```python
import torch

def _softmax(x, axis=-1):
    return torch.softmax(x, dim=axis)
def _gelu(x):
    return torch.nn.functional.gelu(x, approximate="tanh")
def _silu(x):
    return torch.nn.functional.silu(x)
def _sigmoid(x):
    return torch.sigmoid(x)
def _layernorm(x, axis=-1, eps=1e-5):
    m = x.mean(dim=axis, keepdim=True)
    v = x.var(dim=axis, keepdim=True, unbiased=False)
    return (x - m) / torch.sqrt(v + eps)
def _scatter_add(tgt, idx, src, axis=0):
    return tgt.clone().index_add_(axis, idx, src)
def _segment_sum(src, seg, n):
    out = torch.zeros((n,) + src.shape[1:], dtype=src.dtype)
    return out.index_add_(0, seg, src)
def _pad(x, pw):
    flat = tuple(v for pair in reversed(pw) for v in pair)
    return torch.nn.functional.pad(x, flat)

kernel_name = 'sequential_preLN__grouped_kv_mqa__swiglu_ffn__prompt'

def setup_inputs():

    _w = (lambda a: (lambda t: t.to(torch.bfloat16) if t.is_floating_point() else t)(torch.as_tensor(a)))
    def _A_setup():
        B, S, D, H = 1, 2048, 512, 32
        Dh = D // H
        return {
            "x": _w((lambda *s: torch.randn(*s, dtype=torch.bfloat16) * 0.05)(B, S, D)),
            "wq": _w((lambda *s: torch.randn(*s, dtype=torch.bfloat16) * 0.05)(D, H * Dh)),
            "wk": _w((lambda *s: torch.randn(*s, dtype=torch.bfloat16) * 0.05)(D, Dh)),
            "wv": _w((lambda *s: torch.randn(*s, dtype=torch.bfloat16) * 0.05)(D, Dh)),
            "wo": _w((lambda *s: torch.randn(*s, dtype=torch.bfloat16) * 0.05)(H * Dh, D)),
        }
    _A_in = _A_setup()

    def _B_setup():
        B, S, D, F = 1, 2048, 512, 1376
        return {
            "x": _w((lambda *s: torch.randn(*s, dtype=torch.bfloat16) * 0.05)(B, S, D)),
            "w_gate": _w((lambda *s: torch.randn(*s, dtype=torch.bfloat16) * 0.05)(D, F)),
            "w_up": _w((lambda *s: torch.randn(*s, dtype=torch.bfloat16) * 0.05)(D, F)),
            "w_down": _w((lambda *s: torch.randn(*s, dtype=torch.bfloat16) * 0.05)(F, D)),
        }
    _B_in = _B_setup()

    return {
        "A_x": _A_in["x"],
        "A_wq": _A_in["wq"],
        "A_wk": _A_in["wk"],
        "A_wv": _A_in["wv"],
        "A_wo": _A_in["wo"],
        "B_x": _B_in["x"],
        "B_w_gate": _B_in["w_gate"],
        "B_w_up": _B_in["w_up"],
        "B_w_down": _B_in["w_down"],
    }

def reference(A_x, A_wq, A_wk, A_wv, A_wo, B_x, B_w_gate, B_w_up, B_w_down):
    def _A_ref(x, wq, wk, wv, wo):
        B, S, D = x.shape
        H = 32
        Dh = D // H
        q = (lambda x, *d: x.permute(*d))((x @ wq).reshape(B, S, H, Dh), 0, 2, 1, 3)
        k = x @ wk
        v = x @ wv
        scores = torch.einsum("bhqd,bkd->bhqk", q, k) * (Dh ** -0.5)
        p = _softmax(scores, axis=-1)
        o = torch.einsum("bhqk,bkd->bhqd", p, v)
        return (lambda x, *d: x.permute(*d))(o, 0, 2, 1, 3).reshape(B, S, H * Dh) @ wo

    def _B_ref(x, w_gate, w_up, w_down):
        g = _silu(x @ w_gate)
        u = x @ w_up
        return (g * u) @ w_down

    x = A_x
    h = x + _A_ref(_layernorm(x, axis=-1), A_wq, A_wk, A_wv, A_wo)
    h2 = h + _B_ref(_layernorm(h, axis=-1), B_w_gate, B_w_up, B_w_down)
    return h2
```

```python
import sys, re

NAME = "sequential_preLN__grouped_kv_mqa__swiglu_ffn__prompt"

WS_Q = 0x000000
WS_K = 0x200000
WS_V = 0x210000
WS_CS = 0x220000
WS_O = 0x300000
WS_H = 0x500000
WS_ACT = 0x800000
WS_SIZE = 268435456
SRD3 = "0x00020000"
LOG2E = 1.4426950408889634


def f32hex(x):
    import struct
    return "0x%08x" % struct.unpack("<I", struct.pack("<f", x))[0]


class Kern:
    def __init__(s, name, nvgpr, block, grid, lds, accum=None):
        s.name = name
        s.L = []
        s.nvgpr = nvgpr
        s.block = block
        s.grid = grid
        s.lds = lds
        s.accum = accum if accum is not None else nvgpr
        s.nlab = 0

    def __call__(s, txt):
        for t in txt.split("\n"):
            t = t.strip()
            if t:
                m = re.search(r"offset:(\d+)", t)
                if m:
                    lim = 4095 if t.startswith("buffer") else 65535
                    assert int(m.group(1)) <= lim, t
                s.L.append("    " + t)

    def lab(s, l):
        s.L.append(l + ":")

    def newlab(s, p):
        s.nlab += 1
        return "%s_%s%d" % (s.name.replace("_kernel", "")[:8], p, s.nlab)

    def srd(s, reg, preg, size):
        s("s_mov_b32 s%d, s%d" % (reg, preg))
        s("s_and_b32 s%d, s%d, 0xffff" % (reg + 1, preg + 1))
        s("s_mov_b32 s%d, 0x%x" % (reg + 2, size))
        s("s_mov_b32 s%d, %s" % (reg + 3, SRD3))

    def text(s):
        out = []
        out.append(".globl %s" % s.name)
        out.append(".p2align 8")
        out.append(".type %s,@function" % s.name)
        out.append("%s:" % s.name)
        out += s.L
        out.append("    s_endpgm")
        return "\n".join(out)

    def desc(s):
        return "\n".join([
            ".amdhsa_kernel %s" % s.name,
            "  .amdhsa_next_free_vgpr %d" % s.nvgpr,
            "  .amdhsa_next_free_sgpr 102",
            "  .amdhsa_accum_offset %d" % s.accum,
            "  .amdhsa_group_segment_fixed_size 0",
            "  .amdhsa_kernarg_size 96",
            "  .amdhsa_user_sgpr_count 2",
            "  .amdhsa_user_sgpr_kernarg_segment_ptr 1",
            "  .amdhsa_system_sgpr_workgroup_id_x 1",
            ".end_amdhsa_kernel"])


def vr(a, n=1):
    return "v%d" % a if n == 1 else "v[%d:%d]" % (a, a + n - 1)


def sr(a, n=1):
    return "s%d" % a if n == 1 else "s[%d:%d]" % (a, a + n - 1)


def gen_A():
    k = Kern(NAME + "_kernel", 160, 256, 256, 163840)
    end = k.newlab("end")
    k("s_cmp_ge_u32 s2, 256")
    k("s_cbranch_scc1 %s" % end)
    k("s_load_dwordx8 s[24:31], s[0:1], 0")
    k("s_load_dwordx2 s[32:33], s[0:1], 88")
    k("s_load_dwordx4 s[36:39], s[0:1], 48")
    k("v_and_b32 v1, 63, v0")
    k("v_lshrrev_b32 v2, 6, v0")
    k("s_nop 1")
    k("v_readfirstlane_b32 s3, v2")
    k("s_lshr_b32 s48, s2, 3")
    k("s_and_b32 s49, s2, 7")
    k("s_waitcnt lgkmcnt(0)")
    k.srd(4, 24, 2048 * 512 * 2)
    k.srd(8, 26, 512 * 512 * 2)
    k.srd(12, 28, 512 * 16 * 2)
    k.srd(16, 30, 512 * 16 * 2)
    k.srd(20, 32, WS_SIZE)
    k.srd(40, 36, 512 * 1376 * 2)
    k.srd(44, 38, 512 * 1376 * 2)
    k("v_lshrrev_b32 v3, 4, v1")
    k("s_lshl_b32 s50, s3, 2")
    k("v_add_u32 v3, s50, v3")
    k("v_and_b32 v4, 15, v1")
    k("v_xor_b32 v4, v4, v3")
    k("v_lshlrev_b32 v4, 4, v4")
    k("s_lshl_b32 s51, s48, 6")
    k("v_add_u32 v3, s51, v3")
    k("v_lshl_add_u32 v4, v3, 10, v4")
    k("v_lshrrev_b32 v3, 3, v1")
    k("s_lshl_b32 s50, s3, 3")
    k("v_add_u32 v3, s50, v3")
    k("v_and_b32 v5, 7, v1")
    k("v_bfe_u32 v6, v1, 4, 1")
    k("v_lshlrev_b32 v6, 2, v6")
    k("v_xor_b32 v5, v5, v6")
    k("v_lshlrev_b32 v5, 4, v5")
    k("v_lshl_add_u32 v5, v3, 10, v5")
    k("s_lshl_b32 s50, s49, 7")
    k("v_add_u32 v5, s50, v5")
    k("v_lshlrev_b32 v6, 4, v1")
    k("s_lshl_b32 s52, s3, 10")
    k("s_and_b32 s50, s48, 7")
    k("s_cmp_eq_u32 s50, s49")
    k("s_cselect_b32 s53, 1, 0")
    nokv = k.newlab("nokv")
    k("s_cbranch_scc0 %s" % nokv)
    for j in range(4):
        for (srdn, base) in ((12, 131072), (16, 147456)):
            k("s_add_u32 s54, s52, %d" % (j * 4096))
            k("s_add_u32 m0, s54, %d" % base)
            k("s_nop 0")
            k("buffer_load_dwordx4 v6, s[%d:%d], s54 offen lds" % (srdn, srdn + 3))
    k.lab(nokv)
    for c in range(4):
        for j in range(4):
            k("s_add_u32 m0, s52, %d" % (c * 16384 + j * 4096))
            k("s_mov_b32 s54, %d" % (j * 16 * 1024 + c * 256))
            k("buffer_load_dwordx4 v4, s[4:7], s54 offen lds")
        for j in range(4):
            k("s_add_u32 m0, s52, %d" % (65536 + c * 16384 + j * 4096))
            k("s_mov_b32 s54, %d" % ((c * 128 + 32 * j) * 1024))
            k("buffer_load_dwordx4 v5, s[8:11], s54 offen lds")
    noside = k.newlab("noside")
    k("s_cmp_ge_u32 s2, 86")
    k("s_cbranch_scc1 %s" % noside)
    k("s_cmp_lg_u32 s3, 3")
    k("s_cbranch_scc1 %s" % noside)
    k("s_cmp_ge_u32 s2, 43")
    k("s_cselect_b32 s60, s44, s40")
    k("s_cselect_b32 s61, s45, s41")
    k("s_mov_b32 s62, s42")
    k("s_mov_b32 s63, s43")
    k("s_cselect_b32 s55, 43, 0")
    k("s_sub_u32 s55, s2, s55")
    k("v_and_b32 v7, 31, v1")
    k("v_mul_u32_u24 v7, 2752, v7")
    k("v_lshrrev_b32 v8, 5, v1")
    k("v_lshl_add_u32 v7, v8, 4, v7")
    k("s_lshl_b32 s56, s55, 6")
    k("v_add_u32 v7, s56, v7")
    for t in range(16):
        k("s_mov_b32 s56, %d" % (t * 32 * 2752))
        k("buffer_load_dwordx4 %s, v7, s[60:63], s56 offen" % vr(16 + 8 * t, 4))
        k("buffer_load_dwordx4 %s, v7, s[60:63], s56 offen offset:32" % vr(20 + 8 * t, 4))
    k("v_and_b32 v8, 31, v1")
    k("v_lshrrev_b32 v9, 5, v1")
    k("v_lshlrev_b32 v9, 3, v9")
    k("v_sub_u32 v8, v8, v9")
    k("v_subrev_u32 v9, 16, v8")
    for (dv, base) in ((8, 148), (9, 152)):
        for q in range(4):
            k("v_cmp_eq_u32 vcc, %d, v%d" % (2 * q, dv))
            k("v_mov_b32 v10, 0x3f80")
            k("v_cndmask_b32 v11, 0, v10, vcc")
            k("v_cmp_eq_u32 vcc, %d, v%d" % (2 * q + 1, dv))
            k("v_mov_b32 v10, 0x3f800000")
            k("v_cndmask_b32 v%d, v11, v10, vcc" % (base + q))
    k("s_waitcnt vmcnt(0)")
    for t in range(16):
        c = "0" if t == 0 else "v[0+X:15+X]"
        cc = "0" if t == 0 else vr(144 - 144 + 0, 1)
        pass
    ACC = 160
    for t in range(16):
        cs = "0" if t == 0 else vr(ACC, 16)
        k("v_mfma_f32_32x32x16_bf16 %s, %s, %s, %s" % (vr(ACC, 16), vr(16 + 8 * t, 4), vr(148, 4), cs))
        k("v_mfma_f32_32x32x16_bf16 %s, %s, %s, %s" % (vr(ACC, 16), vr(20 + 8 * t, 4), vr(152, 4), vr(ACC, 16)))
    k("s_nop 15")
    k("s_nop 3")
    for step in (8, 4, 2, 1):
        for i in range(step):
            k("v_add_f32 v%d, v%d, v%d" % (ACC + i, ACC + i, ACC + i + step))
    k("v_mov_b32 v%d, v%d" % (ACC + 1, ACC))
    k("s_nop 1")
    k("v_permlane32_swap_b32 v%d, v%d" % (ACC, ACC + 1))
    k("s_nop 1")
    k("v_add_f32 v%d, v%d, v%d" % (ACC, ACC, ACC + 1))
    k("v_lshlrev_b32 v7, 2, v1")
    k("s_lshl_b32 s56, s2, 7")
    k("s_add_u32 s56, s56, 0x%x" % WS_CS)
    k("v_cmp_gt_u32 vcc, 32, v1")
    k("s_and_saveexec_b64 s[58:59], vcc")
    k("buffer_store_dword v%d, v7, s[20:23], s56 offen" % ACC)
    k("s_mov_b64 exec, s[58:59]")
    k.lab(noside)
    k.nvgpr = 176
    k.accum = 176

    k("s_and_b32 s56, s3, 1")
    k("s_lshr_b32 s57, s3, 1")
    k("v_and_b32 v7, 31, v1")
    k("s_lshl_b32 s58, s56, 5")
    k("v_add_u32 v7, s58, v7")
    k("v_lshrrev_b32 v8, 5, v1")
    k("v_and_b32 v9, 15, v7")
    k("v_xor_b32 v9, v9, v8")
    k("v_lshlrev_b32 v9, 4, v9")
    k("v_lshl_add_u32 v9, v7, 8, v9")
    XA = 8 + 8
    for ks in range(8):
        k("v_xor_b32 v%d, %d, v9" % (XA + ks, ks * 32))
    k("v_lshrrev_b32 v7, 5, v1")
    k("v_lshlrev_b32 v7, 3, v7")
    k("v_bfe_u32 v10, v1, 2, 2")
    k("v_add_u32 v7, v7, v10")
    k("v_bfe_u32 v10, v1, 4, 1")
    k("v_lshlrev_b32 v10, 5, v10")
    k("v_and_b32 v11, 3, v1")
    k("v_lshl_add_u32 v10, v11, 3, v10")
    k("s_lshl_b32 s58, s57, 6")
    k("v_add_u32 v10, s58, v10")
    k("v_bfe_u32 v11, v1, 3, 1")
    k("v_lshlrev_b32 v11, 6, v11")
    k("v_xor_b32 v10, v10, v11")
    k("v_lshl_add_u32 v10, v7, 7, v10")
    k("v_add_u32 v10, 0x10000, v10")
    k("v_and_b32 v11, 3, v1")
    k("v_lshlrev_b32 v11, 3, v11")
    k("v_lshl_add_u32 v11, v7, 5, v11")
    k("v_bfe_u32 v12, v1, 4, 1")
    k("v_lshl_add_u32 v11, v12, 14, v11")
    k("v_add_u32 v11, 0x20000, v11")
    ONES = 24
    for i in range(4):
        k("v_mov_b32 v%d, 0x3f803f80" % (ONES + i))
    S1, S2 = 28, 29
    k("v_mov_b32 v%d, 0" % S1)
    k("v_mov_b32 v%d, 0" % S2)
    ACC, CS = 32, 48
    BF, AF = 64, 96
    for c in range(4):
        k("s_waitcnt vmcnt(%d)" % (8 * (3 - c)))
        k("s_barrier")
        for ks in range(8):
            k("ds_read_b128 %s, v%d offset:%d" % (vr(BF + 4 * ks, 4), XA + ks, c * 16384))
            k("ds_read_b64_tr_b16 %s, v10 offset:%d" % (vr(AF + 4 * ks, 2), c * 16384 + ks * 2048))
            k("ds_read_b64_tr_b16 %s, v10 offset:%d" % (vr(AF + 4 * ks + 2, 2), c * 16384 + ks * 2048 + 512))
        for ks in range(8):
            k("s_waitcnt lgkmcnt(%d)" % min(15, 3 * (7 - ks)))
            first = (c == 0 and ks == 0)
            k("v_mfma_f32_32x32x16_bf16 %s, %s, %s, %s" % (vr(ACC, 16), vr(AF + 4 * ks, 4), vr(BF + 4 * ks, 4), "0" if first else vr(ACC, 16)))
            k("v_mfma_f32_32x32x16_bf16 %s, %s, %s, %s" % (vr(CS, 16), vr(AF + 4 * ks, 4), vr(ONES, 4), "0" if first else vr(CS, 16)))
            for q in range(4):
                k("v_dot2c_f32_bf16 v%d, v%d, v%d" % (S1, BF + 4 * ks + q, ONES))
                k("v_dot2c_f32_bf16 v%d, v%d, v%d" % (S2, BF + 4 * ks + q, BF + 4 * ks + q))
    k("s_nop 4")
    k("v_mov_b32 v30, v%d" % S1)
    k("v_mov_b32 v31, v%d" % S2)
    k("s_nop 1")
    k("v_permlane32_swap_b32 v%d, v30" % S1)
    k("v_permlane32_swap_b32 v%d, v31" % S2)
    k("s_nop 1")
    k("v_add_f32 v%d, v%d, v30" % (S1, S1))
    k("v_add_f32 v%d, v%d, v31" % (S2, S2))
    k("v_mul_f32 v%d, %s, v%d" % (S1, f32hex(1.0 / 512), S1))
    k("v_mul_f32 v%d, %s, v%d" % (S2, f32hex(1.0 / 512), S2))
    k("v_fma_f32 v%d, -v%d, v%d, v%d" % (S2, S1, S1, S2))
    k("v_add_f32 v%d, %s, v%d" % (S2, f32hex(1e-5), S2))
    k("v_rsq_f32 v%d, v%d" % (S2, S2))
    k("s_nop 7")
    k("v_mul_f32 v30, %s, v%d" % (f32hex(0.25 * LOG2E), S2))
    k("s_nop 7")
    for r in range(16):
        k("v_fma_f32 v%d, -v%d, v%d, v%d" % (ACC + r, S1, CS + r, ACC + r))
    for r in range(16):
        k("v_mul_f32 v%d, v30, v%d" % (ACC + r, ACC + r))
    for r in range(8):
        k("v_cvt_pk_bf16_f32 v%d, v%d, v%d" % (CS + r, ACC + 2 * r, ACC + 2 * r + 1))
    k("v_and_b32 v7, 31, v1")
    k("s_lshl_b32 s58, s56, 5")
    k("s_add_u32 s58, s58, s51")
    k("v_add_u32 v7, s58, v7")
    k("v_lshrrev_b32 v8, 5, v1")
    k("v_lshlrev_b32 v8, 3, v8")
    k("v_lshl_add_u32 v12, v7, 10, v8")
    k("s_lshl_b32 s59, s49, 7")
    k("s_lshl_b32 s60, s57, 6")
    k("s_add_u32 s59, s59, s60")
    k("s_add_u32 s59, s59, 0x%x" % WS_Q)
    for q in range(4):
        k("buffer_store_dwordx2 %s, v12, s[20:23], s59 offen offset:%d" % (vr(CS + 2 * q, 2), 16 * q))
    k("s_cmp_eq_u32 s53, 0")
    k("s_cbranch_scc1 %s" % end)
    k("s_cmp_lg_u32 s57, 0")
    k("s_cbranch_scc1 %s" % end)
    for c in range(4):
        for ks in range(8):
            k("ds_read_b128 %s, v%d offset:%d" % (vr(BF + 4 * ks, 4), XA + ks, c * 16384))
            k("ds_read_b64_tr_b16 %s, v11 offset:%d" % (vr(AF + 4 * ks, 2), (c * 128 + ks * 16) * 32))
            k("ds_read_b64_tr_b16 %s, v11 offset:%d" % (vr(AF + 4 * ks + 2, 2), (c * 128 + ks * 16 + 4) * 32))
        for ks in range(8):
            k("s_waitcnt lgkmcnt(%d)" % min(15, 3 * (7 - ks)))
            first = (c == 0 and ks == 0)
            k("v_mfma_f32_32x32x16_bf16 %s, %s, %s, %s" % (vr(ACC, 16), vr(AF + 4 * ks, 4), vr(BF + 4 * ks, 4), "0" if first else vr(ACC, 16)))
            k("v_mfma_f32_32x32x16_bf16 %s, %s, %s, %s" % (vr(CS, 16), vr(AF + 4 * ks, 4), vr(ONES, 4), "0" if first else vr(CS, 16)))
    k("s_nop 15")
    k("s_nop 3")
    for r in range(16):
        k("v_fma_f32 v%d, -v%d, v%d, v%d" % (ACC + r, S1, CS + r, ACC + r))
    for r in range(16):
        k("v_mul_f32 v%d, v%d, v%d" % (ACC + r, S2, ACC + r))
    for r in range(8):
        k("v_cvt_pk_bf16_f32 v%d, v%d, v%d" % (CS + r, ACC + 2 * r, ACC + 2 * r + 1))
    k("v_and_b32 v13, 31, v1")
    k("v_lshlrev_b32 v13, 4, v13")
    k("v_lshrrev_b32 v8, 5, v1")
    k("v_lshl_add_u32 v13, v8, 3, v13")
    k("s_lshl_b32 s59, s48, 1")
    k("s_add_u32 s59, s59, s56")
    k("s_lshl_b32 s59, s59, 10")
    k("s_add_u32 s59, s59, 0x%x" % WS_K)
    k("buffer_store_dwordx2 %s, v13, s[20:23], s59 offen" % vr(CS, 2))
    k("buffer_store_dwordx2 %s, v13, s[20:23], s59 offen offset:512" % vr(CS + 2, 2))
    k("v_lshrrev_b32 v13, 4, v7")
    k("v_lshlrev_b32 v13, 9, v13")
    k("v_bfe_u32 v14, v7, 2, 1")
    k("v_lshl_add_u32 v13, v14, 8, v13")
    k("v_bfe_u32 v14, v7, 3, 1")
    k("v_lshl_add_u32 v13, v14, 3, v13")
    k("v_and_b32 v14, 3, v7")
    k("v_lshl_add_u32 v13, v14, 1, v13")
    k("v_lshl_add_u32 v13, v8, 6, v13")
    k("s_mov_b32 s59, 0x%x" % WS_V)
    for r in range(8, 16):
        d = (r & 3) + 8 * ((r >> 2) - 2)
        src = CS + r // 2
        op = "buffer_store_short" if r % 2 == 0 else "buffer_store_short_d16_hi"
        k("%s v%d, v13, s[20:23], s59 offen offset:%d" % (op, src, d * 16))
    k.lab(end)
    return k


def gen_B():
    k = Kern("attn_kernel", 128, 1024, 256, 163840)
    end = k.newlab("end")
    k("s_cmp_ge_u32 s2, 256")
    k("s_cbranch_scc1 %s" % end)
    k("s_load_dwordx2 s[32:33], s[0:1], 88")
    k("v_and_b32 v1, 63, v0")
    k("v_lshrrev_b32 v2, 6, v0")
    k("s_nop 1")
    k("v_readfirstlane_b32 s3, v2")
    k("s_waitcnt lgkmcnt(0)")
    k.srd(20, 32, WS_SIZE)
    k("s_and_b32 s48, s3, 7")
    k("s_lshr_b32 s49, s3, 3")
    k("s_lshl_b32 s50, s2, 3")
    k("s_add_u32 s50, s50, s48")
    QF = 4
    k("v_and_b32 v2, 31, v1")
    k("v_lshlrev_b32 v2, 5, v2")
    k("v_lshrrev_b32 v3, 5, v1")
    k("v_lshl_add_u32 v2, v3, 4, v2")
    k("s_lshl_b32 s51, s50, 10")
    k("s_add_u32 s51, s51, 0x%x" % WS_Q)
    k("buffer_load_dwordx4 %s, v2, s[20:23], s51 offen" % vr(QF, 4))
    k("v_lshlrev_b32 v8, 4, v1")
    k("s_lshl_b32 s52, s3, 10")
    for j in range(8):
        k("s_add_u32 m0, s52, %d" % (j * 16384))
        k("s_add_u32 s53, s52, 0x%x" % (WS_K + j * 16384))
        k("buffer_load_dwordx4 v8, s[20:23], s53 offen lds")
    k("s_lshl_b32 s54, s49, 15")
    k("v_add_u32 v9, s54, v8")
    k("v_and_b32 v10, 15, v1")
    k("v_lshlrev_b32 v10, 4, v10")
    k("v_lshl_add_u32 v10, v3, 8, v10")
    k("v_add_u32 v10, s54, v10")
    k("v_add_u32 v10, 0x10000, v10")
    NEG, SA, SB, O, PK, KF, VF = 16, 32, 48, 64, 80, 88, 100
    M = 11
    for i in range(16):
        k("v_mov_b32 v%d, 0x3f803f80" % (VF + i))
    k("v_mov_b32 v%d, 0xff800000" % M)
    k("s_mov_b32 s56, 0xffff")
    k("s_mov_b32 s57, 0xffff")
    k("s_waitcnt vmcnt(4)")
    k("s_barrier")
    S = [SA, SB]
    NT = 32
    k("ds_read_b128 %s, v9 offset:0" % vr(KF, 4))
    k("ds_read_b128 %s, v9 offset:1024" % vr(KF + 4, 4))
    k("s_waitcnt lgkmcnt(1)")
    k("v_mfma_f32_32x32x16_bf16 %s, %s, %s, 0" % (vr(S[0], 16), vr(KF, 4), vr(QF, 4)))
    for t in range(NT):
        if t + 2 < NT:
            k("ds_read_b128 %s, v9 offset:%d" % (vr(KF + 4 * ((t + 2) % 3), 4), (t + 2) * 1024))
        if t + 1 < NT:
            k("s_waitcnt lgkmcnt(%d)" % (1 if t + 2 < NT else 0))
            k("v_mfma_f32_32x32x16_bf16 %s, %s, %s, 0" % (vr(S[(t + 1) % 2], 16), vr(KF + 4 * ((t + 1) % 3), 4), vr(QF, 4)))
        if t == 0:
            k("s_nop 10")
        else:
            k("s_nop 3")
        s = S[t % 2]
        for i in range(8):
            k("v_max3_f32 v%d, v%d, v%d, v%d" % (M, s + 2 * i, s + 2 * i + 1, M))
    k("v_mov_b32 v12, v%d" % M)
    k("s_nop 1")
    k("v_permlane32_swap_b32 v%d, v12" % M)
    k("s_nop 1")
    k("v_max_f32 v%d, v%d, v12" % (M, M))
    for i in range(16):
        k("v_xor_b32 v%d, 0x80000000, v%d" % (NEG + i, M))
    k("s_waitcnt vmcnt(0)")
    k("s_barrier")

    def rdV(t):
        k("s_mov_b64 exec, s[56:57]")
        k("ds_read_b128 %s, v10 offset:%d" % (vr(VF + 8 * (t % 2), 4), t * 1024))
        k("ds_read_b128 %s, v10 offset:%d" % (vr(VF + 8 * (t % 2) + 4, 4), t * 1024 + 512))
        k("s_mov_b64 exec, -1")
    k("ds_read_b128 %s, v9 offset:0" % vr(KF, 4))
    k("ds_read_b128 %s, v9 offset:1024" % vr(KF + 4, 4))
    rdV(0)
    k("s_waitcnt lgkmcnt(3)")
    k("v_mfma_f32_32x32x16_bf16 %s, %s, %s, %s" % (vr(S[0], 16), vr(KF, 4), vr(QF, 4), vr(NEG, 16)))
    for t in range(NT):
        n_new = 0
        if t + 2 < NT:
            k("ds_read_b128 %s, v9 offset:%d" % (vr(KF + 4 * ((t + 2) % 3), 4), (t + 2) * 1024))
            n_new += 1
        if t + 1 < NT:
            k("s_waitcnt lgkmcnt(%d)" % (2 + n_new))
            k("v_mfma_f32_32x32x16_bf16 %s, %s, %s, %s" % (vr(S[(t + 1) % 2], 16), vr(KF + 4 * ((t + 1) % 3), 4), vr(QF, 4), vr(NEG, 16)))
        if t == 0:
            k("s_nop 10")
        s = S[t % 2]
        for i in range(16):
            k("v_exp_f32 v%d, v%d" % (s + i, s + i))
        for i in range(8):
            k("v_cvt_pk_bf16_f32 v%d, v%d, v%d" % (PK + i, s + 2 * i, s + 2 * i + 1))
        k("s_waitcnt lgkmcnt(%d)" % n_new)
        k("v_mfma_f32_32x32x16_bf16 %s, %s, %s, %s" % (vr(O, 16), vr(VF + 8 * (t % 2), 4), vr(PK, 4), "0" if t == 0 else vr(O, 16)))
        k("v_mfma_f32_32x32x16_bf16 %s, %s, %s, %s" % (vr(O, 16), vr(VF + 8 * (t % 2) + 4, 4), vr(PK + 4, 4), vr(O, 16)))
        if t + 1 < NT:
            rdV(t + 1)
    k("s_mul_i32 s58, s48, 2560")
    k("s_add_u32 s58, s58, 0x20000")
    k("v_lshlrev_b32 v12, 2, v1")
    k("v_add_u32 v12, s58, v12")
    k("s_nop 15")
    w1 = k.newlab("w1")
    k("s_cmp_eq_u32 s49, 0")
    k("s_cbranch_scc1 %s" % w1)
    for i in range(9):
        k("ds_write_b32 v12, v%d offset:%d" % (O + i, i * 256))
    k("ds_write_b32 v12, v%d offset:%d" % (M, 9 * 256))
    k("s_waitcnt lgkmcnt(0)")
    k("s_barrier")
    k("s_branch %s" % end)
    k.lab(w1)
    k("s_barrier")
    for i in range(9):
        k("ds_read_b32 v%d, v12 offset:%d" % (SA + i, i * 256))
    k("ds_read_b32 v%d, v12 offset:%d" % (SA + 9, 9 * 256))
    k("s_waitcnt lgkmcnt(0)")
    m1 = SA + 9
    k("v_max_f32 v13, v%d, v%d" % (M, m1))
    k("v_sub_f32 v14, v%d, v13" % M)
    k("v_sub_f32 v15, v%d, v13" % m1)
    k("v_exp_f32 v14, v14")
    k("v_exp_f32 v15, v15")
    k("s_nop 1")
    for i in range(9):
        k("v_mul_f32 v%d, v14, v%d" % (O + i, O + i))
    for i in range(9):
        k("v_fma_f32 v%d, v15, v%d, v%d" % (O + i, SA + i, O + i))
    k("v_rcp_f32 v13, v%d" % (O + 8))
    k("s_nop 1")
    for i in range(8):
        k("v_mul_f32 v%d, v13, v%d" % (O + i, O + i))
    for i in range(4):
        k("v_cvt_pk_bf16_f32 v%d, v%d, v%d" % (PK + i, O + 2 * i, O + 2 * i + 1))
    k("v_and_b32 v2, 31, v1")
    k("v_lshlrev_b32 v2, 5, v2")
    k("v_lshl_add_u32 v2, v3, 3, v2")
    k("s_lshl_b32 s51, s50, 10")
    k("s_add_u32 s51, s51, 0x%x" % WS_O)
    k("buffer_store_dwordx2 %s, v2, s[20:23], s51 offen" % vr(PK, 2))
    k("buffer_store_dwordx2 %s, v2, s[20:23], s51 offen offset:16" % vr(PK + 2, 2))
    k.lab(end)
    return k


def gen_gemm64(name, x_ws_off, ldx, w_karg, K, resid, outp, S=4):
    lds = S * 32768
    k = Kern(name, 128, 256, 256, lds)
    end = k.newlab("end")
    k("s_cmp_ge_u32 s2, 256")
    k("s_cbranch_scc1 %s" % end)
    k("s_load_dwordx2 s[24:25], s[0:1], %d" % w_karg)
    k("s_load_dwordx2 s[32:33], s[0:1], 88")
    if resid[0] == 'karg':
        k("s_load_dwordx2 s[26:27], s[0:1], %d" % resid[1])
    if outp[0] == 'karg':
        k("s_load_dwordx2 s[28:29], s[0:1], %d" % outp[1])
    k("v_and_b32 v1, 63, v0")
    k("v_lshrrev_b32 v2, 6, v0")
    k("s_nop 1")
    k("v_readfirstlane_b32 s3, v2")
    k("s_lshr_b32 s48, s2, 3")
    k("s_and_b32 s49, s2, 7")
    k("s_waitcnt lgkmcnt(0)")
    k.srd(8, 24, K * 1024)
    k.srd(20, 32, WS_SIZE)
    if resid[0] == 'karg':
        k.srd(12, 26, 2048 * 1024)
        rs, roff = 12, 0
    else:
        rs, roff = 20, resid[1]
    if outp[0] == 'karg':
        k.srd(16, 28, 2048 * 1024)
        os_, ooff = 16, 0
    else:
        os_, ooff = 20, outp[1]
    k("v_lshrrev_b32 v3, 4, v1")
    k("s_lshl_b32 s50, s3, 2")
    k("v_add_u32 v3, s50, v3")
    k("v_and_b32 v4, 15, v1")
    k("v_xor_b32 v4, v4, v3")
    k("v_lshlrev_b32 v4, 4, v4")
    k("s_lshl_b32 s51, s48, 6")
    k("v_add_u32 v3, s51, v3")
    k("v_mul_u32_u24 v3, %d, v3" % ldx)
    k("v_add_u32 v4, v3, v4")
    k("v_lshrrev_b32 v3, 3, v1")
    k("s_lshl_b32 s50, s3, 3")
    k("v_add_u32 v3, s50, v3")
    k("v_and_b32 v5, 7, v1")
    k("v_bfe_u32 v6, v1, 4, 1")
    k("v_lshlrev_b32 v6, 2, v6")
    k("v_xor_b32 v5, v5, v6")
    k("v_lshlrev_b32 v5, 4, v5")
    k("v_lshl_add_u32 v5, v3, 10, v5")
    k("s_lshl_b32 s50, s49, 7")
    k("v_add_u32 v5, s50, v5")
    k("s_lshl_b32 s52, s3, 10")
    chunks = []
    kk = 0
    while kk < K:
        c = min(128, K - kk)
        chunks.append((kk, c))
        kk += c
    NC = len(chunks)

    def issue(c):
        k0, kc = chunks[c]
        st = (c % S) * 32768
        n = 0
        for j in range(4):
            k("s_add_u32 m0, s52, %d" % (st + j * 4096))
            k("s_mov_b32 s54, %d" % (x_ws_off + j * 16 * ldx + k0 * 2))
            k("buffer_load_dwordx4 v4, s[20:23], s54 offen lds")
            n += 1
        for j in range(kc // 32):
            k("s_add_u32 m0, s52, %d" % (st + 16384 + j * 4096))
            k("s_mov_b32 s54, %d" % ((k0 + 32 * j) * 1024))
            k("buffer_load_dwordx4 v5, s[8:11], s54 offen lds")
            n += 1
        return n
    cnt = {}
    for c in range(min(S - 1, NC)):
        cnt[c] = issue(c)
    k("s_and_b32 s56, s3, 1")
    k("s_lshr_b32 s57, s3, 1")
    k("v_and_b32 v7, 31, v1")
    k("s_lshl_b32 s58, s56, 5")
    k("v_add_u32 v7, s58, v7")
    k("v_lshrrev_b32 v8, 5, v1")
    k("v_and_b32 v9, 15, v7")
    k("v_xor_b32 v9, v9, v8")
    k("v_lshlrev_b32 v9, 4, v9")
    k("v_lshl_add_u32 v9, v7, 8, v9")
    XA = 16
    for ks in range(8):
        k("v_xor_b32 v%d, %d, v9" % (XA + ks, ks * 32))
    k("v_lshrrev_b32 v11, 5, v1")
    k("v_lshlrev_b32 v11, 3, v11")
    k("v_bfe_u32 v10, v1, 2, 2")
    k("v_add_u32 v11, v11, v10")
    k("v_bfe_u32 v10, v1, 4, 1")
    k("v_lshlrev_b32 v10, 5, v10")
    k("v_and_b32 v12, 3, v1")
    k("v_lshl_add_u32 v10, v12, 3, v10")
    k("s_lshl_b32 s58, s57, 6")
    k("v_add_u32 v10, s58, v10")
    k("v_bfe_u32 v12, v1, 3, 1")
    k("v_lshlrev_b32 v12, 6, v12")
    k("v_xor_b32 v10, v10, v12")
    k("v_lshl_add_u32 v10, v11, 7, v10")
    k("v_add_u32 v10, 0x4000, v10")
    k("s_lshl_b32 s58, s56, 5")
    k("s_add_u32 s58, s58, s51")
    k("v_and_b32 v13, 31, v1")
    k("v_add_u32 v13, s58, v13")
    k("v_lshlrev_b32 v12, 3, v8")
    k("v_lshl_add_u32 v12, v13, 10, v12")
    k("s_lshl_b32 s59, s49, 7")
    k("s_lshl_b32 s60, s57, 6")
    k("s_add_u32 s59, s59, s60")
    ACC, RES, XC, WC = 32, 48, 24, 14
    BF, AF = 64, 96
    for c in range(NC):
        k0, kc = chunks[c]
        st = (c % S) * 32768
        later = sum(cnt[cc] for cc in range(c + 1, min(c + S - 1, NC)))
        k("s_waitcnt vmcnt(%d)" % later)
        k("s_barrier")
        if c + S - 1 < NC:
            cnt[c + S - 1] = issue(c + S - 1)
        if c == NC - 1:
            k("s_add_u32 s60, s59, 0x%x" % roff)
            for q in range(4):
                k("buffer_load_dwordx2 %s, v12, s[%d:%d], s60 offen offset:%d" % (vr(RES + 2 * q, 2), rs, rs + 3, 16 * q))
        nks = kc // 16
        hi = st >= 65536
        if hi or st + 16384 + 16384 > 65536:
            pass
        for ks in range(nks):
            k("v_add_u32 v%d, %d, v%d" % (XC + ks, st, XA + ks))
        k("v_add_u32 v%d, %d, v10" % (WC, st))
        for ks in range(nks):
            k("ds_read_b128 %s, v%d" % (vr(BF + 4 * ks, 4), XC + ks))
            k("ds_read_b64_tr_b16 %s, v%d offset:%d" % (vr(AF + 4 * ks, 2), WC, ks * 2048))
            k("ds_read_b64_tr_b16 %s, v%d offset:%d" % (vr(AF + 4 * ks + 2, 2), WC, ks * 2048 + 512))
        for ks in range(nks):
            k("s_waitcnt lgkmcnt(%d)" % min(15, 3 * (nks - 1 - ks)))
            first = (c == 0 and ks == 0)
            k("v_mfma_f32_32x32x16_bf16 %s, %s, %s, %s" % (vr(ACC, 16), vr(AF + 4 * ks, 4), vr(BF + 4 * ks, 4), "0" if first else vr(ACC, 16)))
    k("s_waitcnt vmcnt(0)")
    k("s_nop 15")
    for q in range(4):
        for d in range(2):
            r = RES + 2 * q + d
            k("v_lshlrev_b32 v%d, 16, v%d" % (BF, r))
            k("v_and_b32 v%d, 0xffff0000, v%d" % (BF + 1, r))
            k("v_add_f32 v%d, v%d, v%d" % (ACC + 4 * q + 2 * d, ACC + 4 * q + 2 * d, BF))
            k("v_add_f32 v%d, v%d, v%d" % (ACC + 4 * q + 2 * d + 1, ACC + 4 * q + 2 * d + 1, BF + 1))
    for r in range(8):
        k("v_cvt_pk_bf16_f32 v%d, v%d, v%d" % (RES + r, ACC + 2 * r, ACC + 2 * r + 1))
    k("s_add_u32 s60, s59, 0x%x" % ooff)
    for q in range(4):
        k("buffer_store_dwordx2 %s, v12, s[%d:%d], s60 offen offset:%d" % (vr(RES + 2 * q, 2), os_, os_ + 3, 16 * q))
    k.lab(end)
    return k


def gen_C():
    return gen_gemm64("wo_kernel", WS_O, 1024, 32, 512, ('karg', 0), ('ws', WS_H))


def gen_E():
    return gen_gemm64("down_kernel", WS_ACT, 2752, 64, 1376, ('ws', WS_H), ('karg', 72))


def gen_D():
    S = 4
    STG = 40960
    k = Kern("ffn1_kernel", 352, 256, 240, S * STG, accum=256)
    end = k.newlab("end")
    k("s_cmp_ge_u32 s2, 240")
    k("s_cbranch_scc1 %s" % end)
    k("s_load_dwordx4 s[24:27], s[0:1], 48")
    k("s_load_dwordx2 s[32:33], s[0:1], 88")
    k("v_and_b32 v1, 63, v0")
    k("v_lshrrev_b32 v2, 6, v0")
    k("s_nop 1")
    k("v_readfirstlane_b32 s3, v2")
    k("s_mul_i32 s48, s2, 4370")
    k("s_lshr_b32 s48, s48, 16")
    k("s_mul_i32 s49, s48, 15")
    k("s_sub_u32 s49, s2, s49")
    k("s_waitcnt lgkmcnt(0)")
    k.srd(8, 24, 512 * 2752)
    k.srd(12, 26, 512 * 2752)
    k.srd(20, 32, WS_SIZE)
    k("v_lshrrev_b32 v3, 3, v1")
    k("s_lshl_b32 s50, s3, 3")
    k("v_add_u32 v3, s50, v3")
    k("v_lshrrev_b32 v4, 1, v3")
    k("v_and_b32 v4, 7, v4")
    k("v_and_b32 v5, 7, v1")
    k("v_xor_b32 v4, v4, v5")
    k("v_lshlrev_b32 v4, 4, v4")
    k("s_lshl_b32 s51, s48, 7")
    k("v_add_u32 v3, s51, v3")
    k("v_lshl_add_u32 v4, v3, 10, v4")
    k("s_lshl_b32 s50, s3, 6")
    k("s_mul_i32 s52, s49, 192")
    for j in range(3):
        k("v_add_u32 v3, s50, v1")
        k("v_add_u32 v3, %d, v3" % (256 * j))
        k("v_mul_u32_u24 v8, 43691, v3")
        k("v_lshrrev_b32 v8, 19, v8")
        k("v_mul_u32_u24 v9, 12, v8")
        k("v_sub_u32 v9, v3, v9")
        k("v_mul_u32_u24 v8, 2752, v8")
        k("v_lshl_add_u32 v8, v9, 4, v8")
        k("v_add_u32 v%d, s52, v8" % (5 + j))
    k("s_lshl_b32 s52, s3, 10")

    def issue(c):
        st = (c % S) * STG
        for j in range(4):
            k("s_add_u32 m0, s52, %d" % (st + j * 4096))
            k("s_mov_b32 s54, %d" % (WS_H + j * 32 * 1024 + c * 128))
            k("buffer_load_dwordx4 v4, s[20:23], s54 offen lds")
        for (srdn, off) in ((8, 16384), (12, 28672)):
            for j in range(3):
                k("s_add_u32 m0, s52, %d" % (st + off + j * 4096))
                k("s_mov_b32 s54, %d" % (c * 64 * 2752))
                k("buffer_load_dwordx4 v%d, s[%d:%d], s54 offen lds" % (5 + j, srdn, srdn + 3))
    k("v_lshrrev_b32 v8, 5, v1")
    k("v_lshlrev_b32 v9, 4, v8")
    k("s_mul_i32 s55, s49, 384")
    k("s_add_u32 s55, s55, 0x%x" % WS_CS)
    k("s_add_u32 s53, s55, 5504")
    for m in range(2):
        for tl in range(3):
            for q in range(4):
                k("buffer_load_dwordx4 a[%d:%d], v9, s[20:23], s%d offen offset:%d" % (m * 48 + tl * 16 + 4 * q, m * 48 + tl * 16 + 4 * q + 3, 53 if m else 55, tl * 128 + q * 32))
    NC = 8
    for c in range(S - 1):
        issue(c)
    k("v_and_b32 v10, 31, v1")
    k("s_lshl_b32 s58, s3, 5")
    k("v_add_u32 v10, s58, v10")
    k("v_lshrrev_b32 v11, 1, v10")
    k("v_and_b32 v11, 7, v11")
    k("v_xor_b32 v11, v11, v8")
    k("v_lshlrev_b32 v11, 4, v11")
    k("v_lshl_add_u32 v11, v10, 7, v11")
    XA = 16
    for ks in range(4):
        k("v_xor_b32 v%d, %d, v11" % (XA + ks, ks * 32))
    k("v_lshrrev_b32 v12, 5, v1")
    k("v_lshlrev_b32 v12, 3, v12")
    k("v_bfe_u32 v13, v1, 2, 2")
    k("v_add_u32 v12, v12, v13")
    k("v_mul_u32_u24 v12, 192, v12")
    k("v_bfe_u32 v13, v1, 4, 1")
    k("v_lshl_add_u32 v12, v13, 5, v12")
    k("v_and_b32 v13, 3, v1")
    k("v_lshl_add_u32 v12, v13, 3, v12")
    k("v_add_u32 v12, 0x4000, v12")
    ONES = 24
    k("v_mov_b32 v%d, 0x3f803f80" % ONES)
    S1, S2 = 28, 29
    k("v_mov_b32 v%d, 0" % S1)
    k("v_mov_b32 v%d, 0" % S2)
    XC, WC = 20, 14
    ACC = 32
    BF = 128
    AF = 144
    for c in range(NC):
        st = (c % S) * STG
        later = 10 * (min(c + S - 1, NC) - (c + 1))
        k("s_waitcnt vmcnt(%d)" % later)
        k("s_barrier")
        if c + S - 1 < NC:
            issue(c + S - 1)
        for ks in range(4):
            k("v_add_u32 v%d, %d, v%d" % (XC + ks, st, XA + ks))
        k("v_add_u32 v%d, %d, v12" % (WC, st))
        for ks in range(4):
            k("ds_read_b128 %s, v%d" % (vr(BF + 4 * ks, 4), XC + ks))

        def rdA(ks):
            b = AF + 24 * (ks % 2)
            for t in range(6):
                off = (t // 3) * 12288 + ks * 16 * 192 + (t % 3) * 64
                k("ds_read_b64_tr_b16 %s, v%d offset:%d" % (vr(b + 4 * t, 2), WC, off))
                k("ds_read_b64_tr_b16 %s, v%d offset:%d" % (vr(b + 4 * t + 2, 2), WC, off + 768))
        rdA(0)
        for ks in range(4):
            if ks + 1 < 4:
                rdA(ks + 1)
                k("s_waitcnt lgkmcnt(12)")
            else:
                k("s_waitcnt lgkmcnt(0)")
            b = AF + 24 * (ks % 2)
            first = (c == 0 and ks == 0)
            for t in range(6):
                k("v_mfma_f32_32x32x16_bf16 %s, %s, %s, %s" % (vr(ACC + 16 * t, 16), vr(b + 4 * t, 4), vr(BF + 4 * ks, 4), "0" if first else vr(ACC + 16 * t, 16)))
            for q in range(4):
                k("v_dot2c_f32_bf16 v%d, v%d, v%d" % (S1, BF + 4 * ks + q, ONES))
                k("v_dot2c_f32_bf16 v%d, v%d, v%d" % (S2, BF + 4 * ks + q, BF + 4 * ks + q))
    k("s_nop 4")
    k("v_mov_b32 v30, v%d" % S1)
    k("v_mov_b32 v31, v%d" % S2)
    k("s_nop 1")
    k("v_permlane32_swap_b32 v%d, v30" % S1)
    k("v_permlane32_swap_b32 v%d, v31" % S2)
    k("s_nop 1")
    k("v_add_f32 v%d, v%d, v30" % (S1, S1))
    k("v_add_f32 v%d, v%d, v31" % (S2, S2))
    k("v_mul_f32 v%d, %s, v%d" % (S1, f32hex(1.0 / 512), S1))
    k("v_mul_f32 v%d, %s, v%d" % (S2, f32hex(1.0 / 512), S2))
    k("v_fma_f32 v%d, -v%d, v%d, v%d" % (S2, S1, S1, S2))
    k("v_add_f32 v%d, %s, v%d" % (S2, f32hex(1e-5), S2))
    k("v_rsq_f32 v%d, v%d" % (S2, S2))
    k("s_waitcnt vmcnt(0)")
    k("s_nop 15")
    k("s_add_u32 s58, s58, s51")
    k("v_and_b32 v10, 31, v1")
    k("v_add_u32 v10, s58, v10")
    k("v_mul_u32_u24 v10, 2752, v10")
    k("v_lshl_add_u32 v10, v8, 3, v10")
    k("s_mul_i32 s59, s49, 192")
    k("s_add_u32 s59, s59, 0x%x" % WS_ACT)
    T = BF
    for tl in range(3):
        if tl > 0:
            k("s_cmp_eq_u32 s49, 14")
            k("s_cbranch_scc1 %s" % end)
        G, U = ACC + 16 * tl, ACC + 16 * (3 + tl)
        for r in range(16):
            k("v_accvgpr_read_b32 v%d, a%d" % (T + r, tl * 16 + r))
            k("v_accvgpr_read_b32 v%d, a%d" % (T + 16 + r, 48 + tl * 16 + r))
        for r in range(16):
            k("v_fma_f32 v%d, -v%d, v%d, v%d" % (G + r, S1, T + r, G + r))
            k("v_fma_f32 v%d, -v%d, v%d, v%d" % (U + r, S1, T + 16 + r, U + r))
        for r in range(16):
            k("v_mul_f32 v%d, v%d, v%d" % (G + r, S2, G + r))
            k("v_mul_f32 v%d, v%d, v%d" % (U + r, S2, U + r))
        for r in range(16):
            k("v_mul_f32 v%d, %s, v%d" % (T + r, f32hex(-LOG2E), G + r))
        for r in range(16):
            k("v_exp_f32 v%d, v%d" % (T + r, T + r))
        for r in range(16):
            k("v_add_f32 v%d, 1.0, v%d" % (T + r, T + r))
        for r in range(16):
            k("v_rcp_f32 v%d, v%d" % (T + r, T + r))
        for r in range(16):
            k("v_mul_f32 v%d, v%d, v%d" % (G + r, G + r, U + r))
        for r in range(16):
            k("v_mul_f32 v%d, v%d, v%d" % (G + r, G + r, T + r))
        for r in range(8):
            k("v_cvt_pk_bf16_f32 v%d, v%d, v%d" % (T + r, G + 2 * r, G + 2 * r + 1))
        for q in range(4):
            k("buffer_store_dwordx2 %s, v10, s[20:23], s59 offen offset:%d" % (vr(T + 2 * q, 2), tl * 64 + 16 * q))
    k.lab(end)
    return k


def build(kerns):
    head = open("cdna_kernels/%s.s.ref" % NAME).read().split("; @launch")[0]
    out = [head.rstrip("\n")]
    for kk in kerns:
        out.append("; @launch kernel=%s grid=(%d,1,1) block=(%d,1,1) lds=%d" % (kk.name, kk.grid, kk.block, kk.lds))
    out.append('.amdgcn_target "amdgcn-amd-amdhsa--gfx950"')
    out.append(".text")
    for kk in kerns:
        out.append(kk.text())
    out.append('.section .rodata,"a"')
    for kk in kerns:
        out.append(".p2align 6")
        out.append(kk.desc())
    return "\n".join(out) + "\n"


def main():
    which = sys.argv[1] if len(sys.argv) > 1 else "ABCDE"
    gens = {"A": gen_A}
    for nm in "BCDE":
        if "gen_" + nm in globals():
            gens[nm] = globals()["gen_" + nm]
    kerns = [gens[c]() for c in which if c in gens]
    txt = build(kerns)
    open("cdna_kernels/%s.s" % NAME, "w").write(txt)
    print("wrote", len(txt), "bytes;", [kk.name for kk in kerns])


if __name__ == "__main__":
    main()
```

```python
import sys, re

NAME = "sequential_preLN__grouped_kv_mqa__swiglu_ffn__prompt"

WS_Q = 0x000000
WS_K = 0x200000
WS_V = 0x210000
WS_CS = 0x220000
WS_O = 0x300000
WS_H = 0x500000
WS_ACT = 0x800000
WS_SIZE = 268435456
import os
DEBUG_TS = bool(os.environ.get('TS'))
SRD3 = "0x00020000"
LOG2E = 1.4426950408889634


def f32hex(x):
    import struct
    return "0x%08x" % struct.unpack("<I", struct.pack("<f", x))[0]


class Kern:
    def __init__(s, name, nvgpr, block, grid, lds, accum=None):
        s.name = name
        s.L = []
        s.nvgpr = nvgpr
        s.block = block
        s.grid = grid
        s.lds = lds
        s.accum = accum if accum is not None else nvgpr
        s.nlab = 0

    def __call__(s, txt):
        for t in txt.split("\n"):
            t = t.strip()
            if t:
                m = re.search(r"offset:(\d+)", t)
                if m:
                    lim = 4095 if t.startswith("buffer") else 65535
                    assert int(m.group(1)) <= lim, t
                s.L.append("    " + t)

    def lab(s, l):
        s.L.append(l + ":")

    def newlab(s, p):
        s.nlab += 1
        return "%s_%s%d" % (s.name.replace("_kernel", "")[:8], p, s.nlab)

    def srd(s, reg, preg, size):
        s("s_mov_b32 s%d, s%d" % (reg, preg))
        s("s_and_b32 s%d, s%d, 0xffff" % (reg + 1, preg + 1))
        s("s_mov_b32 s%d, 0x%x" % (reg + 2, size))
        s("s_mov_b32 s%d, %s" % (reg + 3, SRD3))

    def ts(s, idx):
        if not DEBUG_TS:
            return
        s("s_memtime s[%d:%d]" % (70 + 2 * idx, 71 + 2 * idx))

    def ts_flush(s, n):
        if not DEBUG_TS:
            return
        lab = s.newlab("nots")
        s("s_waitcnt lgkmcnt(0)")
        s("s_sub_u32 s67, s2, 100")
        s("s_cmp_ge_u32 s67, 4")
        s("s_cbranch_scc1 %s" % lab)
        s("s_cmp_lg_u32 s3, 0")
        s("s_cbranch_scc1 %s" % lab)
        s("s_load_dwordx2 s[96:97], s[0:1], 80")
        s("s_waitcnt lgkmcnt(0)")
        s("s_mov_b32 s98, 256")
        s("s_mov_b32 s99, 0x00020000")
        s("s_lshl_b32 s69, s67, 6")
        s("v_mov_b32 v0, 0")
        for i in range(n):
            s("s_sub_u32 s68, s%d, s70" % (70 + 2 * i))
            s("v_mov_b32 v1, s68")
            s("buffer_store_dword v1, v0, s[96:99], s69 offen offset:%d" % (4 * i))
            s("s_nop 2")
        s.lab(lab)

    def text(s):
        out = []
        out.append(".globl %s" % s.name)
        out.append(".p2align 8")
        out.append(".type %s,@function" % s.name)
        out.append("%s:" % s.name)
        out += s.L
        out.append("    s_endpgm")
        return "\n".join(out)

    def desc(s):
        return "\n".join([
            ".amdhsa_kernel %s" % s.name,
            "  .amdhsa_next_free_vgpr %d" % s.nvgpr,
            "  .amdhsa_next_free_sgpr 102",
            "  .amdhsa_accum_offset %d" % s.accum,
            "  .amdhsa_group_segment_fixed_size 0",
            "  .amdhsa_kernarg_size 96",
            "  .amdhsa_user_sgpr_count 2",
            "  .amdhsa_user_sgpr_kernarg_segment_ptr 1",
            "  .amdhsa_system_sgpr_workgroup_id_x 1",
            ".end_amdhsa_kernel"])


def vr(a, n=1):
    return "v%d" % a if n == 1 else "v[%d:%d]" % (a, a + n - 1)


def sr(a, n=1):
    return "s%d" % a if n == 1 else "s[%d:%d]" % (a, a + n - 1)


def gen_A():
    k = Kern(NAME + "_kernel", 160, 256, 256, 163840)
    end = k.newlab("end")
    k("s_cmp_ge_u32 s2, 256")
    k("s_cbranch_scc1 %s" % end)
    k.ts(0)
    k("s_load_dwordx8 s[24:31], s[0:1], 0")
    k("s_load_dwordx2 s[32:33], s[0:1], 88")
    k("s_load_dwordx4 s[36:39], s[0:1], 48")
    k("v_and_b32 v1, 63, v0")
    k("v_lshrrev_b32 v2, 6, v0")
    k("s_nop 1")
    k("v_readfirstlane_b32 s3, v2")
    k("s_and_b32 s48, s2, 7")
    k("s_lshl_b32 s48, s48, 2")
    k("s_bfe_u32 s49, s2, 0x20003")
    k("s_add_u32 s48, s48, s49")
    k("s_lshr_b32 s49, s2, 5")
    k("s_waitcnt lgkmcnt(0)")
    k.srd(4, 24, 2048 * 512 * 2)
    k.srd(8, 26, 512 * 512 * 2)
    k.srd(12, 28, 512 * 16 * 2)
    k.srd(16, 30, 512 * 16 * 2)
    k.srd(20, 32, WS_SIZE)
    k.srd(40, 36, 512 * 1376 * 2)
    k.srd(44, 38, 512 * 1376 * 2)
    k("v_lshrrev_b32 v3, 4, v1")
    k("s_lshl_b32 s50, s3, 2")
    k("v_add_u32 v3, s50, v3")
    k("v_and_b32 v4, 15, v1")
    k("v_xor_b32 v4, v4, v3")
    k("v_lshlrev_b32 v4, 4, v4")
    k("s_lshl_b32 s51, s48, 6")
    k("v_add_u32 v3, s51, v3")
    k("v_lshl_add_u32 v4, v3, 10, v4")
    k("v_lshrrev_b32 v3, 3, v1")
    k("s_lshl_b32 s50, s3, 3")
    k("v_add_u32 v3, s50, v3")
    k("v_and_b32 v5, 7, v1")
    k("v_bfe_u32 v6, v1, 4, 1")
    k("v_lshlrev_b32 v6, 2, v6")
    k("v_xor_b32 v5, v5, v6")
    k("v_lshlrev_b32 v5, 4, v5")
    k("v_lshl_add_u32 v5, v3, 10, v5")
    k("s_lshl_b32 s50, s49, 7")
    k("v_add_u32 v5, s50, v5")
    k("v_lshlrev_b32 v6, 4, v1")
    k("s_lshl_b32 s52, s3, 10")
    k("s_and_b32 s50, s48, 7")
    k("s_cmp_eq_u32 s50, s49")
    k("s_cselect_b32 s53, 1, 0")
    nokv = k.newlab("nokv")
    k("s_cbranch_scc0 %s" % nokv)
    for j in range(4):
        for (srdn, base) in ((12, 131072), (16, 147456)):
            k("s_add_u32 s54, s52, %d" % (j * 4096))
            k("s_add_u32 m0, s54, %d" % base)
            k("s_nop 0")
            k("buffer_load_dwordx4 v6, s[%d:%d], s54 offen lds" % (srdn, srdn + 3))
    k.lab(nokv)
    for c in range(4):
        for j in range(4):
            k("s_add_u32 m0, s52, %d" % (c * 16384 + j * 4096))
            k("s_mov_b32 s54, %d" % (j * 16 * 1024 + c * 256))
            k("buffer_load_dwordx4 v4, s[4:7], s54 offen lds")
        for j in range(4):
            k("s_add_u32 m0, s52, %d" % (65536 + c * 16384 + j * 4096))
            k("s_mov_b32 s54, %d" % ((c * 128 + 32 * j) * 1024))
            k("buffer_load_dwordx4 v5, s[8:11], s54 offen lds")
    k.ts(1)
    noside = k.newlab("noside")
    k("s_cmp_ge_u32 s2, 86")
    k("s_cbranch_scc1 %s" % noside)
    k("s_cmp_lg_u32 s3, 3")
    k("s_cbranch_scc1 %s" % noside)
    k("s_cmp_ge_u32 s2, 43")
    k("s_cselect_b32 s60, s44, s40")
    k("s_cselect_b32 s61, s45, s41")
    k("s_mov_b32 s62, s42")
    k("s_mov_b32 s63, s43")
    k("s_cselect_b32 s55, 43, 0")
    k("s_sub_u32 s55, s2, s55")
    k("v_and_b32 v7, 31, v1")
    k("v_mul_u32_u24 v7, 2752, v7")
    k("v_lshrrev_b32 v8, 5, v1")
    k("v_lshl_add_u32 v7, v8, 4, v7")
    k("s_lshl_b32 s56, s55, 6")
    k("v_add_u32 v7, s56, v7")
    for t in range(16):
        k("s_mov_b32 s56, %d" % (t * 32 * 2752))
        k("buffer_load_dwordx4 %s, v7, s[60:63], s56 offen" % vr(16 + 8 * t, 4))
        k("buffer_load_dwordx4 %s, v7, s[60:63], s56 offen offset:32" % vr(20 + 8 * t, 4))
    k("v_and_b32 v8, 31, v1")
    k("v_lshrrev_b32 v9, 5, v1")
    k("v_lshlrev_b32 v9, 3, v9")
    k("v_sub_u32 v8, v8, v9")
    k("v_subrev_u32 v9, 16, v8")
    for (dv, base) in ((8, 148), (9, 152)):
        for q in range(4):
            k("v_cmp_eq_u32 vcc, %d, v%d" % (2 * q, dv))
            k("v_mov_b32 v10, 0x3f80")
            k("v_cndmask_b32 v11, 0, v10, vcc")
            k("v_cmp_eq_u32 vcc, %d, v%d" % (2 * q + 1, dv))
            k("v_mov_b32 v10, 0x3f800000")
            k("v_cndmask_b32 v%d, v11, v10, vcc" % (base + q))
    k("s_waitcnt vmcnt(0)")
    for t in range(16):
        c = "0" if t == 0 else "v[0+X:15+X]"
        cc = "0" if t == 0 else vr(144 - 144 + 0, 1)
        pass
    ACC = 160
    for t in range(16):
        cs = "0" if t == 0 else vr(ACC, 16)
        k("v_mfma_f32_32x32x16_bf16 %s, %s, %s, %s" % (vr(ACC, 16), vr(16 + 8 * t, 4), vr(148, 4), cs))
        k("v_mfma_f32_32x32x16_bf16 %s, %s, %s, %s" % (vr(ACC, 16), vr(20 + 8 * t, 4), vr(152, 4), vr(ACC, 16)))
    k("s_nop 15")
    k("s_nop 3")
    for step in (8, 4, 2, 1):
        for i in range(step):
            k("v_add_f32 v%d, v%d, v%d" % (ACC + i, ACC + i, ACC + i + step))
    k("v_mov_b32 v%d, v%d" % (ACC + 1, ACC))
    k("s_nop 1")
    k("v_permlane32_swap_b32 v%d, v%d" % (ACC, ACC + 1))
    k("s_nop 1")
    k("v_add_f32 v%d, v%d, v%d" % (ACC, ACC, ACC + 1))
    k("v_lshlrev_b32 v7, 2, v1")
    k("s_lshl_b32 s56, s2, 7")
    k("s_add_u32 s56, s56, 0x%x" % WS_CS)
    k("v_cmp_gt_u32 vcc, 32, v1")
    k("s_and_saveexec_b64 s[58:59], vcc")
    k("buffer_store_dword v%d, v7, s[20:23], s56 offen" % ACC)
    k("s_mov_b64 exec, s[58:59]")
    k.lab(noside)
    k.nvgpr = 176
    k.accum = 176

    k("s_and_b32 s56, s3, 1")
    k("s_lshr_b32 s57, s3, 1")
    k("v_and_b32 v7, 31, v1")
    k("s_lshl_b32 s58, s56, 5")
    k("v_add_u32 v7, s58, v7")
    k("v_lshrrev_b32 v8, 5, v1")
    k("v_and_b32 v9, 15, v7")
    k("v_xor_b32 v9, v9, v8")
    k("v_lshlrev_b32 v9, 4, v9")
    k("v_lshl_add_u32 v9, v7, 8, v9")
    XA = 8 + 8
    for ks in range(8):
        k("v_xor_b32 v%d, %d, v9" % (XA + ks, ks * 32))
    k("v_lshrrev_b32 v7, 5, v1")
    k("v_lshlrev_b32 v7, 3, v7")
    k("v_bfe_u32 v10, v1, 2, 2")
    k("v_add_u32 v7, v7, v10")
    k("v_bfe_u32 v10, v1, 4, 1")
    k("v_lshlrev_b32 v10, 5, v10")
    k("v_and_b32 v11, 3, v1")
    k("v_lshl_add_u32 v10, v11, 3, v10")
    k("s_lshl_b32 s58, s57, 6")
    k("v_add_u32 v10, s58, v10")
    k("v_bfe_u32 v11, v1, 3, 1")
    k("v_lshlrev_b32 v11, 6, v11")
    k("v_xor_b32 v10, v10, v11")
    k("v_lshl_add_u32 v10, v7, 7, v10")
    k("v_add_u32 v10, 0x10000, v10")
    k("v_and_b32 v11, 3, v1")
    k("v_lshlrev_b32 v11, 3, v11")
    k("v_lshl_add_u32 v11, v7, 5, v11")
    k("v_bfe_u32 v12, v1, 4, 1")
    k("v_lshl_add_u32 v11, v12, 14, v11")
    k("v_add_u32 v11, 0x20000, v11")
    ONES = 24
    for i in range(4):
        k("v_mov_b32 v%d, 0x3f803f80" % (ONES + i))
    S1, S2 = 28, 29
    k("v_mov_b32 v%d, 0" % S1)
    k("v_mov_b32 v%d, 0" % S2)
    ACC, CS = 32, 48
    BF, AF = 64, 96
    for c in range(4):
        k("s_waitcnt vmcnt(%d)" % (8 * (3 - c)))
        k("s_barrier")
        k.ts(2 + c)
        for ks in range(8):
            k("ds_read_b128 %s, v%d offset:%d" % (vr(BF + 4 * ks, 4), XA + ks, c * 16384))
            k("ds_read_b64_tr_b16 %s, v10 offset:%d" % (vr(AF + 4 * ks, 2), c * 16384 + ks * 2048))
            k("ds_read_b64_tr_b16 %s, v10 offset:%d" % (vr(AF + 4 * ks + 2, 2), c * 16384 + ks * 2048 + 512))
        for ks in range(8):
            k("s_waitcnt lgkmcnt(%d)" % min(15, 3 * (7 - ks)))
            first = (c == 0 and ks == 0)
            k("v_mfma_f32_32x32x16_bf16 %s, %s, %s, %s" % (vr(ACC, 16), vr(AF + 4 * ks, 4), vr(BF + 4 * ks, 4), "0" if first else vr(ACC, 16)))
            k("v_mfma_f32_32x32x16_bf16 %s, %s, %s, %s" % (vr(CS, 16), vr(AF + 4 * ks, 4), vr(ONES, 4), "0" if first else vr(CS, 16)))
            for q in range(4):
                k("v_dot2c_f32_bf16 v%d, v%d, v%d" % (S1, BF + 4 * ks + q, ONES))
                k("v_dot2c_f32_bf16 v%d, v%d, v%d" % (S2, BF + 4 * ks + q, BF + 4 * ks + q))
    k.ts(6)
    k("s_nop 4")
    k("v_mov_b32 v30, v%d" % S1)
    k("v_mov_b32 v31, v%d" % S2)
    k("s_nop 1")
    k("v_permlane32_swap_b32 v%d, v30" % S1)
    k("v_permlane32_swap_b32 v%d, v31" % S2)
    k("s_nop 1")
    k("v_add_f32 v%d, v%d, v30" % (S1, S1))
    k("v_add_f32 v%d, v%d, v31" % (S2, S2))
    k("v_mul_f32 v%d, %s, v%d" % (S1, f32hex(1.0 / 512), S1))
    k("v_mul_f32 v%d, %s, v%d" % (S2, f32hex(1.0 / 512), S2))
    k("v_fma_f32 v%d, -v%d, v%d, v%d" % (S2, S1, S1, S2))
    k("v_add_f32 v%d, %s, v%d" % (S2, f32hex(1e-5), S2))
    k("v_rsq_f32 v%d, v%d" % (S2, S2))
    k("s_nop 7")
    k("v_mul_f32 v30, %s, v%d" % (f32hex(0.25 * LOG2E), S2))
    k("s_nop 7")
    for r in range(16):
        k("v_fma_f32 v%d, -v%d, v%d, v%d" % (ACC + r, S1, CS + r, ACC + r))
    for r in range(16):
        k("v_mul_f32 v%d, v30, v%d" % (ACC + r, ACC + r))
    for r in range(8):
        k("v_cvt_pk_bf16_f32 v%d, v%d, v%d" % (CS + r, ACC + 2 * r, ACC + 2 * r + 1))
    k("v_and_b32 v7, 31, v1")
    k("s_lshl_b32 s58, s56, 5")
    k("s_add_u32 s58, s58, s51")
    k("v_add_u32 v7, s58, v7")
    k("v_lshrrev_b32 v8, 5, v1")
    k("v_lshlrev_b32 v8, 3, v8")
    k("v_lshl_add_u32 v12, v7, 10, v8")
    k("s_lshl_b32 s59, s49, 7")
    k("s_lshl_b32 s60, s57, 6")
    k("s_add_u32 s59, s59, s60")
    k("s_add_u32 s59, s59, 0x%x" % WS_Q)
    for q in range(4):
        k("buffer_store_dwordx2 %s, v12, s[20:23], s59 offen offset:%d" % (vr(CS + 2 * q, 2), 16 * q))
    k.ts(7)
    k.ts_flush(8)
    k("s_cmp_eq_u32 s53, 0")
    k("s_cbranch_scc1 %s" % end)
    k("s_cmp_lg_u32 s57, 0")
    k("s_cbranch_scc1 %s" % end)
    for c in range(4):
        for ks in range(8):
            k("ds_read_b128 %s, v%d offset:%d" % (vr(BF + 4 * ks, 4), XA + ks, c * 16384))
            k("ds_read_b64_tr_b16 %s, v11 offset:%d" % (vr(AF + 4 * ks, 2), (c * 128 + ks * 16) * 32))
            k("ds_read_b64_tr_b16 %s, v11 offset:%d" % (vr(AF + 4 * ks + 2, 2), (c * 128 + ks * 16 + 4) * 32))
        for ks in range(8):
            k("s_waitcnt lgkmcnt(%d)" % min(15, 3 * (7 - ks)))
            first = (c == 0 and ks == 0)
            k("v_mfma_f32_32x32x16_bf16 %s, %s, %s, %s" % (vr(ACC, 16), vr(AF + 4 * ks, 4), vr(BF + 4 * ks, 4), "0" if first else vr(ACC, 16)))
            k("v_mfma_f32_32x32x16_bf16 %s, %s, %s, %s" % (vr(CS, 16), vr(AF + 4 * ks, 4), vr(ONES, 4), "0" if first else vr(CS, 16)))
    k("s_nop 15")
    k("s_nop 3")
    for r in range(16):
        k("v_fma_f32 v%d, -v%d, v%d, v%d" % (ACC + r, S1, CS + r, ACC + r))
    for r in range(16):
        k("v_mul_f32 v%d, v%d, v%d" % (ACC + r, S2, ACC + r))
    for r in range(8):
        k("v_cvt_pk_bf16_f32 v%d, v%d, v%d" % (CS + r, ACC + 2 * r, ACC + 2 * r + 1))
    k("v_and_b32 v13, 31, v1")
    k("v_lshlrev_b32 v13, 4, v13")
    k("v_lshrrev_b32 v8, 5, v1")
    k("v_lshl_add_u32 v13, v8, 3, v13")
    k("s_lshl_b32 s59, s48, 1")
    k("s_add_u32 s59, s59, s56")
    k("s_lshl_b32 s59, s59, 10")
    k("s_add_u32 s59, s59, 0x%x" % WS_K)
    k("buffer_store_dwordx2 %s, v13, s[20:23], s59 offen" % vr(CS, 2))
    k("buffer_store_dwordx2 %s, v13, s[20:23], s59 offen offset:512" % vr(CS + 2, 2))
    k("v_lshrrev_b32 v13, 4, v7")
    k("v_lshlrev_b32 v13, 9, v13")
    k("v_bfe_u32 v14, v7, 2, 1")
    k("v_lshl_add_u32 v13, v14, 8, v13")
    k("v_bfe_u32 v14, v7, 3, 1")
    k("v_lshl_add_u32 v13, v14, 3, v13")
    k("v_and_b32 v14, 3, v7")
    k("v_lshl_add_u32 v13, v14, 1, v13")
    k("v_lshl_add_u32 v13, v8, 6, v13")
    k("s_mov_b32 s59, 0x%x" % WS_V)
    for r in range(8, 16):
        d = (r & 3) + 8 * ((r >> 2) - 2)
        src = CS + r // 2
        op = "buffer_store_short" if r % 2 == 0 else "buffer_store_short_d16_hi"
        k("%s v%d, v13, s[20:23], s59 offen offset:%d" % (op, src, d * 16))
    k.lab(end)
    return k


def gen_B():
    k = Kern("attn_kernel", 128, 1024, 256, 163840)
    end = k.newlab("end")
    k("s_cmp_ge_u32 s2, 256")
    k("s_cbranch_scc1 %s" % end)
    k.ts(0)
    k("s_load_dwordx2 s[32:33], s[0:1], 88")
    k("v_and_b32 v1, 63, v0")
    k("v_lshrrev_b32 v2, 6, v0")
    k("s_nop 1")
    k("v_readfirstlane_b32 s3, v2")
    k("s_waitcnt lgkmcnt(0)")
    k.srd(20, 32, WS_SIZE)
    k("s_and_b32 s48, s3, 7")
    k("s_lshr_b32 s49, s3, 3")
    k("s_lshl_b32 s50, s2, 3")
    k("s_add_u32 s50, s50, s48")
    QF = 4
    k("v_and_b32 v2, 31, v1")
    k("v_lshlrev_b32 v2, 5, v2")
    k("v_lshrrev_b32 v3, 5, v1")
    k("v_lshl_add_u32 v2, v3, 4, v2")
    k("s_lshl_b32 s51, s50, 10")
    k("s_add_u32 s51, s51, 0x%x" % WS_Q)
    k("buffer_load_dwordx4 %s, v2, s[20:23], s51 offen" % vr(QF, 4))
    k("v_lshlrev_b32 v8, 4, v1")
    k("s_lshl_b32 s52, s3, 10")
    for j in range(8):
        k("s_add_u32 m0, s52, %d" % (j * 16384))
        k("s_add_u32 s53, s52, 0x%x" % (WS_K + j * 16384))
        k("buffer_load_dwordx4 v8, s[20:23], s53 offen lds")
    k("s_lshl_b32 s54, s49, 15")
    k("v_add_u32 v9, s54, v8")
    k("v_and_b32 v10, 15, v1")
    k("v_lshlrev_b32 v10, 4, v10")
    k("v_lshl_add_u32 v10, v3, 8, v10")
    k("v_add_u32 v10, s54, v10")
    k("v_add_u32 v10, 0x10000, v10")
    NEG, SA, SB, O, PK, KF, VF = 16, 32, 48, 64, 80, 88, 100
    M = 11
    for i in range(16):
        k("v_mov_b32 v%d, 0x3f803f80" % (VF + i))
    k("v_mov_b32 v%d, 0xff800000" % M)
    k("s_mov_b32 s56, 0xffff")
    k("s_mov_b32 s57, 0xffff")
    k("s_waitcnt vmcnt(4)")
    k.ts(1)
    k("s_barrier")
    k.ts(2)
    S = [SA, SB]
    NT = 32
    k("ds_read_b128 %s, v9 offset:0" % vr(KF, 4))
    k("ds_read_b128 %s, v9 offset:1024" % vr(KF + 4, 4))
    k("s_waitcnt lgkmcnt(1)")
    k("v_mfma_f32_32x32x16_bf16 %s, %s, %s, 0" % (vr(S[0], 16), vr(KF, 4), vr(QF, 4)))
    for t in range(NT):
        if t + 2 < NT:
            k("ds_read_b128 %s, v9 offset:%d" % (vr(KF + 4 * ((t + 2) % 3), 4), (t + 2) * 1024))
        if t + 1 < NT:
            k("s_waitcnt lgkmcnt(%d)" % (1 if t + 2 < NT else 0))
            k("v_mfma_f32_32x32x16_bf16 %s, %s, %s, 0" % (vr(S[(t + 1) % 2], 16), vr(KF + 4 * ((t + 1) % 3), 4), vr(QF, 4)))
        if t == 0:
            k("s_nop 10")
        else:
            k("s_nop 3")
        s = S[t % 2]
        for i in range(8):
            k("v_max3_f32 v%d, v%d, v%d, v%d" % (M, s + 2 * i, s + 2 * i + 1, M))
    k("v_mov_b32 v12, v%d" % M)
    k("s_nop 1")
    k("v_permlane32_swap_b32 v%d, v12" % M)
    k("s_nop 1")
    k("v_max_f32 v%d, v%d, v12" % (M, M))
    for i in range(16):
        k("v_xor_b32 v%d, 0x80000000, v%d" % (NEG + i, M))
    k.ts(3)
    k("s_waitcnt vmcnt(0)")
    k("s_barrier")
    k.ts(4)

    def rdV(t):
        k("s_mov_b64 exec, s[56:57]")
        k("ds_read_b128 %s, v10 offset:%d" % (vr(VF + 8 * (t % 2), 4), t * 1024))
        k("ds_read_b128 %s, v10 offset:%d" % (vr(VF + 8 * (t % 2) + 4, 4), t * 1024 + 512))
        k("s_mov_b64 exec, -1")
    k("ds_read_b128 %s, v9 offset:0" % vr(KF, 4))
    k("ds_read_b128 %s, v9 offset:1024" % vr(KF + 4, 4))
    rdV(0)
    k("s_waitcnt lgkmcnt(3)")
    k("v_mfma_f32_32x32x16_bf16 %s, %s, %s, %s" % (vr(S[0], 16), vr(KF, 4), vr(QF, 4), vr(NEG, 16)))
    for t in range(NT):
        n_new = 0
        if t + 2 < NT:
            k("ds_read_b128 %s, v9 offset:%d" % (vr(KF + 4 * ((t + 2) % 3), 4), (t + 2) * 1024))
            n_new += 1
        if t + 1 < NT:
            k("s_waitcnt lgkmcnt(%d)" % (2 + n_new))
            k("v_mfma_f32_32x32x16_bf16 %s, %s, %s, %s" % (vr(S[(t + 1) % 2], 16), vr(KF + 4 * ((t + 1) % 3), 4), vr(QF, 4), vr(NEG, 16)))
        if t == 0:
            k("s_nop 10")
        s = S[t % 2]
        for i in range(16):
            k("v_exp_f32 v%d, v%d" % (s + i, s + i))
        for i in range(8):
            k("v_cvt_pk_bf16_f32 v%d, v%d, v%d" % (PK + i, s + 2 * i, s + 2 * i + 1))
        k("s_waitcnt lgkmcnt(%d)" % n_new)
        k("v_mfma_f32_32x32x16_bf16 %s, %s, %s, %s" % (vr(O, 16), vr(VF + 8 * (t % 2), 4), vr(PK, 4), "0" if t == 0 else vr(O, 16)))
        k("v_mfma_f32_32x32x16_bf16 %s, %s, %s, %s" % (vr(O, 16), vr(VF + 8 * (t % 2) + 4, 4), vr(PK + 4, 4), vr(O, 16)))
        if t + 1 < NT:
            rdV(t + 1)
    k.ts(5)
    k("s_mul_i32 s58, s48, 2560")
    k("s_add_u32 s58, s58, 0x20000")
    k("v_lshlrev_b32 v12, 2, v1")
    k("v_add_u32 v12, s58, v12")
    k("s_nop 15")
    w1 = k.newlab("w1")
    k("s_cmp_eq_u32 s49, 0")
    k("s_cbranch_scc1 %s" % w1)
    for i in range(9):
        k("ds_write_b32 v12, v%d offset:%d" % (O + i, i * 256))
    k("ds_write_b32 v12, v%d offset:%d" % (M, 9 * 256))
    k("s_waitcnt lgkmcnt(0)")
    k("s_barrier")
    k("s_branch %s" % end)
    k.lab(w1)
    k("s_barrier")
    for i in range(9):
        k("ds_read_b32 v%d, v12 offset:%d" % (SA + i, i * 256))
    k("ds_read_b32 v%d, v12 offset:%d" % (SA + 9, 9 * 256))
    k("s_waitcnt lgkmcnt(0)")
    m1 = SA + 9
    k("v_max_f32 v13, v%d, v%d" % (M, m1))
    k("v_sub_f32 v14, v%d, v13" % M)
    k("v_sub_f32 v15, v%d, v13" % m1)
    k("v_exp_f32 v14, v14")
    k("v_exp_f32 v15, v15")
    k("s_nop 1")
    for i in range(9):
        k("v_mul_f32 v%d, v14, v%d" % (O + i, O + i))
    for i in range(9):
        k("v_fma_f32 v%d, v15, v%d, v%d" % (O + i, SA + i, O + i))
    k("v_rcp_f32 v13, v%d" % (O + 8))
    k("s_nop 1")
    for i in range(8):
        k("v_mul_f32 v%d, v13, v%d" % (O + i, O + i))
    for i in range(4):
        k("v_cvt_pk_bf16_f32 v%d, v%d, v%d" % (PK + i, O + 2 * i, O + 2 * i + 1))
    k("v_and_b32 v2, 31, v1")
    k("v_lshlrev_b32 v2, 5, v2")
    k("v_lshl_add_u32 v2, v3, 3, v2")
    k("s_lshl_b32 s51, s50, 10")
    k("s_add_u32 s51, s51, 0x%x" % WS_O)
    k("buffer_store_dwordx2 %s, v2, s[20:23], s51 offen" % vr(PK, 2))
    k("buffer_store_dwordx2 %s, v2, s[20:23], s51 offen offset:16" % vr(PK + 2, 2))
    k.ts(6)
    k.ts_flush(7)
    k.lab(end)
    return k


def gen_gemm64(name, x_ws_off, ldx, w_karg, K, resid, outp, S=4):
    lds = S * 32768
    k = Kern(name, 128, 256, 256, lds)
    end = k.newlab("end")
    k("s_cmp_ge_u32 s2, 256")
    k("s_cbranch_scc1 %s" % end)
    k.ts(0)
    k("s_load_dwordx2 s[24:25], s[0:1], %d" % w_karg)
    k("s_load_dwordx2 s[32:33], s[0:1], 88")
    if resid[0] == 'karg':
        k("s_load_dwordx2 s[26:27], s[0:1], %d" % resid[1])
    if outp[0] == 'karg':
        k("s_load_dwordx2 s[28:29], s[0:1], %d" % outp[1])
    k("v_and_b32 v1, 63, v0")
    k("v_lshrrev_b32 v2, 6, v0")
    k("s_nop 1")
    k("v_readfirstlane_b32 s3, v2")
    k("s_and_b32 s48, s2, 7")
    k("s_lshl_b32 s48, s48, 2")
    k("s_bfe_u32 s49, s2, 0x20003")
    k("s_add_u32 s48, s48, s49")
    k("s_lshr_b32 s49, s2, 5")
    k("s_waitcnt lgkmcnt(0)")
    k.srd(8, 24, K * 1024)
    k.srd(20, 32, WS_SIZE)
    if resid[0] == 'karg':
        k.srd(12, 26, 2048 * 1024)
        rs, roff = 12, 0
    else:
        rs, roff = 20, resid[1]
    if outp[0] == 'karg':
        k.srd(16, 28, 2048 * 1024)
        os_, ooff = 16, 0
    else:
        os_, ooff = 20, outp[1]
    k("v_lshrrev_b32 v3, 4, v1")
    k("s_lshl_b32 s50, s3, 2")
    k("v_add_u32 v3, s50, v3")
    k("v_and_b32 v4, 15, v1")
    k("v_xor_b32 v4, v4, v3")
    k("v_lshlrev_b32 v4, 4, v4")
    k("s_lshl_b32 s51, s48, 6")
    k("v_add_u32 v3, s51, v3")
    k("v_mul_u32_u24 v3, %d, v3" % ldx)
    k("v_add_u32 v4, v3, v4")
    k("v_lshrrev_b32 v3, 3, v1")
    k("s_lshl_b32 s50, s3, 3")
    k("v_add_u32 v3, s50, v3")
    k("v_and_b32 v5, 7, v1")
    k("v_bfe_u32 v6, v1, 4, 1")
    k("v_lshlrev_b32 v6, 2, v6")
    k("v_xor_b32 v5, v5, v6")
    k("v_lshlrev_b32 v5, 4, v5")
    k("v_lshl_add_u32 v5, v3, 10, v5")
    k("s_lshl_b32 s50, s49, 7")
    k("v_add_u32 v5, s50, v5")
    k("s_lshl_b32 s52, s3, 10")
    chunks = []
    kk = 0
    while kk < K:
        c = min(128, K - kk)
        chunks.append((kk, c))
        kk += c
    NC = len(chunks)

    def issue(c):
        k0, kc = chunks[c]
        st = (c % S) * 32768
        n = 0
        for j in range(4):
            k("s_add_u32 m0, s52, %d" % (st + j * 4096))
            k("s_mov_b32 s54, %d" % (x_ws_off + j * 16 * ldx + k0 * 2))
            k("buffer_load_dwordx4 v4, s[20:23], s54 offen lds")
            n += 1
        for j in range(kc // 32):
            k("s_add_u32 m0, s52, %d" % (st + 16384 + j * 4096))
            k("s_mov_b32 s54, %d" % ((k0 + 32 * j) * 1024))
            k("buffer_load_dwordx4 v5, s[8:11], s54 offen lds")
            n += 1
        return n
    cnt = {}
    for c in range(min(S - 1, NC)):
        cnt[c] = issue(c)
    k("s_and_b32 s56, s3, 1")
    k("s_lshr_b32 s57, s3, 1")
    k("v_and_b32 v7, 31, v1")
    k("s_lshl_b32 s58, s56, 5")
    k("v_add_u32 v7, s58, v7")
    k("v_lshrrev_b32 v8, 5, v1")
    k("v_and_b32 v9, 15, v7")
    k("v_xor_b32 v9, v9, v8")
    k("v_lshlrev_b32 v9, 4, v9")
    k("v_lshl_add_u32 v9, v7, 8, v9")
    XA = 16
    for ks in range(8):
        k("v_xor_b32 v%d, %d, v9" % (XA + ks, ks * 32))
    k("v_lshrrev_b32 v11, 5, v1")
    k("v_lshlrev_b32 v11, 3, v11")
    k("v_bfe_u32 v10, v1, 2, 2")
    k("v_add_u32 v11, v11, v10")
    k("v_bfe_u32 v10, v1, 4, 1")
    k("v_lshlrev_b32 v10, 5, v10")
    k("v_and_b32 v12, 3, v1")
    k("v_lshl_add_u32 v10, v12, 3, v10")
    k("s_lshl_b32 s58, s57, 6")
    k("v_add_u32 v10, s58, v10")
    k("v_bfe_u32 v12, v1, 3, 1")
    k("v_lshlrev_b32 v12, 6, v12")
    k("v_xor_b32 v10, v10, v12")
    k("v_lshl_add_u32 v10, v11, 7, v10")
    k("v_add_u32 v10, 0x4000, v10")
    k("s_lshl_b32 s58, s56, 5")
    k("s_add_u32 s58, s58, s51")
    k("v_and_b32 v13, 31, v1")
    k("v_add_u32 v13, s58, v13")
    k("v_lshlrev_b32 v12, 3, v8")
    k("v_lshl_add_u32 v12, v13, 10, v12")
    k("s_lshl_b32 s59, s49, 7")
    k("s_lshl_b32 s60, s57, 6")
    k("s_add_u32 s59, s59, s60")
    ACC, RES, XC, WC = 32, 48, 24, 14
    BF, AF = 64, 96
    for c in range(NC):
        k0, kc = chunks[c]
        st = (c % S) * 32768
        later = sum(cnt[cc] for cc in range(c + 1, min(c + S - 1, NC)))
        k("s_waitcnt vmcnt(%d)" % later)
        k("s_barrier")
        if c < 11: k.ts(1 + c)
        if c + S - 1 < NC:
            cnt[c + S - 1] = issue(c + S - 1)
        if c == NC - 1:
            k("s_add_u32 s60, s59, 0x%x" % roff)
            for q in range(4):
                k("buffer_load_dwordx2 %s, v12, s[%d:%d], s60 offen offset:%d" % (vr(RES + 2 * q, 2), rs, rs + 3, 16 * q))
        nks = kc // 16
        hi = st >= 65536
        if hi or st + 16384 + 16384 > 65536:
            pass
        for ks in range(nks):
            k("v_add_u32 v%d, %d, v%d" % (XC + ks, st, XA + ks))
        k("v_add_u32 v%d, %d, v10" % (WC, st))
        for ks in range(nks):
            k("ds_read_b128 %s, v%d" % (vr(BF + 4 * ks, 4), XC + ks))
            k("ds_read_b64_tr_b16 %s, v%d offset:%d" % (vr(AF + 4 * ks, 2), WC, ks * 2048))
            k("ds_read_b64_tr_b16 %s, v%d offset:%d" % (vr(AF + 4 * ks + 2, 2), WC, ks * 2048 + 512))
        for ks in range(nks):
            k("s_waitcnt lgkmcnt(%d)" % min(15, 3 * (nks - 1 - ks)))
            first = (c == 0 and ks == 0)
            k("v_mfma_f32_32x32x16_bf16 %s, %s, %s, %s" % (vr(ACC, 16), vr(AF + 4 * ks, 4), vr(BF + 4 * ks, 4), "0" if first else vr(ACC, 16)))
    k.ts(12)
    k("s_waitcnt vmcnt(0)")
    k("s_nop 15")
    for q in range(4):
        for d in range(2):
            r = RES + 2 * q + d
            k("v_lshlrev_b32 v%d, 16, v%d" % (BF, r))
            k("v_and_b32 v%d, 0xffff0000, v%d" % (BF + 1, r))
            k("v_add_f32 v%d, v%d, v%d" % (ACC + 4 * q + 2 * d, ACC + 4 * q + 2 * d, BF))
            k("v_add_f32 v%d, v%d, v%d" % (ACC + 4 * q + 2 * d + 1, ACC + 4 * q + 2 * d + 1, BF + 1))
    for r in range(8):
        k("v_cvt_pk_bf16_f32 v%d, v%d, v%d" % (RES + r, ACC + 2 * r, ACC + 2 * r + 1))
    k("s_add_u32 s60, s59, 0x%x" % ooff)
    for q in range(4):
        k("buffer_store_dwordx2 %s, v12, s[%d:%d], s60 offen offset:%d" % (vr(RES + 2 * q, 2), os_, os_ + 3, 16 * q))
    k.ts(13)
    k.ts_flush(14)
    k.lab(end)
    return k


def gen_C():
    return gen_gemm64("wo_kernel", WS_O, 1024, 32, 512, ('karg', 0), ('ws', WS_H))


def gen_E():
    return gen_gemm64("down_kernel", WS_ACT, 2752, 64, 1376, ('ws', WS_H), ('karg', 72))


def gen_D():
    S = 4
    STG = 40960
    k = Kern("ffn1_kernel", 352, 256, 240, S * STG, accum=256)
    end = k.newlab("end")
    k("s_cmp_ge_u32 s2, 240")
    k("s_cbranch_scc1 %s" % end)
    k.ts(0)
    k("s_load_dwordx4 s[24:27], s[0:1], 48")
    k("s_load_dwordx2 s[32:33], s[0:1], 88")
    k("v_and_b32 v1, 63, v0")
    k("v_lshrrev_b32 v2, 6, v0")
    k("s_nop 1")
    k("v_readfirstlane_b32 s3, v2")
    k("s_mul_i32 s48, s2, 4370")
    k("s_lshr_b32 s48, s48, 16")
    k("s_mul_i32 s49, s48, 15")
    k("s_sub_u32 s49, s2, s49")
    k("s_waitcnt lgkmcnt(0)")
    k.srd(8, 24, 512 * 2752)
    k.srd(12, 26, 512 * 2752)
    k.srd(20, 32, WS_SIZE)
    k("v_lshrrev_b32 v3, 3, v1")
    k("s_lshl_b32 s50, s3, 3")
    k("v_add_u32 v3, s50, v3")
    k("v_lshrrev_b32 v4, 1, v3")
    k("v_and_b32 v4, 7, v4")
    k("v_and_b32 v5, 7, v1")
    k("v_xor_b32 v4, v4, v5")
    k("v_lshlrev_b32 v4, 4, v4")
    k("s_lshl_b32 s51, s48, 7")
    k("v_add_u32 v3, s51, v3")
    k("v_lshl_add_u32 v4, v3, 10, v4")
    k("s_lshl_b32 s50, s3, 6")
    k("s_mul_i32 s52, s49, 192")
    for j in range(3):
        k("v_add_u32 v3, s50, v1")
        k("v_add_u32 v3, %d, v3" % (256 * j))
        k("v_mul_u32_u24 v8, 43691, v3")
        k("v_lshrrev_b32 v8, 19, v8")
        k("v_mul_u32_u24 v9, 12, v8")
        k("v_sub_u32 v9, v3, v9")
        k("v_mul_u32_u24 v8, 2752, v8")
        k("v_lshl_add_u32 v8, v9, 4, v8")
        k("v_add_u32 v%d, s52, v8" % (5 + j))
    k("s_lshl_b32 s52, s3, 10")

    def issue(c):
        st = (c % S) * STG
        for j in range(4):
            k("s_add_u32 m0, s52, %d" % (st + j * 4096))
            k("s_mov_b32 s54, %d" % (WS_H + j * 32 * 1024 + c * 128))
            k("buffer_load_dwordx4 v4, s[20:23], s54 offen lds")
        for (srdn, off) in ((8, 16384), (12, 28672)):
            for j in range(3):
                k("s_add_u32 m0, s52, %d" % (st + off + j * 4096))
                k("s_mov_b32 s54, %d" % (c * 64 * 2752))
                k("buffer_load_dwordx4 v%d, s[%d:%d], s54 offen lds" % (5 + j, srdn, srdn + 3))
    k("v_lshrrev_b32 v8, 5, v1")
    k("v_lshlrev_b32 v9, 4, v8")
    k("s_mul_i32 s55, s49, 384")
    k("s_add_u32 s55, s55, 0x%x" % WS_CS)
    k("s_add_u32 s53, s55, 5504")
    for m in range(2):
        for tl in range(3):
            for q in range(4):
                k("buffer_load_dwordx4 a[%d:%d], v9, s[20:23], s%d offen offset:%d" % (m * 48 + tl * 16 + 4 * q, m * 48 + tl * 16 + 4 * q + 3, 53 if m else 55, tl * 128 + q * 32))
    NC = 8
    for c in range(S - 1):
        issue(c)
    k("v_and_b32 v10, 31, v1")
    k("s_lshl_b32 s58, s3, 5")
    k("v_add_u32 v10, s58, v10")
    k("v_lshrrev_b32 v11, 1, v10")
    k("v_and_b32 v11, 7, v11")
    k("v_xor_b32 v11, v11, v8")
    k("v_lshlrev_b32 v11, 4, v11")
    k("v_lshl_add_u32 v11, v10, 7, v11")
    XA = 16
    for ks in range(4):
        k("v_xor_b32 v%d, %d, v11" % (XA + ks, ks * 32))
    k("v_lshrrev_b32 v12, 5, v1")
    k("v_lshlrev_b32 v12, 3, v12")
    k("v_bfe_u32 v13, v1, 2, 2")
    k("v_add_u32 v12, v12, v13")
    k("v_mul_u32_u24 v12, 192, v12")
    k("v_bfe_u32 v13, v1, 4, 1")
    k("v_lshl_add_u32 v12, v13, 5, v12")
    k("v_and_b32 v13, 3, v1")
    k("v_lshl_add_u32 v12, v13, 3, v12")
    k("v_add_u32 v12, 0x4000, v12")
    ONES = 24
    k("v_mov_b32 v%d, 0x3f803f80" % ONES)
    S1, S2 = 28, 29
    k("v_mov_b32 v%d, 0" % S1)
    k("v_mov_b32 v%d, 0" % S2)
    XC, WC = 20, 14
    ACC = 32
    BF = 128
    AF = 144
    for c in range(NC):
        st = (c % S) * STG
        later = 10 * (min(c + S - 1, NC) - (c + 1))
        k("s_waitcnt vmcnt(%d)" % later)
        k("s_barrier")
        k.ts(1 + c)
        if c + S - 1 < NC:
            issue(c + S - 1)
        for ks in range(4):
            k("v_add_u32 v%d, %d, v%d" % (XC + ks, st, XA + ks))
        k("v_add_u32 v%d, %d, v12" % (WC, st))
        for ks in range(4):
            k("ds_read_b128 %s, v%d" % (vr(BF + 4 * ks, 4), XC + ks))

        def rdA(ks):
            b = AF + 24 * (ks % 2)
            for t in range(6):
                off = (t // 3) * 12288 + ks * 16 * 192 + (t % 3) * 64
                k("ds_read_b64_tr_b16 %s, v%d offset:%d" % (vr(b + 4 * t, 2), WC, off))
                k("ds_read_b64_tr_b16 %s, v%d offset:%d" % (vr(b + 4 * t + 2, 2), WC, off + 768))
        rdA(0)
        for ks in range(4):
            if ks + 1 < 4:
                rdA(ks + 1)
                k("s_waitcnt lgkmcnt(12)")
            else:
                k("s_waitcnt lgkmcnt(0)")
            b = AF + 24 * (ks % 2)
            first = (c == 0 and ks == 0)
            for t in range(6):
                k("v_mfma_f32_32x32x16_bf16 %s, %s, %s, %s" % (vr(ACC + 16 * t, 16), vr(b + 4 * t, 4), vr(BF + 4 * ks, 4), "0" if first else vr(ACC + 16 * t, 16)))
            for q in range(4):
                k("v_dot2c_f32_bf16 v%d, v%d, v%d" % (S1, BF + 4 * ks + q, ONES))
                k("v_dot2c_f32_bf16 v%d, v%d, v%d" % (S2, BF + 4 * ks + q, BF + 4 * ks + q))
    k("s_nop 4")
    k("v_mov_b32 v30, v%d" % S1)
    k("v_mov_b32 v31, v%d" % S2)
    k("s_nop 1")
    k("v_permlane32_swap_b32 v%d, v30" % S1)
    k("v_permlane32_swap_b32 v%d, v31" % S2)
    k("s_nop 1")
    k("v_add_f32 v%d, v%d, v30" % (S1, S1))
    k("v_add_f32 v%d, v%d, v31" % (S2, S2))
    k("v_mul_f32 v%d, %s, v%d" % (S1, f32hex(1.0 / 512), S1))
    k("v_mul_f32 v%d, %s, v%d" % (S2, f32hex(1.0 / 512), S2))
    k("v_fma_f32 v%d, -v%d, v%d, v%d" % (S2, S1, S1, S2))
    k("v_add_f32 v%d, %s, v%d" % (S2, f32hex(1e-5), S2))
    k("v_rsq_f32 v%d, v%d" % (S2, S2))
    k.ts(9)
    k("s_waitcnt vmcnt(0)")
    k("s_nop 15")
    k("s_add_u32 s58, s58, s51")
    k("v_and_b32 v10, 31, v1")
    k("v_add_u32 v10, s58, v10")
    k("v_mul_u32_u24 v10, 2752, v10")
    k("v_lshl_add_u32 v10, v8, 3, v10")
    k("s_mul_i32 s59, s49, 192")
    k("s_add_u32 s59, s59, 0x%x" % WS_ACT)
    T = BF
    for tl in range(3):
        if tl > 0:
            k("s_cmp_eq_u32 s49, 14")
            k("s_cbranch_scc1 %s" % end)
        G, U = ACC + 16 * tl, ACC + 16 * (3 + tl)
        for r in range(16):
            k("v_accvgpr_read_b32 v%d, a%d" % (T + r, tl * 16 + r))
            k("v_accvgpr_read_b32 v%d, a%d" % (T + 16 + r, 48 + tl * 16 + r))
        for r in range(16):
            k("v_fma_f32 v%d, -v%d, v%d, v%d" % (G + r, S1, T + r, G + r))
            k("v_fma_f32 v%d, -v%d, v%d, v%d" % (U + r, S1, T + 16 + r, U + r))
        for r in range(16):
            k("v_mul_f32 v%d, v%d, v%d" % (G + r, S2, G + r))
            k("v_mul_f32 v%d, v%d, v%d" % (U + r, S2, U + r))
        for r in range(16):
            k("v_mul_f32 v%d, %s, v%d" % (T + r, f32hex(-LOG2E), G + r))
        for r in range(16):
            k("v_exp_f32 v%d, v%d" % (T + r, T + r))
        for r in range(16):
            k("v_add_f32 v%d, 1.0, v%d" % (T + r, T + r))
        for r in range(16):
            k("v_rcp_f32 v%d, v%d" % (T + r, T + r))
        for r in range(16):
            k("v_mul_f32 v%d, v%d, v%d" % (G + r, G + r, U + r))
        for r in range(16):
            k("v_mul_f32 v%d, v%d, v%d" % (G + r, G + r, T + r))
        for r in range(8):
            k("v_cvt_pk_bf16_f32 v%d, v%d, v%d" % (T + r, G + 2 * r, G + 2 * r + 1))
        for q in range(4):
            k("buffer_store_dwordx2 %s, v10, s[20:23], s59 offen offset:%d" % (vr(T + 2 * q, 2), tl * 64 + 16 * q))
    k.ts(10)
    k.ts_flush(11)
    k.lab(end)
    return k


def build(kerns):
    head = open("cdna_kernels/%s.s.ref" % NAME).read().split("; @launch")[0]
    out = [head.rstrip("\n")]
    for kk in kerns:
        out.append("; @launch kernel=%s grid=(%d,1,1) block=(%d,1,1) lds=%d" % (kk.name, kk.grid, kk.block, kk.lds))
    out.append('.amdgcn_target "amdgcn-amd-amdhsa--gfx950"')
    out.append(".text")
    for kk in kerns:
        out.append(kk.text())
    out.append('.section .rodata,"a"')
    for kk in kerns:
        out.append(".p2align 6")
        out.append(kk.desc())
    return "\n".join(out) + "\n"


def main():
    which = sys.argv[1] if len(sys.argv) > 1 else "ABCDE"
    gens = {"A": gen_A}
    for nm in "BCDE":
        if "gen_" + nm in globals():
            gens[nm] = globals()["gen_" + nm]
    kerns = [gens[c]() for c in which if c in gens]
    txt = build(kerns)
    open("cdna_kernels/%s.s" % NAME, "w").write(txt)
    print("wrote", len(txt), "bytes;", [kk.name for kk in kerns])


if __name__ == "__main__":
    main()
```

```python
import sys, re

NAME = "sequential_preLN__grouped_kv_mqa__swiglu_ffn__prompt"

WS_Q = 0x000000
WS_K = 0x200000
WS_V = 0x210000
WS_CS = 0x220000
WS_KM = 0x228000
WS_O = 0x300000
WS_H = 0x500000
WS_ACT = 0x800000
WS_SIZE = 268435456
import os
DEBUG_TS = bool(os.environ.get('TS'))
SRD3 = "0x00020000"
LOG2E = 1.4426950408889634


def f32hex(x):
    import struct
    return "0x%08x" % struct.unpack("<I", struct.pack("<f", x))[0]


class Kern:
    def __init__(s, name, nvgpr, block, grid, lds, accum=None):
        s.name = name
        s.L = []
        s.nvgpr = nvgpr
        s.block = block
        s.grid = grid
        s.lds = lds
        s.accum = accum if accum is not None else nvgpr
        s.nlab = 0

    def __call__(s, txt):
        for t in txt.split("\n"):
            t = t.strip()
            if t:
                m = re.search(r"offset:(\d+)", t)
                if m:
                    lim = 4095 if t.startswith("buffer") else 65535
                    assert int(m.group(1)) <= lim, t
                s.L.append("    " + t)

    def lab(s, l):
        s.L.append(l + ":")

    def newlab(s, p):
        s.nlab += 1
        return "%s_%s%d" % (s.name.replace("_kernel", "")[:8], p, s.nlab)

    def srd(s, reg, preg, size):
        s("s_mov_b32 s%d, s%d" % (reg, preg))
        s("s_and_b32 s%d, s%d, 0xffff" % (reg + 1, preg + 1))
        s("s_mov_b32 s%d, 0x%x" % (reg + 2, size))
        s("s_mov_b32 s%d, %s" % (reg + 3, SRD3))

    def ts(s, idx):
        if not DEBUG_TS:
            return
        s("s_memtime s[%d:%d]" % (70 + 2 * idx, 71 + 2 * idx))

    def ts_flush(s, n):
        if not DEBUG_TS:
            return
        lab = s.newlab("nots")
        s("s_waitcnt lgkmcnt(0)")
        s("s_sub_u32 s67, s2, 100")
        s("s_cmp_ge_u32 s67, 4")
        s("s_cbranch_scc1 %s" % lab)
        s("s_cmp_lg_u32 s3, 0")
        s("s_cbranch_scc1 %s" % lab)
        s("s_load_dwordx2 s[96:97], s[0:1], 80")
        s("s_waitcnt lgkmcnt(0)")
        s("s_mov_b32 s98, 256")
        s("s_mov_b32 s99, 0x00020000")
        s("s_lshl_b32 s69, s67, 6")
        s("v_mov_b32 v0, 0")
        for i in range(n):
            s("s_sub_u32 s68, s%d, s70" % (70 + 2 * i))
            s("v_mov_b32 v1, s68")
            s("buffer_store_dword v1, v0, s[96:99], s69 offen offset:%d" % (4 * i))
            s("s_nop 2")
        s.lab(lab)

    def text(s):
        out = []
        out.append(".globl %s" % s.name)
        out.append(".p2align 8")
        out.append(".type %s,@function" % s.name)
        out.append("%s:" % s.name)
        out += s.L
        out.append("    s_endpgm")
        return "\n".join(out)

    def desc(s):
        return "\n".join([
            ".amdhsa_kernel %s" % s.name,
            "  .amdhsa_next_free_vgpr %d" % s.nvgpr,
            "  .amdhsa_next_free_sgpr 102",
            "  .amdhsa_accum_offset %d" % s.accum,
            "  .amdhsa_group_segment_fixed_size 0",
            "  .amdhsa_kernarg_size 96",
            "  .amdhsa_user_sgpr_count 2",
            "  .amdhsa_user_sgpr_kernarg_segment_ptr 1",
            "  .amdhsa_system_sgpr_workgroup_id_x 1",
            ".end_amdhsa_kernel"])


def vr(a, n=1):
    return "v%d" % a if n == 1 else "v[%d:%d]" % (a, a + n - 1)


def sr(a, n=1):
    return "s%d" % a if n == 1 else "s[%d:%d]" % (a, a + n - 1)


def gen_A():
    k = Kern(NAME + "_kernel", 160, 256, 256, 163840)
    end = k.newlab("end")
    k("s_cmp_ge_u32 s2, 256")
    k("s_cbranch_scc1 %s" % end)
    k.ts(0)
    k("s_load_dwordx8 s[24:31], s[0:1], 0")
    k("s_load_dwordx2 s[32:33], s[0:1], 88")
    k("s_load_dwordx4 s[36:39], s[0:1], 48")
    k("v_and_b32 v1, 63, v0")
    k("v_lshrrev_b32 v2, 6, v0")
    k("s_nop 1")
    k("v_readfirstlane_b32 s3, v2")
    k("s_and_b32 s48, s2, 7")
    k("s_lshl_b32 s48, s48, 2")
    k("s_bfe_u32 s49, s2, 0x20003")
    k("s_add_u32 s48, s48, s49")
    k("s_lshr_b32 s49, s2, 5")
    k("s_waitcnt lgkmcnt(0)")
    k.srd(4, 24, 2048 * 512 * 2)
    k.srd(8, 26, 512 * 512 * 2)
    k.srd(12, 28, 512 * 16 * 2)
    k.srd(16, 30, 512 * 16 * 2)
    k.srd(20, 32, WS_SIZE)
    k.srd(40, 36, 512 * 1376 * 2)
    k.srd(44, 38, 512 * 1376 * 2)
    k("v_lshrrev_b32 v3, 4, v1")
    k("s_lshl_b32 s50, s3, 2")
    k("v_add_u32 v3, s50, v3")
    k("v_and_b32 v4, 15, v1")
    k("v_xor_b32 v4, v4, v3")
    k("v_lshlrev_b32 v4, 4, v4")
    k("s_lshl_b32 s51, s48, 6")
    k("v_add_u32 v3, s51, v3")
    k("v_lshl_add_u32 v4, v3, 10, v4")
    k("v_lshrrev_b32 v3, 3, v1")
    k("s_lshl_b32 s50, s3, 3")
    k("v_add_u32 v3, s50, v3")
    k("v_and_b32 v5, 7, v1")
    k("v_bfe_u32 v6, v1, 4, 1")
    k("v_lshlrev_b32 v6, 2, v6")
    k("v_xor_b32 v5, v5, v6")
    k("v_lshlrev_b32 v5, 4, v5")
    k("v_lshl_add_u32 v5, v3, 10, v5")
    k("s_lshl_b32 s50, s49, 7")
    k("v_add_u32 v5, s50, v5")
    k("v_lshlrev_b32 v6, 4, v1")
    k("s_lshl_b32 s52, s3, 10")
    k("s_and_b32 s50, s48, 7")
    k("s_cmp_eq_u32 s50, s49")
    k("s_cselect_b32 s53, 1, 0")
    nokv = k.newlab("nokv")
    k("s_cbranch_scc0 %s" % nokv)
    for j in range(4):
        for (srdn, base) in ((12, 131072), (16, 147456)):
            k("s_add_u32 s54, s52, %d" % (j * 4096))
            k("s_add_u32 m0, s54, %d" % base)
            k("s_nop 0")
            k("buffer_load_dwordx4 v6, s[%d:%d], s54 offen lds" % (srdn, srdn + 3))
    k.lab(nokv)
    for c in range(4):
        for j in range(4):
            k("s_add_u32 m0, s52, %d" % (c * 16384 + j * 4096))
            k("s_mov_b32 s54, %d" % (j * 16 * 1024 + c * 256))
            k("buffer_load_dwordx4 v4, s[4:7], s54 offen lds")
        for j in range(4):
            k("s_add_u32 m0, s52, %d" % (65536 + c * 16384 + j * 4096))
            k("s_mov_b32 s54, %d" % ((c * 128 + 32 * j) * 1024))
            k("buffer_load_dwordx4 v5, s[8:11], s54 offen lds")
    k.ts(1)
    noside = k.newlab("noside")
    k("s_cmp_ge_u32 s2, 86")
    k("s_cbranch_scc1 %s" % noside)
    k("s_cmp_lg_u32 s3, 3")
    k("s_cbranch_scc1 %s" % noside)
    k("s_cmp_ge_u32 s2, 43")
    k("s_cselect_b32 s60, s44, s40")
    k("s_cselect_b32 s61, s45, s41")
    k("s_mov_b32 s62, s42")
    k("s_mov_b32 s63, s43")
    k("s_cselect_b32 s55, 43, 0")
    k("s_sub_u32 s55, s2, s55")
    k("v_and_b32 v7, 31, v1")
    k("v_mul_u32_u24 v7, 2752, v7")
    k("v_lshrrev_b32 v8, 5, v1")
    k("v_lshl_add_u32 v7, v8, 4, v7")
    k("s_lshl_b32 s56, s55, 6")
    k("v_add_u32 v7, s56, v7")
    for t in range(16):
        k("s_mov_b32 s56, %d" % (t * 32 * 2752))
        k("buffer_load_dwordx4 %s, v7, s[60:63], s56 offen" % vr(16 + 8 * t, 4))
        k("buffer_load_dwordx4 %s, v7, s[60:63], s56 offen offset:32" % vr(20 + 8 * t, 4))
    k("v_and_b32 v8, 31, v1")
    k("v_lshrrev_b32 v9, 5, v1")
    k("v_lshlrev_b32 v9, 3, v9")
    k("v_sub_u32 v8, v8, v9")
    k("v_subrev_u32 v9, 16, v8")
    for (dv, base) in ((8, 148), (9, 152)):
        for q in range(4):
            k("v_cmp_eq_u32 vcc, %d, v%d" % (2 * q, dv))
            k("v_mov_b32 v10, 0x3f80")
            k("v_cndmask_b32 v11, 0, v10, vcc")
            k("v_cmp_eq_u32 vcc, %d, v%d" % (2 * q + 1, dv))
            k("v_mov_b32 v10, 0x3f800000")
            k("v_cndmask_b32 v%d, v11, v10, vcc" % (base + q))
    k("s_waitcnt vmcnt(0)")
    for t in range(16):
        c = "0" if t == 0 else "v[0+X:15+X]"
        cc = "0" if t == 0 else vr(144 - 144 + 0, 1)
        pass
    ACC = 160
    for t in range(16):
        cs = "0" if t == 0 else vr(ACC, 16)
        k("v_mfma_f32_32x32x16_bf16 %s, %s, %s, %s" % (vr(ACC, 16), vr(16 + 8 * t, 4), vr(148, 4), cs))
        k("v_mfma_f32_32x32x16_bf16 %s, %s, %s, %s" % (vr(ACC, 16), vr(20 + 8 * t, 4), vr(152, 4), vr(ACC, 16)))
    k("s_nop 15")
    k("s_nop 3")
    for step in (8, 4, 2, 1):
        for i in range(step):
            k("v_add_f32 v%d, v%d, v%d" % (ACC + i, ACC + i, ACC + i + step))
    k("v_mov_b32 v%d, v%d" % (ACC + 1, ACC))
    k("s_nop 1")
    k("v_permlane32_swap_b32 v%d, v%d" % (ACC, ACC + 1))
    k("s_nop 1")
    k("v_add_f32 v%d, v%d, v%d" % (ACC, ACC, ACC + 1))
    k("v_lshlrev_b32 v7, 2, v1")
    k("s_lshl_b32 s56, s2, 7")
    k("s_add_u32 s56, s56, 0x%x" % WS_CS)
    k("v_cmp_gt_u32 vcc, 32, v1")
    k("s_and_saveexec_b64 s[58:59], vcc")
    k("buffer_store_dword v%d, v7, s[20:23], s56 offen" % ACC)
    k("s_mov_b64 exec, s[58:59]")
    k.lab(noside)
    k.nvgpr = 176
    k.accum = 176

    k("s_and_b32 s56, s3, 1")
    k("s_lshr_b32 s57, s3, 1")
    k("v_and_b32 v7, 31, v1")
    k("s_lshl_b32 s58, s56, 5")
    k("v_add_u32 v7, s58, v7")
    k("v_lshrrev_b32 v8, 5, v1")
    k("v_and_b32 v9, 15, v7")
    k("v_xor_b32 v9, v9, v8")
    k("v_lshlrev_b32 v9, 4, v9")
    k("v_lshl_add_u32 v9, v7, 8, v9")
    XA = 8 + 8
    for ks in range(8):
        k("v_xor_b32 v%d, %d, v9" % (XA + ks, ks * 32))
    k("v_lshrrev_b32 v7, 5, v1")
    k("v_lshlrev_b32 v7, 3, v7")
    k("v_bfe_u32 v10, v1, 2, 2")
    k("v_add_u32 v7, v7, v10")
    k("v_bfe_u32 v10, v1, 4, 1")
    k("v_lshlrev_b32 v10, 5, v10")
    k("v_and_b32 v11, 3, v1")
    k("v_lshl_add_u32 v10, v11, 3, v10")
    k("s_lshl_b32 s58, s57, 6")
    k("v_add_u32 v10, s58, v10")
    k("v_bfe_u32 v11, v1, 3, 1")
    k("v_lshlrev_b32 v11, 6, v11")
    k("v_xor_b32 v10, v10, v11")
    k("v_lshl_add_u32 v10, v7, 7, v10")
    k("v_add_u32 v10, 0x10000, v10")
    k("v_and_b32 v11, 3, v1")
    k("v_lshlrev_b32 v11, 3, v11")
    k("v_lshl_add_u32 v11, v7, 5, v11")
    k("v_bfe_u32 v12, v1, 4, 1")
    k("v_lshl_add_u32 v11, v12, 14, v11")
    k("v_add_u32 v11, 0x20000, v11")
    ONES = 24
    for i in range(4):
        k("v_mov_b32 v%d, 0x3f803f80" % (ONES + i))
    S1, S2 = 28, 29
    k("v_mov_b32 v%d, 0" % S1)
    k("v_mov_b32 v%d, 0" % S2)
    ACC, CS = 32, 48
    BF, AF = 64, 96
    for c in range(4):
        k("s_waitcnt vmcnt(%d)" % (8 * (3 - c)))
        k("s_barrier")
        k.ts(2 + c)
        for ks in range(8):
            k("ds_read_b128 %s, v%d offset:%d" % (vr(BF + 4 * ks, 4), XA + ks, c * 16384))
            k("ds_read_b64_tr_b16 %s, v10 offset:%d" % (vr(AF + 4 * ks, 2), c * 16384 + ks * 2048))
            k("ds_read_b64_tr_b16 %s, v10 offset:%d" % (vr(AF + 4 * ks + 2, 2), c * 16384 + ks * 2048 + 512))
        for ks in range(8):
            k("s_waitcnt lgkmcnt(%d)" % min(15, 3 * (7 - ks)))
            first = (c == 0 and ks == 0)
            k("v_mfma_f32_32x32x16_bf16 %s, %s, %s, %s" % (vr(ACC, 16), vr(AF + 4 * ks, 4), vr(BF + 4 * ks, 4), "0" if first else vr(ACC, 16)))
            k("v_mfma_f32_32x32x16_bf16 %s, %s, %s, %s" % (vr(CS, 16), vr(AF + 4 * ks, 4), vr(ONES, 4), "0" if first else vr(CS, 16)))
            for q in range(4):
                k("v_dot2c_f32_bf16 v%d, v%d, v%d" % (S1, BF + 4 * ks + q, ONES))
                k("v_dot2c_f32_bf16 v%d, v%d, v%d" % (S2, BF + 4 * ks + q, BF + 4 * ks + q))
    k.ts(6)
    k("s_nop 4")
    k("v_mov_b32 v30, v%d" % S1)
    k("v_mov_b32 v31, v%d" % S2)
    k("s_nop 1")
    k("v_permlane32_swap_b32 v%d, v30" % S1)
    k("v_permlane32_swap_b32 v%d, v31" % S2)
    k("s_nop 1")
    k("v_add_f32 v%d, v%d, v30" % (S1, S1))
    k("v_add_f32 v%d, v%d, v31" % (S2, S2))
    k("v_mul_f32 v%d, %s, v%d" % (S1, f32hex(1.0 / 512), S1))
    k("v_mul_f32 v%d, %s, v%d" % (S2, f32hex(1.0 / 512), S2))
    k("v_fma_f32 v%d, -v%d, v%d, v%d" % (S2, S1, S1, S2))
    k("v_add_f32 v%d, %s, v%d" % (S2, f32hex(1e-5), S2))
    k("v_rsq_f32 v%d, v%d" % (S2, S2))
    k("s_nop 7")
    k("v_mul_f32 v30, %s, v%d" % (f32hex(0.25 * LOG2E), S2))
    k("s_nop 7")
    for r in range(16):
        k("v_fma_f32 v%d, -v%d, v%d, v%d" % (ACC + r, S1, CS + r, ACC + r))
    for r in range(16):
        k("v_mul_f32 v%d, v30, v%d" % (ACC + r, ACC + r))
    for r in range(8):
        k("v_cvt_pk_bf16_f32 v%d, v%d, v%d" % (CS + r, ACC + 2 * r, ACC + 2 * r + 1))
    k("v_and_b32 v7, 31, v1")
    k("s_lshl_b32 s58, s56, 5")
    k("s_add_u32 s58, s58, s51")
    k("v_add_u32 v7, s58, v7")
    k("v_lshrrev_b32 v8, 5, v1")
    k("v_lshlrev_b32 v8, 3, v8")
    k("v_lshl_add_u32 v12, v7, 10, v8")
    k("s_lshl_b32 s59, s49, 7")
    k("s_lshl_b32 s60, s57, 6")
    k("s_add_u32 s59, s59, s60")
    k("s_add_u32 s59, s59, 0x%x" % WS_Q)
    for q in range(4):
        k("buffer_store_dwordx2 %s, v12, s[20:23], s59 offen offset:%d" % (vr(CS + 2 * q, 2), 16 * q))
    k.ts(7)
    k.ts_flush(8)
    k("s_cmp_eq_u32 s53, 0")
    k("s_cbranch_scc1 %s" % end)
    k("s_cmp_lg_u32 s57, 0")
    k("s_cbranch_scc1 %s" % end)
    for c in range(4):
        for ks in range(8):
            k("ds_read_b128 %s, v%d offset:%d" % (vr(BF + 4 * ks, 4), XA + ks, c * 16384))
            k("ds_read_b64_tr_b16 %s, v11 offset:%d" % (vr(AF + 4 * ks, 2), (c * 128 + ks * 16) * 32))
            k("ds_read_b64_tr_b16 %s, v11 offset:%d" % (vr(AF + 4 * ks + 2, 2), (c * 128 + ks * 16 + 4) * 32))
        for ks in range(8):
            k("s_waitcnt lgkmcnt(%d)" % min(15, 3 * (7 - ks)))
            first = (c == 0 and ks == 0)
            k("v_mfma_f32_32x32x16_bf16 %s, %s, %s, %s" % (vr(ACC, 16), vr(AF + 4 * ks, 4), vr(BF + 4 * ks, 4), "0" if first else vr(ACC, 16)))
            k("v_mfma_f32_32x32x16_bf16 %s, %s, %s, %s" % (vr(CS, 16), vr(AF + 4 * ks, 4), vr(ONES, 4), "0" if first else vr(CS, 16)))
    k("s_nop 15")
    k("s_nop 3")
    for r in range(16):
        k("v_fma_f32 v%d, -v%d, v%d, v%d" % (ACC + r, S1, CS + r, ACC + r))
    for r in range(16):
        k("v_mul_f32 v%d, v%d, v%d" % (ACC + r, S2, ACC + r))
    for r in range(8):
        k("v_cvt_pk_bf16_f32 v%d, v%d, v%d" % (CS + r, ACC + 2 * r, ACC + 2 * r + 1))
    k("v_mov_b32 v14, 0")
    for i in range(4):
        k("v_dot2c_f32_bf16 v14, v%d, v%d" % (CS + i, CS + i))
    k("s_nop 4")
    k("v_mov_b32 v15, v14")
    k("s_nop 1")
    k("v_permlane32_swap_b32 v14, v15")
    k("s_nop 1")
    k("v_add_f32 v14, v14, v15")
    k("s_nop 1")
    for r in (8, 4, 2, 1):
        k("v_max_f32_dpp v14, v14, v14 row_ror:%d row_mask:0xf bank_mask:0xf" % r)
        k("s_nop 1")
    k("v_readlane_b32 s60, v14, 0")
    k("v_readlane_b32 s61, v14, 16")
    k("s_nop 3")
    k("s_max_u32 s60, s60, s61")
    k("v_mov_b32 v14, s60")
    k("v_mov_b32 v15, 0")
    k("s_lshl_b32 s61, s48, 1")
    k("s_add_u32 s61, s61, s56")
    k("s_lshl_b32 s61, s61, 2")
    k("s_add_u32 s61, s61, 0x%x" % WS_KM)
    k("s_mov_b64 exec, 1")
    k("buffer_store_dword v14, v15, s[20:23], s61 offen")
    k("s_mov_b64 exec, -1")
    k("v_and_b32 v13, 31, v1")
    k("v_lshlrev_b32 v13, 4, v13")
    k("v_lshrrev_b32 v8, 5, v1")
    k("v_lshl_add_u32 v13, v8, 3, v13")
    k("s_lshl_b32 s59, s48, 1")
    k("s_add_u32 s59, s59, s56")
    k("s_lshl_b32 s59, s59, 10")
    k("s_add_u32 s59, s59, 0x%x" % WS_K)
    k("buffer_store_dwordx2 %s, v13, s[20:23], s59 offen" % vr(CS, 2))
    k("buffer_store_dwordx2 %s, v13, s[20:23], s59 offen offset:512" % vr(CS + 2, 2))
    k("v_lshrrev_b32 v13, 4, v7")
    k("v_lshlrev_b32 v13, 9, v13")
    k("v_bfe_u32 v14, v7, 2, 1")
    k("v_lshl_add_u32 v13, v14, 8, v13")
    k("v_bfe_u32 v14, v7, 3, 1")
    k("v_lshl_add_u32 v13, v14, 3, v13")
    k("v_and_b32 v14, 3, v7")
    k("v_lshl_add_u32 v13, v14, 1, v13")
    k("v_lshl_add_u32 v13, v8, 6, v13")
    k("s_mov_b32 s59, 0x%x" % WS_V)
    for r in range(8, 16):
        d = (r & 3) + 8 * ((r >> 2) - 2)
        src = CS + r // 2
        op = "buffer_store_short" if r % 2 == 0 else "buffer_store_short_d16_hi"
        k("%s v%d, v13, s[20:23], s59 offen offset:%d" % (op, src, d * 16))
    k.lab(end)
    return k


def gen_B():
    k = Kern("attn_kernel", 128, 1024, 256, 163840)
    end = k.newlab("end")
    k("s_cmp_ge_u32 s2, 256")
    k("s_cbranch_scc1 %s" % end)
    k.ts(0)
    k("s_load_dwordx2 s[32:33], s[0:1], 88")
    k("v_and_b32 v1, 63, v0")
    k("v_lshrrev_b32 v2, 6, v0")
    k("s_nop 1")
    k("v_readfirstlane_b32 s3, v2")
    k("v_and_b32 v2, 31, v1")
    k("v_lshlrev_b32 v2, 5, v2")
    k("v_lshrrev_b32 v3, 5, v1")
    k("v_lshl_add_u32 v2, v3, 4, v2")
    k("v_lshlrev_b32 v8, 4, v1")
    k("s_and_b32 s48, s3, 7")
    k("s_lshr_b32 s49, s3, 3")
    k("s_lshl_b32 s50, s2, 3")
    k("s_add_u32 s50, s50, s48")
    k("s_lshl_b32 s51, s50, 10")
    k("s_add_u32 s51, s51, 0x%x" % WS_Q)
    k("s_lshr_b32 s52, s3, 3")
    k("s_lshl_b32 s52, s52, 15")
    k("s_and_b32 s53, s3, 7")
    k("s_lshl_b32 s53, s53, 10")
    k("s_add_u32 s52, s52, s53")
    k("s_waitcnt lgkmcnt(0)")
    k.srd(20, 32, WS_SIZE)
    QF = 4
    k("buffer_load_dwordx4 %s, v2, s[20:23], s51 offen" % vr(QF, 4))
    k("s_lshl_b32 s54, s49, 7")
    k("s_add_u32 s54, s54, 0x%x" % WS_KM)
    k("s_add_u32 s56, s32, s54")
    k("s_addc_u32 s57, s33, 0")
    k("s_load_dwordx16 s[64:79], s[56:57], 0")
    k("s_load_dwordx16 s[80:95], s[56:57], 64")
    for j in range(4):
        for ss in range(2):
            k("s_add_u32 m0, s52, %d" % (ss * 65536 + j * 8192))
            k("s_add_u32 s53, s52, 0x%x" % (WS_K + ss * 65536 + j * 8192))
            k("buffer_load_dwordx4 v8, s[20:23], s53 offen lds")
    k("s_lshl_b32 s54, s49, 15")
    k("v_add_u32 v9, s54, v8")
    k("v_and_b32 v10, 15, v1")
    k("v_lshlrev_b32 v10, 4, v10")
    k("v_lshl_add_u32 v10, v3, 8, v10")
    k("v_add_u32 v10, s54, v10")
    k("v_add_u32 v10, 0x10000, v10")
    NEG, SA, SB, O, PK, KF, VF = 16, 32, 48, 64, 80, 88, 100
    M = 11
    for i in range(16):
        k("v_mov_b32 v%d, 0x3f803f80" % (VF + i))
    k("s_mov_b32 s58, 0xffff")
    k("s_mov_b32 s59, 0xffff")
    k("s_waitcnt lgkmcnt(0)")
    for i in range(1, 32):
        k("s_max_u32 s64, s64, s%d" % (64 + i))
    k("v_mov_b32 v12, 0")
    k("s_waitcnt vmcnt(8)")
    for i in range(4):
        k("v_dot2c_f32_bf16 v12, v%d, v%d" % (QF + i, QF + i))
    k("s_nop 4")
    k("v_mov_b32 v13, v12")
    k("s_nop 1")
    k("v_permlane32_swap_b32 v12, v13")
    k("s_nop 1")
    k("v_add_f32 v12, v12, v13")
    k("v_mul_f32 v12, s64, v12")
    k("v_sqrt_f32 v%d, v12" % M)
    k("s_nop 1")
    for i in range(16):
        k("v_xor_b32 v%d, 0x80000000, v%d" % (NEG + i, M))
    S = [SA, SB]
    NT = 32

    def rdV(t):
        k("s_mov_b64 exec, s[58:59]")
        k("ds_read_b128 %s, v10 offset:%d" % (vr(VF + 8 * (t % 2), 4), t * 1024))
        k("ds_read_b128 %s, v10 offset:%d" % (vr(VF + 8 * (t % 2) + 4, 4), t * 1024 + 512))
        k("s_mov_b64 exec, -1")

    def pass2(bars):
        if bars:
            k("s_waitcnt vmcnt(6)")
            k.ts(1)
            k("s_barrier")
            k.ts(2)
        k("ds_read_b128 %s, v9 offset:0" % vr(KF, 4))
        k("ds_read_b128 %s, v9 offset:1024" % vr(KF + 4, 4))
        rdV(0)
        k("s_waitcnt lgkmcnt(3)")
        k("v_mfma_f32_32x32x16_bf16 %s, %s, %s, %s" % (vr(S[0], 16), vr(KF, 4), vr(QF, 4), vr(NEG, 16)))
        for t in range(NT):
            n_new = 0
            if t + 2 < NT:
                if bars and (t + 2) % 8 == 0:
                    k("s_waitcnt vmcnt(%d)" % (6 - 2 * ((t + 2) // 8)))
                    k("s_barrier")
                k("ds_read_b128 %s, v9 offset:%d" % (vr(KF + 4 * ((t + 2) % 3), 4), (t + 2) * 1024))
                n_new += 1
            if t + 1 < NT:
                k("s_waitcnt lgkmcnt(%d)" % (2 + n_new))
                k("v_mfma_f32_32x32x16_bf16 %s, %s, %s, %s" % (vr(S[(t + 1) % 2], 16), vr(KF + 4 * ((t + 1) % 3), 4), vr(QF, 4), vr(NEG, 16)))
            if t == 0:
                k("s_nop 10")
            s = S[t % 2]
            for i in range(16):
                k("v_exp_f32 v%d, v%d" % (s + i, s + i))
            for i in range(8):
                k("v_cvt_pk_bf16_f32 v%d, v%d, v%d" % (PK + i, s + 2 * i, s + 2 * i + 1))
            k("s_waitcnt lgkmcnt(%d)" % n_new)
            k("v_mfma_f32_32x32x16_bf16 %s, %s, %s, %s" % (vr(O, 16), vr(VF + 8 * (t % 2), 4), vr(PK, 4), "0" if t == 0 else vr(O, 16)))
            k("v_mfma_f32_32x32x16_bf16 %s, %s, %s, %s" % (vr(O, 16), vr(VF + 8 * (t % 2) + 4, 4), vr(PK + 4, 4), vr(O, 16)))
            if t + 1 < NT:
                rdV(t + 1)
    pass2(True)
    k.ts(3)
    k("s_nop 15")
    k("v_cmp_gt_f32 vcc, 0x%08x, v%d" % ((127 - 64) << 23, O + 8))
    k("v_cmp_u_f32 s[60:61], v%d, v%d" % (O + 8, O + 8))
    k("s_or_b64 vcc, vcc, s[60:61]")
    comb = k.newlab("comb")
    k("s_cbranch_vccz %s" % comb)
    k("v_mov_b32 v%d, 0xff800000" % M)
    k("ds_read_b128 %s, v9 offset:0" % vr(KF, 4))
    k("ds_read_b128 %s, v9 offset:1024" % vr(KF + 4, 4))
    k("s_waitcnt lgkmcnt(1)")
    k("v_mfma_f32_32x32x16_bf16 %s, %s, %s, 0" % (vr(S[0], 16), vr(KF, 4), vr(QF, 4)))
    for t in range(NT):
        if t + 2 < NT:
            k("ds_read_b128 %s, v9 offset:%d" % (vr(KF + 4 * ((t + 2) % 3), 4), (t + 2) * 1024))
        if t + 1 < NT:
            k("s_waitcnt lgkmcnt(%d)" % (1 if t + 2 < NT else 0))
            k("v_mfma_f32_32x32x16_bf16 %s, %s, %s, 0" % (vr(S[(t + 1) % 2], 16), vr(KF + 4 * ((t + 1) % 3), 4), vr(QF, 4)))
        k("s_nop 10" if t == 0 else "s_nop 3")
        s = S[t % 2]
        for i in range(8):
            k("v_max3_f32 v%d, v%d, v%d, v%d" % (M, s + 2 * i, s + 2 * i + 1, M))
    k("v_mov_b32 v12, v%d" % M)
    k("s_nop 1")
    k("v_permlane32_swap_b32 v%d, v12" % M)
    k("s_nop 1")
    k("v_max_f32 v%d, v%d, v12" % (M, M))
    for i in range(16):
        k("v_xor_b32 v%d, 0x80000000, v%d" % (NEG + i, M))
    k("s_nop 1")
    pass2(False)
    k("s_nop 15")
    k.lab(comb)
    k("s_mul_i32 s60, s48, 2560")
    k("s_add_u32 s60, s60, 0x20000")
    k("v_lshlrev_b32 v12, 2, v1")
    k("v_add_u32 v12, s60, v12")
    w1 = k.newlab("w1")
    k("s_cmp_eq_u32 s49, 0")
    k("s_cbranch_scc1 %s" % w1)
    for i in range(9):
        k("ds_write_b32 v12, v%d offset:%d" % (O + i, i * 256))
    k("ds_write_b32 v12, v%d offset:%d" % (M, 9 * 256))
    k("s_waitcnt lgkmcnt(0)")
    k("s_barrier")
    k("s_branch %s" % end)
    k.lab(w1)
    k("s_barrier")
    k.ts(4)
    for i in range(9):
        k("ds_read_b32 v%d, v12 offset:%d" % (SA + i, i * 256))
    k("ds_read_b32 v%d, v12 offset:%d" % (SA + 9, 9 * 256))
    k("s_waitcnt lgkmcnt(0)")
    m1 = SA + 9
    k("v_max_f32 v13, v%d, v%d" % (M, m1))
    k("v_sub_f32 v14, v%d, v13" % M)
    k("v_sub_f32 v15, v%d, v13" % m1)
    k("v_exp_f32 v14, v14")
    k("v_exp_f32 v15, v15")
    k("s_nop 1")
    for i in range(9):
        k("v_mul_f32 v%d, v14, v%d" % (O + i, O + i))
    for i in range(9):
        k("v_fma_f32 v%d, v15, v%d, v%d" % (O + i, SA + i, O + i))
    k("v_rcp_f32 v13, v%d" % (O + 8))
    k("s_nop 1")
    for i in range(8):
        k("v_mul_f32 v%d, v13, v%d" % (O + i, O + i))
    for i in range(4):
        k("v_cvt_pk_bf16_f32 v%d, v%d, v%d" % (PK + i, O + 2 * i, O + 2 * i + 1))
    k("v_and_b32 v2, 31, v1")
    k("v_lshlrev_b32 v2, 5, v2")
    k("v_lshl_add_u32 v2, v3, 3, v2")
    k("s_lshl_b32 s51, s50, 10")
    k("s_add_u32 s51, s51, 0x%x" % WS_O)
    k("buffer_store_dwordx2 %s, v2, s[20:23], s51 offen" % vr(PK, 2))
    k("buffer_store_dwordx2 %s, v2, s[20:23], s51 offen offset:16" % vr(PK + 2, 2))
    k.ts(5)
    k.ts_flush(6)
    k.lab(end)
    return k


def gen_gemm64(name, x_ws_off, ldx, w_karg, K, resid, outp, S=4):
    lds = S * 32768
    k = Kern(name, 128, 256, 256, lds)
    end = k.newlab("end")
    k("s_cmp_ge_u32 s2, 256")
    k("s_cbranch_scc1 %s" % end)
    k.ts(0)
    k("s_load_dwordx2 s[24:25], s[0:1], %d" % w_karg)
    k("s_load_dwordx2 s[32:33], s[0:1], 88")
    if resid[0] == 'karg':
        k("s_load_dwordx2 s[26:27], s[0:1], %d" % resid[1])
    if outp[0] == 'karg':
        k("s_load_dwordx2 s[28:29], s[0:1], %d" % outp[1])
    k("v_and_b32 v1, 63, v0")
    k("v_lshrrev_b32 v2, 6, v0")
    k("s_nop 1")
    k("v_readfirstlane_b32 s3, v2")
    k("s_and_b32 s48, s2, 7")
    k("s_lshl_b32 s48, s48, 2")
    k("s_bfe_u32 s49, s2, 0x20003")
    k("s_add_u32 s48, s48, s49")
    k("s_lshr_b32 s49, s2, 5")
    k("s_waitcnt lgkmcnt(0)")
    k.srd(8, 24, K * 1024)
    k.srd(20, 32, WS_SIZE)
    if resid[0] == 'karg':
        k.srd(12, 26, 2048 * 1024)
        rs, roff = 12, 0
    else:
        rs, roff = 20, resid[1]
    if outp[0] == 'karg':
        k.srd(16, 28, 2048 * 1024)
        os_, ooff = 16, 0
    else:
        os_, ooff = 20, outp[1]
    k("v_lshrrev_b32 v3, 4, v1")
    k("s_lshl_b32 s50, s3, 2")
    k("v_add_u32 v3, s50, v3")
    k("v_and_b32 v4, 15, v1")
    k("v_xor_b32 v4, v4, v3")
    k("v_lshlrev_b32 v4, 4, v4")
    k("s_lshl_b32 s51, s48, 6")
    k("v_add_u32 v3, s51, v3")
    k("v_mul_u32_u24 v3, %d, v3" % ldx)
    k("v_add_u32 v4, v3, v4")
    k("v_lshrrev_b32 v3, 3, v1")
    k("s_lshl_b32 s50, s3, 3")
    k("v_add_u32 v3, s50, v3")
    k("v_and_b32 v5, 7, v1")
    k("v_bfe_u32 v6, v1, 4, 1")
    k("v_lshlrev_b32 v6, 2, v6")
    k("v_xor_b32 v5, v5, v6")
    k("v_lshlrev_b32 v5, 4, v5")
    k("v_lshl_add_u32 v5, v3, 10, v5")
    k("s_lshl_b32 s50, s49, 7")
    k("v_add_u32 v5, s50, v5")
    k("s_lshl_b32 s52, s3, 10")
    chunks = []
    kk = 0
    while kk < K:
        c = min(128, K - kk)
        chunks.append((kk, c))
        kk += c
    NC = len(chunks)

    def issue(c):
        k0, kc = chunks[c]
        st = (c % S) * 32768
        n = 0
        for j in range(4):
            k("s_add_u32 m0, s52, %d" % (st + j * 4096))
            k("s_mov_b32 s54, %d" % (x_ws_off + j * 16 * ldx + k0 * 2))
            k("buffer_load_dwordx4 v4, s[20:23], s54 offen lds")
            n += 1
        for j in range(kc // 32):
            k("s_add_u32 m0, s52, %d" % (st + 16384 + j * 4096))
            k("s_mov_b32 s54, %d" % ((k0 + 32 * j) * 1024))
            k("buffer_load_dwordx4 v5, s[8:11], s54 offen lds")
            n += 1
        return n
    cnt = {}
    for c in range(min(S - 1, NC)):
        cnt[c] = issue(c)
    k("s_and_b32 s56, s3, 1")
    k("s_lshr_b32 s57, s3, 1")
    k("v_and_b32 v7, 31, v1")
    k("s_lshl_b32 s58, s56, 5")
    k("v_add_u32 v7, s58, v7")
    k("v_lshrrev_b32 v8, 5, v1")
    k("v_and_b32 v9, 15, v7")
    k("v_xor_b32 v9, v9, v8")
    k("v_lshlrev_b32 v9, 4, v9")
    k("v_lshl_add_u32 v9, v7, 8, v9")
    XA = 16
    for ks in range(8):
        k("v_xor_b32 v%d, %d, v9" % (XA + ks, ks * 32))
    k("v_lshrrev_b32 v11, 5, v1")
    k("v_lshlrev_b32 v11, 3, v11")
    k("v_bfe_u32 v10, v1, 2, 2")
    k("v_add_u32 v11, v11, v10")
    k("v_bfe_u32 v10, v1, 4, 1")
    k("v_lshlrev_b32 v10, 5, v10")
    k("v_and_b32 v12, 3, v1")
    k("v_lshl_add_u32 v10, v12, 3, v10")
    k("s_lshl_b32 s58, s57, 6")
    k("v_add_u32 v10, s58, v10")
    k("v_bfe_u32 v12, v1, 3, 1")
    k("v_lshlrev_b32 v12, 6, v12")
    k("v_xor_b32 v10, v10, v12")
    k("v_lshl_add_u32 v10, v11, 7, v10")
    k("v_add_u32 v10, 0x4000, v10")
    k("s_lshl_b32 s58, s56, 5")
    k("s_add_u32 s58, s58, s51")
    k("v_and_b32 v13, 31, v1")
    k("v_add_u32 v13, s58, v13")
    k("v_lshlrev_b32 v12, 3, v8")
    k("v_lshl_add_u32 v12, v13, 10, v12")
    k("s_lshl_b32 s59, s49, 7")
    k("s_lshl_b32 s60, s57, 6")
    k("s_add_u32 s59, s59, s60")
    ACC, RES, XC, WC = 32, 48, 24, 14
    BF, AF = 64, 96
    for c in range(NC):
        k0, kc = chunks[c]
        st = (c % S) * 32768
        later = sum(cnt[cc] for cc in range(c + 1, min(c + S - 1, NC)))
        k("s_waitcnt vmcnt(%d)" % later)
        k("s_barrier")
        if c < 11: k.ts(1 + c)
        if c + S - 1 < NC:
            cnt[c + S - 1] = issue(c + S - 1)
        if c == NC - 1:
            k("s_add_u32 s60, s59, 0x%x" % roff)
            for q in range(4):
                k("buffer_load_dwordx2 %s, v12, s[%d:%d], s60 offen offset:%d" % (vr(RES + 2 * q, 2), rs, rs + 3, 16 * q))
        nks = kc // 16
        hi = st >= 65536
        if hi or st + 16384 + 16384 > 65536:
            pass
        for ks in range(nks):
            k("v_add_u32 v%d, %d, v%d" % (XC + ks, st, XA + ks))
        k("v_add_u32 v%d, %d, v10" % (WC, st))
        for ks in range(nks):
            k("ds_read_b128 %s, v%d" % (vr(BF + 4 * ks, 4), XC + ks))
            k("ds_read_b64_tr_b16 %s, v%d offset:%d" % (vr(AF + 4 * ks, 2), WC, ks * 2048))
            k("ds_read_b64_tr_b16 %s, v%d offset:%d" % (vr(AF + 4 * ks + 2, 2), WC, ks * 2048 + 512))
        for ks in range(nks):
            k("s_waitcnt lgkmcnt(%d)" % min(15, 3 * (nks - 1 - ks)))
            first = (c == 0 and ks == 0)
            k("v_mfma_f32_32x32x16_bf16 %s, %s, %s, %s" % (vr(ACC, 16), vr(AF + 4 * ks, 4), vr(BF + 4 * ks, 4), "0" if first else vr(ACC, 16)))
    k.ts(12)
    k("s_waitcnt vmcnt(0)")
    k("s_nop 15")
    for q in range(4):
        for d in range(2):
            r = RES + 2 * q + d
            k("v_lshlrev_b32 v%d, 16, v%d" % (BF, r))
            k("v_and_b32 v%d, 0xffff0000, v%d" % (BF + 1, r))
            k("v_add_f32 v%d, v%d, v%d" % (ACC + 4 * q + 2 * d, ACC + 4 * q + 2 * d, BF))
            k("v_add_f32 v%d, v%d, v%d" % (ACC + 4 * q + 2 * d + 1, ACC + 4 * q + 2 * d + 1, BF + 1))
    for r in range(8):
        k("v_cvt_pk_bf16_f32 v%d, v%d, v%d" % (RES + r, ACC + 2 * r, ACC + 2 * r + 1))
    k("s_add_u32 s60, s59, 0x%x" % ooff)
    for q in range(4):
        k("buffer_store_dwordx2 %s, v12, s[%d:%d], s60 offen offset:%d" % (vr(RES + 2 * q, 2), os_, os_ + 3, 16 * q))
    k.ts(13)
    k.ts_flush(14)
    k.lab(end)
    return k


def gen_C():
    return gen_gemm64("wo_kernel", WS_O, 1024, 32, 512, ('karg', 0), ('ws', WS_H))


def gen_E():
    return gen_gemm64("down_kernel", WS_ACT, 2752, 64, 1376, ('ws', WS_H), ('karg', 72))


def gen_D():
    S = 4
    STG = 40960
    k = Kern("ffn1_kernel", 352, 256, 240, S * STG, accum=256)
    end = k.newlab("end")
    k("s_cmp_ge_u32 s2, 240")
    k("s_cbranch_scc1 %s" % end)
    k.ts(0)
    k("s_load_dwordx4 s[24:27], s[0:1], 48")
    k("s_load_dwordx2 s[32:33], s[0:1], 88")
    k("v_and_b32 v1, 63, v0")
    k("v_lshrrev_b32 v2, 6, v0")
    k("s_nop 1")
    k("v_readfirstlane_b32 s3, v2")
    k("s_mul_i32 s48, s2, 4370")
    k("s_lshr_b32 s48, s48, 16")
    k("s_mul_i32 s49, s48, 15")
    k("s_sub_u32 s49, s2, s49")
    k("s_waitcnt lgkmcnt(0)")
    k.srd(8, 24, 512 * 2752)
    k.srd(12, 26, 512 * 2752)
    k.srd(20, 32, WS_SIZE)
    k("v_lshrrev_b32 v3, 3, v1")
    k("s_lshl_b32 s50, s3, 3")
    k("v_add_u32 v3, s50, v3")
    k("v_lshrrev_b32 v4, 1, v3")
    k("v_and_b32 v4, 7, v4")
    k("v_and_b32 v5, 7, v1")
    k("v_xor_b32 v4, v4, v5")
    k("v_lshlrev_b32 v4, 4, v4")
    k("s_lshl_b32 s51, s48, 7")
    k("v_add_u32 v3, s51, v3")
    k("v_lshl_add_u32 v4, v3, 10, v4")
    k("s_lshl_b32 s50, s3, 6")
    k("s_mul_i32 s52, s49, 192")
    for j in range(3):
        k("v_add_u32 v3, s50, v1")
        k("v_add_u32 v3, %d, v3" % (256 * j))
        k("v_mul_u32_u24 v8, 43691, v3")
        k("v_lshrrev_b32 v8, 19, v8")
        k("v_mul_u32_u24 v9, 12, v8")
        k("v_sub_u32 v9, v3, v9")
        k("v_mul_u32_u24 v8, 2752, v8")
        k("v_lshl_add_u32 v8, v9, 4, v8")
        k("v_add_u32 v%d, s52, v8" % (5 + j))
    k("s_lshl_b32 s52, s3, 10")

    def issue(c):
        st = (c % S) * STG
        for j in range(4):
            k("s_add_u32 m0, s52, %d" % (st + j * 4096))
            k("s_mov_b32 s54, %d" % (WS_H + j * 32 * 1024 + c * 128))
            k("buffer_load_dwordx4 v4, s[20:23], s54 offen lds")
        for (srdn, off) in ((8, 16384), (12, 28672)):
            for j in range(3):
                k("s_add_u32 m0, s52, %d" % (st + off + j * 4096))
                k("s_mov_b32 s54, %d" % (c * 64 * 2752))
                k("buffer_load_dwordx4 v%d, s[%d:%d], s54 offen lds" % (5 + j, srdn, srdn + 3))
    k("v_lshrrev_b32 v8, 5, v1")
    k("v_lshlrev_b32 v9, 4, v8")
    k("s_mul_i32 s55, s49, 384")
    k("s_add_u32 s55, s55, 0x%x" % WS_CS)
    k("s_add_u32 s53, s55, 5504")
    for m in range(2):
        for tl in range(3):
            for q in range(4):
                k("buffer_load_dwordx4 a[%d:%d], v9, s[20:23], s%d offen offset:%d" % (m * 48 + tl * 16 + 4 * q, m * 48 + tl * 16 + 4 * q + 3, 53 if m else 55, tl * 128 + q * 32))
    NC = 8
    for c in range(S - 1):
        issue(c)
    k("v_and_b32 v10, 31, v1")
    k("s_lshl_b32 s58, s3, 5")
    k("v_add_u32 v10, s58, v10")
    k("v_lshrrev_b32 v11, 1, v10")
    k("v_and_b32 v11, 7, v11")
    k("v_xor_b32 v11, v11, v8")
    k("v_lshlrev_b32 v11, 4, v11")
    k("v_lshl_add_u32 v11, v10, 7, v11")
    XA = 16
    for ks in range(4):
        k("v_xor_b32 v%d, %d, v11" % (XA + ks, ks * 32))
    k("v_lshrrev_b32 v12, 5, v1")
    k("v_lshlrev_b32 v12, 3, v12")
    k("v_bfe_u32 v13, v1, 2, 2")
    k("v_add_u32 v12, v12, v13")
    k("v_mul_u32_u24 v12, 192, v12")
    k("v_bfe_u32 v13, v1, 4, 1")
    k("v_lshl_add_u32 v12, v13, 5, v12")
    k("v_and_b32 v13, 3, v1")
    k("v_lshl_add_u32 v12, v13, 3, v12")
    k("v_add_u32 v12, 0x4000, v12")
    ONES = 24
    k("v_mov_b32 v%d, 0x3f803f80" % ONES)
    S1, S2 = 28, 29
    k("v_mov_b32 v%d, 0" % S1)
    k("v_mov_b32 v%d, 0" % S2)
    XC, WC = 20, 14
    ACC = 32
    BF = 128
    AF = 144
    for c in range(NC):
        st = (c % S) * STG
        later = 10 * (min(c + S - 1, NC) - (c + 1))
        k("s_waitcnt vmcnt(%d)" % later)
        k("s_barrier")
        k.ts(1 + c)
        if c + S - 1 < NC:
            issue(c + S - 1)
        for ks in range(4):
            k("v_add_u32 v%d, %d, v%d" % (XC + ks, st, XA + ks))
        k("v_add_u32 v%d, %d, v12" % (WC, st))
        for ks in range(4):
            k("ds_read_b128 %s, v%d" % (vr(BF + 4 * ks, 4), XC + ks))

        def rdA(ks):
            b = AF + 24 * (ks % 2)
            for t in range(6):
                off = (t // 3) * 12288 + ks * 16 * 192 + (t % 3) * 64
                k("ds_read_b64_tr_b16 %s, v%d offset:%d" % (vr(b + 4 * t, 2), WC, off))
                k("ds_read_b64_tr_b16 %s, v%d offset:%d" % (vr(b + 4 * t + 2, 2), WC, off + 768))
        rdA(0)
        for ks in range(4):
            if ks + 1 < 4:
                rdA(ks + 1)
                k("s_waitcnt lgkmcnt(12)")
            else:
                k("s_waitcnt lgkmcnt(0)")
            b = AF + 24 * (ks % 2)
            first = (c == 0 and ks == 0)
            for t in range(6):
                k("v_mfma_f32_32x32x16_bf16 %s, %s, %s, %s" % (vr(ACC + 16 * t, 16), vr(b + 4 * t, 4), vr(BF + 4 * ks, 4), "0" if first else vr(ACC + 16 * t, 16)))
            for q in range(4):
                k("v_dot2c_f32_bf16 v%d, v%d, v%d" % (S1, BF + 4 * ks + q, ONES))
                k("v_dot2c_f32_bf16 v%d, v%d, v%d" % (S2, BF + 4 * ks + q, BF + 4 * ks + q))
    k("s_nop 4")
    k("v_mov_b32 v30, v%d" % S1)
    k("v_mov_b32 v31, v%d" % S2)
    k("s_nop 1")
    k("v_permlane32_swap_b32 v%d, v30" % S1)
    k("v_permlane32_swap_b32 v%d, v31" % S2)
    k("s_nop 1")
    k("v_add_f32 v%d, v%d, v30" % (S1, S1))
    k("v_add_f32 v%d, v%d, v31" % (S2, S2))
    k("v_mul_f32 v%d, %s, v%d" % (S1, f32hex(1.0 / 512), S1))
    k("v_mul_f32 v%d, %s, v%d" % (S2, f32hex(1.0 / 512), S2))
    k("v_fma_f32 v%d, -v%d, v%d, v%d" % (S2, S1, S1, S2))
    k("v_add_f32 v%d, %s, v%d" % (S2, f32hex(1e-5), S2))
    k("v_rsq_f32 v%d, v%d" % (S2, S2))
    k.ts(9)
    k("s_waitcnt vmcnt(0)")
    k("s_nop 15")
    k("s_add_u32 s58, s58, s51")
    k("v_and_b32 v10, 31, v1")
    k("v_add_u32 v10, s58, v10")
    k("v_mul_u32_u24 v10, 2752, v10")
    k("v_lshl_add_u32 v10, v8, 3, v10")
    k("s_mul_i32 s59, s49, 192")
    k("s_add_u32 s59, s59, 0x%x" % WS_ACT)
    T = BF
    for tl in range(3):
        if tl > 0:
            k("s_cmp_eq_u32 s49, 14")
            k("s_cbranch_scc1 %s" % end)
        G, U = ACC + 16 * tl, ACC + 16 * (3 + tl)
        for r in range(16):
            k("v_accvgpr_read_b32 v%d, a%d" % (T + r, tl * 16 + r))
            k("v_accvgpr_read_b32 v%d, a%d" % (T + 16 + r, 48 + tl * 16 + r))
        for r in range(16):
            k("v_fma_f32 v%d, -v%d, v%d, v%d" % (G + r, S1, T + r, G + r))
            k("v_fma_f32 v%d, -v%d, v%d, v%d" % (U + r, S1, T + 16 + r, U + r))
        for r in range(16):
            k("v_mul_f32 v%d, v%d, v%d" % (G + r, S2, G + r))
            k("v_mul_f32 v%d, v%d, v%d" % (U + r, S2, U + r))
        for r in range(16):
            k("v_mul_f32 v%d, %s, v%d" % (T + r, f32hex(-LOG2E), G + r))
        for r in range(16):
            k("v_exp_f32 v%d, v%d" % (T + r, T + r))
        for r in range(16):
            k("v_add_f32 v%d, 1.0, v%d" % (T + r, T + r))
        for r in range(16):
            k("v_rcp_f32 v%d, v%d" % (T + r, T + r))
        for r in range(16):
            k("v_mul_f32 v%d, v%d, v%d" % (G + r, G + r, U + r))
        for r in range(16):
            k("v_mul_f32 v%d, v%d, v%d" % (G + r, G + r, T + r))
        for r in range(8):
            k("v_cvt_pk_bf16_f32 v%d, v%d, v%d" % (T + r, G + 2 * r, G + 2 * r + 1))
        for q in range(4):
            k("buffer_store_dwordx2 %s, v10, s[20:23], s59 offen offset:%d" % (vr(T + 2 * q, 2), tl * 64 + 16 * q))
    k.ts(10)
    k.ts_flush(11)
    k.lab(end)
    return k


def build(kerns):
    head = open("cdna_kernels/%s.s.ref" % NAME).read().split("; @launch")[0]
    out = [head.rstrip("\n")]
    for kk in kerns:
        out.append("; @launch kernel=%s grid=(%d,1,1) block=(%d,1,1) lds=%d" % (kk.name, kk.grid, kk.block, kk.lds))
    out.append('.amdgcn_target "amdgcn-amd-amdhsa--gfx950"')
    out.append(".text")
    for kk in kerns:
        out.append(kk.text())
    out.append('.section .rodata,"a"')
    for kk in kerns:
        out.append(".p2align 6")
        out.append(kk.desc())
    return "\n".join(out) + "\n"


def main():
    which = sys.argv[1] if len(sys.argv) > 1 else "ABCDE"
    gens = {"A": gen_A}
    for nm in "BCDE":
        if "gen_" + nm in globals():
            gens[nm] = globals()["gen_" + nm]
    kerns = [gens[c]() for c in which if c in gens]
    txt = build(kerns)
    open("cdna_kernels/%s.s" % NAME, "w").write(txt)
    print("wrote", len(txt), "bytes;", [kk.name for kk in kerns])


if __name__ == "__main__":
    main()
```

```python
import sys, re

NAME = "sequential_preLN__grouped_kv_mqa__swiglu_ffn__prompt"

WS_Q = 0x000000
WS_K = 0x200000
WS_V = 0x210000
WS_CS = 0x220000
WS_KM = 0x228000
WS_O = 0x300000
WS_H = 0x500000
WS_ACT = 0x800000
ACT_LD = 2816
WS_ST = 0x230000
WS_WG = 0x1000000
WS_WD = 0x1400000
WS_WO = 0x1600000
WS_HP = 0x1800000
WS_DUMMY = 0x2000000
KS1 = 16
WS_SIZE = 268435456
import os
DEBUG_TS = bool(os.environ.get('TS'))
TSMODE = int(os.environ.get('TS', '0'))
SRD3 = "0x00020000"
LOG2E = 1.4426950408889634


def f32hex(x):
    import struct
    return "0x%08x" % struct.unpack("<I", struct.pack("<f", x))[0]


class Kern:
    def __init__(s, name, nvgpr, block, grid, lds, accum=None):
        s.name = name
        s.L = []
        s.nvgpr = nvgpr
        s.block = block
        s.grid = grid
        s.lds = lds
        s.accum = accum if accum is not None else nvgpr
        s.nlab = 0
        s.kidx = {"attn_kernel": 1, "wo_kernel": 2, "ffn1_kernel": 3, "down_kernel": 4}.get(name, 0)

    def __call__(s, txt):
        for t in txt.split("\n"):
            t = t.strip()
            if t:
                m = re.search(r"offset:(\d+)", t)
                if m:
                    lim = 4095 if t.startswith("buffer") else 65535
                    assert int(m.group(1)) <= lim, t
                s.L.append("    " + t)

    def lab(s, l):
        s.L.append(l + ":")

    def newlab(s, p):
        s.nlab += 1
        return "%s_%s%d" % (s.name.replace("_kernel", "")[:8], p, s.nlab)

    def srd(s, reg, preg, size):
        s("s_mov_b32 s%d, s%d" % (reg, preg))
        s("s_and_b32 s%d, s%d, 0xffff" % (reg + 1, preg + 1))
        s("s_mov_b32 s%d, 0x%x" % (reg + 2, size))
        s("s_mov_b32 s%d, %s" % (reg + 3, SRD3))

    def ts(s, idx):
        if not DEBUG_TS:
            return
        if TSMODE == 3 and idx != 0:
            return
        s("s_memtime s[%d:%d]" % (70 + 2 * idx, 71 + 2 * idx))

    def ts_flush(s, n):
        if not DEBUG_TS:
            return
        if TSMODE == 3:
            lab = s.newlab("nots")
            s("s_memtime s[72:73]")
            s("s_waitcnt lgkmcnt(0)")
            s("s_cmp_lg_u32 s3, 0")
            s("s_cbranch_scc1 %s" % lab)
            s("s_lshl_b32 s69, s2, 3")
            s("s_add_u32 s69, s69, 0x%x" % (0x1F00000 + 4096 * s.kidx))
            s("v_mov_b32 v0, 0")
            s("v_mov_b32 v2, s70")
            s("v_mov_b32 v3, s72")
            s("s_mov_b64 exec, 1")
            s("buffer_store_dwordx2 v[2:3], v0, s[20:23], s69 offen")
            s.lab(lab)
            return
        lab = s.newlab("nots")
        s("s_waitcnt lgkmcnt(0)")
        s("s_sub_u32 s67, s2, 100")
        s("s_cmp_ge_u32 s67, 4")
        s("s_cbranch_scc1 %s" % lab)
        s("s_cmp_lg_u32 s3, 0")
        s("s_cbranch_scc1 %s" % lab)
        s("s_load_dwordx2 s[96:97], s[0:1], 80")
        s("s_waitcnt lgkmcnt(0)")
        s("s_mov_b32 s98, 256")
        s("s_mov_b32 s99, 0x00020000")
        s("s_lshl_b32 s69, s67, 6")
        s("v_mov_b32 v0, 0")
        for i in range(n):
            s("s_sub_u32 s68, s%d, s70" % (70 + 2 * i))
            s("v_mov_b32 v1, s68")
            s("buffer_store_dword v1, v0, s[96:99], s69 offen offset:%d" % (4 * i))
            s("s_nop 2")
        s.lab(lab)

    def text(s):
        out = []
        out.append(".globl %s" % s.name)
        out.append(".p2align 8")
        out.append(".type %s,@function" % s.name)
        out.append("%s:" % s.name)
        out += s.L
        out.append("    s_endpgm")
        return "\n".join(out)

    def desc(s):
        return "\n".join([
            ".amdhsa_kernel %s" % s.name,
            "  .amdhsa_next_free_vgpr %d" % s.nvgpr,
            "  .amdhsa_next_free_sgpr 102",
            "  .amdhsa_accum_offset %d" % s.accum,
            "  .amdhsa_group_segment_fixed_size 0",
            "  .amdhsa_kernarg_size 96",
            "  .amdhsa_user_sgpr_count 2",
            "  .amdhsa_user_sgpr_kernarg_segment_ptr 1",
            "  .amdhsa_system_sgpr_workgroup_id_x 1",
            ".end_amdhsa_kernel"])


def vr(a, n=1):
    return "v%d" % a if n == 1 else "v[%d:%d]" % (a, a + n - 1)


def sr(a, n=1):
    return "s%d" % a if n == 1 else "s[%d:%d]" % (a, a + n - 1)


def gen_A():
    k = Kern(NAME + "_kernel", 160, 256, 256, 163840)
    end = k.newlab("end")
    k("s_cmp_ge_u32 s2, 256")
    k("s_cbranch_scc1 %s" % end)
    k.ts(0)
    k("s_load_dwordx8 s[24:31], s[0:1], 0")
    k("s_load_dwordx2 s[32:33], s[0:1], 88")
    k("s_load_dwordx4 s[36:39], s[0:1], 48")
    k("v_and_b32 v1, 63, v0")
    k("v_lshrrev_b32 v2, 6, v0")
    k("s_nop 1")
    k("v_readfirstlane_b32 s3, v2")
    k("s_and_b32 s48, s2, 7")
    k("s_lshl_b32 s48, s48, 2")
    k("s_bfe_u32 s49, s2, 0x20003")
    k("s_add_u32 s48, s48, s49")
    k("s_lshr_b32 s49, s2, 5")
    k("s_waitcnt lgkmcnt(0)")
    k.srd(4, 24, 2048 * 512 * 2)
    k.srd(8, 26, 512 * 512 * 2)
    k.srd(12, 28, 512 * 16 * 2)
    k.srd(16, 30, 512 * 16 * 2)
    k.srd(20, 32, WS_SIZE)
    k.srd(40, 36, 512 * 1376 * 2)
    k.srd(44, 38, 512 * 1376 * 2)
    k("v_lshrrev_b32 v3, 4, v1")
    k("s_lshl_b32 s50, s3, 2")
    k("v_add_u32 v3, s50, v3")
    k("v_and_b32 v4, 15, v1")
    k("v_xor_b32 v4, v4, v3")
    k("v_lshlrev_b32 v4, 4, v4")
    k("s_lshl_b32 s51, s48, 6")
    k("v_add_u32 v3, s51, v3")
    k("v_lshl_add_u32 v4, v3, 10, v4")
    k("v_lshrrev_b32 v3, 3, v1")
    k("s_lshl_b32 s50, s3, 3")
    k("v_add_u32 v3, s50, v3")
    k("v_and_b32 v5, 7, v1")
    k("v_bfe_u32 v6, v1, 4, 1")
    k("v_lshlrev_b32 v6, 2, v6")
    k("v_xor_b32 v5, v5, v6")
    k("v_lshlrev_b32 v5, 4, v5")
    k("v_lshl_add_u32 v5, v3, 10, v5")
    k("s_lshl_b32 s50, s49, 7")
    k("v_add_u32 v5, s50, v5")
    k("v_lshlrev_b32 v6, 4, v1")
    k("s_lshl_b32 s52, s3, 10")
    k("s_and_b32 s50, s48, 7")
    k("s_cmp_eq_u32 s50, s49")
    k("s_cselect_b32 s53, 1, 0")
    nokv = k.newlab("nokv")
    k("s_cbranch_scc0 %s" % nokv)
    for j in range(4):
        for (srdn, base) in ((12, 131072), (16, 147456)):
            k("s_add_u32 s54, s52, %d" % (j * 4096))
            k("s_add_u32 m0, s54, %d" % base)
            k("s_nop 0")
            k("buffer_load_dwordx4 v6, s[%d:%d], s54 offen lds" % (srdn, srdn + 3))
    k.lab(nokv)
    for c in range(4):
        for j in range(4):
            k("s_add_u32 m0, s52, %d" % (c * 16384 + j * 4096))
            k("s_mov_b32 s54, %d" % (j * 16 * 1024 + c * 256))
            k("buffer_load_dwordx4 v4, s[4:7], s54 offen lds")
        for j in range(4):
            k("s_add_u32 m0, s52, %d" % (65536 + c * 16384 + j * 4096))
            k("s_mov_b32 s54, %d" % ((c * 128 + 32 * j) * 1024))
            k("buffer_load_dwordx4 v5, s[8:11], s54 offen lds")
    k.ts(1)
    noside = k.newlab("noside")
    k("s_cmp_ge_u32 s2, 86")
    k("s_cbranch_scc1 %s" % noside)
    k("s_cmp_lg_u32 s3, 3")
    k("s_cbranch_scc1 %s" % noside)
    k("s_cmp_ge_u32 s2, 43")
    k("s_cselect_b32 s60, s44, s40")
    k("s_cselect_b32 s61, s45, s41")
    k("s_mov_b32 s62, s42")
    k("s_mov_b32 s63, s43")
    k("s_cselect_b32 s55, 43, 0")
    k("s_sub_u32 s55, s2, s55")
    k("v_and_b32 v7, 31, v1")
    k("v_mul_u32_u24 v7, 2752, v7")
    k("v_lshrrev_b32 v8, 5, v1")
    k("v_lshl_add_u32 v7, v8, 4, v7")
    k("s_lshl_b32 s56, s55, 6")
    k("v_add_u32 v7, s56, v7")
    for t in range(16):
        k("s_mov_b32 s56, %d" % (t * 32 * 2752))
        k("buffer_load_dwordx4 %s, v7, s[60:63], s56 offen" % vr(16 + 8 * t, 4))
        k("buffer_load_dwordx4 %s, v7, s[60:63], s56 offen offset:32" % vr(20 + 8 * t, 4))
    k("v_and_b32 v8, 31, v1")
    k("v_lshrrev_b32 v9, 5, v1")
    k("v_lshlrev_b32 v9, 3, v9")
    k("v_sub_u32 v8, v8, v9")
    k("v_subrev_u32 v9, 16, v8")
    for (dv, base) in ((8, 148), (9, 152)):
        for q in range(4):
            k("v_cmp_eq_u32 vcc, %d, v%d" % (2 * q, dv))
            k("v_mov_b32 v10, 0x3f80")
            k("v_cndmask_b32 v11, 0, v10, vcc")
            k("v_cmp_eq_u32 vcc, %d, v%d" % (2 * q + 1, dv))
            k("v_mov_b32 v10, 0x3f800000")
            k("v_cndmask_b32 v%d, v11, v10, vcc" % (base + q))
    k("s_waitcnt vmcnt(0)")
    for t in range(16):
        c = "0" if t == 0 else "v[0+X:15+X]"
        cc = "0" if t == 0 else vr(144 - 144 + 0, 1)
        pass
    ACC = 160
    for t in range(16):
        cs = "0" if t == 0 else vr(ACC, 16)
        k("v_mfma_f32_32x32x16_bf16 %s, %s, %s, %s" % (vr(ACC, 16), vr(16 + 8 * t, 4), vr(148, 4), cs))
        k("v_mfma_f32_32x32x16_bf16 %s, %s, %s, %s" % (vr(ACC, 16), vr(20 + 8 * t, 4), vr(152, 4), vr(ACC, 16)))
    k("s_nop 15")
    k("s_nop 3")
    for step in (8, 4, 2, 1):
        for i in range(step):
            k("v_add_f32 v%d, v%d, v%d" % (ACC + i, ACC + i, ACC + i + step))
    k("v_mov_b32 v%d, v%d" % (ACC + 1, ACC))
    k("s_nop 1")
    k("v_permlane32_swap_b32 v%d, v%d" % (ACC, ACC + 1))
    k("s_nop 1")
    k("v_add_f32 v%d, v%d, v%d" % (ACC, ACC, ACC + 1))
    k("v_lshlrev_b32 v7, 2, v1")
    k("s_lshl_b32 s56, s2, 7")
    k("s_add_u32 s56, s56, 0x%x" % WS_CS)
    k("v_cmp_gt_u32 vcc, 32, v1")
    k("s_and_saveexec_b64 s[58:59], vcc")
    k("buffer_store_dword v%d, v7, s[20:23], s56 offen" % ACC)
    k("s_mov_b64 exec, s[58:59]")
    k.lab(noside)
    k.nvgpr = 176
    k.accum = 176

    k("s_and_b32 s56, s3, 1")
    k("s_lshr_b32 s57, s3, 1")
    k("v_and_b32 v7, 31, v1")
    k("s_lshl_b32 s58, s56, 5")
    k("v_add_u32 v7, s58, v7")
    k("v_lshrrev_b32 v8, 5, v1")
    k("v_and_b32 v9, 15, v7")
    k("v_xor_b32 v9, v9, v8")
    k("v_lshlrev_b32 v9, 4, v9")
    k("v_lshl_add_u32 v9, v7, 8, v9")
    XA = 8 + 8
    for ks in range(8):
        k("v_xor_b32 v%d, %d, v9" % (XA + ks, ks * 32))
    k("v_lshrrev_b32 v7, 5, v1")
    k("v_lshlrev_b32 v7, 3, v7")
    k("v_bfe_u32 v10, v1, 2, 2")
    k("v_add_u32 v7, v7, v10")
    k("v_bfe_u32 v10, v1, 4, 1")
    k("v_lshlrev_b32 v10, 5, v10")
    k("v_and_b32 v11, 3, v1")
    k("v_lshl_add_u32 v10, v11, 3, v10")
    k("s_lshl_b32 s58, s57, 6")
    k("v_add_u32 v10, s58, v10")
    k("v_bfe_u32 v11, v1, 3, 1")
    k("v_lshlrev_b32 v11, 6, v11")
    k("v_xor_b32 v10, v10, v11")
    k("v_lshl_add_u32 v10, v7, 7, v10")
    k("v_add_u32 v10, 0x10000, v10")
    k("v_and_b32 v11, 3, v1")
    k("v_lshlrev_b32 v11, 3, v11")
    k("v_lshl_add_u32 v11, v7, 5, v11")
    k("v_bfe_u32 v12, v1, 4, 1")
    k("v_lshl_add_u32 v11, v12, 14, v11")
    k("v_add_u32 v11, 0x20000, v11")
    ONES = 24
    for i in range(4):
        k("v_mov_b32 v%d, 0x3f803f80" % (ONES + i))
    S1, S2 = 28, 29
    k("v_mov_b32 v%d, 0" % S1)
    k("v_mov_b32 v%d, 0" % S2)
    ACC, CS = 32, 48
    BF, AF = 64, 96
    for c in range(4):
        k("s_waitcnt vmcnt(%d)" % (8 * (3 - c)))
        k("s_barrier")
        k.ts(2 + c)
        for ks in range(8):
            k("ds_read_b128 %s, v%d offset:%d" % (vr(BF + 4 * ks, 4), XA + ks, c * 16384))
            k("ds_read_b64_tr_b16 %s, v10 offset:%d" % (vr(AF + 4 * ks, 2), c * 16384 + ks * 2048))
            k("ds_read_b64_tr_b16 %s, v10 offset:%d" % (vr(AF + 4 * ks + 2, 2), c * 16384 + ks * 2048 + 512))
        for ks in range(8):
            k("s_waitcnt lgkmcnt(%d)" % min(15, 3 * (7 - ks)))
            first = (c == 0 and ks == 0)
            k("v_mfma_f32_32x32x16_bf16 %s, %s, %s, %s" % (vr(ACC, 16), vr(AF + 4 * ks, 4), vr(BF + 4 * ks, 4), "0" if first else vr(ACC, 16)))
            k("v_mfma_f32_32x32x16_bf16 %s, %s, %s, %s" % (vr(CS, 16), vr(AF + 4 * ks, 4), vr(ONES, 4), "0" if first else vr(CS, 16)))
            for q in range(4):
                k("v_dot2c_f32_bf16 v%d, v%d, v%d" % (S1, BF + 4 * ks + q, ONES))
                k("v_dot2c_f32_bf16 v%d, v%d, v%d" % (S2, BF + 4 * ks + q, BF + 4 * ks + q))
    k.ts(6)
    k("s_nop 4")
    k("v_mov_b32 v30, v%d" % S1)
    k("v_mov_b32 v31, v%d" % S2)
    k("s_nop 1")
    k("v_permlane32_swap_b32 v%d, v30" % S1)
    k("v_permlane32_swap_b32 v%d, v31" % S2)
    k("s_nop 1")
    k("v_add_f32 v%d, v%d, v30" % (S1, S1))
    k("v_add_f32 v%d, v%d, v31" % (S2, S2))
    k("v_mul_f32 v%d, %s, v%d" % (S1, f32hex(1.0 / 512), S1))
    k("v_mul_f32 v%d, %s, v%d" % (S2, f32hex(1.0 / 512), S2))
    k("v_fma_f32 v%d, -v%d, v%d, v%d" % (S2, S1, S1, S2))
    k("v_add_f32 v%d, %s, v%d" % (S2, f32hex(1e-5), S2))
    k("v_rsq_f32 v%d, v%d" % (S2, S2))
    k("s_nop 7")
    k("v_mul_f32 v30, %s, v%d" % (f32hex(0.25 * LOG2E), S2))
    k("s_nop 7")
    for r in range(16):
        k("v_fma_f32 v%d, -v%d, v%d, v%d" % (ACC + r, S1, CS + r, ACC + r))
    for r in range(16):
        k("v_mul_f32 v%d, v30, v%d" % (ACC + r, ACC + r))
    for r in range(8):
        k("v_cvt_pk_bf16_f32 v%d, v%d, v%d" % (CS + r, ACC + 2 * r, ACC + 2 * r + 1))
    k("v_and_b32 v7, 31, v1")
    k("s_lshl_b32 s58, s56, 5")
    k("s_add_u32 s58, s58, s51")
    k("v_add_u32 v7, s58, v7")
    k("v_lshrrev_b32 v8, 5, v1")
    k("v_lshlrev_b32 v8, 3, v8")
    k("v_lshl_add_u32 v12, v7, 10, v8")
    k("s_lshl_b32 s59, s49, 7")
    k("s_lshl_b32 s60, s57, 6")
    k("s_add_u32 s59, s59, s60")
    k("s_add_u32 s59, s59, 0x%x" % WS_Q)
    for q in range(4):
        k("buffer_store_dwordx2 %s, v12, s[20:23], s59 offen offset:%d" % (vr(CS + 2 * q, 2), 16 * q))
    k.ts(7)
    k.ts_flush(8)
    k("s_cmp_eq_u32 s53, 0")
    k("s_cbranch_scc1 %s" % end)
    k("s_cmp_lg_u32 s57, 0")
    k("s_cbranch_scc1 %s" % end)
    for c in range(4):
        for ks in range(8):
            k("ds_read_b128 %s, v%d offset:%d" % (vr(BF + 4 * ks, 4), XA + ks, c * 16384))
            k("ds_read_b64_tr_b16 %s, v11 offset:%d" % (vr(AF + 4 * ks, 2), (c * 128 + ks * 16) * 32))
            k("ds_read_b64_tr_b16 %s, v11 offset:%d" % (vr(AF + 4 * ks + 2, 2), (c * 128 + ks * 16 + 4) * 32))
        for ks in range(8):
            k("s_waitcnt lgkmcnt(%d)" % min(15, 3 * (7 - ks)))
            first = (c == 0 and ks == 0)
            k("v_mfma_f32_32x32x16_bf16 %s, %s, %s, %s" % (vr(ACC, 16), vr(AF + 4 * ks, 4), vr(BF + 4 * ks, 4), "0" if first else vr(ACC, 16)))
            k("v_mfma_f32_32x32x16_bf16 %s, %s, %s, %s" % (vr(CS, 16), vr(AF + 4 * ks, 4), vr(ONES, 4), "0" if first else vr(CS, 16)))
    k("s_nop 15")
    k("s_nop 3")
    for r in range(16):
        k("v_fma_f32 v%d, -v%d, v%d, v%d" % (ACC + r, S1, CS + r, ACC + r))
    for r in range(16):
        k("v_mul_f32 v%d, v%d, v%d" % (ACC + r, S2, ACC + r))
    for r in range(8):
        k("v_cvt_pk_bf16_f32 v%d, v%d, v%d" % (CS + r, ACC + 2 * r, ACC + 2 * r + 1))
    k("v_mov_b32 v14, 0")
    for i in range(4):
        k("v_dot2c_f32_bf16 v14, v%d, v%d" % (CS + i, CS + i))
    k("s_nop 4")
    k("v_mov_b32 v15, v14")
    k("s_nop 1")
    k("v_permlane32_swap_b32 v14, v15")
    k("s_nop 1")
    k("v_add_f32 v14, v14, v15")
    k("s_nop 1")
    for r in (8, 4, 2, 1):
        k("v_max_f32_dpp v14, v14, v14 row_ror:%d row_mask:0xf bank_mask:0xf" % r)
        k("s_nop 1")
    k("v_readlane_b32 s60, v14, 0")
    k("v_readlane_b32 s61, v14, 16")
    k("s_nop 3")
    k("s_max_u32 s60, s60, s61")
    k("v_mov_b32 v14, s60")
    k("v_mov_b32 v15, 0")
    k("s_lshl_b32 s61, s48, 1")
    k("s_add_u32 s61, s61, s56")
    k("s_lshl_b32 s61, s61, 2")
    k("s_add_u32 s61, s61, 0x%x" % WS_KM)
    k("s_mov_b64 exec, 1")
    k("buffer_store_dword v14, v15, s[20:23], s61 offen")
    k("s_mov_b64 exec, -1")
    k("v_and_b32 v13, 31, v1")
    k("v_lshlrev_b32 v13, 4, v13")
    k("v_lshrrev_b32 v8, 5, v1")
    k("v_lshl_add_u32 v13, v8, 3, v13")
    k("s_lshl_b32 s59, s48, 1")
    k("s_add_u32 s59, s59, s56")
    k("s_lshl_b32 s59, s59, 10")
    k("s_add_u32 s59, s59, 0x%x" % WS_K)
    k("buffer_store_dwordx2 %s, v13, s[20:23], s59 offen" % vr(CS, 2))
    k("buffer_store_dwordx2 %s, v13, s[20:23], s59 offen offset:512" % vr(CS + 2, 2))
    k("v_lshrrev_b32 v13, 4, v7")
    k("v_lshlrev_b32 v13, 9, v13")
    k("v_bfe_u32 v14, v7, 2, 1")
    k("v_lshl_add_u32 v13, v14, 8, v13")
    k("v_bfe_u32 v14, v7, 3, 1")
    k("v_lshl_add_u32 v13, v14, 3, v13")
    k("v_and_b32 v14, 3, v7")
    k("v_lshl_add_u32 v13, v14, 1, v13")
    k("v_lshl_add_u32 v13, v8, 6, v13")
    k("s_mov_b32 s59, 0x%x" % WS_V)
    for r in range(8, 16):
        d = (r & 3) + 8 * ((r >> 2) - 2)
        src = CS + r // 2
        op = "buffer_store_short" if r % 2 == 0 else "buffer_store_short_d16_hi"
        k("%s v%d, v13, s[20:23], s59 offen offset:%d" % (op, src, d * 16))
    k.lab(end)
    return k


def gen_B():
    k = Kern("attn_kernel", 128, 1024, 256, 163840)
    end = k.newlab("end")
    k("s_cmp_ge_u32 s2, 256")
    k("s_cbranch_scc1 %s" % end)
    k("s_load_dwordx2 s[32:33], s[0:1], 88")
    k("s_load_dwordx4 s[36:39], s[0:1], 48")
    k("s_load_dwordx2 s[40:41], s[0:1], 64")
    k("s_load_dwordx2 s[42:43], s[0:1], 32")
    k("v_and_b32 v1, 63, v0")
    k("v_lshrrev_b32 v2, 6, v0")
    k("s_nop 1")
    k("v_readfirstlane_b32 s3, v2")
    k("v_and_b32 v2, 31, v1")
    k("v_lshlrev_b32 v2, 5, v2")
    k("v_lshrrev_b32 v3, 5, v1")
    k("v_lshl_add_u32 v2, v3, 4, v2")
    k("v_lshlrev_b32 v8, 4, v1")
    k("s_and_b32 s48, s3, 7")
    k("s_lshr_b32 s49, s3, 3")
    k("s_lshl_b32 s50, s2, 3")
    k("s_add_u32 s50, s50, s48")
    k("s_lshl_b32 s51, s50, 10")
    k("s_add_u32 s51, s51, 0x%x" % WS_Q)
    k("s_lshr_b32 s52, s3, 3")
    k("s_lshl_b32 s52, s52, 15")
    k("s_and_b32 s53, s3, 7")
    k("s_lshl_b32 s53, s53, 10")
    k("s_add_u32 s52, s52, s53")
    k("s_waitcnt lgkmcnt(0)")
    k.srd(20, 32, WS_SIZE)
    QF = 4
    k("buffer_load_dwordx4 %s, v2, s[20:23], s51 offen" % vr(QF, 4))
    k("s_lshl_b32 s54, s49, 7")
    k("s_add_u32 s54, s54, 0x%x" % WS_KM)
    k("s_add_u32 s56, s32, s54")
    k("s_addc_u32 s57, s33, 0")
    k("s_load_dwordx16 s[64:79], s[56:57], 0")
    k("s_load_dwordx16 s[80:95], s[56:57], 64")
    for j in range(4):
        for ss in range(2):
            k("s_add_u32 m0, s52, %d" % (ss * 65536 + j * 8192))
            k("s_add_u32 s53, s52, 0x%x" % (WS_K + ss * 65536 + j * 8192))
            k("buffer_load_dwordx4 v8, s[20:23], s53 offen lds")
    k("s_lshl_b32 s54, s49, 15")
    k("v_add_u32 v9, s54, v8")
    k("v_and_b32 v10, 15, v1")
    k("v_lshlrev_b32 v10, 4, v10")
    k("v_lshl_add_u32 v10, v3, 8, v10")
    k("v_add_u32 v10, s54, v10")
    k("v_add_u32 v10, 0x10000, v10")
    NEG, SA, SB, O, PK, KF, VF = 16, 32, 48, 64, 80, 88, 100
    M = 11
    for i in range(16):
        k("v_mov_b32 v%d, 0x3f803f80" % (VF + i))
    k("s_mov_b32 s58, 0xffff")
    k("s_mov_b32 s59, 0xffff")
    k("s_waitcnt lgkmcnt(0)")
    for i in range(1, 32):
        k("s_max_u32 s64, s64, s%d" % (64 + i))
    k("v_mov_b32 v12, 0")
    k("s_waitcnt vmcnt(8)")
    for i in range(4):
        k("v_dot2c_f32_bf16 v12, v%d, v%d" % (QF + i, QF + i))
    k("s_nop 4")
    k("v_mov_b32 v13, v12")
    k("s_nop 1")
    k("v_permlane32_swap_b32 v12, v13")
    k("s_nop 1")
    k("v_add_f32 v12, v12, v13")
    k("v_mul_f32 v12, s64, v12")
    k("v_sqrt_f32 v%d, v12" % M)
    k("s_nop 1")
    for i in range(16):
        k("v_xor_b32 v%d, 0x80000000, v%d" % (NEG + i, M))
    S = [SA, SB]
    NT = 32

    RP, RQ = 116, 124

    def repack_issue():
        l_dn, l_go = k.newlab("rdn"), k.newlab("rgo")
        k("s_cmp_ge_u32 s64, 2752")
        k("s_cbranch_scc1 %s" % l_dn)
        k("s_lshr_b32 s65, s64, 5")
        k("s_and_b32 s66, s64, 31")
        k("s_cmp_ge_u32 s65, 43")
        k("s_cselect_b32 s67, 1, 0")
        k("s_cselect_b32 s84, s38, s36")
        k("s_cselect_b32 s85, s39, s37")
        k("s_mul_i32 s68, s67, 43")
        k("s_sub_u32 s65, s65, s68")
        k("s_mul_i32 s68, s65, 171")
        k("s_lshr_b32 s68, s68, 9")
        k("s_mul_i32 s69, s68, 3")
        k("s_sub_u32 s69, s65, s69")
        k("s_mul_i32 s70, s66, 6")
        k("s_mul_i32 s71, s67, 3")
        k("s_add_u32 s70, s70, s71")
        k("s_add_u32 s70, s70, s69")
        k("s_mul_i32 s71, s69, %d" % ((32 - KS1) * 2))
        k("s_lshl_b32 s72, s66, 1")
        k("s_add_u32 s71, s71, s72")
        k("s_add_u32 s71, s71, s67")
        k("s_add_u32 s71, s71, %d" % (KS1 * 6 - 2 * KS1))
        k("s_cmp_lt_u32 s66, %d" % KS1)
        k("s_cselect_b32 s70, s70, s71")
        k("s_lshl_b32 s70, s70, 10")
        k("s_mul_i32 s90, s68, 196608")
        k("s_add_u32 s90, s90, s70")
        k("s_add_u32 s90, s90, 0x%x" % WS_WG)
        k("s_mov_b32 s86, %d" % (512 * 2752))
        k("s_mov_b32 s89, 2752")
        k("s_branch %s" % l_go)
        k.lab(l_dn)
        k("s_sub_u32 s64, s64, 2752")
        k("s_cmp_ge_u32 s64, 1376")
        k("s_cselect_b32 s84, s42, s40")
        k("s_cselect_b32 s85, s43, s41")
        k("s_mov_b32 s86, %d" % (1376 * 1024))
        k("s_mov_b32 s68, %d" % (86 * 2048))
        k("s_mov_b32 s90, 0x%x" % WS_WD)
        k("s_cselect_b32 s86, %d, s86" % (512 * 1024))
        k("s_cselect_b32 s67, 1376, 0")
        k("s_cselect_b32 s68, 65536, s68")
        k("s_cselect_b32 s90, 0x%x, s90" % WS_WO)
        k("s_sub_u32 s64, s64, s67")
        k("s_lshr_b32 s66, s64, 4")
        k("s_and_b32 s65, s64, 15")
        k("s_lshr_b32 s69, s65, 1")
        k("s_mul_i32 s69, s69, s68")
        k("s_add_u32 s90, s90, s69")
        k("s_lshl_b32 s69, s66, 11")
        k("s_add_u32 s90, s90, s69")
        k("s_and_b32 s69, s65, 1")
        k("s_lshl_b32 s69, s69, 10")
        k("s_add_u32 s90, s90, s69")
        k("s_mov_b32 s89, 1024")
        k.lab(l_go)
        k("s_and_b32 s85, s85, 0xffff")
        k("s_mov_b32 s87, %s" % SRD3)
        k("s_mul_i32 s88, s66, s89")
        k("s_lshl_b32 s88, s88, 4")
        k("s_lshl_b32 s69, s65, 6")
        k("s_add_u32 s88, s88, s69")
        k("s_lshl_b32 s69, s89, 3")
        k("v_mul_u32_u24 v14, s69, v3")
        k("v_and_b32 v15, 31, v1")
        k("v_lshl_add_u32 v14, v15, 1, v14")
        for j in range(8):
            k("buffer_load_ushort v%d, v14, s[84:87], s88 offen" % (RP + j))
            if j < 7:
                k("s_add_u32 s88, s88, s89")

    def repack_store():
        k("s_waitcnt vmcnt(0)")
        for q in range(4):
            k("v_lshl_or_b32 v%d, v%d, 16, v%d" % (RQ + q, RP + 2 * q + 1, RP + 2 * q))
        k("buffer_store_dwordx4 %s, v8, s[20:23], s90 offen" % vr(RQ, 4))

    def rdV(t):
        k("s_mov_b64 exec, s[58:59]")
        k("ds_read_b128 %s, v10 offset:%d" % (vr(VF + 8 * (t % 2), 4), t * 1024))
        k("ds_read_b128 %s, v10 offset:%d" % (vr(VF + 8 * (t % 2) + 4, 4), t * 1024 + 512))
        k("s_mov_b64 exec, -1")

    def pass2(bars):
        if bars:
            k("s_waitcnt vmcnt(6)")
            k("s_barrier")
        k("ds_read_b128 %s, v9 offset:0" % vr(KF, 4))
        k("ds_read_b128 %s, v9 offset:1024" % vr(KF + 4, 4))
        rdV(0)
        k("s_waitcnt lgkmcnt(3)")
        k("v_mfma_f32_32x32x16_bf16 %s, %s, %s, %s" % (vr(S[0], 16), vr(KF, 4), vr(QF, 4), vr(NEG, 16)))
        for t in range(NT):
            n_new = 0
            if bars and t == 23:
                k("s_lshl_b32 s64, s2, 4")
                k("s_add_u32 s64, s64, s3")
                repack_issue()
            if bars and t == 28:
                repack_store()
                nr2 = k.newlab("nr2")
                k("s_lshl_b32 s64, s3, 8")
                k("s_add_u32 s64, s64, s2")
                k("s_mov_b32 s91, 0")
                k("s_cmp_ge_u32 s64, 544")
                k("s_cbranch_scc1 %s" % nr2)
                k("s_mov_b32 s91, 1")
                k("s_add_u32 s64, s64, 4096")
                repack_issue()
                k.lab(nr2)
            if t + 2 < NT:
                if bars and (t + 2) % 8 == 0:
                    k("s_waitcnt vmcnt(%d)" % (6 - 2 * ((t + 2) // 8)))
                    k("s_barrier")
                k("ds_read_b128 %s, v9 offset:%d" % (vr(KF + 4 * ((t + 2) % 3), 4), (t + 2) * 1024))
                n_new += 1
            if t + 1 < NT:
                k("s_waitcnt lgkmcnt(%d)" % (2 + n_new))
                k("v_mfma_f32_32x32x16_bf16 %s, %s, %s, %s" % (vr(S[(t + 1) % 2], 16), vr(KF + 4 * ((t + 1) % 3), 4), vr(QF, 4), vr(NEG, 16)))
            if t == 0:
                k("s_nop 10")
            s = S[t % 2]
            for i in range(16):
                k("v_exp_f32 v%d, v%d" % (s + i, s + i))
            for i in range(8):
                k("v_cvt_pk_bf16_f32 v%d, v%d, v%d" % (PK + i, s + 2 * i, s + 2 * i + 1))
            k("s_waitcnt lgkmcnt(%d)" % n_new)
            k("v_mfma_f32_32x32x16_bf16 %s, %s, %s, %s" % (vr(O, 16), vr(VF + 8 * (t % 2), 4), vr(PK, 4), "0" if t == 0 else vr(O, 16)))
            k("v_mfma_f32_32x32x16_bf16 %s, %s, %s, %s" % (vr(O, 16), vr(VF + 8 * (t % 2) + 4, 4), vr(PK + 4, 4), vr(O, 16)))
            if t + 1 < NT:
                rdV(t + 1)
    pass2(True)
    nr3 = k.newlab("nr3")
    k("s_cmp_eq_u32 s91, 0")
    k("s_cbranch_scc1 %s" % nr3)
    repack_store()
    k.lab(nr3)
    k("s_nop 15")
    k("v_cmp_gt_f32 vcc, 0x%08x, v%d" % ((127 - 64) << 23, O + 8))
    k("v_cmp_u_f32 s[60:61], v%d, v%d" % (O + 8, O + 8))
    k("s_or_b64 vcc, vcc, s[60:61]")
    comb = k.newlab("comb")
    k("s_cbranch_vccz %s" % comb)
    k("v_mov_b32 v%d, 0xff800000" % M)
    k("ds_read_b128 %s, v9 offset:0" % vr(KF, 4))
    k("ds_read_b128 %s, v9 offset:1024" % vr(KF + 4, 4))
    k("s_waitcnt lgkmcnt(1)")
    k("v_mfma_f32_32x32x16_bf16 %s, %s, %s, 0" % (vr(S[0], 16), vr(KF, 4), vr(QF, 4)))
    for t in range(NT):
        if t + 2 < NT:
            k("ds_read_b128 %s, v9 offset:%d" % (vr(KF + 4 * ((t + 2) % 3), 4), (t + 2) * 1024))
        if t + 1 < NT:
            k("s_waitcnt lgkmcnt(%d)" % (1 if t + 2 < NT else 0))
            k("v_mfma_f32_32x32x16_bf16 %s, %s, %s, 0" % (vr(S[(t + 1) % 2], 16), vr(KF + 4 * ((t + 1) % 3), 4), vr(QF, 4)))
        k("s_nop 10" if t == 0 else "s_nop 3")
        s = S[t % 2]
        for i in range(8):
            k("v_max3_f32 v%d, v%d, v%d, v%d" % (M, s + 2 * i, s + 2 * i + 1, M))
    k("v_mov_b32 v12, v%d" % M)
    k("s_nop 1")
    k("v_permlane32_swap_b32 v%d, v12" % M)
    k("s_nop 1")
    k("v_max_f32 v%d, v%d, v12" % (M, M))
    for i in range(16):
        k("v_xor_b32 v%d, 0x80000000, v%d" % (NEG + i, M))
    k("s_nop 1")
    pass2(False)
    k("s_nop 15")
    k.lab(comb)
    k("s_mul_i32 s60, s48, 2560")
    k("s_add_u32 s60, s60, 0x20000")
    k("v_lshlrev_b32 v12, 2, v1")
    k("v_add_u32 v12, s60, v12")
    w1 = k.newlab("w1")
    k("s_cmp_eq_u32 s49, 0")
    k("s_cbranch_scc1 %s" % w1)
    for i in range(9):
        k("ds_write_b32 v12, v%d offset:%d" % (O + i, i * 256))
    k("ds_write_b32 v12, v%d offset:%d" % (M, 9 * 256))
    k("s_waitcnt lgkmcnt(0)")
    k("s_barrier")
    k("s_branch %s" % end)
    k.lab(w1)
    k("s_barrier")
    for i in range(9):
        k("ds_read_b32 v%d, v12 offset:%d" % (SA + i, i * 256))
    k("ds_read_b32 v%d, v12 offset:%d" % (SA + 9, 9 * 256))
    k("s_waitcnt lgkmcnt(0)")
    m1 = SA + 9
    k("v_max_f32 v13, v%d, v%d" % (M, m1))
    k("v_sub_f32 v14, v%d, v13" % M)
    k("v_sub_f32 v15, v%d, v13" % m1)
    k("v_exp_f32 v14, v14")
    k("v_exp_f32 v15, v15")
    k("s_nop 1")
    for i in range(9):
        k("v_mul_f32 v%d, v14, v%d" % (O + i, O + i))
    for i in range(9):
        k("v_fma_f32 v%d, v15, v%d, v%d" % (O + i, SA + i, O + i))
    k("v_rcp_f32 v13, v%d" % (O + 8))
    k("s_nop 1")
    for i in range(8):
        k("v_mul_f32 v%d, v13, v%d" % (O + i, O + i))
    for i in range(4):
        k("v_cvt_pk_bf16_f32 v%d, v%d, v%d" % (PK + i, O + 2 * i, O + 2 * i + 1))
    k("v_and_b32 v2, 31, v1")
    k("v_lshlrev_b32 v2, 5, v2")
    k("v_lshl_add_u32 v2, v3, 3, v2")
    k("s_lshl_b32 s51, s50, 10")
    k("s_add_u32 s51, s51, 0x%x" % WS_O)
    k("buffer_store_dwordx2 %s, v2, s[20:23], s51 offen" % vr(PK, 2))
    k("buffer_store_dwordx2 %s, v2, s[20:23], s51 offen offset:16" % vr(PK + 2, 2))
    k.lab(end)
    return k


def gen_gemm64(name, x_ws_off, ldx, w_karg, K, resid, outp, S=4, stats=False):
    lds = S * 32768
    k = Kern(name, 128, 256, 256, lds)
    end = k.newlab("end")
    k("s_cmp_ge_u32 s2, 256")
    k("s_cbranch_scc1 %s" % end)
    k.ts(0)
    k("s_load_dwordx2 s[24:25], s[0:1], %d" % w_karg)
    k("s_load_dwordx2 s[32:33], s[0:1], 88")
    if resid[0] == 'karg':
        k("s_load_dwordx2 s[26:27], s[0:1], %d" % resid[1])
    if outp[0] == 'karg':
        k("s_load_dwordx2 s[28:29], s[0:1], %d" % outp[1])
    k("v_and_b32 v1, 63, v0")
    k("v_lshrrev_b32 v2, 6, v0")
    k("s_nop 1")
    k("v_readfirstlane_b32 s3, v2")
    k("s_and_b32 s48, s2, 7")
    k("s_lshl_b32 s48, s48, 2")
    k("s_bfe_u32 s49, s2, 0x20003")
    k("s_add_u32 s48, s48, s49")
    k("s_lshr_b32 s49, s2, 5")
    k("s_waitcnt lgkmcnt(0)")
    k.srd(8, 24, K * 1024)
    k.srd(20, 32, WS_SIZE)
    if resid[0] == 'karg':
        k.srd(12, 26, 2048 * 1024)
        rs, roff = 12, 0
    else:
        rs, roff = 20, resid[1]
    if outp[0] == 'karg':
        k.srd(16, 28, 2048 * 1024)
        os_, ooff = 16, 0
    else:
        os_, ooff = 20, outp[1]
    k("v_lshrrev_b32 v3, 4, v1")
    k("s_lshl_b32 s50, s3, 2")
    k("v_add_u32 v3, s50, v3")
    k("v_and_b32 v4, 15, v1")
    k("v_xor_b32 v4, v4, v3")
    k("v_lshlrev_b32 v4, 4, v4")
    k("s_lshl_b32 s51, s48, 6")
    k("v_add_u32 v3, s51, v3")
    k("v_mul_u32_u24 v3, %d, v3" % ldx)
    k("v_add_u32 v4, v3, v4")
    k("v_lshrrev_b32 v3, 3, v1")
    k("s_lshl_b32 s50, s3, 3")
    k("v_add_u32 v3, s50, v3")
    k("v_and_b32 v5, 7, v1")
    k("v_bfe_u32 v6, v1, 4, 1")
    k("v_lshlrev_b32 v6, 2, v6")
    k("v_xor_b32 v5, v5, v6")
    k("v_lshlrev_b32 v5, 4, v5")
    k("v_lshl_add_u32 v5, v3, 10, v5")
    k("s_lshl_b32 s50, s49, 7")
    k("v_add_u32 v5, s50, v5")
    k("s_lshl_b32 s52, s3, 10")
    chunks = []
    kk = 0
    while kk < K:
        c = min(128, K - kk)
        chunks.append((kk, c))
        kk += c
    NC = len(chunks)

    def issue(c):
        k0, kc = chunks[c]
        st = (c % S) * 32768
        n = 0
        for j in range(4):
            k("s_add_u32 m0, s52, %d" % (st + j * 4096))
            k("s_mov_b32 s54, %d" % (x_ws_off + j * 16 * ldx + k0 * 2))
            k("buffer_load_dwordx4 v4, s[20:23], s54 offen lds")
            n += 1
        for j in range(kc // 32):
            k("s_add_u32 m0, s52, %d" % (st + 16384 + j * 4096))
            k("s_mov_b32 s54, %d" % ((k0 + 32 * j) * 1024))
            k("buffer_load_dwordx4 v5, s[8:11], s54 offen lds")
            n += 1
        return n
    cnt = {}
    for c in range(min(S - 1, NC)):
        cnt[c] = issue(c)
    k("s_and_b32 s56, s3, 1")
    k("s_lshr_b32 s57, s3, 1")
    k("v_and_b32 v7, 31, v1")
    k("s_lshl_b32 s58, s56, 5")
    k("v_add_u32 v7, s58, v7")
    k("v_lshrrev_b32 v8, 5, v1")
    k("v_and_b32 v9, 15, v7")
    k("v_xor_b32 v9, v9, v8")
    k("v_lshlrev_b32 v9, 4, v9")
    k("v_lshl_add_u32 v9, v7, 8, v9")
    XA = 16
    for ks in range(8):
        k("v_xor_b32 v%d, %d, v9" % (XA + ks, ks * 32))
    k("v_lshrrev_b32 v11, 5, v1")
    k("v_lshlrev_b32 v11, 3, v11")
    k("v_bfe_u32 v10, v1, 2, 2")
    k("v_add_u32 v11, v11, v10")
    k("v_bfe_u32 v10, v1, 4, 1")
    k("v_lshlrev_b32 v10, 5, v10")
    k("v_and_b32 v12, 3, v1")
    k("v_lshl_add_u32 v10, v12, 3, v10")
    k("s_lshl_b32 s58, s57, 6")
    k("v_add_u32 v10, s58, v10")
    k("v_bfe_u32 v12, v1, 3, 1")
    k("v_lshlrev_b32 v12, 6, v12")
    k("v_xor_b32 v10, v10, v12")
    k("v_lshl_add_u32 v10, v11, 7, v10")
    k("v_add_u32 v10, 0x4000, v10")
    k("s_lshl_b32 s58, s56, 5")
    k("s_add_u32 s58, s58, s51")
    k("v_and_b32 v13, 31, v1")
    k("v_add_u32 v13, s58, v13")
    k("v_lshlrev_b32 v12, 3, v8")
    k("v_lshl_add_u32 v12, v13, 10, v12")
    k("s_lshl_b32 s59, s49, 7")
    k("s_lshl_b32 s60, s57, 6")
    k("s_add_u32 s59, s59, s60")
    ACC, RES, XC, WC = 32, 48, 24, 14
    BF, AF = 64, 96
    for c in range(NC):
        k0, kc = chunks[c]
        st = (c % S) * 32768
        later = sum(cnt[cc] for cc in range(c + 1, min(c + S - 1, NC)))
        k("s_waitcnt vmcnt(%d)" % later)
        k("s_barrier")
        if c < 11: k.ts(1 + c)
        if c + S - 1 < NC:
            cnt[c + S - 1] = issue(c + S - 1)
        if c == NC - 1:
            k("s_add_u32 s60, s59, 0x%x" % roff)
            for q in range(4):
                k("buffer_load_dwordx2 %s, v12, s[%d:%d], s60 offen offset:%d" % (vr(RES + 2 * q, 2), rs, rs + 3, 16 * q))
        nks = kc // 16
        hi = st >= 65536
        if hi or st + 16384 + 16384 > 65536:
            pass
        for ks in range(nks):
            k("v_add_u32 v%d, %d, v%d" % (XC + ks, st, XA + ks))
        k("v_add_u32 v%d, %d, v10" % (WC, st))
        for ks in range(nks):
            k("ds_read_b128 %s, v%d" % (vr(BF + 4 * ks, 4), XC + ks))
            k("ds_read_b64_tr_b16 %s, v%d offset:%d" % (vr(AF + 4 * ks, 2), WC, ks * 2048))
            k("ds_read_b64_tr_b16 %s, v%d offset:%d" % (vr(AF + 4 * ks + 2, 2), WC, ks * 2048 + 512))
        for ks in range(nks):
            k("s_waitcnt lgkmcnt(%d)" % min(15, 3 * (nks - 1 - ks)))
            first = (c == 0 and ks == 0)
            k("v_mfma_f32_32x32x16_bf16 %s, %s, %s, %s" % (vr(ACC, 16), vr(AF + 4 * ks, 4), vr(BF + 4 * ks, 4), "0" if first else vr(ACC, 16)))
    k.ts(12)
    k("s_waitcnt vmcnt(0)")
    k("s_nop 15")
    for q in range(4):
        for d in range(2):
            r = RES + 2 * q + d
            k("v_lshlrev_b32 v%d, 16, v%d" % (BF, r))
            k("v_and_b32 v%d, 0xffff0000, v%d" % (BF + 1, r))
            k("v_add_f32 v%d, v%d, v%d" % (ACC + 4 * q + 2 * d, ACC + 4 * q + 2 * d, BF))
            k("v_add_f32 v%d, v%d, v%d" % (ACC + 4 * q + 2 * d + 1, ACC + 4 * q + 2 * d + 1, BF + 1))
    for r in range(8):
        k("v_cvt_pk_bf16_f32 v%d, v%d, v%d" % (RES + r, ACC + 2 * r, ACC + 2 * r + 1))
    k("s_add_u32 s60, s59, 0x%x" % ooff)
    for q in range(4):
        k("buffer_store_dwordx2 %s, v12, s[%d:%d], s60 offen offset:%d" % (vr(RES + 2 * q, 2), os_, os_ + 3, 16 * q))
    if stats:
        T = AF
        k("v_and_b32 v%d, 31, v1" % (T + 7))
        k("v_lshlrev_b32 v%d, 4, v%d" % (T + 7, T + 7))
        k("v_lshl_add_u32 v%d, v8, 3, v%d" % (T + 7, T + 7))
        k("s_lshl_b32 s60, s48, 1")
        k("s_add_u32 s60, s60, s56")
        k("s_lshl_b32 s60, s60, 5")
        k("s_lshl_b32 s61, s49, 2")
        k("s_add_u32 s60, s60, s61")
        k("s_lshl_b32 s61, s57, 1")
        k("s_add_u32 s60, s60, s61")
        k("s_lshl_b32 s60, s60, 10")
        k("s_add_u32 s60, s60, 0x%x" % WS_HP)
        for q in range(4):
            k("buffer_store_dwordx2 %s, v%d, s[20:23], s60 offen offset:%d" % (vr(RES + 2 * q, 2), T + 7, (q >> 1) * 1024 + (q & 1) * 512))
        k("v_mov_b32 v%d, 0x3f803f80" % T)
        for i in range(4):
            k("v_mov_b32 v%d, 0" % (T + 2 + i))
        for r in range(8):
            k("v_dot2c_f32_bf16 v%d, v%d, v%d" % (T + 2 + (r & 1), RES + r, T))
            k("v_dot2c_f32_bf16 v%d, v%d, v%d" % (T + 4 + (r & 1), RES + r, RES + r))
        k("s_nop 4")
        k("v_add_f32 v%d, v%d, v%d" % (T + 2, T + 2, T + 3))
        k("v_add_f32 v%d, v%d, v%d" % (T + 3, T + 4, T + 5))
        k("v_mov_b32 v%d, v%d" % (T + 4, T + 2))
        k("v_mov_b32 v%d, v%d" % (T + 5, T + 3))
        k("s_nop 1")
        k("v_permlane32_swap_b32 v%d, v%d" % (T + 2, T + 4))
        k("v_permlane32_swap_b32 v%d, v%d" % (T + 3, T + 5))
        k("s_nop 1")
        k("v_add_f32 v%d, v%d, v%d" % (T + 2, T + 2, T + 4))
        k("v_add_f32 v%d, v%d, v%d" % (T + 3, T + 3, T + 5))
        k("v_lshlrev_b32 v%d, 7, v13" % (T + 6))
        k("s_lshl_b32 s60, s49, 1")
        k("s_add_u32 s60, s60, s57")
        k("s_lshl_b32 s60, s60, 3")
        k("s_add_u32 s60, s60, 0x%x" % WS_ST)
        k("v_cmp_gt_u32 vcc, 32, v1")
        k("s_and_saveexec_b64 s[62:63], vcc")
        k("buffer_store_dwordx2 %s, v%d, s[20:23], s60 offen" % (vr(T + 2, 2), T + 6))
        k("s_mov_b64 exec, s[62:63]")
    k.ts(13)
    k.ts_flush(14)
    k.lab(end)
    return k


def gen_C():
    return gen_gemm64("wo_kernel", WS_O, 1024, 32, 512, ('karg', 0), ('ws', WS_H), stats=True)


def gen_E():
    return gen_gemm64("down_kernel", WS_ACT, ACT_LD, 64, 1376, ('ws', WS_H), ('karg', 72))


class VM:
    def __init__(s, k):
        s.k = k
        s.n = 0
    def issue(s):
        s.n += 1
        return s.n
    def wait(s, tok):
        if os.environ.get("EXP", "") == "nomem":
            return
        s.k("s_waitcnt vmcnt(%d)" % min(63, s.n - tok))


def gen_D():
    S = 10
    CH = 16384
    NCH = 12
    k = Kern("ffn1_kernel", 288, 256, 256, S * CH, accum=256)
    vm = VM(k)
    end = k.newlab("end")
    k("s_cmp_ge_u32 s2, 256")
    k("s_cbranch_scc1 %s" % end)
    k.ts(0)
    k("s_load_dwordx2 s[32:33], s[0:1], 88")
    k("v_and_b32 v1, 63, v0")
    k("v_lshrrev_b32 v2, 6, v0")
    k("s_nop 1")
    k("v_readfirstlane_b32 s3, v2")
    k("s_bfe_u32 s48, s2, 0x20001")
    k("s_lshl_b32 s48, s48, 2")
    k("s_bfe_u32 s49, s2, 0x20003")
    k("s_add_u32 s48, s48, s49")
    k("s_and_b32 s49, s2, 1")
    k("s_lshl_b32 s49, s49, 3")
    k("s_lshr_b32 s50, s2, 5")
    k("s_add_u32 s49, s49, s50")
    k("s_cmp_ge_u32 s49, 15")
    k("s_cbranch_scc1 %s" % end)
    k("v_and_b32 v2, 31, v1")
    k("v_lshrrev_b32 v3, 5, v1")
    k("s_lshl_b32 s50, s3, 5")
    k("s_lshl_b32 s51, s48, 7")
    k("s_add_u32 s50, s50, s51")
    k("v_add_u32 v2, s50, v2")
    k("s_lshl_b32 s57, s50, 10")
    k("v_lshlrev_b32 v6, 7, v2")
    k("v_lshl_add_u32 v6, v3, 6, v6")
    k("v_lshlrev_b32 v7, 4, v1")
    k("v_add_u32 v8, 0x10000, v7")
    k("v_add_u32 v9, 0x20000, v7")
    k("s_lshl_b32 s52, s3, 10")
    k("v_add_u32 v4, s52, v7")
    k("s_mul_i32 s53, s49, 196608")
    k("s_add_u32 s53, s53, 0x%x" % WS_WG)
    k("s_mov_b32 s55, 0x%x" % WS_ST)
    k("s_add_u32 s57, s57, 0x%x" % WS_HP)
    k("s_waitcnt lgkmcnt(0)")
    k.srd(20, 32, WS_SIZE)
    ACC, B, T = 16, 112, 240
    order = []
    for ks in range(KS1):
        for t in range(6):
            order.append((t, ks))
    for p in range(3):
        for ks in range(KS1, 32):
            order.append((p, ks))
            order.append((p + 3, ks))
    assert len(order) == 192
    tokA, tokB = {}, {}

    NOMEM = os.environ.get("EXP", "") == "nomem"
    vq = []

    def opA(c, j):
        def f():
            if NOMEM:
                tokA[c] = 0
                return
            k("s_add_u32 m0, s52, %d" % ((c % S) * CH + j * 4096))
            k("s_add_u32 s54, s53, %d" % (c * CH + j * 4096))
            k("buffer_load_dwordx4 v4, s[20:23], s54 offen lds")
            tokA[c] = vm.issue()
        return f

    def opB(g):
        def f():
            if NOMEM:
                tokB[g] = 0
                return
            k("s_add_u32 s56, s57, %d" % (g * 1024))
            k("buffer_load_dwordx4 %s, v7, s[20:23], s56 offen" % vr(B + 4 * g, 4))
            tokB[g] = vm.issue()
        return f
    nb = 0
    for c in range(NCH):
        need = max(ks for (t, ks) in order[:min(192, (c + 1) * 16 + 8)]) + 1
        while nb < need:
            vq.append((c, opB(nb))); nb += 1
        for j in range(4):
            vq.append((c, opA(c, j)))
    W = int(os.environ.get("W", "4"))

    def vflush(c):
        while vq and vq[0][0] <= c:
            vq.pop(0)[1]()

    def vstep(cur_chunk_x16):
        if vq and vq[0][0] * 16 <= cur_chunk_x16 + W * 16:
            vq.pop(0)[1]()
    for q in range(4):
        k("buffer_load_dwordx4 %s, v6, s[20:23], s55 offen offset:%d" % (vr(ACC + 4 * q, 4), 16 * q))
        tokS = vm.issue()
    vflush(W - 1)
    k.ts(1)
    vm.wait(tokS)
    for i in range(2, 8):
        k("v_add_f32 v%d, v%d, v%d" % (ACC + (i & 1), ACC + (i & 1), ACC + 2 * (i // 2) * 1 + (i & 1)) if False else "")
    for st in (8, 4, 2):
        for i in range(st):
            k("v_add_f32 v%d, v%d, v%d" % (ACC + i, ACC + i, ACC + i + st))
    k("v_mov_b32 v%d, v%d" % (ACC + 2, ACC))
    k("v_mov_b32 v%d, v%d" % (ACC + 3, ACC + 1))
    k("s_nop 1")
    k("v_permlane32_swap_b32 v%d, v%d" % (ACC, ACC + 2))
    k("v_permlane32_swap_b32 v%d, v%d" % (ACC + 1, ACC + 3))
    k("s_nop 1")
    k("v_add_f32 v%d, v%d, v%d" % (ACC, ACC, ACC + 2))
    k("v_add_f32 v%d, v%d, v%d" % (ACC + 1, ACC + 1, ACC + 3))
    k("v_mul_f32 v%d, %s, v%d" % (ACC, f32hex(1.0 / 512), ACC))
    k("v_mul_f32 v%d, %s, v%d" % (ACC + 1, f32hex(1.0 / 512), ACC + 1))
    k("v_fma_f32 v%d, -v%d, v%d, v%d" % (ACC + 1, ACC, ACC, ACC + 1))
    k("v_add_f32 v%d, %s, v%d" % (ACC + 1, f32hex(1e-5), ACC + 1))
    k("v_rsq_f32 v12, v%d" % (ACC + 1))
    k("s_nop 1")
    k("v_mov_b32 v13, v12")
    k("v_mul_f32 v14, v%d, v12" % ACC)
    k("v_xor_b32 v14, 0x80000000, v14")
    k("v_mov_b32 v15, v14")
    k("v_mul_u32_u24 v10, %d, v2" % ACT_LD)
    k("v_lshl_add_u32 v10, v3, 3, v10")
    k("s_mul_i32 s59, s49, 192")
    k("s_add_u32 s59, s59, 0x%x" % WS_ACT)

    from collections import deque
    fq = deque()
    normed = set()

    def q_norm(g):
        def w():
            vm.wait(tokB[g])
        fq.append(("n", g, w))
        for r in range(4):
            t0 = T + 2 * (r & 3)
            b = B + 4 * g + r
            fq.append(("n", g, "v_lshlrev_b32 v%d, 16, v%d" % (t0, b)))
            fq.append(("n", g, "v_and_b32 v%d, 0xffff0000, v%d" % (t0 + 1, b)))
            fq.append(("n", g, "v_fma_f32 v%d, v%d, v12, v14" % (t0, t0)))
            fq.append(("n", g, "v_fma_f32 v%d, v%d, v12, v14" % (t0 + 1, t0 + 1)))
            fq.append(("n", g, "v_cvt_pk_bf16_f32 v%d, v%d, v%d" % (b, t0, t0 + 1)))

    def q_epi(p):
        G, U = ACC + 16 * p, ACC + 16 * (3 + p)
        E = T + 8 if False else T
        fq.append(("e", p, "s_nop 15"))
        for r in range(0, 16, 2):
            fq.append(("e", p, "v_pk_mul_f32 v[%d:%d], v[%d:%d], v[10+X:11+X]" % (E + r, E + r + 1, G + r, G + r + 1)))
    k("s_mov_b32 s60, %s" % f32hex(-LOG2E))
    k("s_mov_b32 s61, %s" % f32hex(-LOG2E))
    k("s_mov_b32 s62, 1.0")
    k("s_mov_b32 s63, 1.0")

    def q_epi(p):
        G, U = ACC + 16 * p, ACC + 16 * (3 + p)
        E = T
        L = []
        L.append("s_nop 15")
        for r in range(16):
            L.append("v_mul_f32 v%d, s60, v%d" % (E + r, G + r))
        for r in range(16):
            L.append("v_exp_f32 v%d, v%d" % (E + r, E + r))
        for r in range(16):
            L.append("v_mul_f32 v%d, v%d, v%d" % (G + r, G + r, U + r))
        for r in range(16):
            L.append("v_add_f32 v%d, 1.0, v%d" % (E + r, E + r))
        for r in range(16):
            L.append("v_rcp_f32 v%d, v%d" % (E + r, E + r))
        for r in range(16):
            L.append("v_mul_f32 v%d, v%d, v%d" % (G + r, G + r, E + r))
        for r in range(8):
            L.append("v_cvt_pk_bf16_f32 v%d, v%d, v%d" % (G + r, G + 2 * r, G + 2 * r + 1))
        for q in range(4):
            L.append("buffer_store_dwordx2 %s, v10, s[20:23], s%d offen offset:%d" % (vr(G + 2 * q, 2), 59 if p == 0 else 58, p * 64 + 16 * q))
        for x in L:
            fq.append(("e", p, x))

    def emit_filler():
        kind, g, x = fq.popleft()
        if callable(x):
            x()
        else:
            if x.startswith("buffer_store"):
                vm.issue()
            EXP = os.environ.get("EXP", "")
            if EXP in ("nofill", "memonly") and x.startswith("v_"):
                return
            if EXP == "addfill" and x.startswith("v_"):
                x = "v_add_f32 v%d, 1.0, v%d" % (T + (len(k.L) % 8), T + (len(k.L) % 8))
            if EXP == "e32" and x.startswith("v_"):
                x = "v_lshlrev_b32 v%d, 16, v%d" % (T + (len(k.L) % 8), T + 8 + (len(k.L) % 8))
            k(x)

    def flush_norm(g):
        last = -1
        for i, (kind, gg, x) in enumerate(fq):
            if kind == "n" and gg <= g:
                last = i
        n = last + 1
        for _ in range(n):
            emit_filler()
        if n:
            k("s_nop 1")
    k("s_cmp_eq_u32 s49, 14")
    k("s_cselect_b32 s58, 0x%x, s59" % WS_DUMMY)
    for g in range(32):
        q_norm(g)

    def read1(gi, j):
        c = gi // 4
        fi = gi * 4 + j
        lds = (c % S) * CH + (fi % 16) * 1024
        k("ds_read_b128 a[%d:%d], v%d offset:%d" % (16 * (gi % 2) + 4 * j, 16 * (gi % 2) + 4 * j + 3, 7 + lds // 65536, lds % 65536))

    def boundary(c):
        if TSMODE == 1 and c >= 1: k.ts(1 + c)
        vflush(c + 1)
        vm.wait(tokA[c + 1])
        if not os.environ.get("NOBAR"):
            k("s_barrier")
        if TSMODE == 2 and c >= 1: k.ts(1 + c)
    boundary(0)
    for j in range(4):
        read1(0, j)
    seen = set()
    NPER = int(os.environ.get("NPER", "4"))
    for gi in range(48):
        if gi + 1 < 48 and (gi + 1) % 8 == 0:
            boundary((gi + 1) // 4)
        for j in range(4):
            t, ks = order[gi * 4 + j]
            flush_norm(ks + 1)
            k("s_waitcnt lgkmcnt(%d)" % (3 if gi + 1 < 48 else 3 - j))
            first = t not in seen
            seen.add(t)
            if os.environ.get("EXP", "") != "memonly":
                k("v_mfma_f32_32x32x16_bf16 %s, a[%d:%d], %s, %s" % (vr(ACC + 16 * t, 16), 16 * (gi % 2) + 4 * j, 16 * (gi % 2) + 4 * j + 3, vr(B + 4 * ks, 4), "0" if first else vr(ACC + 16 * t, 16)))
            if gi + 1 < 48 and os.environ.get("EXP", "") != "memonly":
                read1(gi + 1, j)
            vstep(gi * 4 + j)
            if ks == 31 and t >= 3:
                q_epi(t - 3)
            for _ in range(NPER):
                if fq:
                    emit_filler()
    k.ts(13)
    while fq:
        emit_filler()
    k.ts_flush(14)
    k.lab(end)
    return k


def build(kerns):
    head = open("cdna_kernels/%s.s.ref" % NAME).read().split("; @launch")[0]
    out = [head.rstrip("\n")]
    for kk in kerns:
        out.append("; @launch kernel=%s grid=(%d,1,1) block=(%d,1,1) lds=%d" % (kk.name, kk.grid, kk.block, kk.lds))
    out.append('.amdgcn_target "amdgcn-amd-amdhsa--gfx950"')
    out.append(".text")
    for kk in kerns:
        out.append(kk.text())
    out.append('.section .rodata,"a"')
    for kk in kerns:
        out.append(".p2align 6")
        out.append(kk.desc())
    return "\n".join(out) + "\n"


def main():
    which = sys.argv[1] if len(sys.argv) > 1 else "ABCDE"
    gens = {"A": gen_A}
    for nm in "BCDE":
        if "gen_" + nm in globals():
            gens[nm] = globals()["gen_" + nm]
    kerns = [gens[c]() for c in which if c in gens]
    txt = build(kerns)
    open("cdna_kernels/%s.s" % NAME, "w").write(txt)
    print("wrote", len(txt), "bytes;", [kk.name for kk in kerns])


if __name__ == "__main__":
    main()
```

```python
import sys, re

NAME = "sequential_preLN__grouped_kv_mqa__swiglu_ffn__prompt"

WS_Q = 0x000000
WS_K = 0x200000
WS_V = 0x210000
WS_CS = 0x220000
WS_KM = 0x228000
WS_O = 0x300000
WS_H = 0x500000
WS_ACT = 0x800000
ACT_LD = 2816
WS_ST = 0x230000
WS_WG = 0x1000000
WS_WD = 0x1400000
WS_WO = 0x1600000
WS_HP = 0x1800000
WS_DUMMY = 0x2000000
KS1 = 16
WS_SIZE = 268435456
import os
DEBUG_TS = bool(os.environ.get('TS'))
TSMODE = int(os.environ.get('TS', '0'))
SRD3 = "0x00020000"
LOG2E = 1.4426950408889634


def f32hex(x):
    import struct
    return "0x%08x" % struct.unpack("<I", struct.pack("<f", x))[0]


class Kern:
    def __init__(s, name, nvgpr, block, grid, lds, accum=None):
        s.name = name
        s.L = []
        s.nvgpr = nvgpr
        s.block = block
        s.grid = grid
        s.lds = lds
        s.accum = accum if accum is not None else nvgpr
        s.nlab = 0
        s.tsb = 70
        s.kidx = {"attn_kernel": 1, "wo_kernel": 2, "ffn1_kernel": 3, "down_kernel": 4}.get(name, 0)

    def __call__(s, txt):
        for t in txt.split("\n"):
            t = t.strip()
            if t:
                m = re.search(r"offset:(\d+)", t)
                if m:
                    lim = 4095 if t.startswith("buffer") else 65535
                    assert int(m.group(1)) <= lim, t
                if t.startswith("buffer_store") and os.environ.get("STMOD"):
                    t = t + " " + os.environ["STMOD"]
                s.L.append("    " + t)

    def lab(s, l):
        s.L.append(l + ":")

    def newlab(s, p):
        s.nlab += 1
        return "%s_%s%d" % (s.name.replace("_kernel", "")[:8], p, s.nlab)

    def srd(s, reg, preg, size):
        s("s_mov_b32 s%d, s%d" % (reg, preg))
        s("s_and_b32 s%d, s%d, 0xffff" % (reg + 1, preg + 1))
        s("s_mov_b32 s%d, 0x%x" % (reg + 2, size))
        s("s_mov_b32 s%d, %s" % (reg + 3, SRD3))

    def ts(s, idx):
        if not DEBUG_TS:
            return
        if TSMODE == 3:
            if idx == 0:
                s("s_memrealtime s[100:101]")
            return
        s("s_memtime s[%d:%d]" % (s.tsb + 2 * idx, s.tsb + 1 + 2 * idx))
        if idx == 0:
            s("s_memrealtime s[100:101]")

    def ts_flush(s, n):
        if not DEBUG_TS:
            return
        if TSMODE == 3:
            lab = s.newlab("nots")
            s("s_waitcnt vmcnt(0)")
            s("s_memrealtime s[72:73]")
            s("s_waitcnt lgkmcnt(0)")
            s("s_cmp_lg_u32 s3, 0")
            s("s_cbranch_scc1 %s" % lab)
            s("s_lshl_b32 s69, s2, 3")
            s("s_add_u32 s69, s69, 0x%x" % (0x1F00000 + 4096 * s.kidx))
            s("v_mov_b32 v0, 0")
            s("v_mov_b32 v2, s100")
            s("v_mov_b32 v3, s72")
            s("s_mov_b64 exec, 1")
            s("buffer_store_dwordx2 v[2:3], v0, s[20:23], s69 offen")
            s("s_mov_b64 exec, -1")
            s.lab(lab)
            return
        lab = s.newlab("nots")
        s("s_memrealtime s[64:65]")
        s("s_waitcnt lgkmcnt(0)")
        s("s_sub_u32 s67, s2, 100")
        s("s_cmp_ge_u32 s67, 4")
        s("s_cbranch_scc1 %s" % lab)
        s("s_cmp_lg_u32 s3, 0")
        s("s_cbranch_scc1 %s" % lab)
        s("s_load_dwordx2 s[96:97], s[0:1], 80")
        s("s_waitcnt lgkmcnt(0)")
        s("s_mov_b32 s98, 256")
        s("s_mov_b32 s99, 0x00020000")
        s("s_lshl_b32 s69, s67, 6")
        s("v_mov_b32 v0, 0")
        for i in range(n):
            s("s_sub_u32 s68, s%d, s%d" % (s.tsb + 2 * i, s.tsb))
            s("v_mov_b32 v1, s68")
            s("buffer_store_dword v1, v0, s[96:99], s69 offen offset:%d" % (4 * i))
            s("s_nop 2")
        s("s_sub_u32 s68, s64, s100")
        s("v_mov_b32 v1, s68")
        s("buffer_store_dword v1, v0, s[96:99], s69 offen offset:60")
        s.lab(lab)

    def text(s):
        out = []
        out.append(".globl %s" % s.name)
        out.append(".p2align 8")
        out.append(".type %s,@function" % s.name)
        out.append("%s:" % s.name)
        out += s.L
        out.append("    s_endpgm")
        return "\n".join(out)

    def desc(s):
        return "\n".join([
            ".amdhsa_kernel %s" % s.name,
            "  .amdhsa_next_free_vgpr %d" % s.nvgpr,
            "  .amdhsa_next_free_sgpr 102",
            "  .amdhsa_accum_offset %d" % s.accum,
            "  .amdhsa_group_segment_fixed_size 0",
            "  .amdhsa_kernarg_size 96",
            "  .amdhsa_user_sgpr_count 2",
            "  .amdhsa_user_sgpr_kernarg_segment_ptr 1",
            "  .amdhsa_system_sgpr_workgroup_id_x 1",
            ".end_amdhsa_kernel"])


def vr(a, n=1):
    return "v%d" % a if n == 1 else "v[%d:%d]" % (a, a + n - 1)


def sr(a, n=1):
    return "s%d" % a if n == 1 else "s[%d:%d]" % (a, a + n - 1)


def gen_A():
    k = Kern(NAME + "_kernel", 256, 256, 256, 163840)
    end = k.newlab("end")
    k("s_cmp_ge_u32 s2, 256")
    k("s_cbranch_scc1 %s" % end)
    k.ts(0)
    k("s_load_dwordx8 s[24:31], s[0:1], 0")
    k("s_load_dwordx2 s[32:33], s[0:1], 88")
    k("v_and_b32 v1, 63, v0")
    k("v_lshrrev_b32 v2, 6, v0")
    k("s_nop 1")
    k("v_readfirstlane_b32 s3, v2")
    k("s_and_b32 s48, s2, 7")
    k("s_lshl_b32 s48, s48, 2")
    k("s_bfe_u32 s49, s2, 0x20003")
    k("s_add_u32 s48, s48, s49")
    k("s_lshr_b32 s49, s2, 5")
    k("v_lshrrev_b32 v3, 4, v1")
    k("s_lshl_b32 s50, s3, 2")
    k("v_add_u32 v3, s50, v3")
    k("v_and_b32 v4, 15, v1")
    k("v_xor_b32 v4, v4, v3")
    k("v_lshlrev_b32 v4, 4, v4")
    k("s_lshl_b32 s51, s48, 6")
    k("v_add_u32 v3, s51, v3")
    k("v_lshl_add_u32 v4, v3, 10, v4")
    k("v_lshrrev_b32 v3, 3, v1")
    k("s_lshl_b32 s50, s3, 3")
    k("v_add_u32 v3, s50, v3")
    k("v_and_b32 v5, 7, v1")
    k("v_bfe_u32 v6, v1, 4, 1")
    k("v_lshlrev_b32 v6, 2, v6")
    k("v_xor_b32 v5, v5, v6")
    k("v_lshlrev_b32 v5, 4, v5")
    k("v_lshl_add_u32 v5, v3, 10, v5")
    k("s_lshl_b32 s50, s49, 7")
    k("v_add_u32 v5, s50, v5")
    k("v_lshlrev_b32 v6, 4, v1")
    k("s_lshl_b32 s52, s3, 10")
    k("s_and_b32 s56, s3, 1")
    k("s_lshr_b32 s57, s3, 1")
    k("s_lshl_b32 s62, s56, 11")
    k("s_and_b32 s50, s48, 7")
    k("s_lshl_b32 s63, s57, 8")
    k("s_or_b32 s50, s50, s63")
    k("s_cmp_eq_u32 s50, s49")
    k("s_cselect_b32 s53, 1, 0")
    k("s_waitcnt lgkmcnt(0)")
    k.srd(4, 24, 2048 * 512 * 2)
    for c in range(4):
        for j in range(4):
            k("s_add_u32 m0, s52, %d" % (c * 16384 + j * 4096))
            k("s_mov_b32 s54, %d" % (j * 16 * 1024 + c * 256))
            k("buffer_load_dwordx4 v4, s[4:7], s54 offen lds")
    k.srd(8, 26, 512 * 512 * 2)
    k.srd(12, 28, 512 * 16 * 2)
    k.srd(16, 30, 512 * 16 * 2)
    k.srd(20, 32, WS_SIZE)
    k.ts(1)
    k("v_and_b32 v7, 31, v1")
    k("s_lshl_b32 s58, s56, 5")
    k("v_add_u32 v7, s58, v7")
    k("v_lshrrev_b32 v8, 5, v1")
    k("v_and_b32 v9, 15, v7")
    k("v_xor_b32 v9, v9, v8")
    k("v_lshlrev_b32 v9, 4, v9")
    k("v_lshl_add_u32 v9, v7, 8, v9")
    XA = 16
    for ks in range(8):
        k("v_xor_b32 v%d, %d, v9" % (XA + ks, ks * 32))
    k("v_lshrrev_b32 v7, 5, v1")
    k("v_lshlrev_b32 v7, 3, v7")
    k("v_bfe_u32 v10, v1, 2, 2")
    k("v_add_u32 v7, v7, v10")
    k("v_bfe_u32 v10, v1, 4, 1")
    k("v_lshlrev_b32 v10, 5, v10")
    k("v_and_b32 v11, 3, v1")
    k("v_lshl_add_u32 v10, v11, 3, v10")
    k("s_lshl_b32 s58, s57, 6")
    k("v_add_u32 v10, s58, v10")
    k("v_bfe_u32 v11, v1, 3, 1")
    k("v_lshlrev_b32 v11, 6, v11")
    k("v_xor_b32 v10, v10, v11")
    k("v_lshl_add_u32 v10, v7, 7, v10")
    k("v_add_u32 v10, 0x10000, v10")
    k("v_and_b32 v11, 3, v1")
    k("v_lshlrev_b32 v11, 3, v11")
    k("v_lshl_add_u32 v11, v7, 5, v11")
    k("v_bfe_u32 v12, v1, 4, 1")
    k("v_lshl_add_u32 v11, v12, 14, v11")
    k("v_add_u32 v11, 0x20000, v11")
    ONES = 24
    for i in range(4):
        k("v_mov_b32 v%d, 0x3f803f80" % (ONES + i))
    S1, S2 = 28, 29
    for i in range(4):
        k("v_mov_b32 v%d, 0" % (28 + i))
    ACC, CS, ACC2, CS2 = 32, 48, 64, 80
    BF, AF, AK = 96, 224, 240
    done = k.newlab("done")
    kvp = k.newlab("kvp")
    k("s_cmp_lg_u32 s53, 0")
    k("s_cbranch_scc1 %s" % kvp)

    def body(kv):
        nW = 8 if kv else 4

        def issueW(c):
            for j in range(4):
                k("s_add_u32 m0, s52, %d" % (65536 + c * 16384 + j * 4096))
                k("s_mov_b32 s54, %d" % ((c * 128 + 32 * j) * 1024))
                k("buffer_load_dwordx4 v5, s[8:11], s54 offen lds")
            if kv:
                for (srdn, base) in ((12, 131072), (16, 147456)):
                    for j in range(2):
                        k("s_add_u32 s54, s62, %d" % (c * 4096 + j * 1024))
                        k("s_add_u32 m0, s54, %d" % base)
                        k("buffer_load_dwordx4 v6, s[%d:%d], s54 offen lds" % (srdn, srdn + 3))
        for c in range(4):
            k("s_waitcnt vmcnt(%d)" % (4 * (3 - c) + c * nW))
            k("s_barrier")
            if not kv: k.ts(2 + c)
            for ks in range(8):
                k("ds_read_b128 %s, v%d offset:%d" % (vr(BF + 4 * (8 * c + ks), 4), XA + ks, c * 16384))
            issueW(c)
            for ks in range(8):
                k("s_waitcnt lgkmcnt(%d)" % (7 - ks))
                for q in range(4):
                    b = BF + 4 * (8 * c + ks) + q
                    k("v_dot2c_f32_bf16 v%d, v%d, v%d" % (28 + 2 * (q & 1), b, ONES))
                    k("v_dot2c_f32_bf16 v%d, v%d, v%d" % (29 + 2 * (q & 1), b, b))

        def rdA(g):
            c, ks = g // 8, g % 8
            k("ds_read_b64_tr_b16 %s, v10 offset:%d" % (vr(AF + 4 * (g % 4), 2), c * 16384 + ks * 2048))
            k("ds_read_b64_tr_b16 %s, v10 offset:%d" % (vr(AF + 4 * (g % 4) + 2, 2), c * 16384 + ks * 2048 + 512))
            if kv:
                k("ds_read_b64_tr_b16 %s, v11 offset:%d" % (vr(AK + 4 * (g % 4), 2), (c * 128 + ks * 16) * 32))
                k("ds_read_b64_tr_b16 %s, v11 offset:%d" % (vr(AK + 4 * (g % 4) + 2, 2), (c * 128 + ks * 16 + 4) * 32))
        nr = 4 if kv else 2
        for c in range(4):
            k("s_waitcnt vmcnt(%d)" % ((3 - c) * nW))
            k("s_barrier")
            if not kv: k.ts(6 + c)
            for ks in range(3):
                rdA(8 * c + ks)
            if c == 0:
                k("v_add_f32 v28, v28, v30")
                k("v_add_f32 v29, v29, v31")
                k("v_mov_b32 v30, v28")
                k("v_mov_b32 v31, v29")
                k("s_nop 1")
                k("v_permlane32_swap_b32 v28, v30")
                k("v_permlane32_swap_b32 v29, v31")
                k("s_nop 1")
                k("v_add_f32 v28, v28, v30")
                k("v_add_f32 v29, v29, v31")
                k("v_mul_f32 v%d, %s, v%d" % (S1, f32hex(1.0 / 512), S1))
                k("v_mul_f32 v%d, %s, v%d" % (S2, f32hex(1.0 / 512), S2))
                k("v_fma_f32 v%d, -v%d, v%d, v%d" % (S2, S1, S1, S2))
                k("v_add_f32 v%d, %s, v%d" % (S2, f32hex(1e-5), S2))
                k("v_rsq_f32 v%d, v%d" % (S2, S2))
                k("s_nop 1")
                k("v_mul_f32 v30, %s, v%d" % (f32hex(0.25 * LOG2E), S2))
            for ks in range(8):
                g = 8 * c + ks
                ahead = min(2, 7 - ks)
                k("s_waitcnt lgkmcnt(%d)" % (ahead * nr))
                first = g == 0
                k("v_mfma_f32_32x32x16_bf16 %s, %s, %s, %s" % (vr(ACC, 16), vr(AF + 4 * (g % 4), 4), vr(BF + 4 * g, 4), "0" if first else vr(ACC, 16)))
                if ks + 3 < 8:
                    rdA(g + 3)
                k("v_mfma_f32_32x32x16_bf16 %s, %s, %s, %s" % (vr(CS, 16), vr(AF + 4 * (g % 4), 4), vr(ONES, 4), "0" if first else vr(CS, 16)))
                if kv:
                    k("v_mfma_f32_32x32x16_bf16 %s, %s, %s, %s" % (vr(ACC2, 16), vr(AK + 4 * (g % 4), 4), vr(BF + 4 * g, 4), "0" if first else vr(ACC2, 16)))
                    k("v_mfma_f32_32x32x16_bf16 %s, %s, %s, %s" % (vr(CS2, 16), vr(AK + 4 * (g % 4), 4), vr(ONES, 4), "0" if first else vr(CS2, 16)))
    body(False)
    k("s_branch %s" % done)
    k.lab(kvp)
    body(True)
    k.lab(done)
    k.ts(10)
    k("v_and_b32 v7, 31, v1")
    k("s_lshl_b32 s58, s56, 5")
    k("s_add_u32 s58, s58, s51")
    k("v_add_u32 v7, s58, v7")
    k("v_lshrrev_b32 v8, 5, v1")
    k("v_lshlrev_b32 v9, 3, v8")
    k("v_lshl_add_u32 v12, v7, 10, v9")
    k("s_lshl_b32 s59, s49, 7")
    k("s_lshl_b32 s60, s57, 6")
    k("s_add_u32 s59, s59, s60")
    k("s_add_u32 s59, s59, 0x%x" % WS_Q)
    k("s_nop 15")
    TQ = 224
    for r in range(16):
        k("v_fma_f32 v%d, -v%d, v%d, v%d" % (ACC + r, S1, CS + r, ACC + r))
    for r in range(16):
        k("v_mul_f32 v%d, v30, v%d" % (ACC + r, ACC + r))
    for r in range(8):
        k("v_cvt_pk_bf16_f32 v%d, v%d, v%d" % (TQ + r, ACC + 2 * r, ACC + 2 * r + 1))
    for q in range(4):
        k("buffer_store_dwordx2 %s, v12, s[20:23], s59 offen offset:%d" % (vr(TQ + 2 * q, 2), 16 * q))
    k.ts(11)
    k.ts_flush(12)
    k("s_cmp_eq_u32 s53, 0")
    k("s_cbranch_scc1 %s" % end)
    ACC, CS = ACC2, CS2
    for r in range(16):
        k("v_fma_f32 v%d, -v%d, v%d, v%d" % (ACC + r, S1, CS + r, ACC + r))
    for r in range(16):
        k("v_mul_f32 v%d, v%d, v%d" % (ACC + r, S2, ACC + r))
    for r in range(8):
        k("v_cvt_pk_bf16_f32 v%d, v%d, v%d" % (CS + r, ACC + 2 * r, ACC + 2 * r + 1))
    k("v_mov_b32 v14, 0")
    for i in range(4):
        k("v_dot2c_f32_bf16 v14, v%d, v%d" % (CS + i, CS + i))
    k("s_nop 4")
    k("v_mov_b32 v15, v14")
    k("s_nop 1")
    k("v_permlane32_swap_b32 v14, v15")
    k("s_nop 1")
    k("v_add_f32 v14, v14, v15")
    k("s_nop 1")
    for r in (8, 4, 2, 1):
        k("v_max_f32_dpp v14, v14, v14 row_ror:%d row_mask:0xf bank_mask:0xf" % r)
        k("s_nop 1")
    k("v_readlane_b32 s60, v14, 0")
    k("v_readlane_b32 s61, v14, 16")
    k("s_nop 3")
    k("s_max_u32 s60, s60, s61")
    k("v_mov_b32 v14, s60")
    k("v_mov_b32 v15, 0")
    k("s_lshl_b32 s61, s48, 1")
    k("s_add_u32 s61, s61, s56")
    k("s_lshl_b32 s61, s61, 2")
    k("s_add_u32 s61, s61, 0x%x" % WS_KM)
    k("s_mov_b64 exec, 1")
    k("buffer_store_dword v14, v15, s[20:23], s61 offen")
    k("s_mov_b64 exec, -1")
    k("v_and_b32 v13, 31, v1")
    k("v_lshlrev_b32 v13, 4, v13")
    k("v_lshl_add_u32 v13, v8, 3, v13")
    k("s_lshl_b32 s59, s48, 1")
    k("s_add_u32 s59, s59, s56")
    k("s_lshl_b32 s59, s59, 10")
    k("s_add_u32 s59, s59, 0x%x" % WS_K)
    k("buffer_store_dwordx2 %s, v13, s[20:23], s59 offen" % vr(CS, 2))
    k("buffer_store_dwordx2 %s, v13, s[20:23], s59 offen offset:512" % vr(CS + 2, 2))
    k("v_lshrrev_b32 v13, 4, v7")
    k("v_lshlrev_b32 v13, 9, v13")
    k("v_bfe_u32 v14, v7, 2, 1")
    k("v_lshl_add_u32 v13, v14, 8, v13")
    k("v_bfe_u32 v14, v7, 3, 1")
    k("v_lshl_add_u32 v13, v14, 3, v13")
    k("v_and_b32 v14, 3, v7")
    k("v_lshl_add_u32 v13, v14, 1, v13")
    k("v_lshl_add_u32 v13, v8, 6, v13")
    k("s_mov_b32 s59, 0x%x" % WS_V)
    for r in range(8, 16):
        d = (r & 3) + 8 * ((r >> 2) - 2)
        src = CS + r // 2
        op = "buffer_store_short" if r % 2 == 0 else "buffer_store_short_d16_hi"
        k("%s v%d, v13, s[20:23], s59 offen offset:%d" % (op, src, d * 16))
    k.lab(end)
    return k


def gen_B():
    k = Kern("attn_kernel", 128, 1024, 256, 163840)
    end = k.newlab("end")
    k("s_cmp_ge_u32 s2, 256")
    k("s_cbranch_scc1 %s" % end)
    k.tsb = 4
    k.ts(0)
    k("s_load_dwordx2 s[32:33], s[0:1], 88")
    k("s_load_dwordx4 s[36:39], s[0:1], 48")
    k("s_load_dwordx2 s[40:41], s[0:1], 64")
    k("s_load_dwordx2 s[42:43], s[0:1], 32")
    k("v_and_b32 v1, 63, v0")
    k("v_lshrrev_b32 v2, 6, v0")
    k("s_nop 1")
    k("v_readfirstlane_b32 s3, v2")
    k("v_and_b32 v2, 31, v1")
    k("v_lshlrev_b32 v2, 5, v2")
    k("v_lshrrev_b32 v3, 5, v1")
    k("v_lshl_add_u32 v2, v3, 4, v2")
    k("v_lshlrev_b32 v8, 4, v1")
    k("s_and_b32 s48, s3, 7")
    k("s_lshr_b32 s49, s3, 3")
    k("s_lshl_b32 s50, s2, 3")
    k("s_add_u32 s50, s50, s48")
    k("s_lshl_b32 s51, s50, 10")
    k("s_add_u32 s51, s51, 0x%x" % WS_Q)
    k("s_lshr_b32 s52, s3, 3")
    k("s_lshl_b32 s52, s52, 15")
    k("s_and_b32 s53, s3, 7")
    k("s_lshl_b32 s53, s53, 10")
    k("s_add_u32 s52, s52, s53")
    k("s_waitcnt lgkmcnt(0)")
    k.srd(20, 32, WS_SIZE)
    QF = 4
    k("buffer_load_dwordx4 %s, v2, s[20:23], s51 offen" % vr(QF, 4))
    k("s_lshl_b32 s54, s49, 7")
    k("s_add_u32 s54, s54, 0x%x" % WS_KM)
    k("s_add_u32 s56, s32, s54")
    k("s_addc_u32 s57, s33, 0")
    k("s_load_dwordx16 s[64:79], s[56:57], 0")
    k("s_load_dwordx16 s[80:95], s[56:57], 64")
    for j in range(4):
        for ss in range(2):
            k("s_add_u32 m0, s52, %d" % (ss * 65536 + j * 8192))
            k("s_add_u32 s53, s52, 0x%x" % (WS_K + ss * 65536 + j * 8192))
            k("buffer_load_dwordx4 v8, s[20:23], s53 offen lds")
    k("s_lshl_b32 s54, s49, 15")
    k("v_add_u32 v9, s54, v8")
    k("v_and_b32 v10, 15, v1")
    k("v_lshlrev_b32 v10, 4, v10")
    k("v_lshl_add_u32 v10, v3, 8, v10")
    k("v_add_u32 v10, s54, v10")
    k("v_add_u32 v10, 0x10000, v10")
    NEG, SA, SB, O, PK, KF, VF = 16, 32, 48, 64, 80, 88, 100
    M = 11
    for i in range(16):
        k("v_mov_b32 v%d, 0x3f803f80" % (VF + i))
    k("s_mov_b32 s58, 0xffff")
    k("s_mov_b32 s59, 0xffff")
    k("s_waitcnt lgkmcnt(0)")
    for i in range(1, 32):
        k("s_max_u32 s64, s64, s%d" % (64 + i))
    k("v_mov_b32 v12, 0")
    k("s_waitcnt vmcnt(8)")
    for i in range(4):
        k("v_dot2c_f32_bf16 v12, v%d, v%d" % (QF + i, QF + i))
    k("s_nop 4")
    k("v_mov_b32 v13, v12")
    k("s_nop 1")
    k("v_permlane32_swap_b32 v12, v13")
    k("s_nop 1")
    k("v_add_f32 v12, v12, v13")
    k("v_mul_f32 v12, s64, v12")
    k("v_sqrt_f32 v%d, v12" % M)
    k("s_nop 1")
    for i in range(16):
        k("v_xor_b32 v%d, 0x80000000, v%d" % (NEG + i, M))
    S = [SA, SB]
    NT = 32

    RP, RQ = 116, 124

    def repack_issue():
        l_dn, l_go = k.newlab("rdn"), k.newlab("rgo")
        k("s_cmp_ge_u32 s64, 2752")
        k("s_cbranch_scc1 %s" % l_dn)
        k("s_lshr_b32 s65, s64, 5")
        k("s_and_b32 s66, s64, 31")
        k("s_cmp_ge_u32 s65, 43")
        k("s_cselect_b32 s67, 1, 0")
        k("s_cselect_b32 s84, s38, s36")
        k("s_cselect_b32 s85, s39, s37")
        k("s_mul_i32 s68, s67, 43")
        k("s_sub_u32 s65, s65, s68")
        k("s_mul_i32 s68, s65, 171")
        k("s_lshr_b32 s68, s68, 9")
        k("s_mul_i32 s69, s68, 3")
        k("s_sub_u32 s69, s65, s69")
        k("s_mul_i32 s70, s66, 6")
        k("s_mul_i32 s71, s67, 3")
        k("s_add_u32 s70, s70, s71")
        k("s_add_u32 s70, s70, s69")
        k("s_mul_i32 s71, s69, %d" % ((32 - KS1) * 2))
        k("s_lshl_b32 s72, s66, 1")
        k("s_add_u32 s71, s71, s72")
        k("s_add_u32 s71, s71, s67")
        k("s_add_u32 s71, s71, %d" % (KS1 * 6 - 2 * KS1))
        k("s_cmp_lt_u32 s66, %d" % KS1)
        k("s_cselect_b32 s70, s70, s71")
        k("s_lshl_b32 s70, s70, 10")
        k("s_mul_i32 s90, s68, 196608")
        k("s_add_u32 s90, s90, s70")
        k("s_add_u32 s90, s90, 0x%x" % WS_WG)
        k("s_mov_b32 s86, %d" % (512 * 2752))
        k("s_mov_b32 s89, 2752")
        k("s_branch %s" % l_go)
        k.lab(l_dn)
        k("s_sub_u32 s64, s64, 2752")
        k("s_cmp_ge_u32 s64, 1376")
        k("s_cselect_b32 s84, s42, s40")
        k("s_cselect_b32 s85, s43, s41")
        k("s_mov_b32 s86, %d" % (1376 * 1024))
        k("s_mov_b32 s68, %d" % (86 * 2048))
        k("s_mov_b32 s90, 0x%x" % WS_WD)
        k("s_cselect_b32 s86, %d, s86" % (512 * 1024))
        k("s_cselect_b32 s67, 1376, 0")
        k("s_cselect_b32 s68, 65536, s68")
        k("s_cselect_b32 s90, 0x%x, s90" % WS_WO)
        k("s_sub_u32 s64, s64, s67")
        k("s_lshr_b32 s66, s64, 4")
        k("s_and_b32 s65, s64, 15")
        k("s_lshr_b32 s69, s65, 1")
        k("s_mul_i32 s69, s69, s68")
        k("s_add_u32 s90, s90, s69")
        k("s_lshl_b32 s69, s66, 11")
        k("s_add_u32 s90, s90, s69")
        k("s_and_b32 s69, s65, 1")
        k("s_lshl_b32 s69, s69, 10")
        k("s_add_u32 s90, s90, s69")
        k("s_mov_b32 s89, 1024")
        k.lab(l_go)
        k("s_and_b32 s85, s85, 0xffff")
        k("s_mov_b32 s87, %s" % SRD3)
        k("s_mul_i32 s88, s66, s89")
        k("s_lshl_b32 s88, s88, 4")
        k("s_lshl_b32 s69, s65, 6")
        k("s_add_u32 s88, s88, s69")
        k("s_lshl_b32 s69, s89, 3")
        k("v_mul_u32_u24 v14, s69, v3")
        k("v_and_b32 v15, 31, v1")
        k("v_lshl_add_u32 v14, v15, 1, v14")
        for j in range(8):
            k("buffer_load_ushort v%d, v14, s[84:87], s88 offen" % (RP + j))
            if j < 7:
                k("s_add_u32 s88, s88, s89")

    def repack_store():
        k("s_waitcnt vmcnt(0)")
        for q in range(4):
            k("v_lshl_or_b32 v%d, v%d, 16, v%d" % (RQ + q, RP + 2 * q + 1, RP + 2 * q))
        k("buffer_store_dwordx4 %s, v8, s[20:23], s90 offen" % vr(RQ, 4))

    EXPB = os.environ.get("EXPB", "")
    def rdV(t):
        if "noV" in EXPB and t > 1:
            k("ds_read_b32 v15, v10"); k("ds_read_b32 v15, v10")
            return
        k("s_mov_b64 exec, s[58:59]")
        k("ds_read_b128 %s, v10 offset:%d" % (vr(VF + 8 * (t % 2), 4), t * 1024))
        k("ds_read_b128 %s, v10 offset:%d" % (vr(VF + 8 * (t % 2) + 4, 4), t * 1024 + 512))
        k("s_mov_b64 exec, -1")

    def pass2(bars):
        if bars:
            k("s_waitcnt vmcnt(6)")
            k("s_barrier")
            k.ts(1)
        k("ds_read_b128 %s, v9 offset:0" % vr(KF, 4))
        k("ds_read_b128 %s, v9 offset:1024" % vr(KF + 4, 4))
        rdV(0)
        k("s_waitcnt lgkmcnt(3)")
        k("v_mfma_f32_32x32x16_bf16 %s, %s, %s, %s" % (vr(S[0], 16), vr(KF, 4), vr(QF, 4), vr(NEG, 16)))
        for t in range(NT):
            n_new = 0
            if bars and t == 8: k.ts(2)
            if bars and t == 16: k.ts(3)
            if bars and t == 23: k.ts(4)
            if bars and t == 23:
                k("s_lshl_b32 s64, s2, 4")
                k("s_add_u32 s64, s64, s3")
                repack_issue()
            if bars and t == 28:
                repack_store()
                k.ts(5)
                nr2 = k.newlab("nr2")
                k("s_lshl_b32 s64, s3, 8")
                k("s_add_u32 s64, s64, s2")
                k("s_mov_b32 s91, 0")
                k("s_cmp_ge_u32 s64, 544")
                k("s_cbranch_scc1 %s" % nr2)
                k("s_mov_b32 s91, 1")
                k("s_add_u32 s64, s64, 4096")
                repack_issue()
                k.lab(nr2)
            if t + 2 < NT:
                if bars and (t + 2) % 8 == 0:
                    k("s_waitcnt vmcnt(%d)" % (6 - 2 * ((t + 2) // 8)))
                    k("s_barrier")
                k("ds_read_b128 %s, v9 offset:%d" % (vr(KF + 4 * ((t + 2) % 3), 4), (t + 2) * 1024))
                n_new += 1
            if t + 1 < NT:
                k("s_waitcnt lgkmcnt(%d)" % (2 + n_new))
                k("v_mfma_f32_32x32x16_bf16 %s, %s, %s, %s" % (vr(S[(t + 1) % 2], 16), vr(KF + 4 * ((t + 1) % 3), 4), vr(QF, 4), vr(NEG, 16)))
            if t == 0:
                k("s_nop 10")
            s = S[t % 2]
            for i in range(16):
                if "noexp" in EXPB and i >= 8: continue
                k("v_exp_f32 v%d, v%d" % (s + i, s + i))
            for i in range(8):
                if "nocvt" in EXPB: continue
                k("v_cvt_pk_bf16_f32 v%d, v%d, v%d" % (PK + i, s + 2 * i, s + 2 * i + 1))
            k("s_waitcnt lgkmcnt(%d)" % n_new)
            if "nopv" not in EXPB or t == 0:
                k("v_mfma_f32_32x32x16_bf16 %s, %s, %s, %s" % (vr(O, 16), vr(VF + 8 * (t % 2), 4), vr(PK, 4), "0" if t == 0 else vr(O, 16)))
                k("v_mfma_f32_32x32x16_bf16 %s, %s, %s, %s" % (vr(O, 16), vr(VF + 8 * (t % 2) + 4, 4), vr(PK + 4, 4), vr(O, 16)))
            if t + 1 < NT:
                rdV(t + 1)
    pass2(True)
    k.ts(6)
    nr3 = k.newlab("nr3")
    k("s_cmp_eq_u32 s91, 0")
    k("s_cbranch_scc1 %s" % nr3)
    repack_store()
    k.lab(nr3)
    k("s_nop 15")
    k("v_cmp_gt_f32 vcc, 0x%08x, v%d" % ((127 - 64) << 23, O + 8))
    k("v_cmp_u_f32 s[60:61], v%d, v%d" % (O + 8, O + 8))
    k("s_or_b64 vcc, vcc, s[60:61]")
    comb = k.newlab("comb")
    k("s_cbranch_vccz %s" % comb)
    k("v_mov_b32 v%d, 0xff800000" % M)
    k("ds_read_b128 %s, v9 offset:0" % vr(KF, 4))
    k("ds_read_b128 %s, v9 offset:1024" % vr(KF + 4, 4))
    k("s_waitcnt lgkmcnt(1)")
    k("v_mfma_f32_32x32x16_bf16 %s, %s, %s, 0" % (vr(S[0], 16), vr(KF, 4), vr(QF, 4)))
    for t in range(NT):
        if t + 2 < NT:
            k("ds_read_b128 %s, v9 offset:%d" % (vr(KF + 4 * ((t + 2) % 3), 4), (t + 2) * 1024))
        if t + 1 < NT:
            k("s_waitcnt lgkmcnt(%d)" % (1 if t + 2 < NT else 0))
            k("v_mfma_f32_32x32x16_bf16 %s, %s, %s, 0" % (vr(S[(t + 1) % 2], 16), vr(KF + 4 * ((t + 1) % 3), 4), vr(QF, 4)))
        k("s_nop 10" if t == 0 else "s_nop 3")
        s = S[t % 2]
        for i in range(8):
            k("v_max3_f32 v%d, v%d, v%d, v%d" % (M, s + 2 * i, s + 2 * i + 1, M))
    k("v_mov_b32 v12, v%d" % M)
    k("s_nop 1")
    k("v_permlane32_swap_b32 v%d, v12" % M)
    k("s_nop 1")
    k("v_max_f32 v%d, v%d, v12" % (M, M))
    for i in range(16):
        k("v_xor_b32 v%d, 0x80000000, v%d" % (NEG + i, M))
    k("s_nop 1")
    pass2(False)
    k("s_nop 15")
    k.lab(comb)
    k("s_mul_i32 s60, s48, 2560")
    k("s_add_u32 s60, s60, 0x20000")
    k("v_lshlrev_b32 v12, 2, v1")
    k("v_add_u32 v12, s60, v12")
    w1 = k.newlab("w1")
    k("s_cmp_eq_u32 s49, 0")
    k("s_cbranch_scc1 %s" % w1)
    for i in range(9):
        k("ds_write_b32 v12, v%d offset:%d" % (O + i, i * 256))
    k("ds_write_b32 v12, v%d offset:%d" % (M, 9 * 256))
    k("s_waitcnt lgkmcnt(0)")
    k("s_barrier")
    k("s_branch %s" % end)
    k.lab(w1)
    k("s_barrier")
    for i in range(9):
        k("ds_read_b32 v%d, v12 offset:%d" % (SA + i, i * 256))
    k("ds_read_b32 v%d, v12 offset:%d" % (SA + 9, 9 * 256))
    k("s_waitcnt lgkmcnt(0)")
    m1 = SA + 9
    k("v_max_f32 v13, v%d, v%d" % (M, m1))
    k("v_sub_f32 v14, v%d, v13" % M)
    k("v_sub_f32 v15, v%d, v13" % m1)
    k("v_exp_f32 v14, v14")
    k("v_exp_f32 v15, v15")
    k("s_nop 1")
    for i in range(9):
        k("v_mul_f32 v%d, v14, v%d" % (O + i, O + i))
    for i in range(9):
        k("v_fma_f32 v%d, v15, v%d, v%d" % (O + i, SA + i, O + i))
    k("v_rcp_f32 v13, v%d" % (O + 8))
    k("s_nop 1")
    for i in range(8):
        k("v_mul_f32 v%d, v13, v%d" % (O + i, O + i))
    for i in range(4):
        k("v_cvt_pk_bf16_f32 v%d, v%d, v%d" % (PK + i, O + 2 * i, O + 2 * i + 1))
    k("v_and_b32 v2, 31, v1")
    k("v_lshlrev_b32 v2, 5, v2")
    k("v_lshl_add_u32 v2, v3, 3, v2")
    k("s_lshl_b32 s51, s50, 10")
    k("s_add_u32 s51, s51, 0x%x" % WS_O)
    k("buffer_store_dwordx2 %s, v2, s[20:23], s51 offen" % vr(PK, 2))
    k("buffer_store_dwordx2 %s, v2, s[20:23], s51 offen offset:16" % vr(PK + 2, 2))
    k.ts(7)
    k.ts_flush(8)
    k.lab(end)
    return k


def gen_gemm64(name, x_ws_off, ldx, w_karg, K, resid, outp, S=4, stats=False):
    lds = S * 32768
    k = Kern(name, 128, 256, 256, lds)
    end = k.newlab("end")
    k("s_cmp_ge_u32 s2, 256")
    k("s_cbranch_scc1 %s" % end)
    k.ts(0)
    k("s_load_dwordx2 s[24:25], s[0:1], %d" % w_karg)
    k("s_load_dwordx2 s[32:33], s[0:1], 88")
    if resid[0] == 'karg':
        k("s_load_dwordx2 s[26:27], s[0:1], %d" % resid[1])
    if outp[0] == 'karg':
        k("s_load_dwordx2 s[28:29], s[0:1], %d" % outp[1])
    k("v_and_b32 v1, 63, v0")
    k("v_lshrrev_b32 v2, 6, v0")
    k("s_nop 1")
    k("v_readfirstlane_b32 s3, v2")
    k("s_and_b32 s48, s2, 7")
    k("s_lshl_b32 s48, s48, 2")
    k("s_bfe_u32 s49, s2, 0x20003")
    k("s_add_u32 s48, s48, s49")
    k("s_lshr_b32 s49, s2, 5")
    k("s_waitcnt lgkmcnt(0)")
    k.srd(8, 24, K * 1024)
    k.srd(20, 32, WS_SIZE)
    if resid[0] == 'karg':
        k.srd(12, 26, 2048 * 1024)
        rs, roff = 12, 0
    else:
        rs, roff = 20, resid[1]
    if outp[0] == 'karg':
        k.srd(16, 28, 2048 * 1024)
        os_, ooff = 16, 0
    else:
        os_, ooff = 20, outp[1]
    k("v_lshrrev_b32 v3, 4, v1")
    k("s_lshl_b32 s50, s3, 2")
    k("v_add_u32 v3, s50, v3")
    k("v_and_b32 v4, 15, v1")
    k("v_xor_b32 v4, v4, v3")
    k("v_lshlrev_b32 v4, 4, v4")
    k("s_lshl_b32 s51, s48, 6")
    k("v_add_u32 v3, s51, v3")
    k("v_mul_u32_u24 v3, %d, v3" % ldx)
    k("v_add_u32 v4, v3, v4")
    k("v_lshrrev_b32 v3, 3, v1")
    k("s_lshl_b32 s50, s3, 3")
    k("v_add_u32 v3, s50, v3")
    k("v_and_b32 v5, 7, v1")
    k("v_bfe_u32 v6, v1, 4, 1")
    k("v_lshlrev_b32 v6, 2, v6")
    k("v_xor_b32 v5, v5, v6")
    k("v_lshlrev_b32 v5, 4, v5")
    k("v_lshl_add_u32 v5, v3, 10, v5")
    k("s_lshl_b32 s50, s49, 7")
    k("v_add_u32 v5, s50, v5")
    k("s_lshl_b32 s52, s3, 10")
    chunks = []
    kk = 0
    while kk < K:
        c = min(128, K - kk)
        chunks.append((kk, c))
        kk += c
    NC = len(chunks)

    def issue(c):
        k0, kc = chunks[c]
        st = (c % S) * 32768
        n = 0
        for j in range(4):
            k("s_add_u32 m0, s52, %d" % (st + j * 4096))
            k("s_mov_b32 s54, %d" % (x_ws_off + j * 16 * ldx + k0 * 2))
            k("buffer_load_dwordx4 v4, s[20:23], s54 offen lds")
            n += 1
        for j in range(kc // 32):
            k("s_add_u32 m0, s52, %d" % (st + 16384 + j * 4096))
            k("s_mov_b32 s54, %d" % ((k0 + 32 * j) * 1024))
            k("buffer_load_dwordx4 v5, s[8:11], s54 offen lds")
            n += 1
        return n
    cnt = {}
    for c in range(min(S - 1, NC)):
        cnt[c] = issue(c)
    k("s_and_b32 s56, s3, 1")
    k("s_lshr_b32 s57, s3, 1")
    k("v_and_b32 v7, 31, v1")
    k("s_lshl_b32 s58, s56, 5")
    k("v_add_u32 v7, s58, v7")
    k("v_lshrrev_b32 v8, 5, v1")
    k("v_and_b32 v9, 15, v7")
    k("v_xor_b32 v9, v9, v8")
    k("v_lshlrev_b32 v9, 4, v9")
    k("v_lshl_add_u32 v9, v7, 8, v9")
    XA = 16
    for ks in range(8):
        k("v_xor_b32 v%d, %d, v9" % (XA + ks, ks * 32))
    k("v_lshrrev_b32 v11, 5, v1")
    k("v_lshlrev_b32 v11, 3, v11")
    k("v_bfe_u32 v10, v1, 2, 2")
    k("v_add_u32 v11, v11, v10")
    k("v_bfe_u32 v10, v1, 4, 1")
    k("v_lshlrev_b32 v10, 5, v10")
    k("v_and_b32 v12, 3, v1")
    k("v_lshl_add_u32 v10, v12, 3, v10")
    k("s_lshl_b32 s58, s57, 6")
    k("v_add_u32 v10, s58, v10")
    k("v_bfe_u32 v12, v1, 3, 1")
    k("v_lshlrev_b32 v12, 6, v12")
    k("v_xor_b32 v10, v10, v12")
    k("v_lshl_add_u32 v10, v11, 7, v10")
    k("v_add_u32 v10, 0x4000, v10")
    k("s_lshl_b32 s58, s56, 5")
    k("s_add_u32 s58, s58, s51")
    k("v_and_b32 v13, 31, v1")
    k("v_add_u32 v13, s58, v13")
    k("v_lshlrev_b32 v12, 3, v8")
    k("v_lshl_add_u32 v12, v13, 10, v12")
    k("s_lshl_b32 s59, s49, 7")
    k("s_lshl_b32 s60, s57, 6")
    k("s_add_u32 s59, s59, s60")
    ACC, RES, XC, WC = 32, 48, 24, 14
    BF, AF = 64, 96
    for c in range(NC):
        k0, kc = chunks[c]
        st = (c % S) * 32768
        later = sum(cnt[cc] for cc in range(c + 1, min(c + S - 1, NC)))
        k("s_waitcnt vmcnt(%d)" % later)
        k("s_barrier")
        if c < 11: k.ts(1 + c)
        if c + S - 1 < NC:
            cnt[c + S - 1] = issue(c + S - 1)
        if c == NC - 1:
            k("s_add_u32 s60, s59, 0x%x" % roff)
            for q in range(4):
                k("buffer_load_dwordx2 %s, v12, s[%d:%d], s60 offen offset:%d" % (vr(RES + 2 * q, 2), rs, rs + 3, 16 * q))
        nks = kc // 16
        hi = st >= 65536
        if hi or st + 16384 + 16384 > 65536:
            pass
        for ks in range(nks):
            k("v_add_u32 v%d, %d, v%d" % (XC + ks, st, XA + ks))
        k("v_add_u32 v%d, %d, v10" % (WC, st))
        for ks in range(nks):
            k("ds_read_b128 %s, v%d" % (vr(BF + 4 * ks, 4), XC + ks))
            k("ds_read_b64_tr_b16 %s, v%d offset:%d" % (vr(AF + 4 * ks, 2), WC, ks * 2048))
            k("ds_read_b64_tr_b16 %s, v%d offset:%d" % (vr(AF + 4 * ks + 2, 2), WC, ks * 2048 + 512))
        for ks in range(nks):
            k("s_waitcnt lgkmcnt(%d)" % min(15, 3 * (nks - 1 - ks)))
            first = (c == 0 and ks == 0)
            k("v_mfma_f32_32x32x16_bf16 %s, %s, %s, %s" % (vr(ACC, 16), vr(AF + 4 * ks, 4), vr(BF + 4 * ks, 4), "0" if first else vr(ACC, 16)))
    k.ts(12)
    k("s_waitcnt vmcnt(0)")
    k("s_nop 15")
    for q in range(4):
        for d in range(2):
            r = RES + 2 * q + d
            k("v_lshlrev_b32 v%d, 16, v%d" % (BF, r))
            k("v_and_b32 v%d, 0xffff0000, v%d" % (BF + 1, r))
            k("v_add_f32 v%d, v%d, v%d" % (ACC + 4 * q + 2 * d, ACC + 4 * q + 2 * d, BF))
            k("v_add_f32 v%d, v%d, v%d" % (ACC + 4 * q + 2 * d + 1, ACC + 4 * q + 2 * d + 1, BF + 1))
    for r in range(8):
        k("v_cvt_pk_bf16_f32 v%d, v%d, v%d" % (RES + r, ACC + 2 * r, ACC + 2 * r + 1))
    k("s_add_u32 s60, s59, 0x%x" % ooff)
    for q in range(4):
        k("buffer_store_dwordx2 %s, v12, s[%d:%d], s60 offen offset:%d" % (vr(RES + 2 * q, 2), os_, os_ + 3, 16 * q))
    if stats:
        T = AF
        k("v_and_b32 v%d, 31, v1" % (T + 7))
        k("v_lshlrev_b32 v%d, 4, v%d" % (T + 7, T + 7))
        k("v_lshl_add_u32 v%d, v8, 3, v%d" % (T + 7, T + 7))
        k("s_lshl_b32 s60, s48, 1")
        k("s_add_u32 s60, s60, s56")
        k("s_lshl_b32 s60, s60, 5")
        k("s_lshl_b32 s61, s49, 2")
        k("s_add_u32 s60, s60, s61")
        k("s_lshl_b32 s61, s57, 1")
        k("s_add_u32 s60, s60, s61")
        k("s_lshl_b32 s60, s60, 10")
        k("s_add_u32 s60, s60, 0x%x" % WS_HP)
        for q in range(4):
            k("buffer_store_dwordx2 %s, v%d, s[20:23], s60 offen offset:%d" % (vr(RES + 2 * q, 2), T + 7, (q >> 1) * 1024 + (q & 1) * 512))
        k("v_mov_b32 v%d, 0x3f803f80" % T)
        for i in range(4):
            k("v_mov_b32 v%d, 0" % (T + 2 + i))
        for r in range(8):
            k("v_dot2c_f32_bf16 v%d, v%d, v%d" % (T + 2 + (r & 1), RES + r, T))
            k("v_dot2c_f32_bf16 v%d, v%d, v%d" % (T + 4 + (r & 1), RES + r, RES + r))
        k("s_nop 4")
        k("v_add_f32 v%d, v%d, v%d" % (T + 2, T + 2, T + 3))
        k("v_add_f32 v%d, v%d, v%d" % (T + 3, T + 4, T + 5))
        k("v_mov_b32 v%d, v%d" % (T + 4, T + 2))
        k("v_mov_b32 v%d, v%d" % (T + 5, T + 3))
        k("s_nop 1")
        k("v_permlane32_swap_b32 v%d, v%d" % (T + 2, T + 4))
        k("v_permlane32_swap_b32 v%d, v%d" % (T + 3, T + 5))
        k("s_nop 1")
        k("v_add_f32 v%d, v%d, v%d" % (T + 2, T + 2, T + 4))
        k("v_add_f32 v%d, v%d, v%d" % (T + 3, T + 3, T + 5))
        k("v_lshlrev_b32 v%d, 7, v13" % (T + 6))
        k("s_lshl_b32 s60, s49, 1")
        k("s_add_u32 s60, s60, s57")
        k("s_lshl_b32 s60, s60, 3")
        k("s_add_u32 s60, s60, 0x%x" % WS_ST)
        k("v_cmp_gt_u32 vcc, 32, v1")
        k("s_and_saveexec_b64 s[62:63], vcc")
        k("buffer_store_dwordx2 %s, v%d, s[20:23], s60 offen" % (vr(T + 2, 2), T + 6))
        k("s_mov_b64 exec, s[62:63]")
    k.ts(13)
    k.ts_flush(14)
    k.lab(end)
    return k


def gen_C():
    return gen_gemm64("wo_kernel", WS_O, 1024, 32, 512, ('karg', 0), ('ws', WS_H), stats=True)


def gen_E():
    return gen_gemm64("down_kernel", WS_ACT, ACT_LD, 64, 1376, ('ws', WS_H), ('karg', 72))


class VM:
    def __init__(s, k):
        s.k = k
        s.n = 0
    def issue(s):
        s.n += 1
        return s.n
    def wait(s, tok):
        if os.environ.get("EXP", "") == "nomem":
            return
        s.k("s_waitcnt vmcnt(%d)" % min(63, s.n - tok))


def gen_D():
    S = 10
    CH = 16384
    NCH = 12
    k = Kern("ffn1_kernel", 288, 256, 256, S * CH, accum=256)
    vm = VM(k)
    end = k.newlab("end")
    k("s_cmp_ge_u32 s2, 256")
    k("s_cbranch_scc1 %s" % end)
    k.ts(0)
    k("s_load_dwordx2 s[32:33], s[0:1], 88")
    k("v_and_b32 v1, 63, v0")
    k("v_lshrrev_b32 v2, 6, v0")
    k("s_nop 1")
    k("v_readfirstlane_b32 s3, v2")
    k("s_bfe_u32 s48, s2, 0x20001")
    k("s_lshl_b32 s48, s48, 2")
    k("s_bfe_u32 s49, s2, 0x20003")
    k("s_add_u32 s48, s48, s49")
    k("s_and_b32 s49, s2, 1")
    k("s_lshl_b32 s49, s49, 3")
    k("s_lshr_b32 s50, s2, 5")
    k("s_add_u32 s49, s49, s50")
    k("s_cmp_ge_u32 s49, 15")
    k("s_cbranch_scc1 %s" % end)
    k("v_and_b32 v2, 31, v1")
    k("v_lshrrev_b32 v3, 5, v1")
    k("s_lshl_b32 s50, s3, 5")
    k("s_lshl_b32 s51, s48, 7")
    k("s_add_u32 s50, s50, s51")
    k("v_add_u32 v2, s50, v2")
    k("s_lshl_b32 s57, s50, 10")
    k("v_lshlrev_b32 v6, 7, v2")
    k("v_lshl_add_u32 v6, v3, 6, v6")
    k("v_lshlrev_b32 v7, 4, v1")
    k("v_add_u32 v8, 0x10000, v7")
    k("v_add_u32 v9, 0x20000, v7")
    k("s_lshl_b32 s52, s3, 10")
    k("v_add_u32 v4, s52, v7")
    k("s_mul_i32 s53, s49, 196608")
    k("s_add_u32 s53, s53, 0x%x" % WS_WG)
    k("s_mov_b32 s55, 0x%x" % WS_ST)
    k("s_add_u32 s57, s57, 0x%x" % WS_HP)
    k("s_waitcnt lgkmcnt(0)")
    k.srd(20, 32, WS_SIZE)
    ACC, B, T = 16, 112, 240
    order = []
    for ks in range(KS1):
        for t in range(6):
            order.append((t, ks))
    for p in range(3):
        for ks in range(KS1, 32):
            order.append((p, ks))
            order.append((p + 3, ks))
    assert len(order) == 192
    tokA, tokB = {}, {}

    NOMEM = os.environ.get("EXP", "") == "nomem"
    vq = []

    def opA(c, j):
        def f():
            if NOMEM:
                tokA[c] = 0
                return
            k("s_add_u32 m0, s52, %d" % ((c % S) * CH + j * 4096))
            k("s_add_u32 s54, s53, %d" % (c * CH + j * 4096))
            k("buffer_load_dwordx4 v4, s[20:23], s54 offen lds")
            tokA[c] = vm.issue()
        return f

    def opB(g):
        def f():
            if NOMEM:
                tokB[g] = 0
                return
            k("s_add_u32 s56, s57, %d" % (g * 1024))
            k("buffer_load_dwordx4 %s, v7, s[20:23], s56 offen" % vr(B + 4 * g, 4))
            tokB[g] = vm.issue()
        return f
    nb = 0
    for c in range(NCH):
        need = max(ks for (t, ks) in order[:min(192, (c + 1) * 16 + 8)]) + 1
        while nb < need:
            vq.append((c, opB(nb))); nb += 1
        for j in range(4):
            vq.append((c, opA(c, j)))
    W = int(os.environ.get("W", "3"))

    def vflush(c):
        while vq and vq[0][0] <= c:
            vq.pop(0)[1]()

    def vstep(cur_chunk_x16):
        if vq and vq[0][0] * 16 <= cur_chunk_x16 + W * 16:
            vq.pop(0)[1]()
    for q in range(4):
        k("buffer_load_dwordx4 %s, v6, s[20:23], s55 offen offset:%d" % (vr(ACC + 4 * q, 4), 16 * q))
        tokS = vm.issue()
    vflush(W - 1)
    k.ts(1)
    vm.wait(tokS)
    for i in range(2, 8):
        k("v_add_f32 v%d, v%d, v%d" % (ACC + (i & 1), ACC + (i & 1), ACC + 2 * (i // 2) * 1 + (i & 1)) if False else "")
    for st in (8, 4, 2):
        for i in range(st):
            k("v_add_f32 v%d, v%d, v%d" % (ACC + i, ACC + i, ACC + i + st))
    k("v_mov_b32 v%d, v%d" % (ACC + 2, ACC))
    k("v_mov_b32 v%d, v%d" % (ACC + 3, ACC + 1))
    k("s_nop 1")
    k("v_permlane32_swap_b32 v%d, v%d" % (ACC, ACC + 2))
    k("v_permlane32_swap_b32 v%d, v%d" % (ACC + 1, ACC + 3))
    k("s_nop 1")
    k("v_add_f32 v%d, v%d, v%d" % (ACC, ACC, ACC + 2))
    k("v_add_f32 v%d, v%d, v%d" % (ACC + 1, ACC + 1, ACC + 3))
    k("v_mul_f32 v%d, %s, v%d" % (ACC, f32hex(1.0 / 512), ACC))
    k("v_mul_f32 v%d, %s, v%d" % (ACC + 1, f32hex(1.0 / 512), ACC + 1))
    k("v_fma_f32 v%d, -v%d, v%d, v%d" % (ACC + 1, ACC, ACC, ACC + 1))
    k("v_add_f32 v%d, %s, v%d" % (ACC + 1, f32hex(1e-5), ACC + 1))
    k("v_rsq_f32 v12, v%d" % (ACC + 1))
    k("s_nop 1")
    k("v_mov_b32 v13, v12")
    k("v_mul_f32 v14, v%d, v12" % ACC)
    k("v_xor_b32 v14, 0x80000000, v14")
    k("v_mov_b32 v15, v14")
    k("v_mul_u32_u24 v10, %d, v2" % ACT_LD)
    k("v_lshl_add_u32 v10, v3, 3, v10")
    k("s_mul_i32 s59, s49, 192")
    k("s_add_u32 s59, s59, 0x%x" % WS_ACT)

    from collections import deque
    fq = deque()
    normed = set()

    def q_norm(g):
        def w():
            vm.wait(tokB[g])
        fq.append(("n", g, w))
        for r in range(4):
            t0 = T + 2 * (r & 3)
            b = B + 4 * g + r
            fq.append(("n", g, "v_lshlrev_b32 v%d, 16, v%d" % (t0, b)))
            fq.append(("n", g, "v_and_b32 v%d, 0xffff0000, v%d" % (t0 + 1, b)))
            fq.append(("n", g, "v_fma_f32 v%d, v%d, v12, v14" % (t0, t0)))
            fq.append(("n", g, "v_fma_f32 v%d, v%d, v12, v14" % (t0 + 1, t0 + 1)))
            fq.append(("n", g, "v_cvt_pk_bf16_f32 v%d, v%d, v%d" % (b, t0, t0 + 1)))

    def q_epi(p):
        G, U = ACC + 16 * p, ACC + 16 * (3 + p)
        E = T + 8 if False else T
        fq.append(("e", p, "s_nop 15"))
        for r in range(0, 16, 2):
            fq.append(("e", p, "v_pk_mul_f32 v[%d:%d], v[%d:%d], v[10+X:11+X]" % (E + r, E + r + 1, G + r, G + r + 1)))
    k("s_mov_b32 s60, %s" % f32hex(-LOG2E))
    k("s_mov_b32 s61, %s" % f32hex(-LOG2E))
    k("s_mov_b32 s62, 1.0")
    k("s_mov_b32 s63, 1.0")

    def q_epi(p):
        G, U = ACC + 16 * p, ACC + 16 * (3 + p)
        E = T
        L = []
        L.append("s_nop 15")
        for r in range(16):
            L.append("v_mul_f32 v%d, s60, v%d" % (E + r, G + r))
        for r in range(16):
            L.append("v_exp_f32 v%d, v%d" % (E + r, E + r))
        for r in range(16):
            L.append("v_mul_f32 v%d, v%d, v%d" % (G + r, G + r, U + r))
        for r in range(16):
            L.append("v_add_f32 v%d, 1.0, v%d" % (E + r, E + r))
        for r in range(16):
            L.append("v_rcp_f32 v%d, v%d" % (E + r, E + r))
        for r in range(16):
            L.append("v_mul_f32 v%d, v%d, v%d" % (G + r, G + r, E + r))
        for r in range(8):
            L.append("v_cvt_pk_bf16_f32 v%d, v%d, v%d" % (G + r, G + 2 * r, G + 2 * r + 1))
        for q in range(4):
            L.append("buffer_store_dwordx2 %s, v10, s[20:23], s%d offen offset:%d" % (vr(G + 2 * q, 2), 59 if p == 0 else 58, p * 64 + 16 * q))
        for x in L:
            fq.append(("e", p, x))

    def emit_filler():
        kind, g, x = fq.popleft()
        if callable(x):
            x()
        else:
            if x.startswith("buffer_store"):
                vm.issue()
            EXP = os.environ.get("EXP", "")
            if EXP in ("nofill", "memonly") and x.startswith("v_"):
                return
            if EXP == "addfill" and x.startswith("v_"):
                x = "v_add_f32 v%d, 1.0, v%d" % (T + (len(k.L) % 8), T + (len(k.L) % 8))
            if EXP == "e32" and x.startswith("v_"):
                x = "v_lshlrev_b32 v%d, 16, v%d" % (T + (len(k.L) % 8), T + 8 + (len(k.L) % 8))
            k(x)

    def flush_norm(g):
        last = -1
        for i, (kind, gg, x) in enumerate(fq):
            if kind == "n" and gg <= g:
                last = i
        n = last + 1
        for _ in range(n):
            emit_filler()
        if n:
            k("s_nop 1")
    k("s_cmp_eq_u32 s49, 14")
    k("s_cselect_b32 s58, 0x%x, s59" % WS_DUMMY)
    for g in range(32):
        q_norm(g)

    def read1(gi, j):
        c = gi // 4
        fi = gi * 4 + j
        lds = (c % S) * CH + (fi % 16) * 1024
        k("ds_read_b128 a[%d:%d], v%d offset:%d" % (16 * (gi % 2) + 4 * j, 16 * (gi % 2) + 4 * j + 3, 7 + lds // 65536, lds % 65536))

    def boundary(c):
        if TSMODE == 1 and c >= 1: k.ts(1 + c)
        vflush(c + 1)
        vm.wait(tokA[c + 1])
        if not os.environ.get("NOBAR"):
            k("s_barrier")
        if TSMODE == 2 and c >= 1: k.ts(1 + c)
    boundary(0)
    for j in range(4):
        read1(0, j)
    seen = set()
    NPER = int(os.environ.get("NPER", "4"))
    for gi in range(48):
        if gi + 1 < 48 and (gi + 1) % 8 == 0:
            boundary((gi + 1) // 4)
        for j in range(4):
            t, ks = order[gi * 4 + j]
            flush_norm(ks + 1)
            k("s_waitcnt lgkmcnt(%d)" % (3 if gi + 1 < 48 else 3 - j))
            first = t not in seen
            seen.add(t)
            if os.environ.get("EXP", "") != "memonly":
                k("v_mfma_f32_32x32x16_bf16 %s, a[%d:%d], %s, %s" % (vr(ACC + 16 * t, 16), 16 * (gi % 2) + 4 * j, 16 * (gi % 2) + 4 * j + 3, vr(B + 4 * ks, 4), "0" if first else vr(ACC + 16 * t, 16)))
            if gi + 1 < 48 and os.environ.get("EXP", "") != "memonly":
                read1(gi + 1, j)
            vstep(gi * 4 + j)
            if ks == 31 and t >= 3:
                q_epi(t - 3)
            for _ in range(NPER):
                if fq:
                    emit_filler()
    k.ts(13)
    while fq:
        emit_filler()
    k.ts_flush(14)
    k.lab(end)
    return k


def build(kerns):
    head = open("cdna_kernels/%s.s.ref" % NAME).read().split("; @launch")[0]
    out = [head.rstrip("\n")]
    for kk in kerns:
        out.append("; @launch kernel=%s grid=(%d,1,1) block=(%d,1,1) lds=%d" % (kk.name, kk.grid, kk.block, kk.lds))
    out.append('.amdgcn_target "amdgcn-amd-amdhsa--gfx950"')
    out.append(".text")
    for kk in kerns:
        out.append(kk.text())
    out.append('.section .rodata,"a"')
    for kk in kerns:
        out.append(".p2align 6")
        out.append(kk.desc())
    return "\n".join(out) + "\n"


def main():
    which = sys.argv[1] if len(sys.argv) > 1 else "ABCDE"
    gens = {"A": gen_A}
    for nm in "BCDE":
        if "gen_" + nm in globals():
            gens[nm] = globals()["gen_" + nm]
    kerns = [gens[c]() for c in which if c in gens]
    txt = build(kerns)
    open("cdna_kernels/%s.s" % NAME, "w").write(txt)
    print("wrote", len(txt), "bytes;", [kk.name for kk in kerns])


if __name__ == "__main__":
    main()
```

```python
import sys, re

NAME = "sequential_preLN__grouped_kv_mqa__swiglu_ffn__prompt"

WS_Q = 0x000000
WS_K = 0x200000
WS_V = 0x210000
WS_CS = 0x220000
WS_KM = 0x228000
WS_O = 0x300000
WS_H = 0x500000
WS_ACT = 0x800000
ACT_LD = 2816
WS_ST = 0x230000
WS_WG = 0x1000000
WS_WD = 0x1400000
WS_WO = 0x1600000
WS_HP = 0x1800000
WS_DUMMY = 0x2000000
KS1 = 16
WS_SIZE = 268435456
import os
DEBUG_TS = bool(os.environ.get('TS'))
TSMODE = int(os.environ.get('TS', '0'))
SRD3 = "0x00020000"
LOG2E = 1.4426950408889634


def f32hex(x):
    import struct
    return "0x%08x" % struct.unpack("<I", struct.pack("<f", x))[0]


class Kern:
    def __init__(s, name, nvgpr, block, grid, lds, accum=None):
        s.name = name
        s.L = []
        s.nvgpr = nvgpr
        s.block = block
        s.grid = grid
        s.lds = lds
        s.accum = accum if accum is not None else nvgpr
        s.nlab = 0
        s.tsb = 70
        s.kidx = {"attn_kernel": 1, "wo_kernel": 2, "ffn1_kernel": 3, "down_kernel": 4}.get(name, 0)

    def __call__(s, txt):
        for t in txt.split("\n"):
            t = t.strip()
            if t:
                m = re.search(r"offset:(\d+)", t)
                if m:
                    lim = 4095 if t.startswith("buffer") else 65535
                    assert int(m.group(1)) <= lim, t
                if t.startswith("buffer_store") and os.environ.get("STMOD"):
                    t = t + " " + os.environ["STMOD"]
                s.L.append("    " + t)

    def lab(s, l):
        s.L.append(l + ":")

    def newlab(s, p):
        s.nlab += 1
        return "%s_%s%d" % (s.name.replace("_kernel", "")[:8], p, s.nlab)

    def srd(s, reg, preg, size):
        s("s_mov_b32 s%d, s%d" % (reg, preg))
        s("s_and_b32 s%d, s%d, 0xffff" % (reg + 1, preg + 1))
        s("s_mov_b32 s%d, 0x%x" % (reg + 2, size))
        s("s_mov_b32 s%d, %s" % (reg + 3, SRD3))

    def ts(s, idx):
        if not DEBUG_TS:
            return
        if TSMODE == 3:
            if idx == 0:
                s("s_memrealtime s[100:101]")
            return
        s("s_memtime s[%d:%d]" % (s.tsb + 2 * idx, s.tsb + 1 + 2 * idx))
        if idx == 0:
            s("s_memrealtime s[100:101]")

    def ts_flush(s, n):
        if not DEBUG_TS:
            return
        if TSMODE == 3:
            lab = s.newlab("nots")
            s("s_waitcnt vmcnt(0)")
            s("s_memrealtime s[72:73]")
            s("s_waitcnt lgkmcnt(0)")
            s("s_cmp_lg_u32 s3, 0")
            s("s_cbranch_scc1 %s" % lab)
            s("s_lshl_b32 s69, s2, 3")
            s("s_add_u32 s69, s69, 0x%x" % (0x1F00000 + 4096 * s.kidx))
            s("v_mov_b32 v0, 0")
            s("v_mov_b32 v2, s100")
            s("v_mov_b32 v3, s72")
            s("s_mov_b64 exec, 1")
            s("buffer_store_dwordx2 v[2:3], v0, s[20:23], s69 offen")
            s("s_mov_b64 exec, -1")
            s.lab(lab)
            return
        lab = s.newlab("nots")
        s("s_memrealtime s[64:65]")
        s("s_waitcnt lgkmcnt(0)")
        s("s_sub_u32 s67, s2, 100")
        s("s_cmp_ge_u32 s67, 4")
        s("s_cbranch_scc1 %s" % lab)
        s("s_cmp_lg_u32 s3, 0")
        s("s_cbranch_scc1 %s" % lab)
        s("s_load_dwordx2 s[96:97], s[0:1], 80")
        s("s_waitcnt lgkmcnt(0)")
        s("s_mov_b32 s98, 256")
        s("s_mov_b32 s99, 0x00020000")
        s("s_lshl_b32 s69, s67, 6")
        s("v_mov_b32 v0, 0")
        for i in range(n):
            s("s_sub_u32 s68, s%d, s%d" % (s.tsb + 2 * i, s.tsb))
            s("v_mov_b32 v1, s68")
            s("buffer_store_dword v1, v0, s[96:99], s69 offen offset:%d" % (4 * i))
            s("s_nop 2")
        s("s_sub_u32 s68, s64, s100")
        s("v_mov_b32 v1, s68")
        s("buffer_store_dword v1, v0, s[96:99], s69 offen offset:60")
        s.lab(lab)

    def text(s):
        out = []
        out.append(".globl %s" % s.name)
        out.append(".p2align 8")
        out.append(".type %s,@function" % s.name)
        out.append("%s:" % s.name)
        out += s.L
        out.append("    s_endpgm")
        return "\n".join(out)

    def desc(s):
        return "\n".join([
            ".amdhsa_kernel %s" % s.name,
            "  .amdhsa_next_free_vgpr %d" % s.nvgpr,
            "  .amdhsa_next_free_sgpr 102",
            "  .amdhsa_accum_offset %d" % s.accum,
            "  .amdhsa_group_segment_fixed_size 0",
            "  .amdhsa_kernarg_size 96",
            "  .amdhsa_user_sgpr_count 2",
            "  .amdhsa_user_sgpr_kernarg_segment_ptr 1",
            "  .amdhsa_system_sgpr_workgroup_id_x 1",
            ".end_amdhsa_kernel"])


def vr(a, n=1):
    return "v%d" % a if n == 1 else "v[%d:%d]" % (a, a + n - 1)


def sr(a, n=1):
    return "s%d" % a if n == 1 else "s[%d:%d]" % (a, a + n - 1)


def gen_A():
    k = Kern(NAME + "_kernel", 256, 256, 256, 163840)
    end = k.newlab("end")
    k("s_cmp_ge_u32 s2, 256")
    k("s_cbranch_scc1 %s" % end)
    k.ts(0)
    k("s_load_dwordx8 s[24:31], s[0:1], 0")
    k("s_load_dwordx2 s[32:33], s[0:1], 88")
    k("v_and_b32 v1, 63, v0")
    k("v_lshrrev_b32 v2, 6, v0")
    k("s_nop 1")
    k("v_readfirstlane_b32 s3, v2")
    k("s_and_b32 s48, s2, 7")
    k("s_lshl_b32 s48, s48, 2")
    k("s_bfe_u32 s49, s2, 0x20003")
    k("s_add_u32 s48, s48, s49")
    k("s_lshr_b32 s49, s2, 5")
    k("v_lshrrev_b32 v3, 4, v1")
    k("s_lshl_b32 s50, s3, 2")
    k("v_add_u32 v3, s50, v3")
    k("v_and_b32 v4, 15, v1")
    k("v_xor_b32 v4, v4, v3")
    k("v_lshlrev_b32 v4, 4, v4")
    k("s_lshl_b32 s51, s48, 6")
    k("v_add_u32 v3, s51, v3")
    k("v_lshl_add_u32 v4, v3, 10, v4")
    k("v_lshrrev_b32 v3, 3, v1")
    k("s_lshl_b32 s50, s3, 3")
    k("v_add_u32 v3, s50, v3")
    k("v_and_b32 v5, 7, v1")
    k("v_bfe_u32 v6, v1, 4, 1")
    k("v_lshlrev_b32 v6, 2, v6")
    k("v_xor_b32 v5, v5, v6")
    k("v_lshlrev_b32 v5, 4, v5")
    k("v_lshl_add_u32 v5, v3, 10, v5")
    k("s_lshl_b32 s50, s49, 7")
    k("v_add_u32 v5, s50, v5")
    k("v_lshlrev_b32 v6, 4, v1")
    k("s_lshl_b32 s52, s3, 10")
    k("s_and_b32 s56, s3, 1")
    k("s_lshr_b32 s57, s3, 1")
    k("s_lshl_b32 s62, s56, 11")
    k("s_and_b32 s50, s48, 7")
    k("s_lshl_b32 s63, s57, 8")
    k("s_or_b32 s50, s50, s63")
    k("s_cmp_eq_u32 s50, s49")
    k("s_cselect_b32 s53, 1, 0")
    k("s_waitcnt lgkmcnt(0)")
    k.srd(4, 24, 2048 * 512 * 2)
    for c in range(4):
        for j in range(4):
            k("s_add_u32 m0, s52, %d" % (c * 16384 + j * 4096))
            k("s_mov_b32 s54, %d" % (j * 16 * 1024 + c * 256))
            k("buffer_load_dwordx4 v4, s[4:7], s54 offen lds")
    k.srd(8, 26, 512 * 512 * 2)
    k.srd(12, 28, 512 * 16 * 2)
    k.srd(16, 30, 512 * 16 * 2)
    k.srd(20, 32, WS_SIZE)
    k.ts(1)
    k("v_and_b32 v7, 31, v1")
    k("s_lshl_b32 s58, s56, 5")
    k("v_add_u32 v7, s58, v7")
    k("v_lshrrev_b32 v8, 5, v1")
    k("v_and_b32 v9, 15, v7")
    k("v_xor_b32 v9, v9, v8")
    k("v_lshlrev_b32 v9, 4, v9")
    k("v_lshl_add_u32 v9, v7, 8, v9")
    XA = 16
    for ks in range(8):
        k("v_xor_b32 v%d, %d, v9" % (XA + ks, ks * 32))
    k("v_lshrrev_b32 v7, 5, v1")
    k("v_lshlrev_b32 v7, 3, v7")
    k("v_bfe_u32 v10, v1, 2, 2")
    k("v_add_u32 v7, v7, v10")
    k("v_bfe_u32 v10, v1, 4, 1")
    k("v_lshlrev_b32 v10, 5, v10")
    k("v_and_b32 v11, 3, v1")
    k("v_lshl_add_u32 v10, v11, 3, v10")
    k("s_lshl_b32 s58, s57, 6")
    k("v_add_u32 v10, s58, v10")
    k("v_bfe_u32 v11, v1, 3, 1")
    k("v_lshlrev_b32 v11, 6, v11")
    k("v_xor_b32 v10, v10, v11")
    k("v_lshl_add_u32 v10, v7, 7, v10")
    k("v_add_u32 v10, 0x10000, v10")
    k("v_and_b32 v11, 3, v1")
    k("v_lshlrev_b32 v11, 3, v11")
    k("v_lshl_add_u32 v11, v7, 5, v11")
    k("v_bfe_u32 v12, v1, 4, 1")
    k("v_lshl_add_u32 v11, v12, 14, v11")
    k("v_add_u32 v11, 0x20000, v11")
    ONES = 24
    for i in range(4):
        k("v_mov_b32 v%d, 0x3f803f80" % (ONES + i))
    S1, S2 = 28, 29
    for i in range(4):
        k("v_mov_b32 v%d, 0" % (28 + i))
    ACC, CS, ACC2, CS2 = 32, 48, 64, 80
    BF, AF, AK = 96, 224, 240
    done = k.newlab("done")
    kvp = k.newlab("kvp")
    k("s_cmp_lg_u32 s53, 0")
    k("s_cbranch_scc1 %s" % kvp)

    def body(kv):
        nW = 8 if kv else 4

        def issueW(c):
            for j in range(4):
                k("s_add_u32 m0, s52, %d" % (65536 + c * 16384 + j * 4096))
                k("s_mov_b32 s54, %d" % ((c * 128 + 32 * j) * 1024))
                k("buffer_load_dwordx4 v5, s[8:11], s54 offen lds")
            if kv:
                for (srdn, base) in ((12, 131072), (16, 147456)):
                    for j in range(2):
                        k("s_add_u32 s54, s62, %d" % (c * 4096 + j * 1024))
                        k("s_add_u32 m0, s54, %d" % base)
                        k("buffer_load_dwordx4 v6, s[%d:%d], s54 offen lds" % (srdn, srdn + 3))
        for c in range(4):
            k("s_waitcnt vmcnt(%d)" % (4 * (3 - c) + c * nW))
            k("s_barrier")
            if not kv: k.ts(2 + c)
            for ks in range(8):
                k("ds_read_b128 %s, v%d offset:%d" % (vr(BF + 4 * (8 * c + ks), 4), XA + ks, c * 16384))
            issueW(c)
            for ks in range(8):
                k("s_waitcnt lgkmcnt(%d)" % (7 - ks))
                for q in range(4):
                    b = BF + 4 * (8 * c + ks) + q
                    k("v_dot2c_f32_bf16 v%d, v%d, v%d" % (28 + 2 * (q & 1), b, ONES))
                    k("v_dot2c_f32_bf16 v%d, v%d, v%d" % (29 + 2 * (q & 1), b, b))

        def rdA(g):
            c, ks = g // 8, g % 8
            k("ds_read_b64_tr_b16 %s, v10 offset:%d" % (vr(AF + 4 * (g % 4), 2), c * 16384 + ks * 2048))
            k("ds_read_b64_tr_b16 %s, v10 offset:%d" % (vr(AF + 4 * (g % 4) + 2, 2), c * 16384 + ks * 2048 + 512))
            if kv:
                k("ds_read_b64_tr_b16 %s, v11 offset:%d" % (vr(AK + 4 * (g % 4), 2), (c * 128 + ks * 16) * 32))
                k("ds_read_b64_tr_b16 %s, v11 offset:%d" % (vr(AK + 4 * (g % 4) + 2, 2), (c * 128 + ks * 16 + 4) * 32))
        nr = 4 if kv else 2
        for c in range(4):
            k("s_waitcnt vmcnt(%d)" % ((3 - c) * nW))
            k("s_barrier")
            if not kv: k.ts(6 + c)
            for ks in range(3):
                rdA(8 * c + ks)
            if c == 0:
                k("v_add_f32 v28, v28, v30")
                k("v_add_f32 v29, v29, v31")
                k("v_mov_b32 v30, v28")
                k("v_mov_b32 v31, v29")
                k("s_nop 1")
                k("v_permlane32_swap_b32 v28, v30")
                k("v_permlane32_swap_b32 v29, v31")
                k("s_nop 1")
                k("v_add_f32 v28, v28, v30")
                k("v_add_f32 v29, v29, v31")
                k("v_mul_f32 v%d, %s, v%d" % (S1, f32hex(1.0 / 512), S1))
                k("v_mul_f32 v%d, %s, v%d" % (S2, f32hex(1.0 / 512), S2))
                k("v_fma_f32 v%d, -v%d, v%d, v%d" % (S2, S1, S1, S2))
                k("v_add_f32 v%d, %s, v%d" % (S2, f32hex(1e-5), S2))
                k("v_rsq_f32 v%d, v%d" % (S2, S2))
                k("s_nop 1")
                k("v_mul_f32 v30, %s, v%d" % (f32hex(0.25 * LOG2E), S2))
            for ks in range(8):
                g = 8 * c + ks
                ahead = min(2, 7 - ks)
                k("s_waitcnt lgkmcnt(%d)" % (ahead * nr))
                first = g == 0
                k("v_mfma_f32_32x32x16_bf16 %s, %s, %s, %s" % (vr(ACC, 16), vr(AF + 4 * (g % 4), 4), vr(BF + 4 * g, 4), "0" if first else vr(ACC, 16)))
                if ks + 3 < 8:
                    rdA(g + 3)
                k("v_mfma_f32_32x32x16_bf16 %s, %s, %s, %s" % (vr(CS, 16), vr(AF + 4 * (g % 4), 4), vr(ONES, 4), "0" if first else vr(CS, 16)))
                if kv:
                    k("v_mfma_f32_32x32x16_bf16 %s, %s, %s, %s" % (vr(ACC2, 16), vr(AK + 4 * (g % 4), 4), vr(BF + 4 * g, 4), "0" if first else vr(ACC2, 16)))
                    k("v_mfma_f32_32x32x16_bf16 %s, %s, %s, %s" % (vr(CS2, 16), vr(AK + 4 * (g % 4), 4), vr(ONES, 4), "0" if first else vr(CS2, 16)))
    body(False)
    k("s_branch %s" % done)
    k.lab(kvp)
    body(True)
    k.lab(done)
    k.ts(10)
    k("v_and_b32 v7, 31, v1")
    k("s_lshl_b32 s58, s56, 5")
    k("s_add_u32 s58, s58, s51")
    k("v_add_u32 v7, s58, v7")
    k("v_lshrrev_b32 v8, 5, v1")
    k("v_lshlrev_b32 v9, 3, v8")
    k("v_lshl_add_u32 v12, v7, 10, v9")
    k("s_lshl_b32 s59, s49, 7")
    k("s_lshl_b32 s60, s57, 6")
    k("s_add_u32 s59, s59, s60")
    k("s_add_u32 s59, s59, 0x%x" % WS_Q)
    k("s_nop 15")
    TQ = 224
    for r in range(16):
        k("v_fma_f32 v%d, -v%d, v%d, v%d" % (ACC + r, S1, CS + r, ACC + r))
    for r in range(16):
        k("v_mul_f32 v%d, v30, v%d" % (ACC + r, ACC + r))
    for r in range(8):
        k("v_cvt_pk_bf16_f32 v%d, v%d, v%d" % (TQ + r, ACC + 2 * r, ACC + 2 * r + 1))
    for q in range(4):
        k("buffer_store_dwordx2 %s, v12, s[20:23], s59 offen offset:%d" % (vr(TQ + 2 * q, 2), 16 * q))
    k.ts(11)
    k.ts_flush(12)
    k("s_cmp_eq_u32 s53, 0")
    k("s_cbranch_scc1 %s" % end)
    ACC, CS = ACC2, CS2
    for r in range(16):
        k("v_fma_f32 v%d, -v%d, v%d, v%d" % (ACC + r, S1, CS + r, ACC + r))
    for r in range(16):
        k("v_mul_f32 v%d, v%d, v%d" % (ACC + r, S2, ACC + r))
    for r in range(8):
        k("v_cvt_pk_bf16_f32 v%d, v%d, v%d" % (CS + r, ACC + 2 * r, ACC + 2 * r + 1))
    k("v_mov_b32 v14, 0")
    for i in range(4):
        k("v_dot2c_f32_bf16 v14, v%d, v%d" % (CS + i, CS + i))
    k("s_nop 4")
    k("v_mov_b32 v15, v14")
    k("s_nop 1")
    k("v_permlane32_swap_b32 v14, v15")
    k("s_nop 1")
    k("v_add_f32 v14, v14, v15")
    k("s_nop 1")
    for r in (8, 4, 2, 1):
        k("v_max_f32_dpp v14, v14, v14 row_ror:%d row_mask:0xf bank_mask:0xf" % r)
        k("s_nop 1")
    k("v_readlane_b32 s60, v14, 0")
    k("v_readlane_b32 s61, v14, 16")
    k("s_nop 3")
    k("s_max_u32 s60, s60, s61")
    k("v_mov_b32 v14, s60")
    k("v_mov_b32 v15, 0")
    k("s_lshl_b32 s61, s48, 1")
    k("s_add_u32 s61, s61, s56")
    k("s_lshl_b32 s61, s61, 2")
    k("s_add_u32 s61, s61, 0x%x" % WS_KM)
    k("s_mov_b64 exec, 1")
    k("buffer_store_dword v14, v15, s[20:23], s61 offen")
    k("s_mov_b64 exec, -1")
    k("v_and_b32 v13, 31, v1")
    k("v_lshlrev_b32 v13, 4, v13")
    k("v_lshl_add_u32 v13, v8, 3, v13")
    k("s_lshl_b32 s59, s48, 1")
    k("s_add_u32 s59, s59, s56")
    k("s_lshl_b32 s59, s59, 10")
    k("s_add_u32 s59, s59, 0x%x" % WS_K)
    k("buffer_store_dwordx2 %s, v13, s[20:23], s59 offen" % vr(CS, 2))
    k("buffer_store_dwordx2 %s, v13, s[20:23], s59 offen offset:512" % vr(CS + 2, 2))
    k("v_lshrrev_b32 v13, 4, v7")
    k("v_lshlrev_b32 v13, 9, v13")
    k("v_bfe_u32 v14, v7, 2, 1")
    k("v_lshl_add_u32 v13, v14, 8, v13")
    k("v_bfe_u32 v14, v7, 3, 1")
    k("v_lshl_add_u32 v13, v14, 3, v13")
    k("v_and_b32 v14, 3, v7")
    k("v_lshl_add_u32 v13, v14, 1, v13")
    k("v_lshl_add_u32 v13, v8, 6, v13")
    k("s_mov_b32 s59, 0x%x" % WS_V)
    for r in range(8, 16):
        d = (r & 3) + 8 * ((r >> 2) - 2)
        src = CS + r // 2
        op = "buffer_store_short" if r % 2 == 0 else "buffer_store_short_d16_hi"
        k("%s v%d, v13, s[20:23], s59 offen offset:%d" % (op, src, d * 16))
    k.lab(end)
    return k


def gen_B():
    k = Kern("attn_kernel", 128, 1024, 256, 163840)
    end = k.newlab("end")
    k("s_cmp_ge_u32 s2, 256")
    k("s_cbranch_scc1 %s" % end)
    k.tsb = 4
    k.ts(0)
    k("s_load_dwordx2 s[32:33], s[0:1], 88")
    k("s_load_dwordx4 s[36:39], s[0:1], 48")
    k("s_load_dwordx2 s[40:41], s[0:1], 64")
    k("s_load_dwordx2 s[42:43], s[0:1], 32")
    k("v_and_b32 v1, 63, v0")
    k("v_lshrrev_b32 v2, 6, v0")
    k("s_nop 1")
    k("v_readfirstlane_b32 s3, v2")
    k("v_and_b32 v2, 31, v1")
    k("v_lshlrev_b32 v2, 5, v2")
    k("v_lshrrev_b32 v3, 5, v1")
    k("v_lshl_add_u32 v2, v3, 4, v2")
    k("v_lshlrev_b32 v8, 4, v1")
    k("s_and_b32 s48, s3, 7")
    k("s_lshr_b32 s49, s3, 3")
    k("s_lshl_b32 s50, s2, 3")
    k("s_add_u32 s50, s50, s48")
    k("s_lshl_b32 s51, s50, 10")
    k("s_add_u32 s51, s51, 0x%x" % WS_Q)
    k("s_lshr_b32 s52, s3, 3")
    k("s_lshl_b32 s52, s52, 15")
    k("s_and_b32 s53, s3, 7")
    k("s_lshl_b32 s53, s53, 10")
    k("s_add_u32 s52, s52, s53")
    k("s_waitcnt lgkmcnt(0)")
    k.srd(20, 32, WS_SIZE)
    QF = 4
    k("buffer_load_dwordx4 %s, v2, s[20:23], s51 offen" % vr(QF, 4))
    k("s_lshl_b32 s54, s49, 7")
    k("s_add_u32 s54, s54, 0x%x" % WS_KM)
    k("s_add_u32 s56, s32, s54")
    k("s_addc_u32 s57, s33, 0")
    k("s_load_dwordx16 s[64:79], s[56:57], 0")
    k("s_load_dwordx16 s[80:95], s[56:57], 64")
    for j in range(4):
        for ss in range(2):
            k("s_add_u32 m0, s52, %d" % (ss * 65536 + j * 8192))
            k("s_add_u32 s53, s52, 0x%x" % (WS_K + ss * 65536 + j * 8192))
            k("buffer_load_dwordx4 v8, s[20:23], s53 offen lds")
    k("s_lshl_b32 s54, s49, 15")
    k("v_add_u32 v9, s54, v8")
    k("v_and_b32 v10, 15, v1")
    k("v_lshlrev_b32 v10, 4, v10")
    k("v_lshl_add_u32 v10, v3, 8, v10")
    k("v_add_u32 v10, s54, v10")
    k("v_add_u32 v10, 0x10000, v10")
    NEG, SA, SB, O, PK, KF, VF = 16, 32, 48, 64, 80, 88, 100
    M = 11
    for i in range(16):
        k("v_mov_b32 v%d, 0x3f803f80" % (VF + i))
    k("s_mov_b32 s58, 0xffff")
    k("s_mov_b32 s59, 0xffff")
    k("s_waitcnt lgkmcnt(0)")
    for i in range(1, 32):
        k("s_max_u32 s64, s64, s%d" % (64 + i))
    k("v_mov_b32 v12, 0")
    k("s_waitcnt vmcnt(8)")
    for i in range(4):
        k("v_dot2c_f32_bf16 v12, v%d, v%d" % (QF + i, QF + i))
    k("s_nop 4")
    k("v_mov_b32 v13, v12")
    k("s_nop 1")
    k("v_permlane32_swap_b32 v12, v13")
    k("s_nop 1")
    k("v_add_f32 v12, v12, v13")
    k("v_mul_f32 v12, s64, v12")
    k("v_sqrt_f32 v%d, v12" % M)
    k("s_nop 1")
    for i in range(16):
        k("v_xor_b32 v%d, 0x80000000, v%d" % (NEG + i, M))
    S = [SA, SB]
    NT = 32

    RP, RQ = 116, 124

    def repack_issue():
        l_dn, l_go = k.newlab("rdn"), k.newlab("rgo")
        k("s_cmp_ge_u32 s64, 2752")
        k("s_cbranch_scc1 %s" % l_dn)
        k("s_lshr_b32 s65, s64, 5")
        k("s_and_b32 s66, s64, 31")
        k("s_cmp_ge_u32 s65, 43")
        k("s_cselect_b32 s67, 1, 0")
        k("s_cselect_b32 s84, s38, s36")
        k("s_cselect_b32 s85, s39, s37")
        k("s_mul_i32 s68, s67, 43")
        k("s_sub_u32 s65, s65, s68")
        k("s_mul_i32 s68, s65, 171")
        k("s_lshr_b32 s68, s68, 9")
        k("s_mul_i32 s69, s68, 3")
        k("s_sub_u32 s69, s65, s69")
        k("s_mul_i32 s70, s66, 6")
        k("s_mul_i32 s71, s67, 3")
        k("s_add_u32 s70, s70, s71")
        k("s_add_u32 s70, s70, s69")
        k("s_mul_i32 s71, s69, %d" % ((32 - KS1) * 2))
        k("s_lshl_b32 s72, s66, 1")
        k("s_add_u32 s71, s71, s72")
        k("s_add_u32 s71, s71, s67")
        k("s_add_u32 s71, s71, %d" % (KS1 * 6 - 2 * KS1))
        k("s_cmp_lt_u32 s66, %d" % KS1)
        k("s_cselect_b32 s70, s70, s71")
        k("s_lshl_b32 s70, s70, 10")
        k("s_mul_i32 s90, s68, 196608")
        k("s_add_u32 s90, s90, s70")
        k("s_add_u32 s90, s90, 0x%x" % WS_WG)
        k("s_mov_b32 s86, %d" % (512 * 2752))
        k("s_mov_b32 s89, 2752")
        k("s_branch %s" % l_go)
        k.lab(l_dn)
        k("s_sub_u32 s64, s64, 2752")
        k("s_cmp_ge_u32 s64, 1376")
        k("s_cselect_b32 s84, s42, s40")
        k("s_cselect_b32 s85, s43, s41")
        k("s_mov_b32 s86, %d" % (1376 * 1024))
        k("s_mov_b32 s68, %d" % (86 * 2048))
        k("s_mov_b32 s90, 0x%x" % WS_WD)
        k("s_cselect_b32 s86, %d, s86" % (512 * 1024))
        k("s_cselect_b32 s67, 1376, 0")
        k("s_cselect_b32 s68, 65536, s68")
        k("s_cselect_b32 s90, 0x%x, s90" % WS_WO)
        k("s_sub_u32 s64, s64, s67")
        k("s_lshr_b32 s66, s64, 4")
        k("s_and_b32 s65, s64, 15")
        k("s_lshr_b32 s69, s65, 1")
        k("s_mul_i32 s69, s69, s68")
        k("s_add_u32 s90, s90, s69")
        k("s_lshl_b32 s69, s66, 11")
        k("s_add_u32 s90, s90, s69")
        k("s_and_b32 s69, s65, 1")
        k("s_lshl_b32 s69, s69, 10")
        k("s_add_u32 s90, s90, s69")
        k("s_mov_b32 s89, 1024")
        k.lab(l_go)
        k("s_and_b32 s85, s85, 0xffff")
        k("s_mov_b32 s87, %s" % SRD3)
        k("s_mul_i32 s88, s66, s89")
        k("s_lshl_b32 s88, s88, 4")
        k("s_lshl_b32 s69, s65, 6")
        k("s_add_u32 s88, s88, s69")
        k("s_lshl_b32 s69, s89, 3")
        k("v_mul_u32_u24 v14, s69, v3")
        k("v_and_b32 v15, 31, v1")
        k("v_lshl_add_u32 v14, v15, 1, v14")
        for j in range(8):
            k("buffer_load_ushort v%d, v14, s[84:87], s88 offen" % (RP + j))
            if j < 7:
                k("s_add_u32 s88, s88, s89")

    def repack_store():
        k("s_waitcnt vmcnt(0)")
        for q in range(4):
            k("v_lshl_or_b32 v%d, v%d, 16, v%d" % (RQ + q, RP + 2 * q + 1, RP + 2 * q))
        k("buffer_store_dwordx4 %s, v8, s[20:23], s90 offen" % vr(RQ, 4))

    EXPB = os.environ.get("EXPB", "")
    def rdV(t):
        if "noV" in EXPB and t > 1:
            k("ds_read_b32 v15, v10"); k("ds_read_b32 v15, v10")
            return
        k("s_mov_b64 exec, s[58:59]")
        k("ds_read_b128 %s, v10 offset:%d" % (vr(VF + 8 * (t % 2), 4), t * 1024))
        k("ds_read_b128 %s, v10 offset:%d" % (vr(VF + 8 * (t % 2) + 4, 4), t * 1024 + 512))
        k("s_mov_b64 exec, -1")

    def pass2(bars):
        if bars:
            k("s_waitcnt vmcnt(6)")
            k("s_barrier")
            k.ts(1)
        k("ds_read_b128 %s, v9 offset:0" % vr(KF, 4))
        k("ds_read_b128 %s, v9 offset:1024" % vr(KF + 4, 4))
        rdV(0)
        k("s_waitcnt lgkmcnt(3)")
        k("v_mfma_f32_32x32x16_bf16 %s, %s, %s, %s" % (vr(S[0], 16), vr(KF, 4), vr(QF, 4), vr(NEG, 16)))
        for t in range(NT):
            n_new = 0
            if bars and t == 8: k.ts(2)
            if bars and t == 16: k.ts(3)
            if bars and t == 23: k.ts(4)
            if bars and t == 23:
                k("s_lshl_b32 s64, s2, 4")
                k("s_add_u32 s64, s64, s3")
                repack_issue()
            if bars and t == 28:
                repack_store()
                k.ts(5)
                nr2 = k.newlab("nr2")
                k("s_lshl_b32 s64, s3, 8")
                k("s_add_u32 s64, s64, s2")
                k("s_mov_b32 s91, 0")
                k("s_cmp_ge_u32 s64, 544")
                k("s_cbranch_scc1 %s" % nr2)
                k("s_mov_b32 s91, 1")
                k("s_add_u32 s64, s64, 4096")
                repack_issue()
                k.lab(nr2)
            if t + 2 < NT:
                if bars and (t + 2) % 8 == 0:
                    k("s_waitcnt vmcnt(%d)" % (6 - 2 * ((t + 2) // 8)))
                    k("s_barrier")
                k("ds_read_b128 %s, v9 offset:%d" % (vr(KF + 4 * ((t + 2) % 3), 4), (t + 2) * 1024))
                n_new += 1
            if t + 1 < NT:
                k("s_waitcnt lgkmcnt(%d)" % (2 + n_new))
                k("v_mfma_f32_32x32x16_bf16 %s, %s, %s, %s" % (vr(S[(t + 1) % 2], 16), vr(KF + 4 * ((t + 1) % 3), 4), vr(QF, 4), vr(NEG, 16)))
            if t == 0:
                k("s_nop 10")
            s = S[t % 2]
            for i in range(16):
                if "noexp" in EXPB and i >= 8: continue
                k("v_exp_f32 v%d, v%d" % (s + i, s + i))
            for i in range(8):
                if "nocvt" in EXPB: continue
                k("v_cvt_pk_bf16_f32 v%d, v%d, v%d" % (PK + i, s + 2 * i, s + 2 * i + 1))
            k("s_waitcnt lgkmcnt(%d)" % n_new)
            if "nopv" not in EXPB or t == 0:
                k("v_mfma_f32_32x32x16_bf16 %s, %s, %s, %s" % (vr(O, 16), vr(VF + 8 * (t % 2), 4), vr(PK, 4), "0" if t == 0 else vr(O, 16)))
                k("v_mfma_f32_32x32x16_bf16 %s, %s, %s, %s" % (vr(O, 16), vr(VF + 8 * (t % 2) + 4, 4), vr(PK + 4, 4), vr(O, 16)))
            if t + 1 < NT:
                rdV(t + 1)
    pass2(True)
    k.ts(6)
    nr3 = k.newlab("nr3")
    k("s_cmp_eq_u32 s91, 0")
    k("s_cbranch_scc1 %s" % nr3)
    repack_store()
    k.lab(nr3)
    k("s_nop 15")
    k("v_cmp_gt_f32 vcc, 0x%08x, v%d" % ((127 - 64) << 23, O + 8))
    k("v_cmp_u_f32 s[60:61], v%d, v%d" % (O + 8, O + 8))
    k("s_or_b64 vcc, vcc, s[60:61]")
    comb = k.newlab("comb")
    k("s_cbranch_vccz %s" % comb)
    k("v_mov_b32 v%d, 0xff800000" % M)
    k("ds_read_b128 %s, v9 offset:0" % vr(KF, 4))
    k("ds_read_b128 %s, v9 offset:1024" % vr(KF + 4, 4))
    k("s_waitcnt lgkmcnt(1)")
    k("v_mfma_f32_32x32x16_bf16 %s, %s, %s, 0" % (vr(S[0], 16), vr(KF, 4), vr(QF, 4)))
    for t in range(NT):
        if t + 2 < NT:
            k("ds_read_b128 %s, v9 offset:%d" % (vr(KF + 4 * ((t + 2) % 3), 4), (t + 2) * 1024))
        if t + 1 < NT:
            k("s_waitcnt lgkmcnt(%d)" % (1 if t + 2 < NT else 0))
            k("v_mfma_f32_32x32x16_bf16 %s, %s, %s, 0" % (vr(S[(t + 1) % 2], 16), vr(KF + 4 * ((t + 1) % 3), 4), vr(QF, 4)))
        k("s_nop 10" if t == 0 else "s_nop 3")
        s = S[t % 2]
        for i in range(8):
            k("v_max3_f32 v%d, v%d, v%d, v%d" % (M, s + 2 * i, s + 2 * i + 1, M))
    k("v_mov_b32 v12, v%d" % M)
    k("s_nop 1")
    k("v_permlane32_swap_b32 v%d, v12" % M)
    k("s_nop 1")
    k("v_max_f32 v%d, v%d, v12" % (M, M))
    for i in range(16):
        k("v_xor_b32 v%d, 0x80000000, v%d" % (NEG + i, M))
    k("s_nop 1")
    pass2(False)
    k("s_nop 15")
    k.lab(comb)
    k("s_mul_i32 s60, s48, 2560")
    k("s_add_u32 s60, s60, 0x20000")
    k("v_lshlrev_b32 v12, 2, v1")
    k("v_add_u32 v12, s60, v12")
    w1 = k.newlab("w1")
    k("s_cmp_eq_u32 s49, 0")
    k("s_cbranch_scc1 %s" % w1)
    for i in range(9):
        k("ds_write_b32 v12, v%d offset:%d" % (O + i, i * 256))
    k("ds_write_b32 v12, v%d offset:%d" % (M, 9 * 256))
    k("s_waitcnt lgkmcnt(0)")
    k("s_barrier")
    k("s_branch %s" % end)
    k.lab(w1)
    k("s_barrier")
    for i in range(9):
        k("ds_read_b32 v%d, v12 offset:%d" % (SA + i, i * 256))
    k("ds_read_b32 v%d, v12 offset:%d" % (SA + 9, 9 * 256))
    k("s_waitcnt lgkmcnt(0)")
    m1 = SA + 9
    k("v_max_f32 v13, v%d, v%d" % (M, m1))
    k("v_sub_f32 v14, v%d, v13" % M)
    k("v_sub_f32 v15, v%d, v13" % m1)
    k("v_exp_f32 v14, v14")
    k("v_exp_f32 v15, v15")
    k("s_nop 1")
    for i in range(9):
        k("v_mul_f32 v%d, v14, v%d" % (O + i, O + i))
    for i in range(9):
        k("v_fma_f32 v%d, v15, v%d, v%d" % (O + i, SA + i, O + i))
    k("v_rcp_f32 v13, v%d" % (O + 8))
    k("s_nop 1")
    for i in range(8):
        k("v_mul_f32 v%d, v13, v%d" % (O + i, O + i))
    for i in range(4):
        k("v_cvt_pk_bf16_f32 v%d, v%d, v%d" % (PK + i, O + 2 * i, O + 2 * i + 1))
    k("v_and_b32 v2, 31, v1")
    k("v_lshlrev_b32 v2, 5, v2")
    k("v_lshl_add_u32 v2, v3, 3, v2")
    k("s_lshl_b32 s51, s50, 10")
    k("s_add_u32 s51, s51, 0x%x" % WS_O)
    k("buffer_store_dwordx2 %s, v2, s[20:23], s51 offen" % vr(PK, 2))
    k("buffer_store_dwordx2 %s, v2, s[20:23], s51 offen offset:16" % vr(PK + 2, 2))
    k.ts(7)
    k.ts_flush(8)
    k.lab(end)
    return k


def gen_gemm64(name, x_ws_off, ldx, w_karg, K, resid, outp, S=4, stats=False):
    lds = S * 32768
    k = Kern(name, 128, 256, 256, lds)
    end = k.newlab("end")
    k("s_cmp_ge_u32 s2, 256")
    k("s_cbranch_scc1 %s" % end)
    k.ts(0)
    k("s_load_dwordx2 s[24:25], s[0:1], %d" % w_karg)
    k("s_load_dwordx2 s[32:33], s[0:1], 88")
    if resid[0] == 'karg':
        k("s_load_dwordx2 s[26:27], s[0:1], %d" % resid[1])
    if outp[0] == 'karg':
        k("s_load_dwordx2 s[28:29], s[0:1], %d" % outp[1])
    k("v_and_b32 v1, 63, v0")
    k("v_lshrrev_b32 v2, 6, v0")
    k("s_nop 1")
    k("v_readfirstlane_b32 s3, v2")
    k("s_and_b32 s48, s2, 7")
    k("s_lshl_b32 s48, s48, 2")
    k("s_bfe_u32 s49, s2, 0x20003")
    k("s_add_u32 s48, s48, s49")
    k("s_lshr_b32 s49, s2, 5")
    k("s_waitcnt lgkmcnt(0)")
    k.srd(8, 24, K * 1024)
    k.srd(20, 32, WS_SIZE)
    if resid[0] == 'karg':
        k.srd(12, 26, 2048 * 1024)
        rs, roff = 12, 0
    else:
        rs, roff = 20, resid[1]
    if outp[0] == 'karg':
        k.srd(16, 28, 2048 * 1024)
        os_, ooff = 16, 0
    else:
        os_, ooff = 20, outp[1]
    k("v_lshrrev_b32 v3, 4, v1")
    k("s_lshl_b32 s50, s3, 2")
    k("v_add_u32 v3, s50, v3")
    k("v_and_b32 v4, 15, v1")
    k("v_xor_b32 v4, v4, v3")
    k("v_lshlrev_b32 v4, 4, v4")
    k("s_lshl_b32 s51, s48, 6")
    k("v_add_u32 v3, s51, v3")
    k("v_mul_u32_u24 v3, %d, v3" % ldx)
    k("v_add_u32 v4, v3, v4")
    k("v_lshrrev_b32 v3, 3, v1")
    k("s_lshl_b32 s50, s3, 3")
    k("v_add_u32 v3, s50, v3")
    k("v_and_b32 v5, 7, v1")
    k("v_bfe_u32 v6, v1, 4, 1")
    k("v_lshlrev_b32 v6, 2, v6")
    k("v_xor_b32 v5, v5, v6")
    k("v_lshlrev_b32 v5, 4, v5")
    k("v_lshl_add_u32 v5, v3, 10, v5")
    k("s_lshl_b32 s50, s49, 7")
    k("v_add_u32 v5, s50, v5")
    k("s_lshl_b32 s52, s3, 10")
    chunks = []
    kk = 0
    while kk < K:
        c = min(128, K - kk)
        chunks.append((kk, c))
        kk += c
    NC = len(chunks)

    def issue(c):
        k0, kc = chunks[c]
        st = (c % S) * 32768
        n = 0
        for j in range(4):
            k("s_add_u32 m0, s52, %d" % (st + j * 4096))
            k("s_mov_b32 s54, %d" % (x_ws_off + j * 16 * ldx + k0 * 2))
            k("buffer_load_dwordx4 v4, s[20:23], s54 offen lds")
            n += 1
        for j in range(kc // 32):
            k("s_add_u32 m0, s52, %d" % (st + 16384 + j * 4096))
            k("s_mov_b32 s54, %d" % ((k0 + 32 * j) * 1024))
            k("buffer_load_dwordx4 v5, s[8:11], s54 offen lds")
            n += 1
        return n
    cnt = {}
    for c in range(min(S - 1, NC)):
        cnt[c] = issue(c)
    k("s_and_b32 s56, s3, 1")
    k("s_lshr_b32 s57, s3, 1")
    k("v_and_b32 v7, 31, v1")
    k("s_lshl_b32 s58, s56, 5")
    k("v_add_u32 v7, s58, v7")
    k("v_lshrrev_b32 v8, 5, v1")
    k("v_and_b32 v9, 15, v7")
    k("v_xor_b32 v9, v9, v8")
    k("v_lshlrev_b32 v9, 4, v9")
    k("v_lshl_add_u32 v9, v7, 8, v9")
    XA = 16
    for ks in range(8):
        k("v_xor_b32 v%d, %d, v9" % (XA + ks, ks * 32))
    k("v_lshrrev_b32 v11, 5, v1")
    k("v_lshlrev_b32 v11, 3, v11")
    k("v_bfe_u32 v10, v1, 2, 2")
    k("v_add_u32 v11, v11, v10")
    k("v_bfe_u32 v10, v1, 4, 1")
    k("v_lshlrev_b32 v10, 5, v10")
    k("v_and_b32 v12, 3, v1")
    k("v_lshl_add_u32 v10, v12, 3, v10")
    k("s_lshl_b32 s58, s57, 6")
    k("v_add_u32 v10, s58, v10")
    k("v_bfe_u32 v12, v1, 3, 1")
    k("v_lshlrev_b32 v12, 6, v12")
    k("v_xor_b32 v10, v10, v12")
    k("v_lshl_add_u32 v10, v11, 7, v10")
    k("v_add_u32 v10, 0x4000, v10")
    k("s_lshl_b32 s58, s56, 5")
    k("s_add_u32 s58, s58, s51")
    k("v_and_b32 v13, 31, v1")
    k("v_add_u32 v13, s58, v13")
    k("v_lshlrev_b32 v12, 3, v8")
    k("v_lshl_add_u32 v12, v13, 10, v12")
    k("s_lshl_b32 s59, s49, 7")
    k("s_lshl_b32 s60, s57, 6")
    k("s_add_u32 s59, s59, s60")
    ACC, RES, XC, WC = 32, 48, 24, 14
    BF, AF = 64, 96
    for c in range(NC):
        k0, kc = chunks[c]
        st = (c % S) * 32768
        later = sum(cnt[cc] for cc in range(c + 1, min(c + S - 1, NC)))
        k("s_waitcnt vmcnt(%d)" % later)
        k("s_barrier")
        if c < 11: k.ts(1 + c)
        if c + S - 1 < NC:
            cnt[c + S - 1] = issue(c + S - 1)
        if c == NC - 1:
            k("s_add_u32 s60, s59, 0x%x" % roff)
            for q in range(4):
                k("buffer_load_dwordx2 %s, v12, s[%d:%d], s60 offen offset:%d" % (vr(RES + 2 * q, 2), rs, rs + 3, 16 * q))
        nks = kc // 16
        hi = st >= 65536
        if hi or st + 16384 + 16384 > 65536:
            pass
        for ks in range(nks):
            k("v_add_u32 v%d, %d, v%d" % (XC + ks, st, XA + ks))
        k("v_add_u32 v%d, %d, v10" % (WC, st))
        for ks in range(nks):
            k("ds_read_b128 %s, v%d" % (vr(BF + 4 * ks, 4), XC + ks))
            k("ds_read_b64_tr_b16 %s, v%d offset:%d" % (vr(AF + 4 * ks, 2), WC, ks * 2048))
            k("ds_read_b64_tr_b16 %s, v%d offset:%d" % (vr(AF + 4 * ks + 2, 2), WC, ks * 2048 + 512))
        for ks in range(nks):
            k("s_waitcnt lgkmcnt(%d)" % min(15, 3 * (nks - 1 - ks)))
            first = (c == 0 and ks == 0)
            k("v_mfma_f32_32x32x16_bf16 %s, %s, %s, %s" % (vr(ACC, 16), vr(AF + 4 * ks, 4), vr(BF + 4 * ks, 4), "0" if first else vr(ACC, 16)))
    k.ts(12)
    k("s_waitcnt vmcnt(0)")
    k("s_nop 15")
    for q in range(4):
        for d in range(2):
            r = RES + 2 * q + d
            k("v_lshlrev_b32 v%d, 16, v%d" % (BF, r))
            k("v_and_b32 v%d, 0xffff0000, v%d" % (BF + 1, r))
            k("v_add_f32 v%d, v%d, v%d" % (ACC + 4 * q + 2 * d, ACC + 4 * q + 2 * d, BF))
            k("v_add_f32 v%d, v%d, v%d" % (ACC + 4 * q + 2 * d + 1, ACC + 4 * q + 2 * d + 1, BF + 1))
    for r in range(8):
        k("v_cvt_pk_bf16_f32 v%d, v%d, v%d" % (RES + r, ACC + 2 * r, ACC + 2 * r + 1))
    k("s_add_u32 s60, s59, 0x%x" % ooff)
    for q in range(4):
        k("buffer_store_dwordx2 %s, v12, s[%d:%d], s60 offen offset:%d" % (vr(RES + 2 * q, 2), os_, os_ + 3, 16 * q))
    if stats:
        T = AF
        k("v_and_b32 v%d, 31, v1" % (T + 7))
        k("v_lshlrev_b32 v%d, 4, v%d" % (T + 7, T + 7))
        k("v_lshl_add_u32 v%d, v8, 3, v%d" % (T + 7, T + 7))
        k("s_lshl_b32 s60, s48, 1")
        k("s_add_u32 s60, s60, s56")
        k("s_lshl_b32 s60, s60, 5")
        k("s_lshl_b32 s61, s49, 2")
        k("s_add_u32 s60, s60, s61")
        k("s_lshl_b32 s61, s57, 1")
        k("s_add_u32 s60, s60, s61")
        k("s_lshl_b32 s60, s60, 10")
        k("s_add_u32 s60, s60, 0x%x" % WS_HP)
        for q in range(4):
            k("buffer_store_dwordx2 %s, v%d, s[20:23], s60 offen offset:%d" % (vr(RES + 2 * q, 2), T + 7, (q >> 1) * 1024 + (q & 1) * 512))
        k("v_mov_b32 v%d, 0x3f803f80" % T)
        for i in range(4):
            k("v_mov_b32 v%d, 0" % (T + 2 + i))
        for r in range(8):
            k("v_dot2c_f32_bf16 v%d, v%d, v%d" % (T + 2 + (r & 1), RES + r, T))
            k("v_dot2c_f32_bf16 v%d, v%d, v%d" % (T + 4 + (r & 1), RES + r, RES + r))
        k("s_nop 4")
        k("v_add_f32 v%d, v%d, v%d" % (T + 2, T + 2, T + 3))
        k("v_add_f32 v%d, v%d, v%d" % (T + 3, T + 4, T + 5))
        k("v_mov_b32 v%d, v%d" % (T + 4, T + 2))
        k("v_mov_b32 v%d, v%d" % (T + 5, T + 3))
        k("s_nop 1")
        k("v_permlane32_swap_b32 v%d, v%d" % (T + 2, T + 4))
        k("v_permlane32_swap_b32 v%d, v%d" % (T + 3, T + 5))
        k("s_nop 1")
        k("v_add_f32 v%d, v%d, v%d" % (T + 2, T + 2, T + 4))
        k("v_add_f32 v%d, v%d, v%d" % (T + 3, T + 3, T + 5))
        k("v_lshlrev_b32 v%d, 7, v13" % (T + 6))
        k("s_lshl_b32 s60, s49, 1")
        k("s_add_u32 s60, s60, s57")
        k("s_lshl_b32 s60, s60, 3")
        k("s_add_u32 s60, s60, 0x%x" % WS_ST)
        k("v_cmp_gt_u32 vcc, 32, v1")
        k("s_and_saveexec_b64 s[62:63], vcc")
        k("buffer_store_dwordx2 %s, v%d, s[20:23], s60 offen" % (vr(T + 2, 2), T + 6))
        k("s_mov_b64 exec, s[62:63]")
    k.ts(13)
    k.ts_flush(14)
    k.lab(end)
    return k


def gen_C():
    return gen_gemm64("wo_kernel", WS_O, 1024, 32, 512, ('karg', 0), ('ws', WS_H), stats=True)


def gen_E():
    S = int(os.environ.get("ES", "4"))
    NKS = 86
    NC = (NKS + 7) // 8
    k = Kern("down_kernel", 128, 256, 256, S * 32768)
    end = k.newlab("end")
    k("s_cmp_ge_u32 s2, 256")
    k("s_cbranch_scc1 %s" % end)
    k.ts(0)
    k("s_load_dwordx2 s[32:33], s[0:1], 88")
    k("s_load_dwordx2 s[28:29], s[0:1], 72")
    k("v_and_b32 v1, 63, v0")
    k("v_lshrrev_b32 v2, 6, v0")
    k("s_nop 1")
    k("v_readfirstlane_b32 s3, v2")
    k("s_and_b32 s48, s2, 7")
    k("s_lshl_b32 s48, s48, 2")
    k("s_bfe_u32 s49, s2, 0x20003")
    k("s_add_u32 s48, s48, s49")
    k("s_lshr_b32 s49, s2, 5")
    k("s_and_b32 s56, s3, 1")
    k("s_lshr_b32 s57, s3, 1")
    k("v_lshlrev_b32 v4, 4, v1")
    k("s_lshl_b32 s50, s56, 13")
    k("s_lshl_b32 s51, s57, 12")
    k("s_add_u32 s50, s50, s51")
    k("s_lshl_b32 s52, s48, 1")
    k("s_add_u32 s52, s52, s56")
    k("s_mul_i32 s52, s52, %d" % (NKS * 1024))
    k("s_add_u32 s52, s52, s51")
    k("s_add_u32 s52, s52, 0x%x" % WS_ACT)
    k("s_lshl_b32 s53, s3, 12")
    k("s_mul_i32 s55, s49, %d" % (NKS * 2048))
    k("s_add_u32 s55, s55, s53")
    k("s_add_u32 s55, s55, 0x%x" % WS_WD)
    k("s_add_u32 s53, s53, 16384")
    k("s_lshl_b32 s58, s48, 6")
    k("s_lshl_b32 s59, s56, 5")
    k("s_add_u32 s58, s58, s59")
    k("v_and_b32 v13, 31, v1")
    k("v_add_u32 v13, s58, v13")
    k("v_lshrrev_b32 v8, 5, v1")
    k("v_lshlrev_b32 v12, 3, v8")
    k("v_lshl_add_u32 v12, v13, 10, v12")
    k("s_lshl_b32 s59, s49, 7")
    k("s_lshl_b32 s60, s57, 6")
    k("s_add_u32 s59, s59, s60")
    k("s_add_u32 s60, s59, 0x%x" % WS_H)
    k("s_waitcnt lgkmcnt(0)")
    k.srd(20, 32, WS_SIZE)
    k.srd(16, 28, 2048 * 1024)
    ACC, RES, FR = 32, 48, 64
    for q in range(4):
        k("buffer_load_dwordx2 %s, v12, s[20:23], s60 offen offset:%d" % (vr(RES + 2 * q, 2), 16 * q))

    def issue(c):
        st = (c % S) * 32768
        for j in range(4):
            k("s_add_u32 m0, s50, %d" % (st + j * 1024))
            k("s_add_u32 s54, s52, %d" % (c * 8192 + j * 1024))
            k("buffer_load_dwordx4 v4, s[20:23], s54 offen lds")
        for j in range(4):
            k("s_add_u32 m0, s53, %d" % (st + j * 1024))
            k("s_add_u32 s54, s55, %d" % (c * 16384 + j * 1024))
            k("buffer_load_dwordx4 v4, s[20:23], s54 offen lds")
    for c in range(S - 1):
        issue(c)
    k("s_lshl_b32 s61, s56, 13")
    k("s_lshl_b32 s62, s57, 10")
    k("s_add_u32 s62, s62, 16384")
    for i in range(3):
        k("v_add_u32 v%d, s61, v4" % (16 + i))
        k("v_add_u32 v%d, s62, v4" % (20 + i))
        k("s_add_u32 s61, s61, 65536")
        k("s_add_u32 s62, s62, 65536")

    def rd(g):
        c, ks = g // 8, g % 8
        st = (c % S) * 32768
        ob, oa = st + ks * 1024, st + ks * 2048
        k("ds_read_b128 %s, v%d offset:%d" % (vr(FR + 8 * (g % 4), 4), 20 + st // 65536, oa % 65536))
        k("ds_read_b128 %s, v%d offset:%d" % (vr(FR + 8 * (g % 4) + 4, 4), 16 + st // 65536, ob % 65536))
    for c in range(NC):
        n = min(8, NKS - 8 * c)
        later = 8 * (min(c + S - 1, NC) - (c + 1))
        k("s_waitcnt vmcnt(%d)" % later)
        k("s_barrier")
        if c < 11: k.ts(1 + c)
        for ks in range(3):
            rd(8 * c + ks)
        if c + S - 1 < NC:
            issue(c + S - 1)
        for ks in range(n):
            g = 8 * c + ks
            k("s_waitcnt lgkmcnt(%d)" % (2 * min(2, n - 1 - ks)))
            k("v_mfma_f32_32x32x16_bf16 %s, %s, %s, %s" % (vr(ACC, 16), vr(FR + 8 * (g % 4), 4), vr(FR + 8 * (g % 4) + 4, 4), "0" if g == 0 else vr(ACC, 16)))
            if ks + 3 < n:
                rd(g + 3)
    k.ts(12)
    k("s_nop 15")
    BF = FR
    for q in range(4):
        for d in range(2):
            r = RES + 2 * q + d
            k("v_lshlrev_b32 v%d, 16, v%d" % (BF + 32, r))
            k("v_and_b32 v%d, 0xffff0000, v%d" % (BF + 33, r))
            k("v_add_f32 v%d, v%d, v%d" % (ACC + 4 * q + 2 * d, ACC + 4 * q + 2 * d, BF + 32))
            k("v_add_f32 v%d, v%d, v%d" % (ACC + 4 * q + 2 * d + 1, ACC + 4 * q + 2 * d + 1, BF + 33))
    for r in range(8):
        k("v_cvt_pk_bf16_f32 v%d, v%d, v%d" % (RES + r, ACC + 2 * r, ACC + 2 * r + 1))
    for q in range(4):
        k("buffer_store_dwordx2 %s, v12, s[16:19], s59 offen offset:%d" % (vr(RES + 2 * q, 2), 16 * q))
    k.ts(13)
    k.ts_flush(14)
    k.lab(end)
    return k


class VM:
    def __init__(s, k):
        s.k = k
        s.n = 0
    def issue(s):
        s.n += 1
        return s.n
    def wait(s, tok):
        if os.environ.get("EXP", "") == "nomem":
            return
        s.k("s_waitcnt vmcnt(%d)" % min(63, s.n - tok))


def gen_D():
    S = 10
    CH = 16384
    NCH = 12
    k = Kern("ffn1_kernel", 288, 256, 256, S * CH, accum=256)
    vm = VM(k)
    end = k.newlab("end")
    k("s_cmp_ge_u32 s2, 256")
    k("s_cbranch_scc1 %s" % end)
    k.ts(0)
    k("s_load_dwordx2 s[32:33], s[0:1], 88")
    k("v_and_b32 v1, 63, v0")
    k("v_lshrrev_b32 v2, 6, v0")
    k("s_nop 1")
    k("v_readfirstlane_b32 s3, v2")
    k("s_bfe_u32 s48, s2, 0x20001")
    k("s_lshl_b32 s48, s48, 2")
    k("s_bfe_u32 s49, s2, 0x20003")
    k("s_add_u32 s48, s48, s49")
    k("s_and_b32 s49, s2, 1")
    k("s_lshl_b32 s49, s49, 3")
    k("s_lshr_b32 s50, s2, 5")
    k("s_add_u32 s49, s49, s50")
    k("s_cmp_ge_u32 s49, 15")
    k("s_cbranch_scc1 %s" % end)
    k("v_and_b32 v2, 31, v1")
    k("v_lshrrev_b32 v3, 5, v1")
    k("s_lshl_b32 s50, s3, 5")
    k("s_lshl_b32 s51, s48, 7")
    k("s_add_u32 s50, s50, s51")
    k("v_add_u32 v2, s50, v2")
    k("s_lshl_b32 s57, s50, 10")
    k("v_lshlrev_b32 v6, 7, v2")
    k("v_lshl_add_u32 v6, v3, 6, v6")
    k("v_lshlrev_b32 v7, 4, v1")
    k("v_add_u32 v8, 0x10000, v7")
    k("v_add_u32 v9, 0x20000, v7")
    k("s_lshl_b32 s52, s3, 10")
    k("v_add_u32 v4, s52, v7")
    k("s_mul_i32 s53, s49, 196608")
    k("s_add_u32 s53, s53, 0x%x" % WS_WG)
    k("s_mov_b32 s55, 0x%x" % WS_ST)
    k("s_add_u32 s57, s57, 0x%x" % WS_HP)
    k("s_waitcnt lgkmcnt(0)")
    k.srd(20, 32, WS_SIZE)
    ACC, B, T = 16, 112, 240
    order = []
    for ks in range(KS1):
        for t in range(6):
            order.append((t, ks))
    for p in range(3):
        for ks in range(KS1, 32):
            order.append((p, ks))
            order.append((p + 3, ks))
    assert len(order) == 192
    tokA, tokB = {}, {}

    NOMEM = os.environ.get("EXP", "") == "nomem"
    vq = []

    def opA(c, j):
        def f():
            if NOMEM:
                tokA[c] = 0
                return
            k("s_add_u32 m0, s52, %d" % ((c % S) * CH + j * 4096))
            k("s_add_u32 s54, s53, %d" % (c * CH + j * 4096))
            k("buffer_load_dwordx4 v4, s[20:23], s54 offen lds")
            tokA[c] = vm.issue()
        return f

    def opB(g):
        def f():
            if NOMEM:
                tokB[g] = 0
                return
            k("s_add_u32 s56, s57, %d" % (g * 1024))
            k("buffer_load_dwordx4 %s, v7, s[20:23], s56 offen" % vr(B + 4 * g, 4))
            tokB[g] = vm.issue()
        return f
    nb = 0
    for c in range(NCH):
        need = max(ks for (t, ks) in order[:min(192, (c + 1) * 16 + 8)]) + 1
        while nb < need:
            vq.append((c, opB(nb))); nb += 1
        for j in range(4):
            vq.append((c, opA(c, j)))
    W = int(os.environ.get("W", "3"))

    def vflush(c):
        while vq and vq[0][0] <= c:
            vq.pop(0)[1]()

    def vstep(cur_chunk_x16):
        if vq and vq[0][0] * 16 <= cur_chunk_x16 + W * 16:
            vq.pop(0)[1]()
    for q in range(4):
        k("buffer_load_dwordx4 %s, v6, s[20:23], s55 offen offset:%d" % (vr(ACC + 4 * q, 4), 16 * q))
        tokS = vm.issue()
    vflush(W - 1)
    k.ts(1)
    vm.wait(tokS)
    for i in range(2, 8):
        k("v_add_f32 v%d, v%d, v%d" % (ACC + (i & 1), ACC + (i & 1), ACC + 2 * (i // 2) * 1 + (i & 1)) if False else "")
    for st in (8, 4, 2):
        for i in range(st):
            k("v_add_f32 v%d, v%d, v%d" % (ACC + i, ACC + i, ACC + i + st))
    k("v_mov_b32 v%d, v%d" % (ACC + 2, ACC))
    k("v_mov_b32 v%d, v%d" % (ACC + 3, ACC + 1))
    k("s_nop 1")
    k("v_permlane32_swap_b32 v%d, v%d" % (ACC, ACC + 2))
    k("v_permlane32_swap_b32 v%d, v%d" % (ACC + 1, ACC + 3))
    k("s_nop 1")
    k("v_add_f32 v%d, v%d, v%d" % (ACC, ACC, ACC + 2))
    k("v_add_f32 v%d, v%d, v%d" % (ACC + 1, ACC + 1, ACC + 3))
    k("v_mul_f32 v%d, %s, v%d" % (ACC, f32hex(1.0 / 512), ACC))
    k("v_mul_f32 v%d, %s, v%d" % (ACC + 1, f32hex(1.0 / 512), ACC + 1))
    k("v_fma_f32 v%d, -v%d, v%d, v%d" % (ACC + 1, ACC, ACC, ACC + 1))
    k("v_add_f32 v%d, %s, v%d" % (ACC + 1, f32hex(1e-5), ACC + 1))
    k("v_rsq_f32 v12, v%d" % (ACC + 1))
    k("s_nop 1")
    k("v_mov_b32 v13, v12")
    k("v_mul_f32 v14, v%d, v12" % ACC)
    k("v_xor_b32 v14, 0x80000000, v14")
    k("v_mov_b32 v15, v14")
    k("v_and_b32 v10, 31, v1")
    k("v_lshlrev_b32 v10, 4, v10")
    k("v_lshl_add_u32 v10, v3, 3, v10")
    k("s_lshr_b32 s59, s50, 5")
    k("s_mul_i32 s59, s59, 86")
    k("s_mul_i32 s58, s49, 6")
    k("s_add_u32 s59, s59, s58")
    k("s_lshl_b32 s59, s59, 10")
    k("s_add_u32 s59, s59, 0x%x" % WS_ACT)

    from collections import deque
    fq = deque()
    normed = set()

    def q_norm(g):
        def w():
            vm.wait(tokB[g])
        fq.append(("n", g, w))
        for r in range(4):
            t0 = T + 2 * (r & 3)
            b = B + 4 * g + r
            fq.append(("n", g, "v_lshlrev_b32 v%d, 16, v%d" % (t0, b)))
            fq.append(("n", g, "v_and_b32 v%d, 0xffff0000, v%d" % (t0 + 1, b)))
            fq.append(("n", g, "v_fma_f32 v%d, v%d, v12, v14" % (t0, t0)))
            fq.append(("n", g, "v_fma_f32 v%d, v%d, v12, v14" % (t0 + 1, t0 + 1)))
            fq.append(("n", g, "v_cvt_pk_bf16_f32 v%d, v%d, v%d" % (b, t0, t0 + 1)))

    def q_epi(p):
        G, U = ACC + 16 * p, ACC + 16 * (3 + p)
        E = T + 8 if False else T
        fq.append(("e", p, "s_nop 15"))
        for r in range(0, 16, 2):
            fq.append(("e", p, "v_pk_mul_f32 v[%d:%d], v[%d:%d], v[10+X:11+X]" % (E + r, E + r + 1, G + r, G + r + 1)))
    k("s_mov_b32 s60, %s" % f32hex(-LOG2E))
    k("s_mov_b32 s61, %s" % f32hex(-LOG2E))
    k("s_mov_b32 s62, 1.0")
    k("s_mov_b32 s63, 1.0")

    def q_epi(p):
        G, U = ACC + 16 * p, ACC + 16 * (3 + p)
        E = T
        L = []
        L.append("s_nop 15")
        for r in range(16):
            L.append("v_mul_f32 v%d, s60, v%d" % (E + r, G + r))
        for r in range(16):
            L.append("v_exp_f32 v%d, v%d" % (E + r, E + r))
        for r in range(16):
            L.append("v_mul_f32 v%d, v%d, v%d" % (G + r, G + r, U + r))
        for r in range(16):
            L.append("v_add_f32 v%d, 1.0, v%d" % (E + r, E + r))
        for r in range(16):
            L.append("v_rcp_f32 v%d, v%d" % (E + r, E + r))
        for r in range(16):
            L.append("v_mul_f32 v%d, v%d, v%d" % (G + r, G + r, E + r))
        for r in range(8):
            L.append("v_cvt_pk_bf16_f32 v%d, v%d, v%d" % (G + r, G + 2 * r, G + 2 * r + 1))
        for q in range(4):
            L.append("buffer_store_dwordx2 %s, v10, s[20:23], s%d offen offset:%d" % (vr(G + 2 * q, 2), (59, 58, 64)[p], (q >> 1) * 1024 + (q & 1) * 512))
        for x in L:
            fq.append(("e", p, x))

    def emit_filler():
        kind, g, x = fq.popleft()
        if callable(x):
            x()
        else:
            if x.startswith("buffer_store"):
                vm.issue()
            EXP = os.environ.get("EXP", "")
            if EXP in ("nofill", "memonly") and x.startswith("v_"):
                return
            if EXP == "addfill" and x.startswith("v_"):
                x = "v_add_f32 v%d, 1.0, v%d" % (T + (len(k.L) % 8), T + (len(k.L) % 8))
            if EXP == "e32" and x.startswith("v_"):
                x = "v_lshlrev_b32 v%d, 16, v%d" % (T + (len(k.L) % 8), T + 8 + (len(k.L) % 8))
            k(x)

    def flush_norm(g):
        last = -1
        for i, (kind, gg, x) in enumerate(fq):
            if kind == "n" and gg <= g:
                last = i
        n = last + 1
        for _ in range(n):
            emit_filler()
        if n:
            k("s_nop 1")
    k("s_add_u32 s58, s59, 2048")
    k("s_add_u32 s64, s59, 4096")
    k("s_cmp_eq_u32 s49, 14")
    k("s_cselect_b32 s58, 0x%x, s58" % WS_DUMMY)
    k("s_cselect_b32 s64, 0x%x, s64" % WS_DUMMY)
    for g in range(32):
        q_norm(g)

    def read1(gi, j):
        c = gi // 4
        fi = gi * 4 + j
        lds = (c % S) * CH + (fi % 16) * 1024
        k("ds_read_b128 a[%d:%d], v%d offset:%d" % (16 * (gi % 2) + 4 * j, 16 * (gi % 2) + 4 * j + 3, 7 + lds // 65536, lds % 65536))

    def boundary(c):
        if TSMODE == 1 and c >= 1: k.ts(1 + c)
        vflush(c + 1)
        vm.wait(tokA[c + 1])
        if not os.environ.get("NOBAR"):
            k("s_barrier")
        if TSMODE == 2 and c >= 1: k.ts(1 + c)
    boundary(0)
    for j in range(4):
        read1(0, j)
    seen = set()
    NPER = int(os.environ.get("NPER", "4"))
    for gi in range(48):
        if gi + 1 < 48 and (gi + 1) % 8 == 0:
            boundary((gi + 1) // 4)
        for j in range(4):
            t, ks = order[gi * 4 + j]
            flush_norm(ks + 1)
            k("s_waitcnt lgkmcnt(%d)" % (3 if gi + 1 < 48 else 3 - j))
            first = t not in seen
            seen.add(t)
            if os.environ.get("EXP", "") != "memonly":
                k("v_mfma_f32_32x32x16_bf16 %s, a[%d:%d], %s, %s" % (vr(ACC + 16 * t, 16), 16 * (gi % 2) + 4 * j, 16 * (gi % 2) + 4 * j + 3, vr(B + 4 * ks, 4), "0" if first else vr(ACC + 16 * t, 16)))
            if gi + 1 < 48 and os.environ.get("EXP", "") != "memonly":
                read1(gi + 1, j)
            vstep(gi * 4 + j)
            if ks == 31 and t >= 3:
                q_epi(t - 3)
            for _ in range(NPER):
                if fq:
                    emit_filler()
    k.ts(13)
    while fq:
        emit_filler()
    k.ts_flush(14)
    k.lab(end)
    return k


def build(kerns):
    head = open("cdna_kernels/%s.s.ref" % NAME).read().split("; @launch")[0]
    out = [head.rstrip("\n")]
    for kk in kerns:
        out.append("; @launch kernel=%s grid=(%d,1,1) block=(%d,1,1) lds=%d" % (kk.name, kk.grid, kk.block, kk.lds))
    out.append('.amdgcn_target "amdgcn-amd-amdhsa--gfx950"')
    out.append(".text")
    for kk in kerns:
        out.append(kk.text())
    out.append('.section .rodata,"a"')
    for kk in kerns:
        out.append(".p2align 6")
        out.append(kk.desc())
    return "\n".join(out) + "\n"


def main():
    which = sys.argv[1] if len(sys.argv) > 1 else "ABCDE"
    gens = {"A": gen_A}
    for nm in "BCDE":
        if "gen_" + nm in globals():
            gens[nm] = globals()["gen_" + nm]
    kerns = [gens[c]() for c in which if c in gens]
    txt = build(kerns)
    open("cdna_kernels/%s.s" % NAME, "w").write(txt)
    print("wrote", len(txt), "bytes;", [kk.name for kk in kerns])


if __name__ == "__main__":
    main()
```

```python
import sys, re

NAME = "sequential_preLN__grouped_kv_mqa__swiglu_ffn__prompt"

WS_Q = 0x000000
WS_K = 0x200000
WS_V = 0x210000
WS_CS = 0x220000
WS_KM = 0x228000
WS_O = 0x300000
WS_H = 0x500000
WS_ACT = 0x800000
ACT_LD = 2816
WS_ST = 0x230000
WS_WG = 0x1000000
WS_WD = 0x1400000
WS_WO = 0x1600000
WS_HP = 0x1800000
WS_DUMMY = 0x2000000
KS1 = 16
WS_SIZE = 268435456
import os
DEBUG_TS = bool(os.environ.get('TS'))
TSMODE = int(os.environ.get('TS', '0'))
SRD3 = "0x00020000"
LOG2E = 1.4426950408889634


def f32hex(x):
    import struct
    return "0x%08x" % struct.unpack("<I", struct.pack("<f", x))[0]


class Kern:
    def __init__(s, name, nvgpr, block, grid, lds, accum=None):
        s.name = name
        s.L = []
        s.nvgpr = nvgpr
        s.block = block
        s.grid = grid
        s.lds = lds
        s.accum = accum if accum is not None else nvgpr
        s.nlab = 0
        s.tsb = 70
        s.kidx = {"attn_kernel": 1, "wo_kernel": 2, "ffn1_kernel": 3, "down_kernel": 4}.get(name, 0)

    def __call__(s, txt):
        for t in txt.split("\n"):
            t = t.strip()
            if t:
                m = re.search(r"offset:(\d+)", t)
                if m:
                    lim = 4095 if t.startswith("buffer") else 65535
                    assert int(m.group(1)) <= lim, t
                if t.startswith("buffer_store") and os.environ.get("STMOD"):
                    t = t + " " + os.environ["STMOD"]
                s.L.append("    " + t)

    def lab(s, l):
        s.L.append(l + ":")

    def newlab(s, p):
        s.nlab += 1
        return "%s_%s%d" % (s.name.replace("_kernel", "")[:8], p, s.nlab)

    def srd(s, reg, preg, size):
        s("s_mov_b32 s%d, s%d" % (reg, preg))
        s("s_and_b32 s%d, s%d, 0xffff" % (reg + 1, preg + 1))
        s("s_mov_b32 s%d, 0x%x" % (reg + 2, size))
        s("s_mov_b32 s%d, %s" % (reg + 3, SRD3))

    def ts(s, idx):
        if not DEBUG_TS:
            return
        if TSMODE == 3:
            if idx == 0:
                s("s_memrealtime s[100:101]")
            return
        s("s_memtime s[%d:%d]" % (s.tsb + 2 * idx, s.tsb + 1 + 2 * idx))
        if idx == 0:
            s("s_memrealtime s[100:101]")

    def ts_flush(s, n):
        if not DEBUG_TS:
            return
        if TSMODE == 3:
            lab = s.newlab("nots")
            s("s_waitcnt vmcnt(0)")
            s("s_memrealtime s[72:73]")
            s("s_waitcnt lgkmcnt(0)")
            s("s_cmp_lg_u32 s3, 0")
            s("s_cbranch_scc1 %s" % lab)
            s("s_lshl_b32 s69, s2, 3")
            s("s_add_u32 s69, s69, 0x%x" % (0x1F00000 + 4096 * s.kidx))
            s("v_mov_b32 v0, 0")
            s("v_mov_b32 v2, s100")
            s("v_mov_b32 v3, s72")
            s("s_mov_b64 exec, 1")
            s("buffer_store_dwordx2 v[2:3], v0, s[20:23], s69 offen")
            s("s_mov_b64 exec, -1")
            s.lab(lab)
            return
        lab = s.newlab("nots")
        s("s_memrealtime s[64:65]")
        s("s_waitcnt lgkmcnt(0)")
        s("s_sub_u32 s67, s2, 100")
        s("s_cmp_ge_u32 s67, 4")
        s("s_cbranch_scc1 %s" % lab)
        s("s_cmp_lg_u32 s3, 0")
        s("s_cbranch_scc1 %s" % lab)
        s("s_load_dwordx2 s[96:97], s[0:1], 80")
        s("s_waitcnt lgkmcnt(0)")
        s("s_mov_b32 s98, 256")
        s("s_mov_b32 s99, 0x00020000")
        s("s_lshl_b32 s69, s67, 6")
        s("v_mov_b32 v0, 0")
        for i in range(n):
            s("s_sub_u32 s68, s%d, s%d" % (s.tsb + 2 * i, s.tsb))
            s("v_mov_b32 v1, s68")
            s("buffer_store_dword v1, v0, s[96:99], s69 offen offset:%d" % (4 * i))
            s("s_nop 2")
        s("s_sub_u32 s68, s64, s100")
        s("v_mov_b32 v1, s68")
        s("buffer_store_dword v1, v0, s[96:99], s69 offen offset:60")
        s.lab(lab)

    def text(s):
        out = []
        out.append(".globl %s" % s.name)
        out.append(".p2align 8")
        out.append(".type %s,@function" % s.name)
        out.append("%s:" % s.name)
        out += s.L
        out.append("    s_endpgm")
        return "\n".join(out)

    def desc(s):
        return "\n".join([
            ".amdhsa_kernel %s" % s.name,
            "  .amdhsa_next_free_vgpr %d" % s.nvgpr,
            "  .amdhsa_next_free_sgpr 102",
            "  .amdhsa_accum_offset %d" % s.accum,
            "  .amdhsa_group_segment_fixed_size 0",
            "  .amdhsa_kernarg_size 96",
            "  .amdhsa_user_sgpr_count 2",
            "  .amdhsa_user_sgpr_kernarg_segment_ptr 1",
            "  .amdhsa_system_sgpr_workgroup_id_x 1",
            ".end_amdhsa_kernel"])


def vr(a, n=1):
    return "v%d" % a if n == 1 else "v[%d:%d]" % (a, a + n - 1)


def sr(a, n=1):
    return "s%d" % a if n == 1 else "s[%d:%d]" % (a, a + n - 1)


def gen_A():
    k = Kern(NAME + "_kernel", 256, 256, 256, 163840)
    end = k.newlab("end")
    k("s_cmp_ge_u32 s2, 256")
    k("s_cbranch_scc1 %s" % end)
    k.ts(0)
    k("s_load_dwordx8 s[24:31], s[0:1], 0")
    k("s_load_dwordx2 s[32:33], s[0:1], 88")
    k("v_and_b32 v1, 63, v0")
    k("v_lshrrev_b32 v2, 6, v0")
    k("s_nop 1")
    k("v_readfirstlane_b32 s3, v2")
    k("s_and_b32 s48, s2, 7")
    k("s_lshl_b32 s48, s48, 2")
    k("s_bfe_u32 s49, s2, 0x20003")
    k("s_add_u32 s48, s48, s49")
    k("s_lshr_b32 s49, s2, 5")
    k("v_lshrrev_b32 v3, 4, v1")
    k("s_lshl_b32 s50, s3, 2")
    k("v_add_u32 v3, s50, v3")
    k("v_and_b32 v4, 15, v1")
    k("v_xor_b32 v4, v4, v3")
    k("v_lshlrev_b32 v4, 4, v4")
    k("s_lshl_b32 s51, s48, 6")
    k("v_add_u32 v3, s51, v3")
    k("v_lshl_add_u32 v4, v3, 10, v4")
    k("v_lshrrev_b32 v3, 3, v1")
    k("s_lshl_b32 s50, s3, 3")
    k("v_add_u32 v3, s50, v3")
    k("v_and_b32 v5, 7, v1")
    k("v_bfe_u32 v6, v1, 4, 1")
    k("v_lshlrev_b32 v6, 2, v6")
    k("v_xor_b32 v5, v5, v6")
    k("v_lshlrev_b32 v5, 4, v5")
    k("v_lshl_add_u32 v5, v3, 10, v5")
    k("s_lshl_b32 s50, s49, 7")
    k("v_add_u32 v5, s50, v5")
    k("v_lshlrev_b32 v6, 4, v1")
    k("s_lshl_b32 s52, s3, 10")
    k("s_and_b32 s56, s3, 1")
    k("s_lshr_b32 s57, s3, 1")
    k("s_lshl_b32 s62, s56, 11")
    k("s_and_b32 s50, s48, 7")
    k("s_lshl_b32 s63, s57, 8")
    k("s_or_b32 s50, s50, s63")
    k("s_cmp_eq_u32 s50, s49")
    k("s_cselect_b32 s53, 1, 0")
    k("s_waitcnt lgkmcnt(0)")
    k.srd(4, 24, 2048 * 512 * 2)
    for c in range(4):
        for j in range(4):
            k("s_add_u32 m0, s52, %d" % (c * 16384 + j * 4096))
            k("s_mov_b32 s54, %d" % (j * 16 * 1024 + c * 256))
            k("buffer_load_dwordx4 v4, s[4:7], s54 offen lds")
    k.srd(8, 26, 512 * 512 * 2)
    k.srd(12, 28, 512 * 16 * 2)
    k.srd(16, 30, 512 * 16 * 2)
    k.srd(20, 32, WS_SIZE)
    k.ts(1)
    k("v_and_b32 v7, 31, v1")
    k("s_lshl_b32 s58, s56, 5")
    k("v_add_u32 v7, s58, v7")
    k("v_lshrrev_b32 v8, 5, v1")
    k("v_and_b32 v9, 15, v7")
    k("v_xor_b32 v9, v9, v8")
    k("v_lshlrev_b32 v9, 4, v9")
    k("v_lshl_add_u32 v9, v7, 8, v9")
    XA = 16
    for ks in range(8):
        k("v_xor_b32 v%d, %d, v9" % (XA + ks, ks * 32))
    k("v_lshrrev_b32 v7, 5, v1")
    k("v_lshlrev_b32 v7, 3, v7")
    k("v_bfe_u32 v10, v1, 2, 2")
    k("v_add_u32 v7, v7, v10")
    k("v_bfe_u32 v10, v1, 4, 1")
    k("v_lshlrev_b32 v10, 5, v10")
    k("v_and_b32 v11, 3, v1")
    k("v_lshl_add_u32 v10, v11, 3, v10")
    k("s_lshl_b32 s58, s57, 6")
    k("v_add_u32 v10, s58, v10")
    k("v_bfe_u32 v11, v1, 3, 1")
    k("v_lshlrev_b32 v11, 6, v11")
    k("v_xor_b32 v10, v10, v11")
    k("v_lshl_add_u32 v10, v7, 7, v10")
    k("v_add_u32 v10, 0x10000, v10")
    k("v_and_b32 v11, 3, v1")
    k("v_lshlrev_b32 v11, 3, v11")
    k("v_lshl_add_u32 v11, v7, 5, v11")
    k("v_bfe_u32 v12, v1, 4, 1")
    k("v_lshl_add_u32 v11, v12, 14, v11")
    k("v_add_u32 v11, 0x20000, v11")
    ONES = 24
    for i in range(4):
        k("v_mov_b32 v%d, 0x3f803f80" % (ONES + i))
    S1, S2 = 28, 29
    for i in range(4):
        k("v_mov_b32 v%d, 0" % (28 + i))
    ACC, CS, ACC2, CS2 = 32, 48, 64, 80
    BF, AF, AK = 96, 224, 240
    done = k.newlab("done")
    kvp = k.newlab("kvp")
    k("s_cmp_lg_u32 s53, 0")
    k("s_cbranch_scc1 %s" % kvp)

    def body(kv):
        nW = 8 if kv else 4

        def issueW(c):
            for j in range(4):
                k("s_add_u32 m0, s52, %d" % (65536 + c * 16384 + j * 4096))
                k("s_mov_b32 s54, %d" % ((c * 128 + 32 * j) * 1024))
                k("buffer_load_dwordx4 v5, s[8:11], s54 offen lds")
            if kv:
                for (srdn, base) in ((12, 131072), (16, 147456)):
                    for j in range(2):
                        k("s_add_u32 s54, s62, %d" % (c * 4096 + j * 1024))
                        k("s_add_u32 m0, s54, %d" % base)
                        k("buffer_load_dwordx4 v6, s[%d:%d], s54 offen lds" % (srdn, srdn + 3))
        for c in range(4):
            k("s_waitcnt vmcnt(%d)" % (4 * (3 - c) + c * nW))
            k("s_barrier")
            if not kv: k.ts(2 + c)
            for ks in range(8):
                k("ds_read_b128 %s, v%d offset:%d" % (vr(BF + 4 * (8 * c + ks), 4), XA + ks, c * 16384))
            issueW(c)
            for ks in range(8):
                k("s_waitcnt lgkmcnt(%d)" % (7 - ks))
                for q in range(4):
                    b = BF + 4 * (8 * c + ks) + q
                    k("v_dot2c_f32_bf16 v%d, v%d, v%d" % (28 + 2 * (q & 1), b, ONES))
                    k("v_dot2c_f32_bf16 v%d, v%d, v%d" % (29 + 2 * (q & 1), b, b))

        def rdA(g):
            c, ks = g // 8, g % 8
            k("ds_read_b64_tr_b16 %s, v10 offset:%d" % (vr(AF + 4 * (g % 4), 2), c * 16384 + ks * 2048))
            k("ds_read_b64_tr_b16 %s, v10 offset:%d" % (vr(AF + 4 * (g % 4) + 2, 2), c * 16384 + ks * 2048 + 512))
            if kv:
                k("ds_read_b64_tr_b16 %s, v11 offset:%d" % (vr(AK + 4 * (g % 4), 2), (c * 128 + ks * 16) * 32))
                k("ds_read_b64_tr_b16 %s, v11 offset:%d" % (vr(AK + 4 * (g % 4) + 2, 2), (c * 128 + ks * 16 + 4) * 32))
        nr = 4 if kv else 2
        for c in range(4):
            k("s_waitcnt vmcnt(%d)" % ((3 - c) * nW))
            k("s_barrier")
            if not kv: k.ts(6 + c)
            for ks in range(3):
                rdA(8 * c + ks)
            if c == 0:
                k("v_add_f32 v28, v28, v30")
                k("v_add_f32 v29, v29, v31")
                k("v_mov_b32 v30, v28")
                k("v_mov_b32 v31, v29")
                k("s_nop 1")
                k("v_permlane32_swap_b32 v28, v30")
                k("v_permlane32_swap_b32 v29, v31")
                k("s_nop 1")
                k("v_add_f32 v28, v28, v30")
                k("v_add_f32 v29, v29, v31")
                k("v_mul_f32 v%d, %s, v%d" % (S1, f32hex(1.0 / 512), S1))
                k("v_mul_f32 v%d, %s, v%d" % (S2, f32hex(1.0 / 512), S2))
                k("v_fma_f32 v%d, -v%d, v%d, v%d" % (S2, S1, S1, S2))
                k("v_add_f32 v%d, %s, v%d" % (S2, f32hex(1e-5), S2))
                k("v_rsq_f32 v%d, v%d" % (S2, S2))
                k("s_nop 1")
                k("v_mul_f32 v30, %s, v%d" % (f32hex(0.25 * LOG2E), S2))
            for ks in range(8):
                g = 8 * c + ks
                ahead = min(2, 7 - ks)
                k("s_waitcnt lgkmcnt(%d)" % (ahead * nr))
                first = g == 0
                k("v_mfma_f32_32x32x16_bf16 %s, %s, %s, %s" % (vr(ACC, 16), vr(AF + 4 * (g % 4), 4), vr(BF + 4 * g, 4), "0" if first else vr(ACC, 16)))
                if ks + 3 < 8:
                    rdA(g + 3)
                k("v_mfma_f32_32x32x16_bf16 %s, %s, %s, %s" % (vr(CS, 16), vr(AF + 4 * (g % 4), 4), vr(ONES, 4), "0" if first else vr(CS, 16)))
                if kv:
                    k("v_mfma_f32_32x32x16_bf16 %s, %s, %s, %s" % (vr(ACC2, 16), vr(AK + 4 * (g % 4), 4), vr(BF + 4 * g, 4), "0" if first else vr(ACC2, 16)))
                    k("v_mfma_f32_32x32x16_bf16 %s, %s, %s, %s" % (vr(CS2, 16), vr(AK + 4 * (g % 4), 4), vr(ONES, 4), "0" if first else vr(CS2, 16)))
    body(False)
    k("s_branch %s" % done)
    k.lab(kvp)
    body(True)
    k.lab(done)
    k.ts(10)
    k("v_and_b32 v7, 31, v1")
    k("s_lshl_b32 s58, s56, 5")
    k("s_add_u32 s58, s58, s51")
    k("v_add_u32 v7, s58, v7")
    k("v_lshrrev_b32 v8, 5, v1")
    k("v_lshlrev_b32 v9, 3, v8")
    k("v_lshl_add_u32 v12, v7, 10, v9")
    k("s_lshl_b32 s59, s49, 7")
    k("s_lshl_b32 s60, s57, 6")
    k("s_add_u32 s59, s59, s60")
    k("s_add_u32 s59, s59, 0x%x" % WS_Q)
    k("s_nop 15")
    TQ = 224
    for r in range(16):
        k("v_fma_f32 v%d, -v%d, v%d, v%d" % (ACC + r, S1, CS + r, ACC + r))
    for r in range(16):
        k("v_mul_f32 v%d, v30, v%d" % (ACC + r, ACC + r))
    for r in range(8):
        k("v_cvt_pk_bf16_f32 v%d, v%d, v%d" % (TQ + r, ACC + 2 * r, ACC + 2 * r + 1))
    for q in range(4):
        k("buffer_store_dwordx2 %s, v12, s[20:23], s59 offen offset:%d" % (vr(TQ + 2 * q, 2), 16 * q))
    k.ts(11)
    k.ts_flush(12)
    k("s_cmp_eq_u32 s53, 0")
    k("s_cbranch_scc1 %s" % end)
    ACC, CS = ACC2, CS2
    for r in range(16):
        k("v_fma_f32 v%d, -v%d, v%d, v%d" % (ACC + r, S1, CS + r, ACC + r))
    for r in range(16):
        k("v_mul_f32 v%d, v%d, v%d" % (ACC + r, S2, ACC + r))
    for r in range(8):
        k("v_cvt_pk_bf16_f32 v%d, v%d, v%d" % (CS + r, ACC + 2 * r, ACC + 2 * r + 1))
    k("v_mov_b32 v14, 0")
    for i in range(4):
        k("v_dot2c_f32_bf16 v14, v%d, v%d" % (CS + i, CS + i))
    k("s_nop 4")
    k("v_mov_b32 v15, v14")
    k("s_nop 1")
    k("v_permlane32_swap_b32 v14, v15")
    k("s_nop 1")
    k("v_add_f32 v14, v14, v15")
    k("s_nop 1")
    for r in (8, 4, 2, 1):
        k("v_max_f32_dpp v14, v14, v14 row_ror:%d row_mask:0xf bank_mask:0xf" % r)
        k("s_nop 1")
    k("v_readlane_b32 s60, v14, 0")
    k("v_readlane_b32 s61, v14, 16")
    k("s_nop 3")
    k("s_max_u32 s60, s60, s61")
    k("v_mov_b32 v14, s60")
    k("v_mov_b32 v15, 0")
    k("s_lshl_b32 s61, s48, 1")
    k("s_add_u32 s61, s61, s56")
    k("s_lshl_b32 s61, s61, 2")
    k("s_add_u32 s61, s61, 0x%x" % WS_KM)
    k("s_mov_b64 exec, 1")
    k("buffer_store_dword v14, v15, s[20:23], s61 offen")
    k("s_mov_b64 exec, -1")
    k("v_and_b32 v13, 31, v1")
    k("v_lshlrev_b32 v13, 4, v13")
    k("v_lshl_add_u32 v13, v8, 3, v13")
    k("s_lshl_b32 s59, s48, 1")
    k("s_add_u32 s59, s59, s56")
    k("s_lshl_b32 s59, s59, 10")
    k("s_add_u32 s59, s59, 0x%x" % WS_K)
    k("buffer_store_dwordx2 %s, v13, s[20:23], s59 offen" % vr(CS, 2))
    k("buffer_store_dwordx2 %s, v13, s[20:23], s59 offen offset:512" % vr(CS + 2, 2))
    k("v_lshrrev_b32 v13, 4, v7")
    k("v_lshlrev_b32 v13, 9, v13")
    k("v_bfe_u32 v14, v7, 2, 1")
    k("v_lshl_add_u32 v13, v14, 8, v13")
    k("v_bfe_u32 v14, v7, 3, 1")
    k("v_lshl_add_u32 v13, v14, 3, v13")
    k("v_and_b32 v14, 3, v7")
    k("v_lshl_add_u32 v13, v14, 1, v13")
    k("v_lshl_add_u32 v13, v8, 6, v13")
    k("s_mov_b32 s59, 0x%x" % WS_V)
    for r in range(8, 16):
        d = (r & 3) + 8 * ((r >> 2) - 2)
        src = CS + r // 2
        op = "buffer_store_short" if r % 2 == 0 else "buffer_store_short_d16_hi"
        k("%s v%d, v13, s[20:23], s59 offen offset:%d" % (op, src, d * 16))
    k.lab(end)
    return k


def gen_B():
    k = Kern("attn_kernel", 128, 1024, 256, 163840)
    end = k.newlab("end")
    k("s_cmp_ge_u32 s2, 256")
    k("s_cbranch_scc1 %s" % end)
    k.tsb = 4
    k.ts(0)
    k("s_load_dwordx2 s[32:33], s[0:1], 88")
    k("s_load_dwordx4 s[36:39], s[0:1], 48")
    k("s_load_dwordx2 s[40:41], s[0:1], 64")
    k("s_load_dwordx2 s[42:43], s[0:1], 32")
    k("v_and_b32 v1, 63, v0")
    k("v_lshrrev_b32 v2, 6, v0")
    k("s_nop 1")
    k("v_readfirstlane_b32 s3, v2")
    k("v_and_b32 v2, 31, v1")
    k("v_lshlrev_b32 v2, 5, v2")
    k("v_lshrrev_b32 v3, 5, v1")
    k("v_lshl_add_u32 v2, v3, 4, v2")
    k("v_lshlrev_b32 v8, 4, v1")
    k("s_and_b32 s48, s3, 7")
    k("s_lshr_b32 s49, s3, 3")
    k("s_lshl_b32 s50, s2, 3")
    k("s_add_u32 s50, s50, s48")
    k("s_lshl_b32 s51, s50, 10")
    k("s_add_u32 s51, s51, 0x%x" % WS_Q)
    k("s_lshr_b32 s52, s3, 3")
    k("s_lshl_b32 s52, s52, 15")
    k("s_and_b32 s53, s3, 7")
    k("s_lshl_b32 s53, s53, 10")
    k("s_add_u32 s52, s52, s53")
    k("s_waitcnt lgkmcnt(0)")
    k.srd(20, 32, WS_SIZE)
    QF = 4
    k("buffer_load_dwordx4 %s, v2, s[20:23], s51 offen" % vr(QF, 4))
    k("s_lshl_b32 s54, s49, 7")
    k("s_add_u32 s54, s54, 0x%x" % WS_KM)
    k("s_add_u32 s56, s32, s54")
    k("s_addc_u32 s57, s33, 0")
    k("s_load_dwordx16 s[64:79], s[56:57], 0")
    k("s_load_dwordx16 s[80:95], s[56:57], 64")
    for j in range(4):
        for ss in range(2):
            k("s_add_u32 m0, s52, %d" % (ss * 65536 + j * 8192))
            k("s_add_u32 s53, s52, 0x%x" % (WS_K + ss * 65536 + j * 8192))
            k("buffer_load_dwordx4 v8, s[20:23], s53 offen lds")
    k("s_lshl_b32 s54, s49, 15")
    k("v_add_u32 v9, s54, v8")
    k("v_and_b32 v10, 15, v1")
    k("v_lshlrev_b32 v10, 4, v10")
    k("v_lshl_add_u32 v10, v3, 8, v10")
    k("v_add_u32 v10, s54, v10")
    k("v_add_u32 v10, 0x10000, v10")
    NEG, SA, SB, O, PK, KF, VF = 16, 32, 48, 64, 80, 88, 100
    M = 11
    for i in range(16):
        k("v_mov_b32 v%d, 0x3f803f80" % (VF + i))
    k("s_mov_b32 s58, 0xffff")
    k("s_mov_b32 s59, 0xffff")
    k("s_waitcnt lgkmcnt(0)")
    for i in range(1, 32):
        k("s_max_u32 s64, s64, s%d" % (64 + i))
    k("v_mov_b32 v12, 0")
    k("s_waitcnt vmcnt(8)")
    for i in range(4):
        k("v_dot2c_f32_bf16 v12, v%d, v%d" % (QF + i, QF + i))
    k("s_nop 4")
    k("v_mov_b32 v13, v12")
    k("s_nop 1")
    k("v_permlane32_swap_b32 v12, v13")
    k("s_nop 1")
    k("v_add_f32 v12, v12, v13")
    k("v_mul_f32 v12, s64, v12")
    k("v_sqrt_f32 v%d, v12" % M)
    k("s_nop 1")
    for i in range(16):
        k("v_xor_b32 v%d, 0x80000000, v%d" % (NEG + i, M))
    S = [SA, SB]
    NT = 32

    RP, RQ = 116, 124

    def repack_issue():
        l_dn, l_go = k.newlab("rdn"), k.newlab("rgo")
        k("s_cmp_ge_u32 s64, 2752")
        k("s_cbranch_scc1 %s" % l_dn)
        k("s_lshr_b32 s65, s64, 5")
        k("s_and_b32 s66, s64, 31")
        k("s_cmp_ge_u32 s65, 43")
        k("s_cselect_b32 s67, 1, 0")
        k("s_cselect_b32 s84, s38, s36")
        k("s_cselect_b32 s85, s39, s37")
        k("s_mul_i32 s68, s67, 43")
        k("s_sub_u32 s65, s65, s68")
        k("s_mul_i32 s68, s65, 171")
        k("s_lshr_b32 s68, s68, 9")
        k("s_mul_i32 s69, s68, 3")
        k("s_sub_u32 s69, s65, s69")
        k("s_mul_i32 s70, s66, 6")
        k("s_mul_i32 s71, s67, 3")
        k("s_add_u32 s70, s70, s71")
        k("s_add_u32 s70, s70, s69")
        k("s_mul_i32 s71, s69, %d" % ((32 - KS1) * 2))
        k("s_lshl_b32 s72, s66, 1")
        k("s_add_u32 s71, s71, s72")
        k("s_add_u32 s71, s71, s67")
        k("s_add_u32 s71, s71, %d" % (KS1 * 6 - 2 * KS1))
        k("s_cmp_lt_u32 s66, %d" % KS1)
        k("s_cselect_b32 s70, s70, s71")
        k("s_lshl_b32 s70, s70, 10")
        k("s_mul_i32 s90, s68, 196608")
        k("s_add_u32 s90, s90, s70")
        k("s_add_u32 s90, s90, 0x%x" % WS_WG)
        k("s_mov_b32 s86, %d" % (512 * 2752))
        k("s_mov_b32 s89, 2752")
        k("s_branch %s" % l_go)
        k.lab(l_dn)
        k("s_sub_u32 s64, s64, 2752")
        k("s_cmp_ge_u32 s64, 1376")
        k("s_cselect_b32 s84, s42, s40")
        k("s_cselect_b32 s85, s43, s41")
        k("s_mov_b32 s86, %d" % (1376 * 1024))
        k("s_mov_b32 s68, %d" % (86 * 2048))
        k("s_mov_b32 s90, 0x%x" % WS_WD)
        k("s_cselect_b32 s86, %d, s86" % (512 * 1024))
        k("s_cselect_b32 s67, 1376, 0")
        k("s_cselect_b32 s68, 65536, s68")
        k("s_cselect_b32 s90, 0x%x, s90" % WS_WO)
        k("s_sub_u32 s64, s64, s67")
        k("s_lshr_b32 s66, s64, 4")
        k("s_and_b32 s65, s64, 15")
        k("s_lshr_b32 s69, s65, 1")
        k("s_mul_i32 s69, s69, s68")
        k("s_add_u32 s90, s90, s69")
        k("s_lshl_b32 s69, s66, 11")
        k("s_add_u32 s90, s90, s69")
        k("s_and_b32 s69, s65, 1")
        k("s_lshl_b32 s69, s69, 10")
        k("s_add_u32 s90, s90, s69")
        k("s_mov_b32 s89, 1024")
        k.lab(l_go)
        k("s_and_b32 s85, s85, 0xffff")
        k("s_mov_b32 s87, %s" % SRD3)
        k("s_mul_i32 s88, s66, s89")
        k("s_lshl_b32 s88, s88, 4")
        k("s_lshl_b32 s69, s65, 6")
        k("s_add_u32 s88, s88, s69")
        k("s_lshl_b32 s69, s89, 3")
        k("v_mul_u32_u24 v14, s69, v3")
        k("v_and_b32 v15, 31, v1")
        k("v_lshl_add_u32 v14, v15, 1, v14")
        for j in range(8):
            k("buffer_load_ushort v%d, v14, s[84:87], s88 offen" % (RP + j))
            if j < 7:
                k("s_add_u32 s88, s88, s89")

    def repack_store():
        k("s_waitcnt vmcnt(0)")
        for q in range(4):
            k("v_lshl_or_b32 v%d, v%d, 16, v%d" % (RQ + q, RP + 2 * q + 1, RP + 2 * q))
        k("buffer_store_dwordx4 %s, v8, s[20:23], s90 offen" % vr(RQ, 4))

    EXPB = os.environ.get("EXPB", "")
    PRIO = int(os.environ.get("PRIO", "0"))
    RT = [int(x) for x in os.environ.get("RT", "1,12,24").split(",")]
    repack_wait = [False]
    def rdV(t):
        if "noV" in EXPB and t > 1:
            k("ds_read_b32 v15, v10"); k("ds_read_b32 v15, v10")
            return
        k("s_mov_b64 exec, s[58:59]")
        k("ds_read_b128 %s, v10 offset:%d" % (vr(VF + 8 * (t % 2), 4), t * 1024))
        k("ds_read_b128 %s, v10 offset:%d" % (vr(VF + 8 * (t % 2) + 4, 4), t * 1024 + 512))
        k("s_mov_b64 exec, -1")

    def pass2(bars):
        if bars:
            k("s_waitcnt vmcnt(6)")
            k("s_barrier")
            k.ts(1)
        k("ds_read_b128 %s, v9 offset:0" % vr(KF, 4))
        k("ds_read_b128 %s, v9 offset:1024" % vr(KF + 4, 4))
        rdV(0)
        k("s_waitcnt lgkmcnt(3)")
        k("v_mfma_f32_32x32x16_bf16 %s, %s, %s, %s" % (vr(S[0], 16), vr(KF, 4), vr(QF, 4), vr(NEG, 16)))
        for t in range(NT):
            n_new = 0
            if bars and t == 8: k.ts(2)
            if bars and t == 16: k.ts(3)
            if bars and t == 23: k.ts(4)
            if bars and PRIO and t % 8 in (0, 2, 4, 6):
                k("s_setprio %d" % (3 - ((t + 2) % 8) // 2 if PRIO == 1 else 3 - (t % 8) // 2))
            if bars and t == RT[0]:
                k("s_lshl_b32 s64, s2, 4")
                k("s_add_u32 s64, s64, s3")
                repack_issue()
            if bars and t == RT[1]:
                repack_store()
                k.ts(5)
                nr2 = k.newlab("nr2")
                k("s_lshl_b32 s64, s3, 8")
                k("s_add_u32 s64, s64, s2")
                k("s_cmp_ge_u32 s64, 544")
                k("s_cbranch_scc1 %s" % nr2)
                k("s_add_u32 s64, s64, 4096")
                repack_issue()
                repack_wait[0] = True
                k.lab(nr2)
            if bars and t == RT[2]:
                nr3 = k.newlab("nr3")
                k("s_lshl_b32 s64, s3, 8")
                k("s_add_u32 s64, s64, s2")
                k("s_cmp_ge_u32 s64, 544")
                k("s_cbranch_scc1 %s" % nr3)
                repack_store()
                k.lab(nr3)
            if t + 2 < NT:
                if bars and (t + 2) % 8 == 0:
                    young = 8 if RT[0] <= t < RT[1] else 0
                    if t >= RT[1]:
                        pass
                    else:
                        k("s_waitcnt vmcnt(%d)" % (6 - 2 * ((t + 2) // 8) + young))
                    k("s_barrier")
                k("ds_read_b128 %s, v9 offset:%d" % (vr(KF + 4 * ((t + 2) % 3), 4), (t + 2) * 1024))
                n_new += 1
            if t + 1 < NT:
                k("s_waitcnt lgkmcnt(%d)" % (2 + n_new))
                k("v_mfma_f32_32x32x16_bf16 %s, %s, %s, %s" % (vr(S[(t + 1) % 2], 16), vr(KF + 4 * ((t + 1) % 3), 4), vr(QF, 4), vr(NEG, 16)))
            if t == 0:
                k("s_nop 10")
            s = S[t % 2]
            for i in range(16):
                if "noexp" in EXPB and i >= 8: continue
                k("v_exp_f32 v%d, v%d" % (s + i, s + i))
            for i in range(8):
                if "nocvt" in EXPB: continue
                k("v_cvt_pk_bf16_f32 v%d, v%d, v%d" % (PK + i, s + 2 * i, s + 2 * i + 1))
            k("s_waitcnt lgkmcnt(%d)" % n_new)
            if "nopv" not in EXPB or t == 0:
                k("v_mfma_f32_32x32x16_bf16 %s, %s, %s, %s" % (vr(O, 16), vr(VF + 8 * (t % 2), 4), vr(PK, 4), "0" if t == 0 else vr(O, 16)))
                k("v_mfma_f32_32x32x16_bf16 %s, %s, %s, %s" % (vr(O, 16), vr(VF + 8 * (t % 2) + 4, 4), vr(PK + 4, 4), vr(O, 16)))
            if t + 1 < NT:
                rdV(t + 1)
    pass2(True)
    k.ts(6)
    k("s_nop 15")
    k("v_cmp_gt_f32 vcc, 0x%08x, v%d" % ((127 - 64) << 23, O + 8))
    k("v_cmp_u_f32 s[60:61], v%d, v%d" % (O + 8, O + 8))
    k("s_or_b64 vcc, vcc, s[60:61]")
    comb = k.newlab("comb")
    k("s_cbranch_vccz %s" % comb)
    k("v_mov_b32 v%d, 0xff800000" % M)
    k("ds_read_b128 %s, v9 offset:0" % vr(KF, 4))
    k("ds_read_b128 %s, v9 offset:1024" % vr(KF + 4, 4))
    k("s_waitcnt lgkmcnt(1)")
    k("v_mfma_f32_32x32x16_bf16 %s, %s, %s, 0" % (vr(S[0], 16), vr(KF, 4), vr(QF, 4)))
    for t in range(NT):
        if t + 2 < NT:
            k("ds_read_b128 %s, v9 offset:%d" % (vr(KF + 4 * ((t + 2) % 3), 4), (t + 2) * 1024))
        if t + 1 < NT:
            k("s_waitcnt lgkmcnt(%d)" % (1 if t + 2 < NT else 0))
            k("v_mfma_f32_32x32x16_bf16 %s, %s, %s, 0" % (vr(S[(t + 1) % 2], 16), vr(KF + 4 * ((t + 1) % 3), 4), vr(QF, 4)))
        k("s_nop 10" if t == 0 else "s_nop 3")
        s = S[t % 2]
        for i in range(8):
            k("v_max3_f32 v%d, v%d, v%d, v%d" % (M, s + 2 * i, s + 2 * i + 1, M))
    k("v_mov_b32 v12, v%d" % M)
    k("s_nop 1")
    k("v_permlane32_swap_b32 v%d, v12" % M)
    k("s_nop 1")
    k("v_max_f32 v%d, v%d, v12" % (M, M))
    for i in range(16):
        k("v_xor_b32 v%d, 0x80000000, v%d" % (NEG + i, M))
    k("s_nop 1")
    pass2(False)
    k("s_nop 15")
    k.lab(comb)
    k("s_mul_i32 s60, s48, 2560")
    k("s_add_u32 s60, s60, 0x20000")
    k("v_lshlrev_b32 v12, 2, v1")
    k("v_add_u32 v12, s60, v12")
    w1 = k.newlab("w1")
    k("s_cmp_eq_u32 s49, 0")
    k("s_cbranch_scc1 %s" % w1)
    for i in range(9):
        k("ds_write_b32 v12, v%d offset:%d" % (O + i, i * 256))
    k("ds_write_b32 v12, v%d offset:%d" % (M, 9 * 256))
    k("s_waitcnt lgkmcnt(0)")
    k("s_barrier")
    k("s_branch %s" % end)
    k.lab(w1)
    k("s_barrier")
    for i in range(9):
        k("ds_read_b32 v%d, v12 offset:%d" % (SA + i, i * 256))
    k("ds_read_b32 v%d, v12 offset:%d" % (SA + 9, 9 * 256))
    k("s_waitcnt lgkmcnt(0)")
    m1 = SA + 9
    k("v_max_f32 v13, v%d, v%d" % (M, m1))
    k("v_sub_f32 v14, v%d, v13" % M)
    k("v_sub_f32 v15, v%d, v13" % m1)
    k("v_exp_f32 v14, v14")
    k("v_exp_f32 v15, v15")
    k("s_nop 1")
    for i in range(9):
        k("v_mul_f32 v%d, v14, v%d" % (O + i, O + i))
    for i in range(9):
        k("v_fma_f32 v%d, v15, v%d, v%d" % (O + i, SA + i, O + i))
    k("v_rcp_f32 v13, v%d" % (O + 8))
    k("s_nop 1")
    for i in range(8):
        k("v_mul_f32 v%d, v13, v%d" % (O + i, O + i))
    for i in range(4):
        k("v_cvt_pk_bf16_f32 v%d, v%d, v%d" % (PK + i, O + 2 * i, O + 2 * i + 1))
    k("v_and_b32 v2, 31, v1")
    k("v_lshlrev_b32 v2, 5, v2")
    k("v_lshl_add_u32 v2, v3, 3, v2")
    k("s_lshl_b32 s51, s50, 10")
    k("s_add_u32 s51, s51, 0x%x" % WS_O)
    k("buffer_store_dwordx2 %s, v2, s[20:23], s51 offen" % vr(PK, 2))
    k("buffer_store_dwordx2 %s, v2, s[20:23], s51 offen offset:16" % vr(PK + 2, 2))
    k.ts(7)
    k.ts_flush(8)
    k.lab(end)
    return k


def gen_gemm64(name, x_ws_off, ldx, w_karg, K, resid, outp, S=4, stats=False):
    lds = S * 32768
    k = Kern(name, 128, 256, 256, lds)
    end = k.newlab("end")
    k("s_cmp_ge_u32 s2, 256")
    k("s_cbranch_scc1 %s" % end)
    k.ts(0)
    k("s_load_dwordx2 s[24:25], s[0:1], %d" % w_karg)
    k("s_load_dwordx2 s[32:33], s[0:1], 88")
    if resid[0] == 'karg':
        k("s_load_dwordx2 s[26:27], s[0:1], %d" % resid[1])
    if outp[0] == 'karg':
        k("s_load_dwordx2 s[28:29], s[0:1], %d" % outp[1])
    k("v_and_b32 v1, 63, v0")
    k("v_lshrrev_b32 v2, 6, v0")
    k("s_nop 1")
    k("v_readfirstlane_b32 s3, v2")
    k("s_and_b32 s48, s2, 7")
    k("s_lshl_b32 s48, s48, 2")
    k("s_bfe_u32 s49, s2, 0x20003")
    k("s_add_u32 s48, s48, s49")
    k("s_lshr_b32 s49, s2, 5")
    k("s_waitcnt lgkmcnt(0)")
    k.srd(8, 24, K * 1024)
    k.srd(20, 32, WS_SIZE)
    if resid[0] == 'karg':
        k.srd(12, 26, 2048 * 1024)
        rs, roff = 12, 0
    else:
        rs, roff = 20, resid[1]
    if outp[0] == 'karg':
        k.srd(16, 28, 2048 * 1024)
        os_, ooff = 16, 0
    else:
        os_, ooff = 20, outp[1]
    k("v_lshrrev_b32 v3, 4, v1")
    k("s_lshl_b32 s50, s3, 2")
    k("v_add_u32 v3, s50, v3")
    k("v_and_b32 v4, 15, v1")
    k("v_xor_b32 v4, v4, v3")
    k("v_lshlrev_b32 v4, 4, v4")
    k("s_lshl_b32 s51, s48, 6")
    k("v_add_u32 v3, s51, v3")
    k("v_mul_u32_u24 v3, %d, v3" % ldx)
    k("v_add_u32 v4, v3, v4")
    k("v_lshrrev_b32 v3, 3, v1")
    k("s_lshl_b32 s50, s3, 3")
    k("v_add_u32 v3, s50, v3")
    k("v_and_b32 v5, 7, v1")
    k("v_bfe_u32 v6, v1, 4, 1")
    k("v_lshlrev_b32 v6, 2, v6")
    k("v_xor_b32 v5, v5, v6")
    k("v_lshlrev_b32 v5, 4, v5")
    k("v_lshl_add_u32 v5, v3, 10, v5")
    k("s_lshl_b32 s50, s49, 7")
    k("v_add_u32 v5, s50, v5")
    k("s_lshl_b32 s52, s3, 10")
    chunks = []
    kk = 0
    while kk < K:
        c = min(128, K - kk)
        chunks.append((kk, c))
        kk += c
    NC = len(chunks)

    def issue(c):
        k0, kc = chunks[c]
        st = (c % S) * 32768
        n = 0
        for j in range(4):
            k("s_add_u32 m0, s52, %d" % (st + j * 4096))
            k("s_mov_b32 s54, %d" % (x_ws_off + j * 16 * ldx + k0 * 2))
            k("buffer_load_dwordx4 v4, s[20:23], s54 offen lds")
            n += 1
        for j in range(kc // 32):
            k("s_add_u32 m0, s52, %d" % (st + 16384 + j * 4096))
            k("s_mov_b32 s54, %d" % ((k0 + 32 * j) * 1024))
            k("buffer_load_dwordx4 v5, s[8:11], s54 offen lds")
            n += 1
        return n
    cnt = {}
    for c in range(min(S - 1, NC)):
        cnt[c] = issue(c)
    k("s_and_b32 s56, s3, 1")
    k("s_lshr_b32 s57, s3, 1")
    k("v_and_b32 v7, 31, v1")
    k("s_lshl_b32 s58, s56, 5")
    k("v_add_u32 v7, s58, v7")
    k("v_lshrrev_b32 v8, 5, v1")
    k("v_and_b32 v9, 15, v7")
    k("v_xor_b32 v9, v9, v8")
    k("v_lshlrev_b32 v9, 4, v9")
    k("v_lshl_add_u32 v9, v7, 8, v9")
    XA = 16
    for ks in range(8):
        k("v_xor_b32 v%d, %d, v9" % (XA + ks, ks * 32))
    k("v_lshrrev_b32 v11, 5, v1")
    k("v_lshlrev_b32 v11, 3, v11")
    k("v_bfe_u32 v10, v1, 2, 2")
    k("v_add_u32 v11, v11, v10")
    k("v_bfe_u32 v10, v1, 4, 1")
    k("v_lshlrev_b32 v10, 5, v10")
    k("v_and_b32 v12, 3, v1")
    k("v_lshl_add_u32 v10, v12, 3, v10")
    k("s_lshl_b32 s58, s57, 6")
    k("v_add_u32 v10, s58, v10")
    k("v_bfe_u32 v12, v1, 3, 1")
    k("v_lshlrev_b32 v12, 6, v12")
    k("v_xor_b32 v10, v10, v12")
    k("v_lshl_add_u32 v10, v11, 7, v10")
    k("v_add_u32 v10, 0x4000, v10")
    k("s_lshl_b32 s58, s56, 5")
    k("s_add_u32 s58, s58, s51")
    k("v_and_b32 v13, 31, v1")
    k("v_add_u32 v13, s58, v13")
    k("v_lshlrev_b32 v12, 3, v8")
    k("v_lshl_add_u32 v12, v13, 10, v12")
    k("s_lshl_b32 s59, s49, 7")
    k("s_lshl_b32 s60, s57, 6")
    k("s_add_u32 s59, s59, s60")
    ACC, RES, XC, WC = 32, 48, 24, 14
    BF, AF = 64, 96
    for c in range(NC):
        k0, kc = chunks[c]
        st = (c % S) * 32768
        later = sum(cnt[cc] for cc in range(c + 1, min(c + S - 1, NC)))
        k("s_waitcnt vmcnt(%d)" % later)
        k("s_barrier")
        if c < 11: k.ts(1 + c)
        if c + S - 1 < NC:
            cnt[c + S - 1] = issue(c + S - 1)
        if c == NC - 1:
            k("s_add_u32 s60, s59, 0x%x" % roff)
            for q in range(4):
                k("buffer_load_dwordx2 %s, v12, s[%d:%d], s60 offen offset:%d" % (vr(RES + 2 * q, 2), rs, rs + 3, 16 * q))
        nks = kc // 16
        hi = st >= 65536
        if hi or st + 16384 + 16384 > 65536:
            pass
        for ks in range(nks):
            k("v_add_u32 v%d, %d, v%d" % (XC + ks, st, XA + ks))
        k("v_add_u32 v%d, %d, v10" % (WC, st))
        for ks in range(nks):
            k("ds_read_b128 %s, v%d" % (vr(BF + 4 * ks, 4), XC + ks))
            k("ds_read_b64_tr_b16 %s, v%d offset:%d" % (vr(AF + 4 * ks, 2), WC, ks * 2048))
            k("ds_read_b64_tr_b16 %s, v%d offset:%d" % (vr(AF + 4 * ks + 2, 2), WC, ks * 2048 + 512))
        for ks in range(nks):
            k("s_waitcnt lgkmcnt(%d)" % min(15, 3 * (nks - 1 - ks)))
            first = (c == 0 and ks == 0)
            k("v_mfma_f32_32x32x16_bf16 %s, %s, %s, %s" % (vr(ACC, 16), vr(AF + 4 * ks, 4), vr(BF + 4 * ks, 4), "0" if first else vr(ACC, 16)))
    k.ts(12)
    k("s_waitcnt vmcnt(0)")
    k("s_nop 15")
    for q in range(4):
        for d in range(2):
            r = RES + 2 * q + d
            k("v_lshlrev_b32 v%d, 16, v%d" % (BF, r))
            k("v_and_b32 v%d, 0xffff0000, v%d" % (BF + 1, r))
            k("v_add_f32 v%d, v%d, v%d" % (ACC + 4 * q + 2 * d, ACC + 4 * q + 2 * d, BF))
            k("v_add_f32 v%d, v%d, v%d" % (ACC + 4 * q + 2 * d + 1, ACC + 4 * q + 2 * d + 1, BF + 1))
    for r in range(8):
        k("v_cvt_pk_bf16_f32 v%d, v%d, v%d" % (RES + r, ACC + 2 * r, ACC + 2 * r + 1))
    k("s_add_u32 s60, s59, 0x%x" % ooff)
    for q in range(4):
        k("buffer_store_dwordx2 %s, v12, s[%d:%d], s60 offen offset:%d" % (vr(RES + 2 * q, 2), os_, os_ + 3, 16 * q))
    if stats:
        T = AF
        k("v_and_b32 v%d, 31, v1" % (T + 7))
        k("v_lshlrev_b32 v%d, 4, v%d" % (T + 7, T + 7))
        k("v_lshl_add_u32 v%d, v8, 3, v%d" % (T + 7, T + 7))
        k("s_lshl_b32 s60, s48, 1")
        k("s_add_u32 s60, s60, s56")
        k("s_lshl_b32 s60, s60, 5")
        k("s_lshl_b32 s61, s49, 2")
        k("s_add_u32 s60, s60, s61")
        k("s_lshl_b32 s61, s57, 1")
        k("s_add_u32 s60, s60, s61")
        k("s_lshl_b32 s60, s60, 10")
        k("s_add_u32 s60, s60, 0x%x" % WS_HP)
        for q in range(4):
            k("buffer_store_dwordx2 %s, v%d, s[20:23], s60 offen offset:%d" % (vr(RES + 2 * q, 2), T + 7, (q >> 1) * 1024 + (q & 1) * 512))
        k("v_mov_b32 v%d, 0x3f803f80" % T)
        for i in range(4):
            k("v_mov_b32 v%d, 0" % (T + 2 + i))
        for r in range(8):
            k("v_dot2c_f32_bf16 v%d, v%d, v%d" % (T + 2 + (r & 1), RES + r, T))
            k("v_dot2c_f32_bf16 v%d, v%d, v%d" % (T + 4 + (r & 1), RES + r, RES + r))
        k("s_nop 4")
        k("v_add_f32 v%d, v%d, v%d" % (T + 2, T + 2, T + 3))
        k("v_add_f32 v%d, v%d, v%d" % (T + 3, T + 4, T + 5))
        k("v_mov_b32 v%d, v%d" % (T + 4, T + 2))
        k("v_mov_b32 v%d, v%d" % (T + 5, T + 3))
        k("s_nop 1")
        k("v_permlane32_swap_b32 v%d, v%d" % (T + 2, T + 4))
        k("v_permlane32_swap_b32 v%d, v%d" % (T + 3, T + 5))
        k("s_nop 1")
        k("v_add_f32 v%d, v%d, v%d" % (T + 2, T + 2, T + 4))
        k("v_add_f32 v%d, v%d, v%d" % (T + 3, T + 3, T + 5))
        k("v_lshlrev_b32 v%d, 7, v13" % (T + 6))
        k("s_lshl_b32 s60, s49, 1")
        k("s_add_u32 s60, s60, s57")
        k("s_lshl_b32 s60, s60, 3")
        k("s_add_u32 s60, s60, 0x%x" % WS_ST)
        k("v_cmp_gt_u32 vcc, 32, v1")
        k("s_and_saveexec_b64 s[62:63], vcc")
        k("buffer_store_dwordx2 %s, v%d, s[20:23], s60 offen" % (vr(T + 2, 2), T + 6))
        k("s_mov_b64 exec, s[62:63]")
    k.ts(13)
    k.ts_flush(14)
    k.lab(end)
    return k


def gen_C():
    return gen_gemm64("wo_kernel", WS_O, 1024, 32, 512, ('karg', 0), ('ws', WS_H), stats=True)


def gen_E():
    S = int(os.environ.get("ES", "4"))
    NKS = 86
    NC = (NKS + 7) // 8
    k = Kern("down_kernel", 128, 256, 256, S * 32768)
    end = k.newlab("end")
    k("s_cmp_ge_u32 s2, 256")
    k("s_cbranch_scc1 %s" % end)
    k.ts(0)
    k("s_load_dwordx2 s[32:33], s[0:1], 88")
    k("s_load_dwordx2 s[28:29], s[0:1], 72")
    k("v_and_b32 v1, 63, v0")
    k("v_lshrrev_b32 v2, 6, v0")
    k("s_nop 1")
    k("v_readfirstlane_b32 s3, v2")
    k("s_and_b32 s48, s2, 7")
    k("s_lshl_b32 s48, s48, 2")
    k("s_bfe_u32 s49, s2, 0x20003")
    k("s_add_u32 s48, s48, s49")
    k("s_lshr_b32 s49, s2, 5")
    k("s_and_b32 s56, s3, 1")
    k("s_lshr_b32 s57, s3, 1")
    k("v_lshlrev_b32 v4, 4, v1")
    k("s_lshl_b32 s50, s56, 13")
    k("s_lshl_b32 s51, s57, 12")
    k("s_add_u32 s50, s50, s51")
    k("s_lshl_b32 s52, s48, 1")
    k("s_add_u32 s52, s52, s56")
    k("s_mul_i32 s52, s52, %d" % (NKS * 1024))
    k("s_add_u32 s52, s52, s51")
    k("s_add_u32 s52, s52, 0x%x" % WS_ACT)
    k("s_lshl_b32 s53, s3, 12")
    k("s_mul_i32 s55, s49, %d" % (NKS * 2048))
    k("s_add_u32 s55, s55, s53")
    k("s_add_u32 s55, s55, 0x%x" % WS_WD)
    k("s_add_u32 s53, s53, 16384")
    k("s_lshl_b32 s58, s48, 6")
    k("s_lshl_b32 s59, s56, 5")
    k("s_add_u32 s58, s58, s59")
    k("v_and_b32 v13, 31, v1")
    k("v_add_u32 v13, s58, v13")
    k("v_lshrrev_b32 v8, 5, v1")
    k("v_lshlrev_b32 v12, 3, v8")
    k("v_lshl_add_u32 v12, v13, 10, v12")
    k("s_lshl_b32 s59, s49, 7")
    k("s_lshl_b32 s60, s57, 6")
    k("s_add_u32 s59, s59, s60")
    k("s_add_u32 s60, s59, 0x%x" % WS_H)
    k("s_waitcnt lgkmcnt(0)")
    k.srd(20, 32, WS_SIZE)
    k.srd(16, 28, 2048 * 1024)
    ACC, RES, FR = 32, 48, 64
    for q in range(4):
        k("buffer_load_dwordx2 %s, v12, s[20:23], s60 offen offset:%d" % (vr(RES + 2 * q, 2), 16 * q))

    def issue(c):
        st = (c % S) * 32768
        for j in range(4):
            k("s_add_u32 m0, s50, %d" % (st + j * 1024))
            k("s_add_u32 s54, s52, %d" % (c * 8192 + j * 1024))
            k("buffer_load_dwordx4 v4, s[20:23], s54 offen lds")
        for j in range(4):
            k("s_add_u32 m0, s53, %d" % (st + j * 1024))
            k("s_add_u32 s54, s55, %d" % (c * 16384 + j * 1024))
            k("buffer_load_dwordx4 v4, s[20:23], s54 offen lds")
    for c in range(S - 1):
        issue(c)
    k("s_lshl_b32 s61, s56, 13")
    k("s_lshl_b32 s62, s57, 10")
    k("s_add_u32 s62, s62, 16384")
    for i in range(3):
        k("v_add_u32 v%d, s61, v4" % (16 + i))
        k("v_add_u32 v%d, s62, v4" % (20 + i))
        k("s_add_u32 s61, s61, 65536")
        k("s_add_u32 s62, s62, 65536")

    def rd(g):
        c, ks = g // 8, g % 8
        st = (c % S) * 32768
        ob, oa = st + ks * 1024, st + ks * 2048
        k("ds_read_b128 %s, v%d offset:%d" % (vr(FR + 8 * (g % 4), 4), 20 + st // 65536, oa % 65536))
        k("ds_read_b128 %s, v%d offset:%d" % (vr(FR + 8 * (g % 4) + 4, 4), 16 + st // 65536, ob % 65536))
    for c in range(NC):
        n = min(8, NKS - 8 * c)
        later = 8 * (min(c + S - 1, NC) - (c + 1))
        k("s_waitcnt vmcnt(%d)" % later)
        k("s_barrier")
        if c < 11: k.ts(1 + c)
        for ks in range(3):
            rd(8 * c + ks)
        if c + S - 1 < NC:
            issue(c + S - 1)
        for ks in range(n):
            g = 8 * c + ks
            k("s_waitcnt lgkmcnt(%d)" % (2 * min(2, n - 1 - ks)))
            k("v_mfma_f32_32x32x16_bf16 %s, %s, %s, %s" % (vr(ACC, 16), vr(FR + 8 * (g % 4), 4), vr(FR + 8 * (g % 4) + 4, 4), "0" if g == 0 else vr(ACC, 16)))
            if ks + 3 < n:
                rd(g + 3)
    k.ts(12)
    k("s_nop 15")
    BF = FR
    for q in range(4):
        for d in range(2):
            r = RES + 2 * q + d
            k("v_lshlrev_b32 v%d, 16, v%d" % (BF + 32, r))
            k("v_and_b32 v%d, 0xffff0000, v%d" % (BF + 33, r))
            k("v_add_f32 v%d, v%d, v%d" % (ACC + 4 * q + 2 * d, ACC + 4 * q + 2 * d, BF + 32))
            k("v_add_f32 v%d, v%d, v%d" % (ACC + 4 * q + 2 * d + 1, ACC + 4 * q + 2 * d + 1, BF + 33))
    for r in range(8):
        k("v_cvt_pk_bf16_f32 v%d, v%d, v%d" % (RES + r, ACC + 2 * r, ACC + 2 * r + 1))
    for q in range(4):
        k("buffer_store_dwordx2 %s, v12, s[16:19], s59 offen offset:%d" % (vr(RES + 2 * q, 2), 16 * q))
    k.ts(13)
    k.ts_flush(14)
    k.lab(end)
    return k


class VM:
    def __init__(s, k):
        s.k = k
        s.n = 0
    def issue(s):
        s.n += 1
        return s.n
    def wait(s, tok):
        if os.environ.get("EXP", "") == "nomem":
            return
        s.k("s_waitcnt vmcnt(%d)" % min(63, s.n - tok))


def gen_D():
    S = 10
    CH = 16384
    NCH = 12
    k = Kern("ffn1_kernel", 288, 256, 256, S * CH, accum=256)
    vm = VM(k)
    end = k.newlab("end")
    k("s_cmp_ge_u32 s2, 256")
    k("s_cbranch_scc1 %s" % end)
    k.ts(0)
    k("s_load_dwordx2 s[32:33], s[0:1], 88")
    k("v_and_b32 v1, 63, v0")
    k("v_lshrrev_b32 v2, 6, v0")
    k("s_nop 1")
    k("v_readfirstlane_b32 s3, v2")
    k("s_bfe_u32 s48, s2, 0x20001")
    k("s_lshl_b32 s48, s48, 2")
    k("s_bfe_u32 s49, s2, 0x20003")
    k("s_add_u32 s48, s48, s49")
    k("s_and_b32 s49, s2, 1")
    k("s_lshl_b32 s49, s49, 3")
    k("s_lshr_b32 s50, s2, 5")
    k("s_add_u32 s49, s49, s50")
    k("s_cmp_ge_u32 s49, 15")
    k("s_cbranch_scc1 %s" % end)
    k("v_and_b32 v2, 31, v1")
    k("v_lshrrev_b32 v3, 5, v1")
    k("s_lshl_b32 s50, s3, 5")
    k("s_lshl_b32 s51, s48, 7")
    k("s_add_u32 s50, s50, s51")
    k("v_add_u32 v2, s50, v2")
    k("s_lshl_b32 s57, s50, 10")
    k("v_lshlrev_b32 v6, 7, v2")
    k("v_lshl_add_u32 v6, v3, 6, v6")
    k("v_lshlrev_b32 v7, 4, v1")
    k("v_add_u32 v8, 0x10000, v7")
    k("v_add_u32 v9, 0x20000, v7")
    k("s_lshl_b32 s52, s3, 10")
    k("v_add_u32 v4, s52, v7")
    k("s_mul_i32 s53, s49, 196608")
    k("s_add_u32 s53, s53, 0x%x" % WS_WG)
    k("s_mov_b32 s55, 0x%x" % WS_ST)
    k("s_add_u32 s57, s57, 0x%x" % WS_HP)
    k("s_waitcnt lgkmcnt(0)")
    k.srd(20, 32, WS_SIZE)
    ACC, B, T = 16, 112, 240
    order = []
    for ks in range(KS1):
        for t in range(6):
            order.append((t, ks))
    for p in range(3):
        for ks in range(KS1, 32):
            order.append((p, ks))
            order.append((p + 3, ks))
    assert len(order) == 192
    tokA, tokB = {}, {}

    NOMEM = os.environ.get("EXP", "") == "nomem"
    vq = []

    def opA(c, j):
        def f():
            if NOMEM:
                tokA[c] = 0
                return
            k("s_add_u32 m0, s52, %d" % ((c % S) * CH + j * 4096))
            k("s_add_u32 s54, s53, %d" % (c * CH + j * 4096))
            k("buffer_load_dwordx4 v4, s[20:23], s54 offen lds")
            tokA[c] = vm.issue()
        return f

    def opB(g):
        def f():
            if NOMEM:
                tokB[g] = 0
                return
            k("s_add_u32 s56, s57, %d" % (g * 1024))
            k("buffer_load_dwordx4 %s, v7, s[20:23], s56 offen" % vr(B + 4 * g, 4))
            tokB[g] = vm.issue()
        return f
    nb = 0
    for c in range(NCH):
        need = max(ks for (t, ks) in order[:min(192, (c + 1) * 16 + 8)]) + 1
        while nb < need:
            vq.append((c, opB(nb))); nb += 1
        for j in range(4):
            vq.append((c, opA(c, j)))
    W = int(os.environ.get("W", "3"))

    def vflush(c):
        while vq and vq[0][0] <= c:
            vq.pop(0)[1]()

    def vstep(cur_chunk_x16):
        if vq and vq[0][0] * 16 <= cur_chunk_x16 + W * 16:
            vq.pop(0)[1]()
    for q in range(4):
        k("buffer_load_dwordx4 %s, v6, s[20:23], s55 offen offset:%d" % (vr(ACC + 4 * q, 4), 16 * q))
        tokS = vm.issue()
    vflush(W - 1)
    k.ts(1)
    vm.wait(tokS)
    for i in range(2, 8):
        k("v_add_f32 v%d, v%d, v%d" % (ACC + (i & 1), ACC + (i & 1), ACC + 2 * (i // 2) * 1 + (i & 1)) if False else "")
    for st in (8, 4, 2):
        for i in range(st):
            k("v_add_f32 v%d, v%d, v%d" % (ACC + i, ACC + i, ACC + i + st))
    k("v_mov_b32 v%d, v%d" % (ACC + 2, ACC))
    k("v_mov_b32 v%d, v%d" % (ACC + 3, ACC + 1))
    k("s_nop 1")
    k("v_permlane32_swap_b32 v%d, v%d" % (ACC, ACC + 2))
    k("v_permlane32_swap_b32 v%d, v%d" % (ACC + 1, ACC + 3))
    k("s_nop 1")
    k("v_add_f32 v%d, v%d, v%d" % (ACC, ACC, ACC + 2))
    k("v_add_f32 v%d, v%d, v%d" % (ACC + 1, ACC + 1, ACC + 3))
    k("v_mul_f32 v%d, %s, v%d" % (ACC, f32hex(1.0 / 512), ACC))
    k("v_mul_f32 v%d, %s, v%d" % (ACC + 1, f32hex(1.0 / 512), ACC + 1))
    k("v_fma_f32 v%d, -v%d, v%d, v%d" % (ACC + 1, ACC, ACC, ACC + 1))
    k("v_add_f32 v%d, %s, v%d" % (ACC + 1, f32hex(1e-5), ACC + 1))
    k("v_rsq_f32 v12, v%d" % (ACC + 1))
    k("s_nop 1")
    k("v_mov_b32 v13, v12")
    k("v_mul_f32 v14, v%d, v12" % ACC)
    k("v_xor_b32 v14, 0x80000000, v14")
    k("v_mov_b32 v15, v14")
    k("v_and_b32 v10, 31, v1")
    k("v_lshlrev_b32 v10, 4, v10")
    k("v_lshl_add_u32 v10, v3, 3, v10")
    k("s_lshr_b32 s59, s50, 5")
    k("s_mul_i32 s59, s59, 86")
    k("s_mul_i32 s58, s49, 6")
    k("s_add_u32 s59, s59, s58")
    k("s_lshl_b32 s59, s59, 10")
    k("s_add_u32 s59, s59, 0x%x" % WS_ACT)

    from collections import deque
    fq = deque()
    normed = set()

    def q_norm(g):
        def w():
            vm.wait(tokB[g])
        fq.append(("n", g, w))
        for r in range(4):
            t0 = T + 2 * (r & 3)
            b = B + 4 * g + r
            fq.append(("n", g, "v_lshlrev_b32 v%d, 16, v%d" % (t0, b)))
            fq.append(("n", g, "v_and_b32 v%d, 0xffff0000, v%d" % (t0 + 1, b)))
            fq.append(("n", g, "v_fma_f32 v%d, v%d, v12, v14" % (t0, t0)))
            fq.append(("n", g, "v_fma_f32 v%d, v%d, v12, v14" % (t0 + 1, t0 + 1)))
            fq.append(("n", g, "v_cvt_pk_bf16_f32 v%d, v%d, v%d" % (b, t0, t0 + 1)))

    def q_epi(p):
        G, U = ACC + 16 * p, ACC + 16 * (3 + p)
        E = T + 8 if False else T
        fq.append(("e", p, "s_nop 15"))
        for r in range(0, 16, 2):
            fq.append(("e", p, "v_pk_mul_f32 v[%d:%d], v[%d:%d], v[10+X:11+X]" % (E + r, E + r + 1, G + r, G + r + 1)))
    k("s_mov_b32 s60, %s" % f32hex(-LOG2E))
    k("s_mov_b32 s61, %s" % f32hex(-LOG2E))
    k("s_mov_b32 s62, 1.0")
    k("s_mov_b32 s63, 1.0")

    def q_epi(p):
        G, U = ACC + 16 * p, ACC + 16 * (3 + p)
        E = T
        L = []
        L.append("s_nop 15")
        for r in range(16):
            L.append("v_mul_f32 v%d, s60, v%d" % (E + r, G + r))
        for r in range(16):
            L.append("v_exp_f32 v%d, v%d" % (E + r, E + r))
        for r in range(16):
            L.append("v_mul_f32 v%d, v%d, v%d" % (G + r, G + r, U + r))
        for r in range(16):
            L.append("v_add_f32 v%d, 1.0, v%d" % (E + r, E + r))
        for r in range(16):
            L.append("v_rcp_f32 v%d, v%d" % (E + r, E + r))
        for r in range(16):
            L.append("v_mul_f32 v%d, v%d, v%d" % (G + r, G + r, E + r))
        for r in range(8):
            L.append("v_cvt_pk_bf16_f32 v%d, v%d, v%d" % (G + r, G + 2 * r, G + 2 * r + 1))
        for q in range(4):
            L.append("buffer_store_dwordx2 %s, v10, s[20:23], s%d offen offset:%d" % (vr(G + 2 * q, 2), (59, 58, 64)[p], (q >> 1) * 1024 + (q & 1) * 512))
        for x in L:
            fq.append(("e", p, x))

    def emit_filler():
        kind, g, x = fq.popleft()
        if callable(x):
            x()
        else:
            if x.startswith("buffer_store"):
                vm.issue()
            EXP = os.environ.get("EXP", "")
            if EXP in ("nofill", "memonly") and x.startswith("v_"):
                return
            if EXP == "addfill" and x.startswith("v_"):
                x = "v_add_f32 v%d, 1.0, v%d" % (T + (len(k.L) % 8), T + (len(k.L) % 8))
            if EXP == "e32" and x.startswith("v_"):
                x = "v_lshlrev_b32 v%d, 16, v%d" % (T + (len(k.L) % 8), T + 8 + (len(k.L) % 8))
            k(x)

    def flush_norm(g):
        last = -1
        for i, (kind, gg, x) in enumerate(fq):
            if kind == "n" and gg <= g:
                last = i
        n = last + 1
        for _ in range(n):
            emit_filler()
        if n:
            k("s_nop 1")
    k("s_add_u32 s58, s59, 2048")
    k("s_add_u32 s64, s59, 4096")
    k("s_cmp_eq_u32 s49, 14")
    k("s_cselect_b32 s58, 0x%x, s58" % WS_DUMMY)
    k("s_cselect_b32 s64, 0x%x, s64" % WS_DUMMY)
    for g in range(32):
        q_norm(g)

    def read1(gi, j):
        c = gi // 4
        fi = gi * 4 + j
        lds = (c % S) * CH + (fi % 16) * 1024
        k("ds_read_b128 a[%d:%d], v%d offset:%d" % (16 * (gi % 2) + 4 * j, 16 * (gi % 2) + 4 * j + 3, 7 + lds // 65536, lds % 65536))

    def boundary(c):
        if TSMODE == 1 and c >= 1: k.ts(1 + c)
        vflush(c + 1)
        vm.wait(tokA[c + 1])
        if not os.environ.get("NOBAR"):
            k("s_barrier")
        if TSMODE == 2 and c >= 1: k.ts(1 + c)
    boundary(0)
    for j in range(4):
        read1(0, j)
    seen = set()
    NPER = int(os.environ.get("NPER", "4"))
    for gi in range(48):
        if gi + 1 < 48 and (gi + 1) % 8 == 0:
            boundary((gi + 1) // 4)
        for j in range(4):
            t, ks = order[gi * 4 + j]
            flush_norm(ks + 1)
            k("s_waitcnt lgkmcnt(%d)" % (3 if gi + 1 < 48 else 3 - j))
            first = t not in seen
            seen.add(t)
            if os.environ.get("EXP", "") != "memonly":
                k("v_mfma_f32_32x32x16_bf16 %s, a[%d:%d], %s, %s" % (vr(ACC + 16 * t, 16), 16 * (gi % 2) + 4 * j, 16 * (gi % 2) + 4 * j + 3, vr(B + 4 * ks, 4), "0" if first else vr(ACC + 16 * t, 16)))
            if gi + 1 < 48 and os.environ.get("EXP", "") != "memonly":
                read1(gi + 1, j)
            vstep(gi * 4 + j)
            if ks == 31 and t >= 3:
                q_epi(t - 3)
            for _ in range(NPER):
                if fq:
                    emit_filler()
    k.ts(13)
    while fq:
        emit_filler()
    k.ts_flush(14)
    k.lab(end)
    return k


def build(kerns):
    head = open("cdna_kernels/%s.s.ref" % NAME).read().split("; @launch")[0]
    out = [head.rstrip("\n")]
    for kk in kerns:
        out.append("; @launch kernel=%s grid=(%d,1,1) block=(%d,1,1) lds=%d" % (kk.name, kk.grid, kk.block, kk.lds))
    out.append('.amdgcn_target "amdgcn-amd-amdhsa--gfx950"')
    out.append(".text")
    for kk in kerns:
        out.append(kk.text())
    out.append('.section .rodata,"a"')
    for kk in kerns:
        out.append(".p2align 6")
        out.append(kk.desc())
    return "\n".join(out) + "\n"


def main():
    which = sys.argv[1] if len(sys.argv) > 1 else "ABCDE"
    gens = {"A": gen_A}
    for nm in "BCDE":
        if "gen_" + nm in globals():
            gens[nm] = globals()["gen_" + nm]
    kerns = [gens[c]() for c in which if c in gens]
    txt = build(kerns)
    open("cdna_kernels/%s.s" % NAME, "w").write(txt)
    print("wrote", len(txt), "bytes;", [kk.name for kk in kerns])


if __name__ == "__main__":
    main()
```

```python
import sys, re

NAME = "sequential_preLN__grouped_kv_mqa__swiglu_ffn__prompt"

WS_Q = 0x000000
WS_K = 0x200000
WS_V = 0x210000
WS_CS = 0x220000
WS_KM = 0x228000
WS_O = 0x300000
WS_H = 0x500000
WS_ACT = 0x800000
ACT_LD = 2816
WS_ST = 0x230000
WS_WG = 0x1000000
WS_WD = 0x1400000
WS_WO = 0x1600000
WS_HP = 0x1800000
WS_DUMMY = 0x2000000
KS1 = int(__import__("os").environ.get("KS1", "16"))
WS_SIZE = 268435456
import os
DEBUG_TS = bool(os.environ.get('TS'))
TSMODE = int(os.environ.get('TS', '0'))
SRD3 = "0x00020000"
LOG2E = 1.4426950408889634


def f32hex(x):
    import struct
    return "0x%08x" % struct.unpack("<I", struct.pack("<f", x))[0]


class Kern:
    def __init__(s, name, nvgpr, block, grid, lds, accum=None):
        s.name = name
        s.L = []
        s.nvgpr = nvgpr
        s.block = block
        s.grid = grid
        s.lds = lds
        s.accum = accum if accum is not None else nvgpr
        s.nlab = 0
        s.tsb = 70
        s.kidx = {"attn_kernel": 1, "wo_kernel": 2, "ffn1_kernel": 3, "down_kernel": 4}.get(name, 0)

    def __call__(s, txt):
        for t in txt.split("\n"):
            t = t.strip()
            if t:
                m = re.search(r"offset:(\d+)", t)
                if m:
                    lim = 4095 if t.startswith("buffer") else 65535
                    assert int(m.group(1)) <= lim, t
                if t.startswith("buffer_store") and os.environ.get("STMOD"):
                    t = t + " " + os.environ["STMOD"]
                s.L.append("    " + t)

    def lab(s, l):
        s.L.append(l + ":")

    def newlab(s, p):
        s.nlab += 1
        return "%s_%s%d" % (s.name.replace("_kernel", "")[:8], p, s.nlab)

    def srd(s, reg, preg, size):
        s("s_mov_b32 s%d, s%d" % (reg, preg))
        s("s_and_b32 s%d, s%d, 0xffff" % (reg + 1, preg + 1))
        s("s_mov_b32 s%d, 0x%x" % (reg + 2, size))
        s("s_mov_b32 s%d, %s" % (reg + 3, SRD3))

    def ts(s, idx):
        if not DEBUG_TS:
            return
        if TSMODE == 3:
            if idx == 0:
                s("s_memrealtime s[100:101]")
            return
        s("s_memtime s[%d:%d]" % (s.tsb + 2 * idx, s.tsb + 1 + 2 * idx))
        if idx == 0:
            s("s_memrealtime s[100:101]")

    def ts_flush(s, n):
        if not DEBUG_TS:
            return
        if TSMODE == 3:
            lab = s.newlab("nots")
            s("s_waitcnt vmcnt(0)")
            s("s_memrealtime s[72:73]")
            s("s_waitcnt lgkmcnt(0)")
            s("s_cmp_lg_u32 s3, 0")
            s("s_cbranch_scc1 %s" % lab)
            s("s_lshl_b32 s69, s2, 3")
            s("s_add_u32 s69, s69, 0x%x" % (0x1F00000 + 4096 * s.kidx))
            s("v_mov_b32 v0, 0")
            s("v_mov_b32 v2, s100")
            s("v_mov_b32 v3, s72")
            s("s_mov_b64 exec, 1")
            s("buffer_store_dwordx2 v[2:3], v0, s[20:23], s69 offen")
            s("s_mov_b64 exec, -1")
            s.lab(lab)
            return
        lab = s.newlab("nots")
        s("s_memrealtime s[64:65]")
        s("s_waitcnt lgkmcnt(0)")
        s("s_sub_u32 s67, s2, 100")
        s("s_cmp_ge_u32 s67, 4")
        s("s_cbranch_scc1 %s" % lab)
        s("s_cmp_lg_u32 s3, 0")
        s("s_cbranch_scc1 %s" % lab)
        s("s_load_dwordx2 s[96:97], s[0:1], 80")
        s("s_waitcnt lgkmcnt(0)")
        s("s_mov_b32 s98, 256")
        s("s_mov_b32 s99, 0x00020000")
        s("s_lshl_b32 s69, s67, 6")
        s("v_mov_b32 v0, 0")
        for i in range(n):
            s("s_sub_u32 s68, s%d, s%d" % (s.tsb + 2 * i, s.tsb))
            s("v_mov_b32 v1, s68")
            s("buffer_store_dword v1, v0, s[96:99], s69 offen offset:%d" % (4 * i))
            s("s_nop 2")
        s("s_sub_u32 s68, s64, s100")
        s("v_mov_b32 v1, s68")
        s("buffer_store_dword v1, v0, s[96:99], s69 offen offset:60")
        s.lab(lab)

    def text(s):
        out = []
        out.append(".globl %s" % s.name)
        out.append(".p2align 8")
        out.append(".type %s,@function" % s.name)
        out.append("%s:" % s.name)
        out += s.L
        out.append("    s_endpgm")
        return "\n".join(out)

    def desc(s):
        return "\n".join([
            ".amdhsa_kernel %s" % s.name,
            "  .amdhsa_next_free_vgpr %d" % s.nvgpr,
            "  .amdhsa_next_free_sgpr 102",
            "  .amdhsa_accum_offset %d" % s.accum,
            "  .amdhsa_group_segment_fixed_size 0",
            "  .amdhsa_kernarg_size 96",
            "  .amdhsa_user_sgpr_count 2",
            "  .amdhsa_user_sgpr_kernarg_segment_ptr 1",
            "  .amdhsa_system_sgpr_workgroup_id_x 1",
            ".end_amdhsa_kernel"])


def vr(a, n=1):
    return "v%d" % a if n == 1 else "v[%d:%d]" % (a, a + n - 1)


def sr(a, n=1):
    return "s%d" % a if n == 1 else "s[%d:%d]" % (a, a + n - 1)


def gen_A():
    k = Kern(NAME + "_kernel", 256, 256, 256, 163840)
    end = k.newlab("end")
    k("s_cmp_ge_u32 s2, 256")
    k("s_cbranch_scc1 %s" % end)
    k.ts(0)
    k("s_load_dwordx8 s[24:31], s[0:1], 0")
    k("s_load_dwordx2 s[32:33], s[0:1], 88")
    k("v_and_b32 v1, 63, v0")
    k("v_lshrrev_b32 v2, 6, v0")
    k("s_nop 1")
    k("v_readfirstlane_b32 s3, v2")
    k("s_and_b32 s48, s2, 7")
    k("s_lshl_b32 s48, s48, 2")
    k("s_bfe_u32 s49, s2, 0x20003")
    k("s_add_u32 s48, s48, s49")
    k("s_lshr_b32 s49, s2, 5")
    k("v_lshrrev_b32 v3, 4, v1")
    k("s_lshl_b32 s50, s3, 2")
    k("v_add_u32 v3, s50, v3")
    k("v_and_b32 v4, 15, v1")
    k("v_xor_b32 v4, v4, v3")
    k("v_lshlrev_b32 v4, 4, v4")
    k("s_lshl_b32 s51, s48, 6")
    k("v_add_u32 v3, s51, v3")
    k("v_lshl_add_u32 v4, v3, 10, v4")
    k("v_lshrrev_b32 v3, 3, v1")
    k("s_lshl_b32 s50, s3, 3")
    k("v_add_u32 v3, s50, v3")
    k("v_and_b32 v5, 7, v1")
    k("v_bfe_u32 v6, v1, 4, 1")
    k("v_lshlrev_b32 v6, 2, v6")
    k("v_xor_b32 v5, v5, v6")
    k("v_lshlrev_b32 v5, 4, v5")
    k("v_lshl_add_u32 v5, v3, 10, v5")
    k("s_lshl_b32 s50, s49, 7")
    k("v_add_u32 v5, s50, v5")
    k("v_lshlrev_b32 v6, 4, v1")
    k("s_lshl_b32 s52, s3, 10")
    k("s_and_b32 s56, s3, 1")
    k("s_lshr_b32 s57, s3, 1")
    k("s_lshl_b32 s62, s56, 11")
    k("s_and_b32 s50, s48, 7")
    k("s_lshl_b32 s63, s57, 8")
    k("s_or_b32 s50, s50, s63")
    k("s_cmp_eq_u32 s50, s49")
    k("s_cselect_b32 s53, 1, 0")
    k("s_waitcnt lgkmcnt(0)")
    k.srd(4, 24, 2048 * 512 * 2)
    for c in range(4):
        for j in range(4):
            k("s_add_u32 m0, s52, %d" % (c * 16384 + j * 4096))
            k("s_mov_b32 s54, %d" % (j * 16 * 1024 + c * 256))
            k("buffer_load_dwordx4 v4, s[4:7], s54 offen lds")
    k.srd(8, 26, 512 * 512 * 2)
    k.srd(12, 28, 512 * 16 * 2)
    k.srd(16, 30, 512 * 16 * 2)
    k.srd(20, 32, WS_SIZE)
    k.ts(1)
    k("v_and_b32 v7, 31, v1")
    k("s_lshl_b32 s58, s56, 5")
    k("v_add_u32 v7, s58, v7")
    k("v_lshrrev_b32 v8, 5, v1")
    k("v_and_b32 v9, 15, v7")
    k("v_xor_b32 v9, v9, v8")
    k("v_lshlrev_b32 v9, 4, v9")
    k("v_lshl_add_u32 v9, v7, 8, v9")
    XA = 16
    for ks in range(8):
        k("v_xor_b32 v%d, %d, v9" % (XA + ks, ks * 32))
    k("v_lshrrev_b32 v7, 5, v1")
    k("v_lshlrev_b32 v7, 3, v7")
    k("v_bfe_u32 v10, v1, 2, 2")
    k("v_add_u32 v7, v7, v10")
    k("v_bfe_u32 v10, v1, 4, 1")
    k("v_lshlrev_b32 v10, 5, v10")
    k("v_and_b32 v11, 3, v1")
    k("v_lshl_add_u32 v10, v11, 3, v10")
    k("s_lshl_b32 s58, s57, 6")
    k("v_add_u32 v10, s58, v10")
    k("v_bfe_u32 v11, v1, 3, 1")
    k("v_lshlrev_b32 v11, 6, v11")
    k("v_xor_b32 v10, v10, v11")
    k("v_lshl_add_u32 v10, v7, 7, v10")
    k("v_add_u32 v10, 0x10000, v10")
    k("v_and_b32 v11, 3, v1")
    k("v_lshlrev_b32 v11, 3, v11")
    k("v_lshl_add_u32 v11, v7, 5, v11")
    k("v_bfe_u32 v12, v1, 4, 1")
    k("v_lshl_add_u32 v11, v12, 14, v11")
    k("v_add_u32 v11, 0x20000, v11")
    ONES = 24
    for i in range(4):
        k("v_mov_b32 v%d, 0x3f803f80" % (ONES + i))
    S1, S2 = 28, 29
    for i in range(4):
        k("v_mov_b32 v%d, 0" % (28 + i))
    ACC, CS, ACC2, CS2 = 32, 48, 64, 80
    BF, AF, AK = 96, 224, 240
    done = k.newlab("done")
    kvp = k.newlab("kvp")
    k("s_cmp_lg_u32 s53, 0")
    k("s_cbranch_scc1 %s" % kvp)

    def body(kv):
        nW = 8 if kv else 4

        def issueW(c):
            for j in range(4):
                k("s_add_u32 m0, s52, %d" % (65536 + c * 16384 + j * 4096))
                k("s_mov_b32 s54, %d" % ((c * 128 + 32 * j) * 1024))
                k("buffer_load_dwordx4 v5, s[8:11], s54 offen lds")
            if kv:
                for (srdn, base) in ((12, 131072), (16, 147456)):
                    for j in range(2):
                        k("s_add_u32 s54, s62, %d" % (c * 4096 + j * 1024))
                        k("s_add_u32 m0, s54, %d" % base)
                        k("buffer_load_dwordx4 v6, s[%d:%d], s54 offen lds" % (srdn, srdn + 3))
        for c in range(4):
            k("s_waitcnt vmcnt(%d)" % (4 * (3 - c) + c * nW))
            k("s_barrier")
            if not kv: k.ts(2 + c)
            for ks in range(8):
                k("ds_read_b128 %s, v%d offset:%d" % (vr(BF + 4 * (8 * c + ks), 4), XA + ks, c * 16384))
            issueW(c)
            for ks in range(8):
                k("s_waitcnt lgkmcnt(%d)" % (7 - ks))
                for q in range(4):
                    b = BF + 4 * (8 * c + ks) + q
                    k("v_dot2c_f32_bf16 v%d, v%d, v%d" % (28 + 2 * (q & 1), b, ONES))
                    k("v_dot2c_f32_bf16 v%d, v%d, v%d" % (29 + 2 * (q & 1), b, b))

        def rdA(g):
            c, ks = g // 8, g % 8
            k("ds_read_b64_tr_b16 %s, v10 offset:%d" % (vr(AF + 4 * (g % 4), 2), c * 16384 + ks * 2048))
            k("ds_read_b64_tr_b16 %s, v10 offset:%d" % (vr(AF + 4 * (g % 4) + 2, 2), c * 16384 + ks * 2048 + 512))
            if kv:
                k("ds_read_b64_tr_b16 %s, v11 offset:%d" % (vr(AK + 4 * (g % 4), 2), (c * 128 + ks * 16) * 32))
                k("ds_read_b64_tr_b16 %s, v11 offset:%d" % (vr(AK + 4 * (g % 4) + 2, 2), (c * 128 + ks * 16 + 4) * 32))
        nr = 4 if kv else 2
        for c in range(4):
            k("s_waitcnt vmcnt(%d)" % ((3 - c) * nW))
            k("s_barrier")
            if not kv: k.ts(6 + c)
            for ks in range(3):
                rdA(8 * c + ks)
            if c == 0:
                k("v_add_f32 v28, v28, v30")
                k("v_add_f32 v29, v29, v31")
                k("v_mov_b32 v30, v28")
                k("v_mov_b32 v31, v29")
                k("s_nop 1")
                k("v_permlane32_swap_b32 v28, v30")
                k("v_permlane32_swap_b32 v29, v31")
                k("s_nop 1")
                k("v_add_f32 v28, v28, v30")
                k("v_add_f32 v29, v29, v31")
                k("v_mul_f32 v%d, %s, v%d" % (S1, f32hex(1.0 / 512), S1))
                k("v_mul_f32 v%d, %s, v%d" % (S2, f32hex(1.0 / 512), S2))
                k("v_fma_f32 v%d, -v%d, v%d, v%d" % (S2, S1, S1, S2))
                k("v_add_f32 v%d, %s, v%d" % (S2, f32hex(1e-5), S2))
                k("v_rsq_f32 v%d, v%d" % (S2, S2))
                k("s_nop 1")
                k("v_mul_f32 v30, %s, v%d" % (f32hex(0.25 * LOG2E), S2))
            for ks in range(8):
                g = 8 * c + ks
                ahead = min(2, 7 - ks)
                k("s_waitcnt lgkmcnt(%d)" % (ahead * nr))
                first = g == 0
                k("v_mfma_f32_32x32x16_bf16 %s, %s, %s, %s" % (vr(ACC, 16), vr(AF + 4 * (g % 4), 4), vr(BF + 4 * g, 4), "0" if first else vr(ACC, 16)))
                if ks + 3 < 8:
                    rdA(g + 3)
                k("v_mfma_f32_32x32x16_bf16 %s, %s, %s, %s" % (vr(CS, 16), vr(AF + 4 * (g % 4), 4), vr(ONES, 4), "0" if first else vr(CS, 16)))
                if kv:
                    k("v_mfma_f32_32x32x16_bf16 %s, %s, %s, %s" % (vr(ACC2, 16), vr(AK + 4 * (g % 4), 4), vr(BF + 4 * g, 4), "0" if first else vr(ACC2, 16)))
                    k("v_mfma_f32_32x32x16_bf16 %s, %s, %s, %s" % (vr(CS2, 16), vr(AK + 4 * (g % 4), 4), vr(ONES, 4), "0" if first else vr(CS2, 16)))
    body(False)
    k("s_branch %s" % done)
    k.lab(kvp)
    body(True)
    k.lab(done)
    k.ts(10)
    k("v_and_b32 v7, 31, v1")
    k("s_lshl_b32 s58, s56, 5")
    k("s_add_u32 s58, s58, s51")
    k("v_add_u32 v7, s58, v7")
    k("v_lshrrev_b32 v8, 5, v1")
    k("v_lshlrev_b32 v9, 3, v8")
    k("v_lshl_add_u32 v12, v7, 10, v9")
    k("s_lshl_b32 s59, s49, 7")
    k("s_lshl_b32 s60, s57, 6")
    k("s_add_u32 s59, s59, s60")
    k("s_add_u32 s59, s59, 0x%x" % WS_Q)
    k("s_nop 15")
    TQ = 224
    for r in range(16):
        k("v_fma_f32 v%d, -v%d, v%d, v%d" % (ACC + r, S1, CS + r, ACC + r))
    for r in range(16):
        k("v_mul_f32 v%d, v30, v%d" % (ACC + r, ACC + r))
    for r in range(8):
        k("v_cvt_pk_bf16_f32 v%d, v%d, v%d" % (TQ + r, ACC + 2 * r, ACC + 2 * r + 1))
    for q in range(4):
        k("buffer_store_dwordx2 %s, v12, s[20:23], s59 offen offset:%d" % (vr(TQ + 2 * q, 2), 16 * q))
    k.ts(11)
    k.ts_flush(12)
    k("s_cmp_eq_u32 s53, 0")
    k("s_cbranch_scc1 %s" % end)
    ACC, CS = ACC2, CS2
    for r in range(16):
        k("v_fma_f32 v%d, -v%d, v%d, v%d" % (ACC + r, S1, CS + r, ACC + r))
    for r in range(16):
        k("v_mul_f32 v%d, v%d, v%d" % (ACC + r, S2, ACC + r))
    for r in range(8):
        k("v_cvt_pk_bf16_f32 v%d, v%d, v%d" % (CS + r, ACC + 2 * r, ACC + 2 * r + 1))
    k("v_mov_b32 v14, 0")
    for i in range(4):
        k("v_dot2c_f32_bf16 v14, v%d, v%d" % (CS + i, CS + i))
    k("s_nop 4")
    k("v_mov_b32 v15, v14")
    k("s_nop 1")
    k("v_permlane32_swap_b32 v14, v15")
    k("s_nop 1")
    k("v_add_f32 v14, v14, v15")
    k("s_nop 1")
    for r in (8, 4, 2, 1):
        k("v_max_f32_dpp v14, v14, v14 row_ror:%d row_mask:0xf bank_mask:0xf" % r)
        k("s_nop 1")
    k("v_readlane_b32 s60, v14, 0")
    k("v_readlane_b32 s61, v14, 16")
    k("s_nop 3")
    k("s_max_u32 s60, s60, s61")
    k("v_mov_b32 v14, s60")
    k("v_mov_b32 v15, 0")
    k("s_lshl_b32 s61, s48, 1")
    k("s_add_u32 s61, s61, s56")
    k("s_lshl_b32 s61, s61, 2")
    k("s_add_u32 s61, s61, 0x%x" % WS_KM)
    k("s_mov_b64 exec, 1")
    k("buffer_store_dword v14, v15, s[20:23], s61 offen")
    k("s_mov_b64 exec, -1")
    k("v_and_b32 v13, 31, v1")
    k("v_lshlrev_b32 v13, 4, v13")
    k("v_lshl_add_u32 v13, v8, 3, v13")
    k("s_lshl_b32 s59, s48, 1")
    k("s_add_u32 s59, s59, s56")
    k("s_lshl_b32 s59, s59, 10")
    k("s_add_u32 s59, s59, 0x%x" % WS_K)
    k("buffer_store_dwordx2 %s, v13, s[20:23], s59 offen" % vr(CS, 2))
    k("buffer_store_dwordx2 %s, v13, s[20:23], s59 offen offset:512" % vr(CS + 2, 2))
    k("v_lshrrev_b32 v13, 4, v7")
    k("v_lshlrev_b32 v13, 9, v13")
    k("v_bfe_u32 v14, v7, 2, 1")
    k("v_lshl_add_u32 v13, v14, 8, v13")
    k("v_bfe_u32 v14, v7, 3, 1")
    k("v_lshl_add_u32 v13, v14, 3, v13")
    k("v_and_b32 v14, 3, v7")
    k("v_lshl_add_u32 v13, v14, 1, v13")
    k("v_lshl_add_u32 v13, v8, 6, v13")
    k("s_mov_b32 s59, 0x%x" % WS_V)
    for r in range(8, 16):
        d = (r & 3) + 8 * ((r >> 2) - 2)
        src = CS + r // 2
        op = "buffer_store_short" if r % 2 == 0 else "buffer_store_short_d16_hi"
        k("%s v%d, v13, s[20:23], s59 offen offset:%d" % (op, src, d * 16))
    k.lab(end)
    return k


def gen_B():
    k = Kern("attn_kernel", 128, 1024, 256, 163840)
    end = k.newlab("end")
    k("s_cmp_ge_u32 s2, 256")
    k("s_cbranch_scc1 %s" % end)
    k.tsb = 4
    k.ts(0)
    k("s_load_dwordx2 s[32:33], s[0:1], 88")
    k("s_load_dwordx4 s[36:39], s[0:1], 48")
    k("s_load_dwordx2 s[40:41], s[0:1], 64")
    k("s_load_dwordx2 s[42:43], s[0:1], 32")
    k("v_and_b32 v1, 63, v0")
    k("v_lshrrev_b32 v2, 6, v0")
    k("s_nop 1")
    k("v_readfirstlane_b32 s3, v2")
    k("v_and_b32 v2, 31, v1")
    k("v_lshlrev_b32 v2, 5, v2")
    k("v_lshrrev_b32 v3, 5, v1")
    k("v_lshl_add_u32 v2, v3, 4, v2")
    k("v_lshlrev_b32 v8, 4, v1")
    k("s_and_b32 s48, s3, 7")
    k("s_lshr_b32 s49, s3, 3")
    k("s_lshl_b32 s50, s2, 3")
    k("s_add_u32 s50, s50, s48")
    k("s_lshl_b32 s51, s50, 10")
    k("s_add_u32 s51, s51, 0x%x" % WS_Q)
    k("s_lshr_b32 s52, s3, 3")
    k("s_lshl_b32 s52, s52, 15")
    k("s_and_b32 s53, s3, 7")
    k("s_lshl_b32 s53, s53, 10")
    k("s_add_u32 s52, s52, s53")
    k("s_waitcnt lgkmcnt(0)")
    k.srd(20, 32, WS_SIZE)
    QF = 4
    k("buffer_load_dwordx4 %s, v2, s[20:23], s51 offen" % vr(QF, 4))
    k("s_lshl_b32 s54, s49, 7")
    k("s_add_u32 s54, s54, 0x%x" % WS_KM)
    k("s_add_u32 s56, s32, s54")
    k("s_addc_u32 s57, s33, 0")
    k("s_load_dwordx16 s[64:79], s[56:57], 0")
    k("s_load_dwordx16 s[80:95], s[56:57], 64")
    for j in range(4):
        for ss in range(2):
            k("s_add_u32 m0, s52, %d" % (ss * 65536 + j * 8192))
            k("s_add_u32 s53, s52, 0x%x" % (WS_K + ss * 65536 + j * 8192))
            k("buffer_load_dwordx4 v8, s[20:23], s53 offen lds")
    k("s_lshl_b32 s54, s49, 15")
    k("v_add_u32 v9, s54, v8")
    k("v_and_b32 v10, 15, v1")
    k("v_lshlrev_b32 v10, 4, v10")
    k("v_lshl_add_u32 v10, v3, 8, v10")
    k("v_add_u32 v10, s54, v10")
    k("v_add_u32 v10, 0x10000, v10")
    NEG, SA, SB, O, PK, KF, VF = 16, 32, 48, 64, 80, 88, 100
    M = 11
    for i in range(16):
        k("v_mov_b32 v%d, 0x3f803f80" % (VF + i))
    k("s_mov_b32 s58, 0xffff")
    k("s_mov_b32 s59, 0xffff")
    k("s_waitcnt lgkmcnt(0)")
    for i in range(1, 32):
        k("s_max_u32 s64, s64, s%d" % (64 + i))
    k("v_mov_b32 v12, 0")
    k("s_waitcnt vmcnt(8)")
    for i in range(4):
        k("v_dot2c_f32_bf16 v12, v%d, v%d" % (QF + i, QF + i))
    k("s_nop 4")
    k("v_mov_b32 v13, v12")
    k("s_nop 1")
    k("v_permlane32_swap_b32 v12, v13")
    k("s_nop 1")
    k("v_add_f32 v12, v12, v13")
    k("v_mul_f32 v12, s64, v12")
    k("v_sqrt_f32 v%d, v12" % M)
    k("s_nop 1")
    for i in range(16):
        k("v_xor_b32 v%d, 0x80000000, v%d" % (NEG + i, M))
    S = [SA, SB]
    NT = 32

    RP, RQ = 116, 124

    def repack_issue():
        l_dn, l_go = k.newlab("rdn"), k.newlab("rgo")
        k("s_cmp_ge_u32 s64, 2752")
        k("s_cbranch_scc1 %s" % l_dn)
        k("s_lshr_b32 s65, s64, 5")
        k("s_and_b32 s66, s64, 31")
        k("s_cmp_ge_u32 s65, 43")
        k("s_cselect_b32 s67, 1, 0")
        k("s_cselect_b32 s84, s38, s36")
        k("s_cselect_b32 s85, s39, s37")
        k("s_mul_i32 s68, s67, 43")
        k("s_sub_u32 s65, s65, s68")
        k("s_mul_i32 s68, s65, 171")
        k("s_lshr_b32 s68, s68, 9")
        k("s_mul_i32 s69, s68, 3")
        k("s_sub_u32 s69, s65, s69")
        k("s_mul_i32 s70, s66, 6")
        k("s_mul_i32 s71, s67, 3")
        k("s_add_u32 s70, s70, s71")
        k("s_add_u32 s70, s70, s69")
        k("s_mul_i32 s71, s69, %d" % ((32 - KS1) * 2))
        k("s_lshl_b32 s72, s66, 1")
        k("s_add_u32 s71, s71, s72")
        k("s_add_u32 s71, s71, s67")
        k("s_add_u32 s71, s71, %d" % (KS1 * 6 - 2 * KS1))
        k("s_cmp_lt_u32 s66, %d" % KS1)
        k("s_cselect_b32 s70, s70, s71")
        k("s_lshl_b32 s70, s70, 10")
        k("s_mul_i32 s90, s68, 196608")
        k("s_add_u32 s90, s90, s70")
        k("s_add_u32 s90, s90, 0x%x" % WS_WG)
        k("s_mov_b32 s86, %d" % (512 * 2752))
        k("s_mov_b32 s89, 2752")
        k("s_branch %s" % l_go)
        k.lab(l_dn)
        k("s_sub_u32 s64, s64, 2752")
        k("s_cmp_ge_u32 s64, 1376")
        k("s_cselect_b32 s84, s42, s40")
        k("s_cselect_b32 s85, s43, s41")
        k("s_mov_b32 s86, %d" % (1376 * 1024))
        k("s_mov_b32 s68, %d" % (86 * 2048))
        k("s_mov_b32 s90, 0x%x" % WS_WD)
        k("s_cselect_b32 s86, %d, s86" % (512 * 1024))
        k("s_cselect_b32 s67, 1376, 0")
        k("s_cselect_b32 s68, 65536, s68")
        k("s_cselect_b32 s90, 0x%x, s90" % WS_WO)
        k("s_sub_u32 s64, s64, s67")
        k("s_lshr_b32 s66, s64, 4")
        k("s_and_b32 s65, s64, 15")
        k("s_lshr_b32 s69, s65, 1")
        k("s_mul_i32 s69, s69, s68")
        k("s_add_u32 s90, s90, s69")
        k("s_lshl_b32 s69, s66, 11")
        k("s_add_u32 s90, s90, s69")
        k("s_and_b32 s69, s65, 1")
        k("s_lshl_b32 s69, s69, 10")
        k("s_add_u32 s90, s90, s69")
        k("s_mov_b32 s89, 1024")
        k.lab(l_go)
        k("s_and_b32 s85, s85, 0xffff")
        k("s_mov_b32 s87, %s" % SRD3)
        k("s_mul_i32 s88, s66, s89")
        k("s_lshl_b32 s88, s88, 4")
        k("s_lshl_b32 s69, s65, 6")
        k("s_add_u32 s88, s88, s69")
        k("s_lshl_b32 s69, s89, 3")
        k("v_mul_u32_u24 v14, s69, v3")
        k("v_and_b32 v15, 31, v1")
        k("v_lshl_add_u32 v14, v15, 1, v14")
        for j in range(8):
            k("buffer_load_ushort v%d, v14, s[84:87], s88 offen" % (RP + j))
            if j < 7:
                k("s_add_u32 s88, s88, s89")

    def repack_store():
        k("s_waitcnt vmcnt(0)")
        for q in range(4):
            k("v_lshl_or_b32 v%d, v%d, 16, v%d" % (RQ + q, RP + 2 * q + 1, RP + 2 * q))
        k("buffer_store_dwordx4 %s, v8, s[20:23], s90 offen" % vr(RQ, 4))

    EXPB = os.environ.get("EXPB", "")
    PRIO = int(os.environ.get("PRIO", "1"))
    RT = [int(x) for x in os.environ.get("RT", "1,12,24").split(",")]
    repack_wait = [False]
    def rdV(t):
        if "noV" in EXPB and t > 1:
            k("ds_read_b32 v15, v10"); k("ds_read_b32 v15, v10")
            return
        k("s_mov_b64 exec, s[58:59]")
        k("ds_read_b128 %s, v10 offset:%d" % (vr(VF + 8 * (t % 2), 4), t * 1024))
        k("ds_read_b128 %s, v10 offset:%d" % (vr(VF + 8 * (t % 2) + 4, 4), t * 1024 + 512))
        k("s_mov_b64 exec, -1")

    def pass2(bars):
        if bars:
            k("s_waitcnt vmcnt(6)")
            k("s_barrier")
            k.ts(1)
        k("ds_read_b128 %s, v9 offset:0" % vr(KF, 4))
        k("ds_read_b128 %s, v9 offset:1024" % vr(KF + 4, 4))
        rdV(0)
        k("s_waitcnt lgkmcnt(3)")
        k("v_mfma_f32_32x32x16_bf16 %s, %s, %s, %s" % (vr(S[0], 16), vr(KF, 4), vr(QF, 4), vr(NEG, 16)))
        for t in range(NT):
            n_new = 0
            if bars and t == 8: k.ts(2)
            if bars and t == 16: k.ts(3)
            if bars and t == 23: k.ts(4)
            if bars and PRIO and t % 8 in (0, 2, 4, 6):
                k("s_setprio %d" % (3 - ((t + 2) % 8) // 2 if PRIO == 1 else 3 - (t % 8) // 2))
            if bars and t == RT[0]:
                k("s_lshl_b32 s64, s2, 4")
                k("s_add_u32 s64, s64, s3")
                repack_issue()
            if bars and t == RT[1]:
                repack_store()
                k.ts(5)
                nr2 = k.newlab("nr2")
                k("s_lshl_b32 s64, s3, 8")
                k("s_add_u32 s64, s64, s2")
                k("s_cmp_ge_u32 s64, 544")
                k("s_cbranch_scc1 %s" % nr2)
                k("s_add_u32 s64, s64, 4096")
                repack_issue()
                repack_wait[0] = True
                k.lab(nr2)
            if bars and t == int(os.environ.get("WBT", "27")):
                nwb = k.newlab("nwb")
                k("s_lshl_b32 s64, s3, 8")
                k("s_add_u32 s64, s64, s2")
                k("s_cmp_ge_u32 s64, 8")
                k("s_cbranch_scc1 %s" % nwb)
                k("buffer_wbl2 sc1")
                k.lab(nwb)
            if bars and t == RT[2]:
                nr3 = k.newlab("nr3")
                k("s_lshl_b32 s64, s3, 8")
                k("s_add_u32 s64, s64, s2")
                k("s_cmp_ge_u32 s64, 544")
                k("s_cbranch_scc1 %s" % nr3)
                repack_store()
                k.lab(nr3)
            if t + 2 < NT:
                if bars and (t + 2) % 8 == 0:
                    young = 8 if RT[0] <= t < RT[1] else 0
                    if t >= RT[1]:
                        pass
                    else:
                        k("s_waitcnt vmcnt(%d)" % (6 - 2 * ((t + 2) // 8) + young))
                    k("s_barrier")
                k("ds_read_b128 %s, v9 offset:%d" % (vr(KF + 4 * ((t + 2) % 3), 4), (t + 2) * 1024))
                n_new += 1
            if t + 1 < NT:
                k("s_waitcnt lgkmcnt(%d)" % (2 + n_new))
                k("v_mfma_f32_32x32x16_bf16 %s, %s, %s, %s" % (vr(S[(t + 1) % 2], 16), vr(KF + 4 * ((t + 1) % 3), 4), vr(QF, 4), vr(NEG, 16)))
            if t == 0:
                k("s_nop 10")
            s = S[t % 2]
            for i in range(16):
                if "noexp" in EXPB and i >= 8: continue
                k("v_exp_f32 v%d, v%d" % (s + i, s + i))
            for i in range(8):
                if "nocvt" in EXPB: continue
                k("v_cvt_pk_bf16_f32 v%d, v%d, v%d" % (PK + i, s + 2 * i, s + 2 * i + 1))
            k("s_waitcnt lgkmcnt(%d)" % n_new)
            if "nopv" not in EXPB or t == 0:
                k("v_mfma_f32_32x32x16_bf16 %s, %s, %s, %s" % (vr(O, 16), vr(VF + 8 * (t % 2), 4), vr(PK, 4), "0" if t == 0 else vr(O, 16)))
                k("v_mfma_f32_32x32x16_bf16 %s, %s, %s, %s" % (vr(O, 16), vr(VF + 8 * (t % 2) + 4, 4), vr(PK + 4, 4), vr(O, 16)))
            if t + 1 < NT:
                rdV(t + 1)
    pass2(True)
    k.ts(6)
    k("s_nop 15")
    k("v_cmp_gt_f32 vcc, 0x%08x, v%d" % ((127 - 64) << 23, O + 8))
    k("v_cmp_u_f32 s[60:61], v%d, v%d" % (O + 8, O + 8))
    k("s_or_b64 vcc, vcc, s[60:61]")
    comb = k.newlab("comb")
    k("s_cbranch_vccz %s" % comb)
    k("v_mov_b32 v%d, 0xff800000" % M)
    k("ds_read_b128 %s, v9 offset:0" % vr(KF, 4))
    k("ds_read_b128 %s, v9 offset:1024" % vr(KF + 4, 4))
    k("s_waitcnt lgkmcnt(1)")
    k("v_mfma_f32_32x32x16_bf16 %s, %s, %s, 0" % (vr(S[0], 16), vr(KF, 4), vr(QF, 4)))
    for t in range(NT):
        if t + 2 < NT:
            k("ds_read_b128 %s, v9 offset:%d" % (vr(KF + 4 * ((t + 2) % 3), 4), (t + 2) * 1024))
        if t + 1 < NT:
            k("s_waitcnt lgkmcnt(%d)" % (1 if t + 2 < NT else 0))
            k("v_mfma_f32_32x32x16_bf16 %s, %s, %s, 0" % (vr(S[(t + 1) % 2], 16), vr(KF + 4 * ((t + 1) % 3), 4), vr(QF, 4)))
        k("s_nop 10" if t == 0 else "s_nop 3")
        s = S[t % 2]
        for i in range(8):
            k("v_max3_f32 v%d, v%d, v%d, v%d" % (M, s + 2 * i, s + 2 * i + 1, M))
    k("v_mov_b32 v12, v%d" % M)
    k("s_nop 1")
    k("v_permlane32_swap_b32 v%d, v12" % M)
    k("s_nop 1")
    k("v_max_f32 v%d, v%d, v12" % (M, M))
    for i in range(16):
        k("v_xor_b32 v%d, 0x80000000, v%d" % (NEG + i, M))
    k("s_nop 1")
    pass2(False)
    k("s_nop 15")
    k.lab(comb)
    k("s_mul_i32 s60, s48, 2560")
    k("s_add_u32 s60, s60, 0x20000")
    k("v_lshlrev_b32 v12, 2, v1")
    k("v_add_u32 v12, s60, v12")
    w1 = k.newlab("w1")
    k("s_cmp_eq_u32 s49, 0")
    k("s_cbranch_scc1 %s" % w1)
    for i in range(9):
        k("ds_write_b32 v12, v%d offset:%d" % (O + i, i * 256))
    k("ds_write_b32 v12, v%d offset:%d" % (M, 9 * 256))
    k("s_waitcnt lgkmcnt(0)")
    k("s_barrier")
    k("s_branch %s" % end)
    k.lab(w1)
    k("s_barrier")
    for i in range(9):
        k("ds_read_b32 v%d, v12 offset:%d" % (SA + i, i * 256))
    k("ds_read_b32 v%d, v12 offset:%d" % (SA + 9, 9 * 256))
    k("s_waitcnt lgkmcnt(0)")
    m1 = SA + 9
    k("v_max_f32 v13, v%d, v%d" % (M, m1))
    k("v_sub_f32 v14, v%d, v13" % M)
    k("v_sub_f32 v15, v%d, v13" % m1)
    k("v_exp_f32 v14, v14")
    k("v_exp_f32 v15, v15")
    k("s_nop 1")
    for i in range(9):
        k("v_mul_f32 v%d, v14, v%d" % (O + i, O + i))
    for i in range(9):
        k("v_fma_f32 v%d, v15, v%d, v%d" % (O + i, SA + i, O + i))
    k("v_rcp_f32 v13, v%d" % (O + 8))
    k("s_nop 1")
    for i in range(8):
        k("v_mul_f32 v%d, v13, v%d" % (O + i, O + i))
    for i in range(4):
        k("v_cvt_pk_bf16_f32 v%d, v%d, v%d" % (PK + i, O + 2 * i, O + 2 * i + 1))
    k("v_and_b32 v2, 31, v1")
    k("v_lshlrev_b32 v2, 5, v2")
    k("v_lshl_add_u32 v2, v3, 3, v2")
    k("s_lshl_b32 s51, s50, 10")
    k("s_add_u32 s51, s51, 0x%x" % WS_O)
    k("buffer_store_dwordx2 %s, v2, s[20:23], s51 offen" % vr(PK, 2))
    k("buffer_store_dwordx2 %s, v2, s[20:23], s51 offen offset:16" % vr(PK + 2, 2))
    k.ts(7)
    k.ts_flush(8)
    k.lab(end)
    return k


def gen_gemm64(name, x_ws_off, ldx, w_karg, K, resid, outp, S=4, stats=False):
    lds = S * 32768
    k = Kern(name, 128, 256, 256, lds)
    end = k.newlab("end")
    k("s_cmp_ge_u32 s2, 256")
    k("s_cbranch_scc1 %s" % end)
    k.ts(0)
    k("s_load_dwordx2 s[24:25], s[0:1], %d" % w_karg)
    k("s_load_dwordx2 s[32:33], s[0:1], 88")
    if resid[0] == 'karg':
        k("s_load_dwordx2 s[26:27], s[0:1], %d" % resid[1])
    if outp[0] == 'karg':
        k("s_load_dwordx2 s[28:29], s[0:1], %d" % outp[1])
    k("v_and_b32 v1, 63, v0")
    k("v_lshrrev_b32 v2, 6, v0")
    k("s_nop 1")
    k("v_readfirstlane_b32 s3, v2")
    k("s_and_b32 s48, s2, 7")
    k("s_lshl_b32 s48, s48, 2")
    k("s_bfe_u32 s49, s2, 0x20003")
    k("s_add_u32 s48, s48, s49")
    k("s_lshr_b32 s49, s2, 5")
    k("s_waitcnt lgkmcnt(0)")
    k.srd(8, 24, K * 1024)
    k.srd(20, 32, WS_SIZE)
    if resid[0] == 'karg':
        k.srd(12, 26, 2048 * 1024)
        rs, roff = 12, 0
    else:
        rs, roff = 20, resid[1]
    if outp[0] == 'karg':
        k.srd(16, 28, 2048 * 1024)
        os_, ooff = 16, 0
    else:
        os_, ooff = 20, outp[1]
    k("v_lshrrev_b32 v3, 4, v1")
    k("s_lshl_b32 s50, s3, 2")
    k("v_add_u32 v3, s50, v3")
    k("v_and_b32 v4, 15, v1")
    k("v_xor_b32 v4, v4, v3")
    k("v_lshlrev_b32 v4, 4, v4")
    k("s_lshl_b32 s51, s48, 6")
    k("v_add_u32 v3, s51, v3")
    k("v_mul_u32_u24 v3, %d, v3" % ldx)
    k("v_add_u32 v4, v3, v4")
    k("v_lshrrev_b32 v3, 3, v1")
    k("s_lshl_b32 s50, s3, 3")
    k("v_add_u32 v3, s50, v3")
    k("v_and_b32 v5, 7, v1")
    k("v_bfe_u32 v6, v1, 4, 1")
    k("v_lshlrev_b32 v6, 2, v6")
    k("v_xor_b32 v5, v5, v6")
    k("v_lshlrev_b32 v5, 4, v5")
    k("v_lshl_add_u32 v5, v3, 10, v5")
    k("s_lshl_b32 s50, s49, 7")
    k("v_add_u32 v5, s50, v5")
    k("s_lshl_b32 s52, s3, 10")
    chunks = []
    kk = 0
    while kk < K:
        c = min(128, K - kk)
        chunks.append((kk, c))
        kk += c
    NC = len(chunks)

    def issue(c):
        k0, kc = chunks[c]
        st = (c % S) * 32768
        n = 0
        for j in range(4):
            k("s_add_u32 m0, s52, %d" % (st + j * 4096))
            k("s_mov_b32 s54, %d" % (x_ws_off + j * 16 * ldx + k0 * 2))
            k("buffer_load_dwordx4 v4, s[20:23], s54 offen lds")
            n += 1
        for j in range(kc // 32):
            k("s_add_u32 m0, s52, %d" % (st + 16384 + j * 4096))
            k("s_mov_b32 s54, %d" % ((k0 + 32 * j) * 1024))
            k("buffer_load_dwordx4 v5, s[8:11], s54 offen lds")
            n += 1
        return n
    cnt = {}
    for c in range(min(S - 1, NC)):
        cnt[c] = issue(c)
    k("s_and_b32 s56, s3, 1")
    k("s_lshr_b32 s57, s3, 1")
    k("v_and_b32 v7, 31, v1")
    k("s_lshl_b32 s58, s56, 5")
    k("v_add_u32 v7, s58, v7")
    k("v_lshrrev_b32 v8, 5, v1")
    k("v_and_b32 v9, 15, v7")
    k("v_xor_b32 v9, v9, v8")
    k("v_lshlrev_b32 v9, 4, v9")
    k("v_lshl_add_u32 v9, v7, 8, v9")
    XA = 16
    for ks in range(8):
        k("v_xor_b32 v%d, %d, v9" % (XA + ks, ks * 32))
    k("v_lshrrev_b32 v11, 5, v1")
    k("v_lshlrev_b32 v11, 3, v11")
    k("v_bfe_u32 v10, v1, 2, 2")
    k("v_add_u32 v11, v11, v10")
    k("v_bfe_u32 v10, v1, 4, 1")
    k("v_lshlrev_b32 v10, 5, v10")
    k("v_and_b32 v12, 3, v1")
    k("v_lshl_add_u32 v10, v12, 3, v10")
    k("s_lshl_b32 s58, s57, 6")
    k("v_add_u32 v10, s58, v10")
    k("v_bfe_u32 v12, v1, 3, 1")
    k("v_lshlrev_b32 v12, 6, v12")
    k("v_xor_b32 v10, v10, v12")
    k("v_lshl_add_u32 v10, v11, 7, v10")
    k("v_add_u32 v10, 0x4000, v10")
    k("s_lshl_b32 s58, s56, 5")
    k("s_add_u32 s58, s58, s51")
    k("v_and_b32 v13, 31, v1")
    k("v_add_u32 v13, s58, v13")
    k("v_lshlrev_b32 v12, 3, v8")
    k("v_lshl_add_u32 v12, v13, 10, v12")
    k("s_lshl_b32 s59, s49, 7")
    k("s_lshl_b32 s60, s57, 6")
    k("s_add_u32 s59, s59, s60")
    ACC, RES, XC, WC = 32, 48, 24, 14
    BF, AF = 64, 96
    for c in range(NC):
        k0, kc = chunks[c]
        st = (c % S) * 32768
        later = sum(cnt[cc] for cc in range(c + 1, min(c + S - 1, NC)))
        k("s_waitcnt vmcnt(%d)" % later)
        k("s_barrier")
        if c < 11: k.ts(1 + c)
        if c + S - 1 < NC:
            cnt[c + S - 1] = issue(c + S - 1)
        if c == NC - 1:
            k("s_add_u32 s60, s59, 0x%x" % roff)
            for q in range(4):
                k("buffer_load_dwordx2 %s, v12, s[%d:%d], s60 offen offset:%d" % (vr(RES + 2 * q, 2), rs, rs + 3, 16 * q))
        nks = kc // 16
        hi = st >= 65536
        if hi or st + 16384 + 16384 > 65536:
            pass
        for ks in range(nks):
            k("v_add_u32 v%d, %d, v%d" % (XC + ks, st, XA + ks))
        k("v_add_u32 v%d, %d, v10" % (WC, st))
        for ks in range(nks):
            k("ds_read_b128 %s, v%d" % (vr(BF + 4 * ks, 4), XC + ks))
            k("ds_read_b64_tr_b16 %s, v%d offset:%d" % (vr(AF + 4 * ks, 2), WC, ks * 2048))
            k("ds_read_b64_tr_b16 %s, v%d offset:%d" % (vr(AF + 4 * ks + 2, 2), WC, ks * 2048 + 512))
        for ks in range(nks):
            k("s_waitcnt lgkmcnt(%d)" % min(15, 3 * (nks - 1 - ks)))
            first = (c == 0 and ks == 0)
            k("v_mfma_f32_32x32x16_bf16 %s, %s, %s, %s" % (vr(ACC, 16), vr(AF + 4 * ks, 4), vr(BF + 4 * ks, 4), "0" if first else vr(ACC, 16)))
    k.ts(12)
    k("s_waitcnt vmcnt(0)")
    k("s_nop 15")
    for q in range(4):
        for d in range(2):
            r = RES + 2 * q + d
            k("v_lshlrev_b32 v%d, 16, v%d" % (BF, r))
            k("v_and_b32 v%d, 0xffff0000, v%d" % (BF + 1, r))
            k("v_add_f32 v%d, v%d, v%d" % (ACC + 4 * q + 2 * d, ACC + 4 * q + 2 * d, BF))
            k("v_add_f32 v%d, v%d, v%d" % (ACC + 4 * q + 2 * d + 1, ACC + 4 * q + 2 * d + 1, BF + 1))
    for r in range(8):
        k("v_cvt_pk_bf16_f32 v%d, v%d, v%d" % (RES + r, ACC + 2 * r, ACC + 2 * r + 1))
    if not stats or os.environ.get("HROW"):
        k("s_add_u32 s60, s59, 0x%x" % ooff)
        for q in range(4):
            k("buffer_store_dwordx2 %s, v12, s[%d:%d], s60 offen offset:%d" % (vr(RES + 2 * q, 2), os_, os_ + 3, 16 * q))
    if stats:
        T = AF
        k("v_and_b32 v%d, 31, v1" % (T + 7))
        k("v_lshlrev_b32 v%d, 4, v%d" % (T + 7, T + 7))
        k("v_lshl_add_u32 v%d, v8, 3, v%d" % (T + 7, T + 7))
        k("s_lshl_b32 s60, s48, 1")
        k("s_add_u32 s60, s60, s56")
        k("s_lshl_b32 s60, s60, 5")
        k("s_lshl_b32 s61, s49, 2")
        k("s_add_u32 s60, s60, s61")
        k("s_lshl_b32 s61, s57, 1")
        k("s_add_u32 s60, s60, s61")
        k("s_lshl_b32 s60, s60, 10")
        k("s_add_u32 s60, s60, 0x%x" % WS_HP)
        for q in range(4):
            k("buffer_store_dwordx2 %s, v%d, s[20:23], s60 offen offset:%d" % (vr(RES + 2 * q, 2), T + 7, (q >> 1) * 1024 + (q & 1) * 512))
        k("v_mov_b32 v%d, 0x3f803f80" % T)
        for i in range(4):
            k("v_mov_b32 v%d, 0" % (T + 2 + i))
        for r in range(8):
            k("v_dot2c_f32_bf16 v%d, v%d, v%d" % (T + 2 + (r & 1), RES + r, T))
            k("v_dot2c_f32_bf16 v%d, v%d, v%d" % (T + 4 + (r & 1), RES + r, RES + r))
        k("s_nop 4")
        k("v_add_f32 v%d, v%d, v%d" % (T + 2, T + 2, T + 3))
        k("v_add_f32 v%d, v%d, v%d" % (T + 3, T + 4, T + 5))
        k("v_mov_b32 v%d, v%d" % (T + 4, T + 2))
        k("v_mov_b32 v%d, v%d" % (T + 5, T + 3))
        k("s_nop 1")
        k("v_permlane32_swap_b32 v%d, v%d" % (T + 2, T + 4))
        k("v_permlane32_swap_b32 v%d, v%d" % (T + 3, T + 5))
        k("s_nop 1")
        k("v_add_f32 v%d, v%d, v%d" % (T + 2, T + 2, T + 4))
        k("v_add_f32 v%d, v%d, v%d" % (T + 3, T + 3, T + 5))
        k("v_lshlrev_b32 v%d, 7, v13" % (T + 6))
        k("s_lshl_b32 s60, s49, 1")
        k("s_add_u32 s60, s60, s57")
        k("s_lshl_b32 s60, s60, 3")
        k("s_add_u32 s60, s60, 0x%x" % WS_ST)
        k("v_cmp_gt_u32 vcc, 32, v1")
        k("s_and_saveexec_b64 s[62:63], vcc")
        k("buffer_store_dwordx2 %s, v%d, s[20:23], s60 offen" % (vr(T + 2, 2), T + 6))
        k("s_mov_b64 exec, s[62:63]")
    k.ts(13)
    k.ts_flush(14)
    k.lab(end)
    return k


def gen_C():
    return gen_gemm64("wo_kernel", WS_O, 1024, 32, 512, ('karg', 0), ('ws', WS_H), stats=True)


def gen_E():
    S = int(os.environ.get("ES", "4"))
    NKS = 86
    NC = (NKS + 7) // 8
    k = Kern("down_kernel", 128, 256, 256, S * 32768)
    end = k.newlab("end")
    k("s_cmp_ge_u32 s2, 256")
    k("s_cbranch_scc1 %s" % end)
    k.ts(0)
    k("s_load_dwordx2 s[32:33], s[0:1], 88")
    k("s_load_dwordx2 s[28:29], s[0:1], 72")
    k("v_and_b32 v1, 63, v0")
    k("v_lshrrev_b32 v2, 6, v0")
    k("s_nop 1")
    k("v_readfirstlane_b32 s3, v2")
    k("s_and_b32 s48, s2, 7")
    k("s_lshl_b32 s48, s48, 2")
    k("s_bfe_u32 s49, s2, 0x20003")
    k("s_add_u32 s48, s48, s49")
    k("s_lshr_b32 s49, s2, 5")
    k("s_and_b32 s56, s3, 1")
    k("s_lshr_b32 s57, s3, 1")
    k("v_lshlrev_b32 v4, 4, v1")
    k("s_lshl_b32 s50, s56, 13")
    k("s_lshl_b32 s51, s57, 12")
    k("s_add_u32 s50, s50, s51")
    k("s_lshl_b32 s52, s48, 1")
    k("s_add_u32 s52, s52, s56")
    k("s_mul_i32 s52, s52, %d" % (NKS * 1024))
    k("s_add_u32 s52, s52, s51")
    k("s_add_u32 s52, s52, 0x%x" % WS_ACT)
    k("s_lshl_b32 s53, s3, 12")
    k("s_mul_i32 s55, s49, %d" % (NKS * 2048))
    k("s_add_u32 s55, s55, s53")
    k("s_add_u32 s55, s55, 0x%x" % WS_WD)
    k("s_add_u32 s53, s53, 16384")
    k("s_lshl_b32 s58, s48, 6")
    k("s_lshl_b32 s59, s56, 5")
    k("s_add_u32 s58, s58, s59")
    k("v_and_b32 v13, 31, v1")
    k("v_add_u32 v13, s58, v13")
    k("v_lshrrev_b32 v8, 5, v1")
    k("v_lshlrev_b32 v12, 3, v8")
    k("v_lshl_add_u32 v12, v13, 10, v12")
    k("s_lshl_b32 s59, s49, 7")
    k("s_lshl_b32 s60, s57, 6")
    k("s_add_u32 s59, s59, s60")
    k("v_and_b32 v14, 31, v1")
    k("v_lshlrev_b32 v14, 4, v14")
    k("v_lshl_add_u32 v14, v8, 3, v14")
    k("s_lshl_b32 s60, s48, 1")
    k("s_add_u32 s60, s60, s56")
    k("s_lshl_b32 s60, s60, 5")
    k("s_lshl_b32 s61, s49, 2")
    k("s_add_u32 s60, s60, s61")
    k("s_lshl_b32 s61, s57, 1")
    k("s_add_u32 s60, s60, s61")
    k("s_lshl_b32 s60, s60, 10")
    k("s_add_u32 s60, s60, 0x%x" % WS_HP)
    k("s_waitcnt lgkmcnt(0)")
    k.srd(20, 32, WS_SIZE)
    k.srd(16, 28, 2048 * 1024)
    ACC, RES, FR = 32, 48, 64
    for q in range(4):
        k("buffer_load_dwordx2 %s, v14, s[20:23], s60 offen offset:%d" % (vr(RES + 2 * q, 2), (q >> 1) * 1024 + (q & 1) * 512))

    def issue(c):
        st = (c % S) * 32768
        for j in range(4):
            k("s_add_u32 m0, s50, %d" % (st + j * 1024))
            k("s_add_u32 s54, s52, %d" % (c * 8192 + j * 1024))
            k("buffer_load_dwordx4 v4, s[20:23], s54 offen lds")
        for j in range(4):
            k("s_add_u32 m0, s53, %d" % (st + j * 1024))
            k("s_add_u32 s54, s55, %d" % (c * 16384 + j * 1024))
            k("buffer_load_dwordx4 v4, s[20:23], s54 offen lds")
    for c in range(S - 1):
        issue(c)
    k("s_lshl_b32 s61, s56, 13")
    k("s_lshl_b32 s62, s57, 10")
    k("s_add_u32 s62, s62, 16384")
    for i in range(3):
        k("v_add_u32 v%d, s61, v4" % (16 + i))
        k("v_add_u32 v%d, s62, v4" % (20 + i))
        k("s_add_u32 s61, s61, 65536")
        k("s_add_u32 s62, s62, 65536")

    def rd(g):
        c, ks = g // 8, g % 8
        st = (c % S) * 32768
        ob, oa = st + ks * 1024, st + ks * 2048
        k("ds_read_b128 %s, v%d offset:%d" % (vr(FR + 8 * (g % 4), 4), 20 + st // 65536, oa % 65536))
        k("ds_read_b128 %s, v%d offset:%d" % (vr(FR + 8 * (g % 4) + 4, 4), 16 + st // 65536, ob % 65536))
    for c in range(NC):
        n = min(8, NKS - 8 * c)
        later = 8 * (min(c + S - 1, NC) - (c + 1))
        k("s_waitcnt vmcnt(%d)" % later)
        k("s_barrier")
        if c < 11: k.ts(1 + c)
        for ks in range(3):
            rd(8 * c + ks)
        if c + S - 1 < NC:
            issue(c + S - 1)
        for ks in range(n):
            g = 8 * c + ks
            k("s_waitcnt lgkmcnt(%d)" % (2 * min(2, n - 1 - ks)))
            k("v_mfma_f32_32x32x16_bf16 %s, %s, %s, %s" % (vr(ACC, 16), vr(FR + 8 * (g % 4), 4), vr(FR + 8 * (g % 4) + 4, 4), "0" if g == 0 else vr(ACC, 16)))
            if ks + 3 < n:
                rd(g + 3)
    k.ts(12)
    k("s_nop 15")
    BF = FR
    for q in range(4):
        for d in range(2):
            r = RES + 2 * q + d
            k("v_lshlrev_b32 v%d, 16, v%d" % (BF + 32, r))
            k("v_and_b32 v%d, 0xffff0000, v%d" % (BF + 33, r))
            k("v_add_f32 v%d, v%d, v%d" % (ACC + 4 * q + 2 * d, ACC + 4 * q + 2 * d, BF + 32))
            k("v_add_f32 v%d, v%d, v%d" % (ACC + 4 * q + 2 * d + 1, ACC + 4 * q + 2 * d + 1, BF + 33))
    for r in range(8):
        k("v_cvt_pk_bf16_f32 v%d, v%d, v%d" % (RES + r, ACC + 2 * r, ACC + 2 * r + 1))
    for q in range(4):
        k("buffer_store_dwordx2 %s, v12, s[16:19], s59 offen offset:%d" % (vr(RES + 2 * q, 2), 16 * q))
    k.ts(13)
    k.ts_flush(14)
    k.lab(end)
    return k


class VM:
    def __init__(s, k):
        s.k = k
        s.n = 0
    def issue(s):
        s.n += 1
        return s.n
    def wait(s, tok):
        if os.environ.get("EXP", "") == "nomem":
            return
        s.k("s_waitcnt vmcnt(%d)" % min(63, s.n - tok))


def gen_D():
    S = 10
    CH = 16384
    NCH = 12
    k = Kern("ffn1_kernel", 288, 256, 256, S * CH, accum=256)
    vm = VM(k)
    end = k.newlab("end")
    k("s_cmp_ge_u32 s2, 256")
    k("s_cbranch_scc1 %s" % end)
    k.ts(0)
    k("s_load_dwordx2 s[32:33], s[0:1], 88")
    k("v_and_b32 v1, 63, v0")
    k("v_lshrrev_b32 v2, 6, v0")
    k("s_nop 1")
    k("v_readfirstlane_b32 s3, v2")
    k("s_bfe_u32 s48, s2, 0x20001")
    k("s_lshl_b32 s48, s48, 2")
    k("s_bfe_u32 s49, s2, 0x20003")
    k("s_add_u32 s48, s48, s49")
    k("s_and_b32 s49, s2, 1")
    k("s_lshl_b32 s49, s49, 3")
    k("s_lshr_b32 s50, s2, 5")
    k("s_add_u32 s49, s49, s50")
    k("s_cmp_ge_u32 s49, 15")
    k("s_cbranch_scc1 %s" % end)
    k("v_and_b32 v2, 31, v1")
    k("v_lshrrev_b32 v3, 5, v1")
    k("s_lshl_b32 s50, s3, 5")
    k("s_lshl_b32 s51, s48, 7")
    k("s_add_u32 s50, s50, s51")
    k("v_add_u32 v2, s50, v2")
    k("s_lshl_b32 s57, s50, 10")
    k("v_lshlrev_b32 v6, 7, v2")
    k("v_lshl_add_u32 v6, v3, 6, v6")
    k("v_lshlrev_b32 v7, 4, v1")
    k("v_add_u32 v8, 0x10000, v7")
    k("v_add_u32 v9, 0x20000, v7")
    k("s_lshl_b32 s52, s3, 10")
    k("v_add_u32 v4, s52, v7")
    k("s_mul_i32 s53, s49, 196608")
    k("s_add_u32 s53, s53, 0x%x" % WS_WG)
    k("s_mov_b32 s55, 0x%x" % WS_ST)
    k("s_add_u32 s57, s57, 0x%x" % WS_HP)
    k("s_waitcnt lgkmcnt(0)")
    k.srd(20, 32, WS_SIZE)
    ACC, B, T = 16, 112, 240
    order = []
    for ks in range(KS1):
        for t in range(6):
            order.append((t, ks))
    for p in range(3):
        for ks in range(KS1, 32):
            order.append((p, ks))
            order.append((p + 3, ks))
    assert len(order) == 192
    tokA, tokB = {}, {}

    NOMEM = os.environ.get("EXP", "") == "nomem"
    vq = []

    def opA(c, j):
        def f():
            if NOMEM:
                tokA[c] = 0
                return
            k("s_add_u32 m0, s52, %d" % ((c % S) * CH + j * 4096))
            k("s_add_u32 s54, s53, %d" % (c * CH + j * 4096))
            k("buffer_load_dwordx4 v4, s[20:23], s54 offen lds")
            tokA[c] = vm.issue()
        return f

    def opB(g):
        def f():
            if NOMEM:
                tokB[g] = 0
                return
            k("s_add_u32 s56, s57, %d" % (g * 1024))
            k("buffer_load_dwordx4 %s, v7, s[20:23], s56 offen" % vr(B + 4 * g, 4))
            tokB[g] = vm.issue()
        return f
    nb = 0
    for c in range(NCH):
        need = max(ks for (t, ks) in order[:min(192, (c + 1) * 16 + 8)]) + 1
        while nb < need:
            vq.append((c, opB(nb))); nb += 1
        for j in range(4):
            vq.append((c, opA(c, j)))
    W = int(os.environ.get("W", "3"))

    def vflush(c):
        while vq and vq[0][0] <= c:
            vq.pop(0)[1]()

    def vstep(cur_chunk_x16):
        if vq and vq[0][0] * 16 <= cur_chunk_x16 + W * 16:
            vq.pop(0)[1]()
    for q in range(4):
        k("buffer_load_dwordx4 %s, v6, s[20:23], s55 offen offset:%d" % (vr(ACC + 4 * q, 4), 16 * q))
        tokS = vm.issue()
    vflush(W - 1)
    k.ts(1)
    vm.wait(tokS)
    for i in range(2, 8):
        k("v_add_f32 v%d, v%d, v%d" % (ACC + (i & 1), ACC + (i & 1), ACC + 2 * (i // 2) * 1 + (i & 1)) if False else "")
    for st in (8, 4, 2):
        for i in range(st):
            k("v_add_f32 v%d, v%d, v%d" % (ACC + i, ACC + i, ACC + i + st))
    k("v_mov_b32 v%d, v%d" % (ACC + 2, ACC))
    k("v_mov_b32 v%d, v%d" % (ACC + 3, ACC + 1))
    k("s_nop 1")
    k("v_permlane32_swap_b32 v%d, v%d" % (ACC, ACC + 2))
    k("v_permlane32_swap_b32 v%d, v%d" % (ACC + 1, ACC + 3))
    k("s_nop 1")
    k("v_add_f32 v%d, v%d, v%d" % (ACC, ACC, ACC + 2))
    k("v_add_f32 v%d, v%d, v%d" % (ACC + 1, ACC + 1, ACC + 3))
    k("v_mul_f32 v%d, %s, v%d" % (ACC, f32hex(1.0 / 512), ACC))
    k("v_mul_f32 v%d, %s, v%d" % (ACC + 1, f32hex(1.0 / 512), ACC + 1))
    k("v_fma_f32 v%d, -v%d, v%d, v%d" % (ACC + 1, ACC, ACC, ACC + 1))
    k("v_add_f32 v%d, %s, v%d" % (ACC + 1, f32hex(1e-5), ACC + 1))
    k("v_rsq_f32 v12, v%d" % (ACC + 1))
    k("s_nop 1")
    k("v_mov_b32 v13, v12")
    k("v_mul_f32 v14, v%d, v12" % ACC)
    k("v_xor_b32 v14, 0x80000000, v14")
    k("v_mov_b32 v15, v14")
    k("v_and_b32 v10, 31, v1")
    k("v_lshlrev_b32 v10, 4, v10")
    k("v_lshl_add_u32 v10, v3, 3, v10")
    k("s_lshr_b32 s59, s50, 5")
    k("s_mul_i32 s59, s59, 86")
    k("s_mul_i32 s58, s49, 6")
    k("s_add_u32 s59, s59, s58")
    k("s_lshl_b32 s59, s59, 10")
    k("s_add_u32 s59, s59, 0x%x" % WS_ACT)

    from collections import deque
    fq = deque()
    normed = set()

    def q_norm(g):
        def w():
            vm.wait(tokB[g])
        fq.append(("n", g, w))
        for r in range(4):
            t0 = T + 2 * (r & 3)
            b = B + 4 * g + r
            fq.append(("n", g, "v_lshlrev_b32 v%d, 16, v%d" % (t0, b)))
            fq.append(("n", g, "v_and_b32 v%d, 0xffff0000, v%d" % (t0 + 1, b)))
            fq.append(("n", g, "v_fma_f32 v%d, v%d, v12, v14" % (t0, t0)))
            fq.append(("n", g, "v_fma_f32 v%d, v%d, v12, v14" % (t0 + 1, t0 + 1)))
            fq.append(("n", g, "v_cvt_pk_bf16_f32 v%d, v%d, v%d" % (b, t0, t0 + 1)))

    def q_epi(p):
        G, U = ACC + 16 * p, ACC + 16 * (3 + p)
        E = T + 8 if False else T
        fq.append(("e", p, "s_nop 15"))
        for r in range(0, 16, 2):
            fq.append(("e", p, "v_pk_mul_f32 v[%d:%d], v[%d:%d], v[10+X:11+X]" % (E + r, E + r + 1, G + r, G + r + 1)))
    k("s_mov_b32 s60, %s" % f32hex(-LOG2E))
    k("s_mov_b32 s61, %s" % f32hex(-LOG2E))
    k("s_mov_b32 s62, 1.0")
    k("s_mov_b32 s63, 1.0")

    def q_epi(p):
        G, U = ACC + 16 * p, ACC + 16 * (3 + p)
        E = T
        L = []
        L.append("s_nop 15")
        for r in range(16):
            L.append("v_mul_f32 v%d, s60, v%d" % (E + r, G + r))
        for r in range(16):
            L.append("v_exp_f32 v%d, v%d" % (E + r, E + r))
        for r in range(16):
            L.append("v_mul_f32 v%d, v%d, v%d" % (G + r, G + r, U + r))
        for r in range(16):
            L.append("v_add_f32 v%d, 1.0, v%d" % (E + r, E + r))
        for r in range(16):
            L.append("v_rcp_f32 v%d, v%d" % (E + r, E + r))
        for r in range(16):
            L.append("v_mul_f32 v%d, v%d, v%d" % (G + r, G + r, E + r))
        for r in range(8):
            L.append("v_cvt_pk_bf16_f32 v%d, v%d, v%d" % (G + r, G + 2 * r, G + 2 * r + 1))
        for q in range(4):
            L.append("buffer_store_dwordx2 %s, v10, s[20:23], s%d offen offset:%d" % (vr(G + 2 * q, 2), (59, 58, 64)[p], (q >> 1) * 1024 + (q & 1) * 512))
        if os.environ.get("WBD", "1") == "1" and p < 2:
            L.append(("wb", p))
        for x in L:
            fq.append(("e", p, x))

    def emit_filler():
        kind, g, x = fq.popleft()
        if callable(x):
            x()
        elif isinstance(x, tuple):
            nwb = k.newlab("nwb")
            k("s_cmp_eq_u32 s65, 0")
            k("s_cbranch_scc1 %s" % nwb)
            k("buffer_wbl2 sc1")
            k.lab(nwb)
        else:
            if x.startswith("buffer_store") or x.startswith("buffer_wbl2"):
                vm.issue()
            EXP = os.environ.get("EXP", "")
            if EXP in ("nofill", "memonly") and x.startswith("v_"):
                return
            if EXP == "addfill" and x.startswith("v_"):
                x = "v_add_f32 v%d, 1.0, v%d" % (T + (len(k.L) % 8), T + (len(k.L) % 8))
            if EXP == "e32" and x.startswith("v_"):
                x = "v_lshlrev_b32 v%d, 16, v%d" % (T + (len(k.L) % 8), T + 8 + (len(k.L) % 8))
            k(x)

    def flush_norm(g):
        last = -1
        for i, (kind, gg, x) in enumerate(fq):
            if kind == "n" and gg <= g:
                last = i
        n = last + 1
        for _ in range(n):
            emit_filler()
        if n:
            k("s_nop 1")
    k("s_lshl_b32 s65, s3, 8")
    k("s_add_u32 s65, s65, s2")
    k("s_cmp_lt_u32 s65, 8")
    k("s_cselect_b32 s65, 1, 0")
    k("s_add_u32 s58, s59, 2048")
    k("s_add_u32 s64, s59, 4096")
    k("s_cmp_eq_u32 s49, 14")
    k("s_cselect_b32 s58, 0x%x, s58" % WS_DUMMY)
    k("s_cselect_b32 s64, 0x%x, s64" % WS_DUMMY)
    for g in range(32):
        q_norm(g)

    def read1(gi, j):
        c = gi // 4
        fi = gi * 4 + j
        lds = (c % S) * CH + (fi % 16) * 1024
        k("ds_read_b128 a[%d:%d], v%d offset:%d" % (16 * (gi % 2) + 4 * j, 16 * (gi % 2) + 4 * j + 3, 7 + lds // 65536, lds % 65536))

    def boundary(c):
        if TSMODE == 1 and c >= 1: k.ts(1 + c)
        vflush(c + 1)
        vm.wait(tokA[c + 1])
        if not os.environ.get("NOBAR"):
            k("s_barrier")
        if TSMODE == 2 and c >= 1: k.ts(1 + c)
    boundary(0)
    for j in range(4):
        read1(0, j)
    seen = set()
    NPER = int(os.environ.get("NPER", "4"))
    for gi in range(48):
        if gi + 1 < 48 and (gi + 1) % 8 == 0:
            boundary((gi + 1) // 4)
        for j in range(4):
            t, ks = order[gi * 4 + j]
            flush_norm(ks + 1)
            k("s_waitcnt lgkmcnt(%d)" % (3 if gi + 1 < 48 else 3 - j))
            first = t not in seen
            seen.add(t)
            if os.environ.get("EXP", "") != "memonly":
                k("v_mfma_f32_32x32x16_bf16 %s, a[%d:%d], %s, %s" % (vr(ACC + 16 * t, 16), 16 * (gi % 2) + 4 * j, 16 * (gi % 2) + 4 * j + 3, vr(B + 4 * ks, 4), "0" if first else vr(ACC + 16 * t, 16)))
            if gi + 1 < 48 and os.environ.get("EXP", "") != "memonly":
                read1(gi + 1, j)
            vstep(gi * 4 + j)
            if ks == 31 and t >= 3:
                q_epi(t - 3)
            for _ in range(NPER):
                if fq:
                    emit_filler()
    k.ts(13)
    while fq:
        emit_filler()
    k.ts_flush(14)
    k.lab(end)
    return k


def build(kerns):
    head = open("cdna_kernels/%s.s.ref" % NAME).read().split("; @launch")[0]
    out = [head.rstrip("\n")]
    for kk in kerns:
        out.append("; @launch kernel=%s grid=(%d,1,1) block=(%d,1,1) lds=%d" % (kk.name, kk.grid, kk.block, kk.lds))
    out.append('.amdgcn_target "amdgcn-amd-amdhsa--gfx950"')
    out.append(".text")
    for kk in kerns:
        out.append(kk.text())
    out.append('.section .rodata,"a"')
    for kk in kerns:
        out.append(".p2align 6")
        out.append(kk.desc())
    return "\n".join(out) + "\n"


def main():
    which = sys.argv[1] if len(sys.argv) > 1 else "ABCDE"
    gens = {"A": gen_A}
    for nm in "BCDE":
        if "gen_" + nm in globals():
            gens[nm] = globals()["gen_" + nm]
    kerns = [gens[c]() for c in which if c in gens]
    txt = build(kerns)
    open("cdna_kernels/%s.s" % NAME, "w").write(txt)
    print("wrote", len(txt), "bytes;", [kk.name for kk in kerns])


if __name__ == "__main__":
    main()
```

```python
import sys, re

NAME = "sequential_preLN__grouped_kv_mqa__swiglu_ffn__prompt"

WS_Q = 0x000000
WS_K = 0x200000
WS_V = 0x210000
WS_CS = 0x220000
WS_KM = 0x228000
WS_O = 0x300000
WS_H = 0x500000
WS_ACT = 0x800000
ACT_LD = 2816
WS_ST = 0x230000
WS_WG = 0x1000000
WS_WD = 0x1400000
WS_WO = 0x1600000
WS_HP = 0x1800000
WS_DUMMY = 0x2000000
KS1 = int(__import__("os").environ.get("KS1", "16"))
WS_SIZE = 268435456
import os
DEBUG_TS = bool(os.environ.get('TS'))
FUSED = "F" in (sys.argv[1] if len(sys.argv) > 1 else "")
TSMODE = int(os.environ.get('TS', '0'))
SRD3 = "0x00020000"
LOG2E = 1.4426950408889634


def f32hex(x):
    import struct
    return "0x%08x" % struct.unpack("<I", struct.pack("<f", x))[0]


class Kern:
    def __init__(s, name, nvgpr, block, grid, lds, accum=None):
        s.name = name
        s.L = []
        s.nvgpr = nvgpr
        s.block = block
        s.grid = grid
        s.lds = lds
        s.accum = accum if accum is not None else nvgpr
        s.nlab = 0
        s.tsb = 70
        s.kidx = {"attn_kernel": 1, "wo_kernel": 2, "ffn1_kernel": 3, "down_kernel": 4}.get(name, 0)

    def __call__(s, txt):
        for t in txt.split("\n"):
            t = t.strip()
            if t:
                m = re.search(r"offset:(\d+)", t)
                if m:
                    lim = 4095 if t.startswith("buffer") else 65535
                    assert int(m.group(1)) <= lim, t
                if t.startswith("buffer_store") and os.environ.get("STMOD"):
                    t = t + " " + os.environ["STMOD"]
                s.L.append("    " + t)

    def lab(s, l):
        s.L.append(l + ":")

    def newlab(s, p):
        s.nlab += 1
        return "%s_%s%d" % (s.name.replace("_kernel", "")[:8], p, s.nlab)

    def srd(s, reg, preg, size):
        s("s_mov_b32 s%d, s%d" % (reg, preg))
        s("s_and_b32 s%d, s%d, 0xffff" % (reg + 1, preg + 1))
        s("s_mov_b32 s%d, 0x%x" % (reg + 2, size))
        s("s_mov_b32 s%d, %s" % (reg + 3, SRD3))

    def ts(s, idx):
        if not DEBUG_TS:
            return
        if TSMODE == 3:
            if idx == 0:
                s("s_memrealtime s[100:101]")
            return
        s("s_memtime s[%d:%d]" % (s.tsb + 2 * idx, s.tsb + 1 + 2 * idx))
        if idx == 0:
            s("s_memrealtime s[100:101]")

    def ts_flush(s, n):
        if not DEBUG_TS:
            return
        if TSMODE == 3:
            lab = s.newlab("nots")
            s("s_waitcnt vmcnt(0)")
            s("s_memrealtime s[72:73]")
            s("s_waitcnt lgkmcnt(0)")
            s("s_cmp_lg_u32 s3, 0")
            s("s_cbranch_scc1 %s" % lab)
            s("s_lshl_b32 s69, s2, 3")
            s("s_add_u32 s69, s69, 0x%x" % (0x1F00000 + 4096 * s.kidx))
            s("v_mov_b32 v0, 0")
            s("v_mov_b32 v2, s100")
            s("v_mov_b32 v3, s72")
            s("s_mov_b64 exec, 1")
            s("buffer_store_dwordx2 v[2:3], v0, s[20:23], s69 offen")
            s("s_mov_b64 exec, -1")
            s.lab(lab)
            return
        lab = s.newlab("nots")
        s("s_memrealtime s[64:65]")
        s("s_waitcnt lgkmcnt(0)")
        s("s_sub_u32 s67, s2, 100")
        s("s_cmp_ge_u32 s67, 4")
        s("s_cbranch_scc1 %s" % lab)
        s("s_cmp_lg_u32 s3, 0")
        s("s_cbranch_scc1 %s" % lab)
        s("s_load_dwordx2 s[96:97], s[0:1], 80")
        s("s_waitcnt lgkmcnt(0)")
        s("s_mov_b32 s98, 256")
        s("s_mov_b32 s99, 0x00020000")
        s("s_lshl_b32 s69, s67, 6")
        s("v_mov_b32 v0, 0")
        for i in range(n):
            s("s_sub_u32 s68, s%d, s%d" % (s.tsb + 2 * i, s.tsb))
            s("v_mov_b32 v1, s68")
            s("buffer_store_dword v1, v0, s[96:99], s69 offen offset:%d" % (4 * i))
            s("s_nop 2")
        s("s_sub_u32 s68, s64, s100")
        s("v_mov_b32 v1, s68")
        s("buffer_store_dword v1, v0, s[96:99], s69 offen offset:60")
        s.lab(lab)

    def text(s):
        out = []
        out.append(".globl %s" % s.name)
        out.append(".p2align 8")
        out.append(".type %s,@function" % s.name)
        out.append("%s:" % s.name)
        out += s.L
        out.append("    s_endpgm")
        return "\n".join(out)

    def desc(s):
        return "\n".join([
            ".amdhsa_kernel %s" % s.name,
            "  .amdhsa_next_free_vgpr %d" % s.nvgpr,
            "  .amdhsa_next_free_sgpr 102",
            "  .amdhsa_accum_offset %d" % s.accum,
            "  .amdhsa_group_segment_fixed_size 0",
            "  .amdhsa_kernarg_size 96",
            "  .amdhsa_user_sgpr_count 2",
            "  .amdhsa_user_sgpr_kernarg_segment_ptr 1",
            "  .amdhsa_system_sgpr_workgroup_id_x 1",
            ".end_amdhsa_kernel"])


def vr(a, n=1):
    return "v%d" % a if n == 1 else "v[%d:%d]" % (a, a + n - 1)


def sr(a, n=1):
    return "s%d" % a if n == 1 else "s[%d:%d]" % (a, a + n - 1)


def gen_A():
    k = Kern(NAME + "_kernel", 256, 256, 256, 163840)
    end = k.newlab("end")
    k("s_cmp_ge_u32 s2, 256")
    k("s_cbranch_scc1 %s" % end)
    k.ts(0)
    k("s_load_dwordx8 s[24:31], s[0:1], 0")
    k("s_load_dwordx2 s[32:33], s[0:1], 88")
    k("v_and_b32 v1, 63, v0")
    k("v_lshrrev_b32 v2, 6, v0")
    k("s_nop 1")
    k("v_readfirstlane_b32 s3, v2")
    k("s_and_b32 s48, s2, 7")
    k("s_lshl_b32 s48, s48, 2")
    k("s_bfe_u32 s49, s2, 0x20003")
    k("s_add_u32 s48, s48, s49")
    k("s_lshr_b32 s49, s2, 5")
    k("v_lshrrev_b32 v3, 4, v1")
    k("s_lshl_b32 s50, s3, 2")
    k("v_add_u32 v3, s50, v3")
    k("v_and_b32 v4, 15, v1")
    k("v_xor_b32 v4, v4, v3")
    k("v_lshlrev_b32 v4, 4, v4")
    k("s_lshl_b32 s51, s48, 6")
    k("v_add_u32 v3, s51, v3")
    k("v_lshl_add_u32 v4, v3, 10, v4")
    k("v_lshrrev_b32 v3, 3, v1")
    k("s_lshl_b32 s50, s3, 3")
    k("v_add_u32 v3, s50, v3")
    k("v_and_b32 v5, 7, v1")
    k("v_bfe_u32 v6, v1, 4, 1")
    k("v_lshlrev_b32 v6, 2, v6")
    k("v_xor_b32 v5, v5, v6")
    k("v_lshlrev_b32 v5, 4, v5")
    k("v_lshl_add_u32 v5, v3, 10, v5")
    k("s_lshl_b32 s50, s49, 7")
    k("v_add_u32 v5, s50, v5")
    k("v_lshlrev_b32 v6, 4, v1")
    k("s_lshl_b32 s52, s3, 10")
    k("s_and_b32 s56, s3, 1")
    k("s_lshr_b32 s57, s3, 1")
    k("s_lshl_b32 s62, s56, 11")
    k("s_and_b32 s50, s48, 7")
    k("s_lshl_b32 s63, s57, 8")
    k("s_or_b32 s50, s50, s63")
    k("s_cmp_eq_u32 s50, s49")
    k("s_cselect_b32 s53, 1, 0")
    k("s_waitcnt lgkmcnt(0)")
    k.srd(4, 24, 2048 * 512 * 2)
    for c in range(4):
        for j in range(4):
            k("s_add_u32 m0, s52, %d" % (c * 16384 + j * 4096))
            k("s_mov_b32 s54, %d" % (j * 16 * 1024 + c * 256))
            k("buffer_load_dwordx4 v4, s[4:7], s54 offen lds")
    k.srd(8, 26, 512 * 512 * 2)
    k.srd(12, 28, 512 * 16 * 2)
    k.srd(16, 30, 512 * 16 * 2)
    k.srd(20, 32, WS_SIZE)
    k.ts(1)
    k("v_and_b32 v7, 31, v1")
    k("s_lshl_b32 s58, s56, 5")
    k("v_add_u32 v7, s58, v7")
    k("v_lshrrev_b32 v8, 5, v1")
    k("v_and_b32 v9, 15, v7")
    k("v_xor_b32 v9, v9, v8")
    k("v_lshlrev_b32 v9, 4, v9")
    k("v_lshl_add_u32 v9, v7, 8, v9")
    XA = 16
    for ks in range(8):
        k("v_xor_b32 v%d, %d, v9" % (XA + ks, ks * 32))
    k("v_lshrrev_b32 v7, 5, v1")
    k("v_lshlrev_b32 v7, 3, v7")
    k("v_bfe_u32 v10, v1, 2, 2")
    k("v_add_u32 v7, v7, v10")
    k("v_bfe_u32 v10, v1, 4, 1")
    k("v_lshlrev_b32 v10, 5, v10")
    k("v_and_b32 v11, 3, v1")
    k("v_lshl_add_u32 v10, v11, 3, v10")
    k("s_lshl_b32 s58, s57, 6")
    k("v_add_u32 v10, s58, v10")
    k("v_bfe_u32 v11, v1, 3, 1")
    k("v_lshlrev_b32 v11, 6, v11")
    k("v_xor_b32 v10, v10, v11")
    k("v_lshl_add_u32 v10, v7, 7, v10")
    k("v_add_u32 v10, 0x10000, v10")
    k("v_and_b32 v11, 3, v1")
    k("v_lshlrev_b32 v11, 3, v11")
    k("v_lshl_add_u32 v11, v7, 5, v11")
    k("v_bfe_u32 v12, v1, 4, 1")
    k("v_lshl_add_u32 v11, v12, 14, v11")
    k("v_add_u32 v11, 0x20000, v11")
    ONES = 24
    for i in range(4):
        k("v_mov_b32 v%d, 0x3f803f80" % (ONES + i))
    S1, S2 = 28, 29
    for i in range(4):
        k("v_mov_b32 v%d, 0" % (28 + i))
    ACC, CS, ACC2, CS2 = 32, 48, 64, 80
    BF, AF, AK = 96, 224, 240
    done = k.newlab("done")
    kvp = k.newlab("kvp")
    k("s_cmp_lg_u32 s53, 0")
    k("s_cbranch_scc1 %s" % kvp)

    def body(kv):
        nW = 8 if kv else 4

        def issueW(c):
            for j in range(4):
                k("s_add_u32 m0, s52, %d" % (65536 + c * 16384 + j * 4096))
                k("s_mov_b32 s54, %d" % ((c * 128 + 32 * j) * 1024))
                k("buffer_load_dwordx4 v5, s[8:11], s54 offen lds")
            if kv:
                for (srdn, base) in ((12, 131072), (16, 147456)):
                    for j in range(2):
                        k("s_add_u32 s54, s62, %d" % (c * 4096 + j * 1024))
                        k("s_add_u32 m0, s54, %d" % base)
                        k("buffer_load_dwordx4 v6, s[%d:%d], s54 offen lds" % (srdn, srdn + 3))
        for c in range(4):
            k("s_waitcnt vmcnt(%d)" % (4 * (3 - c) + c * nW))
            k("s_barrier")
            if not kv: k.ts(2 + c)
            for ks in range(8):
                k("ds_read_b128 %s, v%d offset:%d" % (vr(BF + 4 * (8 * c + ks), 4), XA + ks, c * 16384))
            issueW(c)
            for ks in range(8):
                k("s_waitcnt lgkmcnt(%d)" % (7 - ks))
                for q in range(4):
                    b = BF + 4 * (8 * c + ks) + q
                    k("v_dot2c_f32_bf16 v%d, v%d, v%d" % (28 + 2 * (q & 1), b, ONES))
                    k("v_dot2c_f32_bf16 v%d, v%d, v%d" % (29 + 2 * (q & 1), b, b))

        def rdA(g):
            c, ks = g // 8, g % 8
            k("ds_read_b64_tr_b16 %s, v10 offset:%d" % (vr(AF + 4 * (g % 4), 2), c * 16384 + ks * 2048))
            k("ds_read_b64_tr_b16 %s, v10 offset:%d" % (vr(AF + 4 * (g % 4) + 2, 2), c * 16384 + ks * 2048 + 512))
            if kv:
                k("ds_read_b64_tr_b16 %s, v11 offset:%d" % (vr(AK + 4 * (g % 4), 2), (c * 128 + ks * 16) * 32))
                k("ds_read_b64_tr_b16 %s, v11 offset:%d" % (vr(AK + 4 * (g % 4) + 2, 2), (c * 128 + ks * 16 + 4) * 32))
        nr = 4 if kv else 2
        for c in range(4):
            k("s_waitcnt vmcnt(%d)" % ((3 - c) * nW))
            k("s_barrier")
            if not kv: k.ts(6 + c)
            for ks in range(3):
                rdA(8 * c + ks)
            if c == 0:
                k("v_add_f32 v28, v28, v30")
                k("v_add_f32 v29, v29, v31")
                k("v_mov_b32 v30, v28")
                k("v_mov_b32 v31, v29")
                k("s_nop 1")
                k("v_permlane32_swap_b32 v28, v30")
                k("v_permlane32_swap_b32 v29, v31")
                k("s_nop 1")
                k("v_add_f32 v28, v28, v30")
                k("v_add_f32 v29, v29, v31")
                k("v_mul_f32 v%d, %s, v%d" % (S1, f32hex(1.0 / 512), S1))
                k("v_mul_f32 v%d, %s, v%d" % (S2, f32hex(1.0 / 512), S2))
                k("v_fma_f32 v%d, -v%d, v%d, v%d" % (S2, S1, S1, S2))
                k("v_add_f32 v%d, %s, v%d" % (S2, f32hex(1e-5), S2))
                k("v_rsq_f32 v%d, v%d" % (S2, S2))
                k("s_nop 1")
                k("v_mul_f32 v30, %s, v%d" % (f32hex(0.25 * LOG2E), S2))
            for ks in range(8):
                g = 8 * c + ks
                ahead = min(2, 7 - ks)
                k("s_waitcnt lgkmcnt(%d)" % (ahead * nr))
                first = g == 0
                k("v_mfma_f32_32x32x16_bf16 %s, %s, %s, %s" % (vr(ACC, 16), vr(AF + 4 * (g % 4), 4), vr(BF + 4 * g, 4), "0" if first else vr(ACC, 16)))
                if ks + 3 < 8:
                    rdA(g + 3)
                k("v_mfma_f32_32x32x16_bf16 %s, %s, %s, %s" % (vr(CS, 16), vr(AF + 4 * (g % 4), 4), vr(ONES, 4), "0" if first else vr(CS, 16)))
                if kv:
                    k("v_mfma_f32_32x32x16_bf16 %s, %s, %s, %s" % (vr(ACC2, 16), vr(AK + 4 * (g % 4), 4), vr(BF + 4 * g, 4), "0" if first else vr(ACC2, 16)))
                    k("v_mfma_f32_32x32x16_bf16 %s, %s, %s, %s" % (vr(CS2, 16), vr(AK + 4 * (g % 4), 4), vr(ONES, 4), "0" if first else vr(CS2, 16)))
    body(False)
    k("s_branch %s" % done)
    k.lab(kvp)
    body(True)
    k.lab(done)
    k.ts(10)
    k("v_and_b32 v7, 31, v1")
    k("s_lshl_b32 s58, s56, 5")
    k("s_add_u32 s58, s58, s51")
    k("v_add_u32 v7, s58, v7")
    k("v_lshrrev_b32 v8, 5, v1")
    k("v_lshlrev_b32 v9, 3, v8")
    k("v_lshl_add_u32 v12, v7, 10, v9")
    k("s_lshl_b32 s59, s49, 7")
    k("s_lshl_b32 s60, s57, 6")
    k("s_add_u32 s59, s59, s60")
    k("s_add_u32 s59, s59, 0x%x" % WS_Q)
    k("s_nop 15")
    TQ = 224
    for r in range(16):
        k("v_fma_f32 v%d, -v%d, v%d, v%d" % (ACC + r, S1, CS + r, ACC + r))
    for r in range(16):
        k("v_mul_f32 v%d, v30, v%d" % (ACC + r, ACC + r))
    for r in range(8):
        k("v_cvt_pk_bf16_f32 v%d, v%d, v%d" % (TQ + r, ACC + 2 * r, ACC + 2 * r + 1))
    for q in range(4):
        k("buffer_store_dwordx2 %s, v12, s[20:23], s59 offen offset:%d" % (vr(TQ + 2 * q, 2), 16 * q))
    k.ts(11)
    k.ts_flush(12)
    k("s_cmp_eq_u32 s53, 0")
    k("s_cbranch_scc1 %s" % end)
    ACC, CS = ACC2, CS2
    for r in range(16):
        k("v_fma_f32 v%d, -v%d, v%d, v%d" % (ACC + r, S1, CS + r, ACC + r))
    for r in range(16):
        k("v_mul_f32 v%d, v%d, v%d" % (ACC + r, S2, ACC + r))
    for r in range(8):
        k("v_cvt_pk_bf16_f32 v%d, v%d, v%d" % (CS + r, ACC + 2 * r, ACC + 2 * r + 1))
    k("v_mov_b32 v14, 0")
    for i in range(4):
        k("v_dot2c_f32_bf16 v14, v%d, v%d" % (CS + i, CS + i))
    k("s_nop 4")
    k("v_mov_b32 v15, v14")
    k("s_nop 1")
    k("v_permlane32_swap_b32 v14, v15")
    k("s_nop 1")
    k("v_add_f32 v14, v14, v15")
    k("s_nop 1")
    for r in (8, 4, 2, 1):
        k("v_max_f32_dpp v14, v14, v14 row_ror:%d row_mask:0xf bank_mask:0xf" % r)
        k("s_nop 1")
    k("v_readlane_b32 s60, v14, 0")
    k("v_readlane_b32 s61, v14, 16")
    k("s_nop 3")
    k("s_max_u32 s60, s60, s61")
    k("v_mov_b32 v14, s60")
    k("v_mov_b32 v15, 0")
    k("s_lshl_b32 s61, s48, 1")
    k("s_add_u32 s61, s61, s56")
    k("s_lshl_b32 s61, s61, 2")
    k("s_add_u32 s61, s61, 0x%x" % WS_KM)
    k("s_mov_b64 exec, 1")
    k("buffer_store_dword v14, v15, s[20:23], s61 offen")
    k("s_mov_b64 exec, -1")
    k("v_and_b32 v13, 31, v1")
    k("v_lshlrev_b32 v13, 4, v13")
    k("v_lshl_add_u32 v13, v8, 3, v13")
    k("s_lshl_b32 s59, s48, 1")
    k("s_add_u32 s59, s59, s56")
    k("s_lshl_b32 s59, s59, 10")
    k("s_add_u32 s59, s59, 0x%x" % WS_K)
    k("buffer_store_dwordx2 %s, v13, s[20:23], s59 offen" % vr(CS, 2))
    k("buffer_store_dwordx2 %s, v13, s[20:23], s59 offen offset:512" % vr(CS + 2, 2))
    k("v_lshrrev_b32 v13, 4, v7")
    k("v_lshlrev_b32 v13, 9, v13")
    k("v_bfe_u32 v14, v7, 2, 1")
    k("v_lshl_add_u32 v13, v14, 8, v13")
    k("v_bfe_u32 v14, v7, 3, 1")
    k("v_lshl_add_u32 v13, v14, 3, v13")
    k("v_and_b32 v14, 3, v7")
    k("v_lshl_add_u32 v13, v14, 1, v13")
    k("v_lshl_add_u32 v13, v8, 6, v13")
    k("s_mov_b32 s59, 0x%x" % WS_V)
    for r in range(8, 16):
        d = (r & 3) + 8 * ((r >> 2) - 2)
        src = CS + r // 2
        op = "buffer_store_short" if r % 2 == 0 else "buffer_store_short_d16_hi"
        k("%s v%d, v13, s[20:23], s59 offen offset:%d" % (op, src, d * 16))
    k.lab(end)
    return k


def gen_B():
    k = Kern("attn_kernel", 128, 1024, 256, 163840)
    end = k.newlab("end")
    k("s_cmp_ge_u32 s2, 256")
    k("s_cbranch_scc1 %s" % end)
    k.tsb = 4
    k.ts(0)
    k("s_load_dwordx2 s[32:33], s[0:1], 88")
    k("s_load_dwordx4 s[36:39], s[0:1], 48")
    k("s_load_dwordx2 s[40:41], s[0:1], 64")
    k("s_load_dwordx2 s[42:43], s[0:1], 32")
    k("v_and_b32 v1, 63, v0")
    k("v_lshrrev_b32 v2, 6, v0")
    k("s_nop 1")
    k("v_readfirstlane_b32 s3, v2")
    k("v_and_b32 v2, 31, v1")
    k("v_lshlrev_b32 v2, 5, v2")
    k("v_lshrrev_b32 v3, 5, v1")
    k("v_lshl_add_u32 v2, v3, 4, v2")
    k("v_lshlrev_b32 v8, 4, v1")
    k("s_and_b32 s48, s3, 7")
    k("s_lshr_b32 s49, s3, 3")
    k("s_lshl_b32 s50, s2, 3")
    k("s_add_u32 s50, s50, s48")
    k("s_lshl_b32 s51, s50, 10")
    k("s_add_u32 s51, s51, 0x%x" % WS_Q)
    k("s_lshr_b32 s52, s3, 3")
    k("s_lshl_b32 s52, s52, 15")
    k("s_and_b32 s53, s3, 7")
    k("s_lshl_b32 s53, s53, 10")
    k("s_add_u32 s52, s52, s53")
    k("s_waitcnt lgkmcnt(0)")
    k.srd(20, 32, WS_SIZE)
    QF = 4
    k("buffer_load_dwordx4 %s, v2, s[20:23], s51 offen" % vr(QF, 4))
    if FUSED:
        zl = k.newlab("zf")
        k("s_lshl_b32 s60, s3, 8")
        k("s_add_u32 s60, s60, s2")
        k("s_cmp_ge_u32 s60, 16")
        k("s_cbranch_scc1 %s" % zl)
        k("s_lshl_b32 s60, s2, 10")
        k("s_add_u32 s60, s60, 0x%x" % WS_FL)
        for i in range(4):
            k("v_mov_b32 v%d, 0" % (12 + i))
        k("buffer_store_dwordx4 v[12:15], v8, s[20:23], s60 offen")
        k.lab(zl)
    k("s_lshl_b32 s54, s49, 7")
    k("s_add_u32 s54, s54, 0x%x" % WS_KM)
    k("s_add_u32 s56, s32, s54")
    k("s_addc_u32 s57, s33, 0")
    k("s_load_dwordx16 s[64:79], s[56:57], 0")
    k("s_load_dwordx16 s[80:95], s[56:57], 64")
    for j in range(4):
        for ss in range(2):
            k("s_add_u32 m0, s52, %d" % (ss * 65536 + j * 8192))
            k("s_add_u32 s53, s52, 0x%x" % (WS_K + ss * 65536 + j * 8192))
            k("buffer_load_dwordx4 v8, s[20:23], s53 offen lds")
    k("s_lshl_b32 s54, s49, 15")
    k("v_add_u32 v9, s54, v8")
    k("v_and_b32 v10, 15, v1")
    k("v_lshlrev_b32 v10, 4, v10")
    k("v_lshl_add_u32 v10, v3, 8, v10")
    k("v_add_u32 v10, s54, v10")
    k("v_add_u32 v10, 0x10000, v10")
    NEG, SA, SB, O, PK, KF, VF = 16, 32, 48, 64, 80, 88, 100
    M = 11
    for i in range(16):
        k("v_mov_b32 v%d, 0x3f803f80" % (VF + i))
    k("s_mov_b32 s58, 0xffff")
    k("s_mov_b32 s59, 0xffff")
    k("s_waitcnt lgkmcnt(0)")
    for i in range(1, 32):
        k("s_max_u32 s64, s64, s%d" % (64 + i))
    k("v_mov_b32 v12, 0")
    k("s_waitcnt vmcnt(8)")
    for i in range(4):
        k("v_dot2c_f32_bf16 v12, v%d, v%d" % (QF + i, QF + i))
    k("s_nop 4")
    k("v_mov_b32 v13, v12")
    k("s_nop 1")
    k("v_permlane32_swap_b32 v12, v13")
    k("s_nop 1")
    k("v_add_f32 v12, v12, v13")
    k("v_mul_f32 v12, s64, v12")
    k("v_sqrt_f32 v%d, v12" % M)
    k("s_nop 1")
    for i in range(16):
        k("v_xor_b32 v%d, 0x80000000, v%d" % (NEG + i, M))
    S = [SA, SB]
    NT = 32

    RP, RQ = 116, 124

    def repack_issue():
        l_dn, l_go = k.newlab("rdn"), k.newlab("rgo")
        k("s_cmp_ge_u32 s64, 2752")
        k("s_cbranch_scc1 %s" % l_dn)
        k("s_lshr_b32 s65, s64, 5")
        k("s_and_b32 s66, s64, 31")
        k("s_cmp_ge_u32 s65, 43")
        k("s_cselect_b32 s67, 1, 0")
        k("s_cselect_b32 s84, s38, s36")
        k("s_cselect_b32 s85, s39, s37")
        k("s_mul_i32 s68, s67, 43")
        k("s_sub_u32 s65, s65, s68")
        k("s_mul_i32 s68, s65, 171")
        k("s_lshr_b32 s68, s68, 9")
        k("s_mul_i32 s69, s68, 3")
        k("s_sub_u32 s69, s65, s69")
        k("s_mul_i32 s70, s66, 6")
        k("s_mul_i32 s71, s67, 3")
        k("s_add_u32 s70, s70, s71")
        k("s_add_u32 s70, s70, s69")
        k("s_mul_i32 s71, s69, %d" % ((32 - KS1) * 2))
        k("s_lshl_b32 s72, s66, 1")
        k("s_add_u32 s71, s71, s72")
        k("s_add_u32 s71, s71, s67")
        k("s_add_u32 s71, s71, %d" % (KS1 * 6 - 2 * KS1))
        k("s_cmp_lt_u32 s66, %d" % KS1)
        k("s_cselect_b32 s70, s70, s71")
        k("s_lshl_b32 s70, s70, 10")
        k("s_mul_i32 s90, s68, 196608")
        k("s_add_u32 s90, s90, s70")
        k("s_add_u32 s90, s90, 0x%x" % WS_WG)
        k("s_mov_b32 s86, %d" % (512 * 2752))
        k("s_mov_b32 s89, 2752")
        k("s_branch %s" % l_go)
        k.lab(l_dn)
        k("s_sub_u32 s64, s64, 2752")
        k("s_cmp_ge_u32 s64, 1376")
        k("s_cselect_b32 s84, s42, s40")
        k("s_cselect_b32 s85, s43, s41")
        k("s_mov_b32 s86, %d" % (1376 * 1024))
        k("s_mov_b32 s68, %d" % (86 * 2048))
        k("s_mov_b32 s90, 0x%x" % WS_WD)
        k("s_cselect_b32 s86, %d, s86" % (512 * 1024))
        k("s_cselect_b32 s67, 1376, 0")
        k("s_cselect_b32 s68, 65536, s68")
        k("s_cselect_b32 s90, 0x%x, s90" % WS_WO)
        k("s_sub_u32 s64, s64, s67")
        k("s_lshr_b32 s66, s64, 4")
        k("s_and_b32 s65, s64, 15")
        k("s_lshr_b32 s69, s65, 1")
        k("s_mul_i32 s69, s69, s68")
        k("s_add_u32 s90, s90, s69")
        k("s_lshl_b32 s69, s66, 11")
        k("s_add_u32 s90, s90, s69")
        k("s_and_b32 s69, s65, 1")
        k("s_lshl_b32 s69, s69, 10")
        k("s_add_u32 s90, s90, s69")
        k("s_mov_b32 s89, 1024")
        k.lab(l_go)
        k("s_and_b32 s85, s85, 0xffff")
        k("s_mov_b32 s87, %s" % SRD3)
        k("s_mul_i32 s88, s66, s89")
        k("s_lshl_b32 s88, s88, 4")
        k("s_lshl_b32 s69, s65, 6")
        k("s_add_u32 s88, s88, s69")
        k("s_lshl_b32 s69, s89, 3")
        k("v_mul_u32_u24 v14, s69, v3")
        k("v_and_b32 v15, 31, v1")
        k("v_lshl_add_u32 v14, v15, 1, v14")
        for j in range(8):
            k("buffer_load_ushort v%d, v14, s[84:87], s88 offen" % (RP + j))
            if j < 7:
                k("s_add_u32 s88, s88, s89")

    def repack_store():
        k("s_waitcnt vmcnt(0)")
        for q in range(4):
            k("v_lshl_or_b32 v%d, v%d, 16, v%d" % (RQ + q, RP + 2 * q + 1, RP + 2 * q))
        k("buffer_store_dwordx4 %s, v8, s[20:23], s90 offen" % vr(RQ, 4))

    EXPB = os.environ.get("EXPB", "")
    PRIO = int(os.environ.get("PRIO", "1"))
    RT = [int(x) for x in os.environ.get("RT", "1,12,24").split(",")]
    repack_wait = [False]
    def rdV(t):
        if "noV" in EXPB and t > 1:
            k("ds_read_b32 v15, v10"); k("ds_read_b32 v15, v10")
            return
        k("s_mov_b64 exec, s[58:59]")
        k("ds_read_b128 %s, v10 offset:%d" % (vr(VF + 8 * (t % 2), 4), t * 1024))
        k("ds_read_b128 %s, v10 offset:%d" % (vr(VF + 8 * (t % 2) + 4, 4), t * 1024 + 512))
        k("s_mov_b64 exec, -1")

    def pass2(bars):
        if bars:
            k("s_waitcnt vmcnt(6)")
            k("s_barrier")
            k.ts(1)
        k("ds_read_b128 %s, v9 offset:0" % vr(KF, 4))
        k("ds_read_b128 %s, v9 offset:1024" % vr(KF + 4, 4))
        rdV(0)
        k("s_waitcnt lgkmcnt(3)")
        k("v_mfma_f32_32x32x16_bf16 %s, %s, %s, %s" % (vr(S[0], 16), vr(KF, 4), vr(QF, 4), vr(NEG, 16)))
        for t in range(NT):
            n_new = 0
            if bars and t == 8: k.ts(2)
            if bars and t == 16: k.ts(3)
            if bars and t == 23: k.ts(4)
            if bars and PRIO and t % 8 in (0, 2, 4, 6):
                k("s_setprio %d" % (3 - ((t + 2) % 8) // 2 if PRIO == 1 else 3 - (t % 8) // 2))
            if bars and t == RT[0]:
                k("s_lshl_b32 s64, s2, 4")
                k("s_add_u32 s64, s64, s3")
                repack_issue()
            if bars and t == RT[1]:
                repack_store()
                k.ts(5)
                nr2 = k.newlab("nr2")
                k("s_lshl_b32 s64, s3, 8")
                k("s_add_u32 s64, s64, s2")
                k("s_cmp_ge_u32 s64, 544")
                k("s_cbranch_scc1 %s" % nr2)
                k("s_add_u32 s64, s64, 4096")
                repack_issue()
                repack_wait[0] = True
                k.lab(nr2)
            if bars and t == int(os.environ.get("WBT", "27")):
                nwb = k.newlab("nwb")
                k("s_lshl_b32 s64, s3, 8")
                k("s_add_u32 s64, s64, s2")
                k("s_cmp_ge_u32 s64, 8")
                k("s_cbranch_scc1 %s" % nwb)
                k("buffer_wbl2 sc1")
                k.lab(nwb)
            if bars and t == RT[2]:
                nr3 = k.newlab("nr3")
                k("s_lshl_b32 s64, s3, 8")
                k("s_add_u32 s64, s64, s2")
                k("s_cmp_ge_u32 s64, 544")
                k("s_cbranch_scc1 %s" % nr3)
                repack_store()
                k.lab(nr3)
            if t + 2 < NT:
                if bars and (t + 2) % 8 == 0:
                    young = 8 if RT[0] <= t < RT[1] else 0
                    if t >= RT[1]:
                        pass
                    else:
                        k("s_waitcnt vmcnt(%d)" % (6 - 2 * ((t + 2) // 8) + young))
                    k("s_barrier")
                k("ds_read_b128 %s, v9 offset:%d" % (vr(KF + 4 * ((t + 2) % 3), 4), (t + 2) * 1024))
                n_new += 1
            if t + 1 < NT:
                k("s_waitcnt lgkmcnt(%d)" % (2 + n_new))
                k("v_mfma_f32_32x32x16_bf16 %s, %s, %s, %s" % (vr(S[(t + 1) % 2], 16), vr(KF + 4 * ((t + 1) % 3), 4), vr(QF, 4), vr(NEG, 16)))
            if t == 0:
                k("s_nop 10")
            s = S[t % 2]
            for i in range(16):
                if "noexp" in EXPB and i >= 8: continue
                k("v_exp_f32 v%d, v%d" % (s + i, s + i))
            for i in range(8):
                if "nocvt" in EXPB: continue
                k("v_cvt_pk_bf16_f32 v%d, v%d, v%d" % (PK + i, s + 2 * i, s + 2 * i + 1))
            k("s_waitcnt lgkmcnt(%d)" % n_new)
            if "nopv" not in EXPB or t == 0:
                k("v_mfma_f32_32x32x16_bf16 %s, %s, %s, %s" % (vr(O, 16), vr(VF + 8 * (t % 2), 4), vr(PK, 4), "0" if t == 0 else vr(O, 16)))
                k("v_mfma_f32_32x32x16_bf16 %s, %s, %s, %s" % (vr(O, 16), vr(VF + 8 * (t % 2) + 4, 4), vr(PK + 4, 4), vr(O, 16)))
            if t + 1 < NT:
                rdV(t + 1)
    pass2(True)
    k.ts(6)
    k("s_nop 15")
    k("v_cmp_gt_f32 vcc, 0x%08x, v%d" % ((127 - 64) << 23, O + 8))
    k("v_cmp_u_f32 s[60:61], v%d, v%d" % (O + 8, O + 8))
    k("s_or_b64 vcc, vcc, s[60:61]")
    comb = k.newlab("comb")
    k("s_cbranch_vccz %s" % comb)
    k("v_mov_b32 v%d, 0xff800000" % M)
    k("ds_read_b128 %s, v9 offset:0" % vr(KF, 4))
    k("ds_read_b128 %s, v9 offset:1024" % vr(KF + 4, 4))
    k("s_waitcnt lgkmcnt(1)")
    k("v_mfma_f32_32x32x16_bf16 %s, %s, %s, 0" % (vr(S[0], 16), vr(KF, 4), vr(QF, 4)))
    for t in range(NT):
        if t + 2 < NT:
            k("ds_read_b128 %s, v9 offset:%d" % (vr(KF + 4 * ((t + 2) % 3), 4), (t + 2) * 1024))
        if t + 1 < NT:
            k("s_waitcnt lgkmcnt(%d)" % (1 if t + 2 < NT else 0))
            k("v_mfma_f32_32x32x16_bf16 %s, %s, %s, 0" % (vr(S[(t + 1) % 2], 16), vr(KF + 4 * ((t + 1) % 3), 4), vr(QF, 4)))
        k("s_nop 10" if t == 0 else "s_nop 3")
        s = S[t % 2]
        for i in range(8):
            k("v_max3_f32 v%d, v%d, v%d, v%d" % (M, s + 2 * i, s + 2 * i + 1, M))
    k("v_mov_b32 v12, v%d" % M)
    k("s_nop 1")
    k("v_permlane32_swap_b32 v%d, v12" % M)
    k("s_nop 1")
    k("v_max_f32 v%d, v%d, v12" % (M, M))
    for i in range(16):
        k("v_xor_b32 v%d, 0x80000000, v%d" % (NEG + i, M))
    k("s_nop 1")
    pass2(False)
    k("s_nop 15")
    k.lab(comb)
    k("s_mul_i32 s60, s48, 2560")
    k("s_add_u32 s60, s60, 0x20000")
    k("v_lshlrev_b32 v12, 2, v1")
    k("v_add_u32 v12, s60, v12")
    w1 = k.newlab("w1")
    k("s_cmp_eq_u32 s49, 0")
    k("s_cbranch_scc1 %s" % w1)
    for i in range(9):
        k("ds_write_b32 v12, v%d offset:%d" % (O + i, i * 256))
    k("ds_write_b32 v12, v%d offset:%d" % (M, 9 * 256))
    k("s_waitcnt lgkmcnt(0)")
    k("s_barrier")
    k("s_branch %s" % end)
    k.lab(w1)
    k("s_barrier")
    for i in range(9):
        k("ds_read_b32 v%d, v12 offset:%d" % (SA + i, i * 256))
    k("ds_read_b32 v%d, v12 offset:%d" % (SA + 9, 9 * 256))
    k("s_waitcnt lgkmcnt(0)")
    m1 = SA + 9
    k("v_max_f32 v13, v%d, v%d" % (M, m1))
    k("v_sub_f32 v14, v%d, v13" % M)
    k("v_sub_f32 v15, v%d, v13" % m1)
    k("v_exp_f32 v14, v14")
    k("v_exp_f32 v15, v15")
    k("s_nop 1")
    for i in range(9):
        k("v_mul_f32 v%d, v14, v%d" % (O + i, O + i))
    for i in range(9):
        k("v_fma_f32 v%d, v15, v%d, v%d" % (O + i, SA + i, O + i))
    k("v_rcp_f32 v13, v%d" % (O + 8))
    k("s_nop 1")
    for i in range(8):
        k("v_mul_f32 v%d, v13, v%d" % (O + i, O + i))
    for i in range(4):
        k("v_cvt_pk_bf16_f32 v%d, v%d, v%d" % (PK + i, O + 2 * i, O + 2 * i + 1))
    k("v_and_b32 v2, 31, v1")
    k("v_lshlrev_b32 v2, 5, v2")
    k("v_lshl_add_u32 v2, v3, 3, v2")
    k("s_lshl_b32 s51, s50, 10")
    k("s_add_u32 s51, s51, 0x%x" % WS_O)
    k("buffer_store_dwordx2 %s, v2, s[20:23], s51 offen" % vr(PK, 2))
    k("buffer_store_dwordx2 %s, v2, s[20:23], s51 offen offset:16" % vr(PK + 2, 2))
    k.ts(7)
    k.ts_flush(8)
    k.lab(end)
    return k


def gen_gemm64(name, x_ws_off, ldx, w_karg, K, resid, outp, S=4, stats=False):
    lds = S * 32768
    k = Kern(name, 128, 256, 256, lds)
    end = k.newlab("end")
    k("s_cmp_ge_u32 s2, 256")
    k("s_cbranch_scc1 %s" % end)
    k.ts(0)
    k("s_load_dwordx2 s[24:25], s[0:1], %d" % w_karg)
    k("s_load_dwordx2 s[32:33], s[0:1], 88")
    if resid[0] == 'karg':
        k("s_load_dwordx2 s[26:27], s[0:1], %d" % resid[1])
    if outp[0] == 'karg':
        k("s_load_dwordx2 s[28:29], s[0:1], %d" % outp[1])
    k("v_and_b32 v1, 63, v0")
    k("v_lshrrev_b32 v2, 6, v0")
    k("s_nop 1")
    k("v_readfirstlane_b32 s3, v2")
    k("s_and_b32 s48, s2, 7")
    k("s_lshl_b32 s48, s48, 2")
    k("s_bfe_u32 s49, s2, 0x20003")
    k("s_add_u32 s48, s48, s49")
    k("s_lshr_b32 s49, s2, 5")
    k("s_waitcnt lgkmcnt(0)")
    k.srd(8, 24, K * 1024)
    k.srd(20, 32, WS_SIZE)
    if resid[0] == 'karg':
        k.srd(12, 26, 2048 * 1024)
        rs, roff = 12, 0
    else:
        rs, roff = 20, resid[1]
    if outp[0] == 'karg':
        k.srd(16, 28, 2048 * 1024)
        os_, ooff = 16, 0
    else:
        os_, ooff = 20, outp[1]
    k("v_lshrrev_b32 v3, 4, v1")
    k("s_lshl_b32 s50, s3, 2")
    k("v_add_u32 v3, s50, v3")
    k("v_and_b32 v4, 15, v1")
    k("v_xor_b32 v4, v4, v3")
    k("v_lshlrev_b32 v4, 4, v4")
    k("s_lshl_b32 s51, s48, 6")
    k("v_add_u32 v3, s51, v3")
    k("v_mul_u32_u24 v3, %d, v3" % ldx)
    k("v_add_u32 v4, v3, v4")
    k("v_lshrrev_b32 v3, 3, v1")
    k("s_lshl_b32 s50, s3, 3")
    k("v_add_u32 v3, s50, v3")
    k("v_and_b32 v5, 7, v1")
    k("v_bfe_u32 v6, v1, 4, 1")
    k("v_lshlrev_b32 v6, 2, v6")
    k("v_xor_b32 v5, v5, v6")
    k("v_lshlrev_b32 v5, 4, v5")
    k("v_lshl_add_u32 v5, v3, 10, v5")
    k("s_lshl_b32 s50, s49, 7")
    k("v_add_u32 v5, s50, v5")
    k("s_lshl_b32 s52, s3, 10")
    chunks = []
    kk = 0
    while kk < K:
        c = min(128, K - kk)
        chunks.append((kk, c))
        kk += c
    NC = len(chunks)

    def issue(c):
        k0, kc = chunks[c]
        st = (c % S) * 32768
        n = 0
        for j in range(4):
            k("s_add_u32 m0, s52, %d" % (st + j * 4096))
            k("s_mov_b32 s54, %d" % (x_ws_off + j * 16 * ldx + k0 * 2))
            k("buffer_load_dwordx4 v4, s[20:23], s54 offen lds")
            n += 1
        for j in range(kc // 32):
            k("s_add_u32 m0, s52, %d" % (st + 16384 + j * 4096))
            k("s_mov_b32 s54, %d" % ((k0 + 32 * j) * 1024))
            k("buffer_load_dwordx4 v5, s[8:11], s54 offen lds")
            n += 1
        return n
    cnt = {}
    for c in range(min(S - 1, NC)):
        cnt[c] = issue(c)
    k("s_and_b32 s56, s3, 1")
    k("s_lshr_b32 s57, s3, 1")
    k("v_and_b32 v7, 31, v1")
    k("s_lshl_b32 s58, s56, 5")
    k("v_add_u32 v7, s58, v7")
    k("v_lshrrev_b32 v8, 5, v1")
    k("v_and_b32 v9, 15, v7")
    k("v_xor_b32 v9, v9, v8")
    k("v_lshlrev_b32 v9, 4, v9")
    k("v_lshl_add_u32 v9, v7, 8, v9")
    XA = 16
    for ks in range(8):
        k("v_xor_b32 v%d, %d, v9" % (XA + ks, ks * 32))
    k("v_lshrrev_b32 v11, 5, v1")
    k("v_lshlrev_b32 v11, 3, v11")
    k("v_bfe_u32 v10, v1, 2, 2")
    k("v_add_u32 v11, v11, v10")
    k("v_bfe_u32 v10, v1, 4, 1")
    k("v_lshlrev_b32 v10, 5, v10")
    k("v_and_b32 v12, 3, v1")
    k("v_lshl_add_u32 v10, v12, 3, v10")
    k("s_lshl_b32 s58, s57, 6")
    k("v_add_u32 v10, s58, v10")
    k("v_bfe_u32 v12, v1, 3, 1")
    k("v_lshlrev_b32 v12, 6, v12")
    k("v_xor_b32 v10, v10, v12")
    k("v_lshl_add_u32 v10, v11, 7, v10")
    k("v_add_u32 v10, 0x4000, v10")
    k("s_lshl_b32 s58, s56, 5")
    k("s_add_u32 s58, s58, s51")
    k("v_and_b32 v13, 31, v1")
    k("v_add_u32 v13, s58, v13")
    k("v_lshlrev_b32 v12, 3, v8")
    k("v_lshl_add_u32 v12, v13, 10, v12")
    k("s_lshl_b32 s59, s49, 7")
    k("s_lshl_b32 s60, s57, 6")
    k("s_add_u32 s59, s59, s60")
    ACC, RES, XC, WC = 32, 48, 24, 14
    BF, AF = 64, 96
    for c in range(NC):
        k0, kc = chunks[c]
        st = (c % S) * 32768
        later = sum(cnt[cc] for cc in range(c + 1, min(c + S - 1, NC)))
        k("s_waitcnt vmcnt(%d)" % later)
        k("s_barrier")
        if c < 11: k.ts(1 + c)
        if c + S - 1 < NC:
            cnt[c + S - 1] = issue(c + S - 1)
        if c == NC - 1:
            k("s_add_u32 s60, s59, 0x%x" % roff)
            for q in range(4):
                k("buffer_load_dwordx2 %s, v12, s[%d:%d], s60 offen offset:%d" % (vr(RES + 2 * q, 2), rs, rs + 3, 16 * q))
        nks = kc // 16
        hi = st >= 65536
        if hi or st + 16384 + 16384 > 65536:
            pass
        for ks in range(nks):
            k("v_add_u32 v%d, %d, v%d" % (XC + ks, st, XA + ks))
        k("v_add_u32 v%d, %d, v10" % (WC, st))
        for ks in range(nks):
            k("ds_read_b128 %s, v%d" % (vr(BF + 4 * ks, 4), XC + ks))
            k("ds_read_b64_tr_b16 %s, v%d offset:%d" % (vr(AF + 4 * ks, 2), WC, ks * 2048))
            k("ds_read_b64_tr_b16 %s, v%d offset:%d" % (vr(AF + 4 * ks + 2, 2), WC, ks * 2048 + 512))
        for ks in range(nks):
            k("s_waitcnt lgkmcnt(%d)" % min(15, 3 * (nks - 1 - ks)))
            first = (c == 0 and ks == 0)
            k("v_mfma_f32_32x32x16_bf16 %s, %s, %s, %s" % (vr(ACC, 16), vr(AF + 4 * ks, 4), vr(BF + 4 * ks, 4), "0" if first else vr(ACC, 16)))
    k.ts(12)
    k("s_waitcnt vmcnt(0)")
    k("s_nop 15")
    for q in range(4):
        for d in range(2):
            r = RES + 2 * q + d
            k("v_lshlrev_b32 v%d, 16, v%d" % (BF, r))
            k("v_and_b32 v%d, 0xffff0000, v%d" % (BF + 1, r))
            k("v_add_f32 v%d, v%d, v%d" % (ACC + 4 * q + 2 * d, ACC + 4 * q + 2 * d, BF))
            k("v_add_f32 v%d, v%d, v%d" % (ACC + 4 * q + 2 * d + 1, ACC + 4 * q + 2 * d + 1, BF + 1))
    for r in range(8):
        k("v_cvt_pk_bf16_f32 v%d, v%d, v%d" % (RES + r, ACC + 2 * r, ACC + 2 * r + 1))
    if not stats or os.environ.get("HROW"):
        k("s_add_u32 s60, s59, 0x%x" % ooff)
        for q in range(4):
            k("buffer_store_dwordx2 %s, v12, s[%d:%d], s60 offen offset:%d" % (vr(RES + 2 * q, 2), os_, os_ + 3, 16 * q))
    if stats:
        T = AF
        k("v_and_b32 v%d, 31, v1" % (T + 7))
        k("v_lshlrev_b32 v%d, 4, v%d" % (T + 7, T + 7))
        k("v_lshl_add_u32 v%d, v8, 3, v%d" % (T + 7, T + 7))
        k("s_lshl_b32 s60, s48, 1")
        k("s_add_u32 s60, s60, s56")
        k("s_lshl_b32 s60, s60, 5")
        k("s_lshl_b32 s61, s49, 2")
        k("s_add_u32 s60, s60, s61")
        k("s_lshl_b32 s61, s57, 1")
        k("s_add_u32 s60, s60, s61")
        k("s_lshl_b32 s60, s60, 10")
        k("s_add_u32 s60, s60, 0x%x" % WS_HP)
        for q in range(4):
            k("buffer_store_dwordx2 %s, v%d, s[20:23], s60 offen offset:%d" % (vr(RES + 2 * q, 2), T + 7, (q >> 1) * 1024 + (q & 1) * 512))
        k("v_mov_b32 v%d, 0x3f803f80" % T)
        for i in range(4):
            k("v_mov_b32 v%d, 0" % (T + 2 + i))
        for r in range(8):
            k("v_dot2c_f32_bf16 v%d, v%d, v%d" % (T + 2 + (r & 1), RES + r, T))
            k("v_dot2c_f32_bf16 v%d, v%d, v%d" % (T + 4 + (r & 1), RES + r, RES + r))
        k("s_nop 4")
        k("v_add_f32 v%d, v%d, v%d" % (T + 2, T + 2, T + 3))
        k("v_add_f32 v%d, v%d, v%d" % (T + 3, T + 4, T + 5))
        k("v_mov_b32 v%d, v%d" % (T + 4, T + 2))
        k("v_mov_b32 v%d, v%d" % (T + 5, T + 3))
        k("s_nop 1")
        k("v_permlane32_swap_b32 v%d, v%d" % (T + 2, T + 4))
        k("v_permlane32_swap_b32 v%d, v%d" % (T + 3, T + 5))
        k("s_nop 1")
        k("v_add_f32 v%d, v%d, v%d" % (T + 2, T + 2, T + 4))
        k("v_add_f32 v%d, v%d, v%d" % (T + 3, T + 3, T + 5))
        k("v_lshlrev_b32 v%d, 7, v13" % (T + 6))
        k("s_lshl_b32 s60, s49, 1")
        k("s_add_u32 s60, s60, s57")
        k("s_lshl_b32 s60, s60, 3")
        k("s_add_u32 s60, s60, 0x%x" % WS_ST)
        k("v_cmp_gt_u32 vcc, 32, v1")
        k("s_and_saveexec_b64 s[62:63], vcc")
        k("buffer_store_dwordx2 %s, v%d, s[20:23], s60 offen" % (vr(T + 2, 2), T + 6))
        k("s_mov_b64 exec, s[62:63]")
    k.ts(13)
    k.ts_flush(14)
    k.lab(end)
    return k


def gen_C():
    return gen_gemm64("wo_kernel", WS_O, 1024, 32, 512, ('karg', 0), ('ws', WS_H), stats=True)


def gen_E():
    S = int(os.environ.get("ES", "4"))
    NKS = 86
    NC = (NKS + 7) // 8
    k = Kern("down_kernel", 128, 256, 256, S * 32768)
    end = k.newlab("end")
    k("s_cmp_ge_u32 s2, 256")
    k("s_cbranch_scc1 %s" % end)
    k.ts(0)
    k("s_load_dwordx2 s[32:33], s[0:1], 88")
    k("s_load_dwordx2 s[28:29], s[0:1], 72")
    k("v_and_b32 v1, 63, v0")
    k("v_lshrrev_b32 v2, 6, v0")
    k("s_nop 1")
    k("v_readfirstlane_b32 s3, v2")
    k("s_and_b32 s48, s2, 7")
    k("s_lshl_b32 s48, s48, 2")
    k("s_bfe_u32 s49, s2, 0x20003")
    k("s_add_u32 s48, s48, s49")
    k("s_lshr_b32 s49, s2, 5")
    k("s_and_b32 s56, s3, 1")
    k("s_lshr_b32 s57, s3, 1")
    k("v_lshlrev_b32 v4, 4, v1")
    k("s_lshl_b32 s50, s56, 13")
    k("s_lshl_b32 s51, s57, 12")
    k("s_add_u32 s50, s50, s51")
    k("s_lshl_b32 s52, s48, 1")
    k("s_add_u32 s52, s52, s56")
    k("s_mul_i32 s52, s52, %d" % (NKS * 1024))
    k("s_add_u32 s52, s52, s51")
    k("s_add_u32 s52, s52, 0x%x" % WS_ACT)
    k("s_lshl_b32 s53, s3, 12")
    k("s_mul_i32 s55, s49, %d" % (NKS * 2048))
    k("s_add_u32 s55, s55, s53")
    k("s_add_u32 s55, s55, 0x%x" % WS_WD)
    k("s_add_u32 s53, s53, 16384")
    k("s_lshl_b32 s58, s48, 6")
    k("s_lshl_b32 s59, s56, 5")
    k("s_add_u32 s58, s58, s59")
    k("v_and_b32 v13, 31, v1")
    k("v_add_u32 v13, s58, v13")
    k("v_lshrrev_b32 v8, 5, v1")
    k("v_lshlrev_b32 v12, 3, v8")
    k("v_lshl_add_u32 v12, v13, 10, v12")
    k("s_lshl_b32 s59, s49, 7")
    k("s_lshl_b32 s60, s57, 6")
    k("s_add_u32 s59, s59, s60")
    k("v_and_b32 v14, 31, v1")
    k("v_lshlrev_b32 v14, 4, v14")
    k("v_lshl_add_u32 v14, v8, 3, v14")
    k("s_lshl_b32 s60, s48, 1")
    k("s_add_u32 s60, s60, s56")
    k("s_lshl_b32 s60, s60, 5")
    k("s_lshl_b32 s61, s49, 2")
    k("s_add_u32 s60, s60, s61")
    k("s_lshl_b32 s61, s57, 1")
    k("s_add_u32 s60, s60, s61")
    k("s_lshl_b32 s60, s60, 10")
    k("s_add_u32 s60, s60, 0x%x" % WS_HP)
    k("s_waitcnt lgkmcnt(0)")
    k.srd(20, 32, WS_SIZE)
    k.srd(16, 28, 2048 * 1024)
    ACC, RES, FR = 32, 48, 64
    for q in range(4):
        k("buffer_load_dwordx2 %s, v14, s[20:23], s60 offen offset:%d" % (vr(RES + 2 * q, 2), (q >> 1) * 1024 + (q & 1) * 512))

    def issue(c):
        st = (c % S) * 32768
        for j in range(4):
            k("s_add_u32 m0, s50, %d" % (st + j * 1024))
            k("s_add_u32 s54, s52, %d" % (c * 8192 + j * 1024))
            k("buffer_load_dwordx4 v4, s[20:23], s54 offen lds")
        for j in range(4):
            k("s_add_u32 m0, s53, %d" % (st + j * 1024))
            k("s_add_u32 s54, s55, %d" % (c * 16384 + j * 1024))
            k("buffer_load_dwordx4 v4, s[20:23], s54 offen lds")
    for c in range(S - 1):
        issue(c)
    k("s_lshl_b32 s61, s56, 13")
    k("s_lshl_b32 s62, s57, 10")
    k("s_add_u32 s62, s62, 16384")
    for i in range(3):
        k("v_add_u32 v%d, s61, v4" % (16 + i))
        k("v_add_u32 v%d, s62, v4" % (20 + i))
        k("s_add_u32 s61, s61, 65536")
        k("s_add_u32 s62, s62, 65536")

    def rd(g):
        c, ks = g // 8, g % 8
        st = (c % S) * 32768
        ob, oa = st + ks * 1024, st + ks * 2048
        k("ds_read_b128 %s, v%d offset:%d" % (vr(FR + 8 * (g % 4), 4), 20 + st // 65536, oa % 65536))
        k("ds_read_b128 %s, v%d offset:%d" % (vr(FR + 8 * (g % 4) + 4, 4), 16 + st // 65536, ob % 65536))
    for c in range(NC):
        n = min(8, NKS - 8 * c)
        later = 8 * (min(c + S - 1, NC) - (c + 1))
        k("s_waitcnt vmcnt(%d)" % later)
        k("s_barrier")
        if c < 11: k.ts(1 + c)
        for ks in range(3):
            rd(8 * c + ks)
        if c + S - 1 < NC:
            issue(c + S - 1)
        for ks in range(n):
            g = 8 * c + ks
            k("s_waitcnt lgkmcnt(%d)" % (2 * min(2, n - 1 - ks)))
            k("v_mfma_f32_32x32x16_bf16 %s, %s, %s, %s" % (vr(ACC, 16), vr(FR + 8 * (g % 4), 4), vr(FR + 8 * (g % 4) + 4, 4), "0" if g == 0 else vr(ACC, 16)))
            if ks + 3 < n:
                rd(g + 3)
    k.ts(12)
    k("s_nop 15")
    BF = FR
    for q in range(4):
        for d in range(2):
            r = RES + 2 * q + d
            k("v_lshlrev_b32 v%d, 16, v%d" % (BF + 32, r))
            k("v_and_b32 v%d, 0xffff0000, v%d" % (BF + 33, r))
            k("v_add_f32 v%d, v%d, v%d" % (ACC + 4 * q + 2 * d, ACC + 4 * q + 2 * d, BF + 32))
            k("v_add_f32 v%d, v%d, v%d" % (ACC + 4 * q + 2 * d + 1, ACC + 4 * q + 2 * d + 1, BF + 33))
    for r in range(8):
        k("v_cvt_pk_bf16_f32 v%d, v%d, v%d" % (RES + r, ACC + 2 * r, ACC + 2 * r + 1))
    for q in range(4):
        k("buffer_store_dwordx2 %s, v12, s[16:19], s59 offen offset:%d" % (vr(RES + 2 * q, 2), 16 * q))
    k.ts(13)
    k.ts_flush(14)
    k.lab(end)
    return k


class VM:
    def __init__(s, k):
        s.k = k
        s.n = 0
    def issue(s):
        s.n += 1
        return s.n
    def wait(s, tok):
        if os.environ.get("EXP", "") == "nomem":
            return
        s.k("s_waitcnt vmcnt(%d)" % min(63, s.n - tok))


def gen_D():
    S = 10
    CH = 16384
    NCH = 12
    k = Kern("ffn1_kernel", 288, 256, 256, S * CH, accum=256)
    vm = VM(k)
    end = k.newlab("end")
    k("s_cmp_ge_u32 s2, 256")
    k("s_cbranch_scc1 %s" % end)
    k.ts(0)
    k("s_load_dwordx2 s[32:33], s[0:1], 88")
    k("v_and_b32 v1, 63, v0")
    k("v_lshrrev_b32 v2, 6, v0")
    k("s_nop 1")
    k("v_readfirstlane_b32 s3, v2")
    k("s_bfe_u32 s48, s2, 0x20001")
    k("s_lshl_b32 s48, s48, 2")
    k("s_bfe_u32 s49, s2, 0x20003")
    k("s_add_u32 s48, s48, s49")
    k("s_and_b32 s49, s2, 1")
    k("s_lshl_b32 s49, s49, 3")
    k("s_lshr_b32 s50, s2, 5")
    k("s_add_u32 s49, s49, s50")
    k("s_cmp_ge_u32 s49, 15")
    k("s_cbranch_scc1 %s" % end)
    k("v_and_b32 v2, 31, v1")
    k("v_lshrrev_b32 v3, 5, v1")
    k("s_lshl_b32 s50, s3, 5")
    k("s_lshl_b32 s51, s48, 7")
    k("s_add_u32 s50, s50, s51")
    k("v_add_u32 v2, s50, v2")
    k("s_lshl_b32 s57, s50, 10")
    k("v_lshlrev_b32 v6, 7, v2")
    k("v_lshl_add_u32 v6, v3, 6, v6")
    k("v_lshlrev_b32 v7, 4, v1")
    k("v_add_u32 v8, 0x10000, v7")
    k("v_add_u32 v9, 0x20000, v7")
    k("s_lshl_b32 s52, s3, 10")
    k("v_add_u32 v4, s52, v7")
    k("s_mul_i32 s53, s49, 196608")
    k("s_add_u32 s53, s53, 0x%x" % WS_WG)
    k("s_mov_b32 s55, 0x%x" % WS_ST)
    k("s_add_u32 s57, s57, 0x%x" % WS_HP)
    k("s_waitcnt lgkmcnt(0)")
    k.srd(20, 32, WS_SIZE)
    ACC, B, T = 16, 112, 240
    order = []
    for ks in range(KS1):
        for t in range(6):
            order.append((t, ks))
    for p in range(3):
        for ks in range(KS1, 32):
            order.append((p, ks))
            order.append((p + 3, ks))
    assert len(order) == 192
    tokA, tokB = {}, {}

    NOMEM = os.environ.get("EXP", "") == "nomem"
    vq = []

    def opA(c, j):
        def f():
            if NOMEM:
                tokA[c] = 0
                return
            k("s_add_u32 m0, s52, %d" % ((c % S) * CH + j * 4096))
            k("s_add_u32 s54, s53, %d" % (c * CH + j * 4096))
            k("buffer_load_dwordx4 v4, s[20:23], s54 offen lds")
            tokA[c] = vm.issue()
        return f

    def opB(g):
        def f():
            if NOMEM:
                tokB[g] = 0
                return
            k("s_add_u32 s56, s57, %d" % (g * 1024))
            k("buffer_load_dwordx4 %s, v7, s[20:23], s56 offen" % vr(B + 4 * g, 4))
            tokB[g] = vm.issue()
        return f
    nb = 0
    for c in range(NCH):
        need = max(ks for (t, ks) in order[:min(192, (c + 1) * 16 + 8)]) + 1
        while nb < need:
            vq.append((c, opB(nb))); nb += 1
        for j in range(4):
            vq.append((c, opA(c, j)))
    W = int(os.environ.get("W", "3"))

    def vflush(c):
        while vq and vq[0][0] <= c:
            vq.pop(0)[1]()

    def vstep(cur_chunk_x16):
        if vq and vq[0][0] * 16 <= cur_chunk_x16 + W * 16:
            vq.pop(0)[1]()
    for q in range(4):
        k("buffer_load_dwordx4 %s, v6, s[20:23], s55 offen offset:%d" % (vr(ACC + 4 * q, 4), 16 * q))
        tokS = vm.issue()
    vflush(W - 1)
    k.ts(1)
    vm.wait(tokS)
    for i in range(2, 8):
        k("v_add_f32 v%d, v%d, v%d" % (ACC + (i & 1), ACC + (i & 1), ACC + 2 * (i // 2) * 1 + (i & 1)) if False else "")
    for st in (8, 4, 2):
        for i in range(st):
            k("v_add_f32 v%d, v%d, v%d" % (ACC + i, ACC + i, ACC + i + st))
    k("v_mov_b32 v%d, v%d" % (ACC + 2, ACC))
    k("v_mov_b32 v%d, v%d" % (ACC + 3, ACC + 1))
    k("s_nop 1")
    k("v_permlane32_swap_b32 v%d, v%d" % (ACC, ACC + 2))
    k("v_permlane32_swap_b32 v%d, v%d" % (ACC + 1, ACC + 3))
    k("s_nop 1")
    k("v_add_f32 v%d, v%d, v%d" % (ACC, ACC, ACC + 2))
    k("v_add_f32 v%d, v%d, v%d" % (ACC + 1, ACC + 1, ACC + 3))
    k("v_mul_f32 v%d, %s, v%d" % (ACC, f32hex(1.0 / 512), ACC))
    k("v_mul_f32 v%d, %s, v%d" % (ACC + 1, f32hex(1.0 / 512), ACC + 1))
    k("v_fma_f32 v%d, -v%d, v%d, v%d" % (ACC + 1, ACC, ACC, ACC + 1))
    k("v_add_f32 v%d, %s, v%d" % (ACC + 1, f32hex(1e-5), ACC + 1))
    k("v_rsq_f32 v12, v%d" % (ACC + 1))
    k("s_nop 1")
    k("v_mov_b32 v13, v12")
    k("v_mul_f32 v14, v%d, v12" % ACC)
    k("v_xor_b32 v14, 0x80000000, v14")
    k("v_mov_b32 v15, v14")
    k("v_and_b32 v10, 31, v1")
    k("v_lshlrev_b32 v10, 4, v10")
    k("v_lshl_add_u32 v10, v3, 3, v10")
    k("s_lshr_b32 s59, s50, 5")
    k("s_mul_i32 s59, s59, 86")
    k("s_mul_i32 s58, s49, 6")
    k("s_add_u32 s59, s59, s58")
    k("s_lshl_b32 s59, s59, 10")
    k("s_add_u32 s59, s59, 0x%x" % WS_ACT)

    from collections import deque
    fq = deque()
    normed = set()

    def q_norm(g):
        def w():
            vm.wait(tokB[g])
        fq.append(("n", g, w))
        for r in range(4):
            t0 = T + 2 * (r & 3)
            b = B + 4 * g + r
            fq.append(("n", g, "v_lshlrev_b32 v%d, 16, v%d" % (t0, b)))
            fq.append(("n", g, "v_and_b32 v%d, 0xffff0000, v%d" % (t0 + 1, b)))
            fq.append(("n", g, "v_fma_f32 v%d, v%d, v12, v14" % (t0, t0)))
            fq.append(("n", g, "v_fma_f32 v%d, v%d, v12, v14" % (t0 + 1, t0 + 1)))
            fq.append(("n", g, "v_cvt_pk_bf16_f32 v%d, v%d, v%d" % (b, t0, t0 + 1)))

    def q_epi(p):
        G, U = ACC + 16 * p, ACC + 16 * (3 + p)
        E = T + 8 if False else T
        fq.append(("e", p, "s_nop 15"))
        for r in range(0, 16, 2):
            fq.append(("e", p, "v_pk_mul_f32 v[%d:%d], v[%d:%d], v[10+X:11+X]" % (E + r, E + r + 1, G + r, G + r + 1)))
    k("s_mov_b32 s60, %s" % f32hex(-LOG2E))
    k("s_mov_b32 s61, %s" % f32hex(-LOG2E))
    k("s_mov_b32 s62, 1.0")
    k("s_mov_b32 s63, 1.0")

    def q_epi(p):
        G, U = ACC + 16 * p, ACC + 16 * (3 + p)
        E = T
        L = []
        L.append("s_nop 15")
        for r in range(16):
            L.append("v_mul_f32 v%d, s60, v%d" % (E + r, G + r))
        for r in range(16):
            L.append("v_exp_f32 v%d, v%d" % (E + r, E + r))
        for r in range(16):
            L.append("v_mul_f32 v%d, v%d, v%d" % (G + r, G + r, U + r))
        for r in range(16):
            L.append("v_add_f32 v%d, 1.0, v%d" % (E + r, E + r))
        for r in range(16):
            L.append("v_rcp_f32 v%d, v%d" % (E + r, E + r))
        for r in range(16):
            L.append("v_mul_f32 v%d, v%d, v%d" % (G + r, G + r, E + r))
        for r in range(8):
            L.append("v_cvt_pk_bf16_f32 v%d, v%d, v%d" % (G + r, G + 2 * r, G + 2 * r + 1))
        for q in range(4):
            L.append("buffer_store_dwordx2 %s, v10, s[20:23], s%d offen offset:%d" % (vr(G + 2 * q, 2), (59, 58, 64)[p], (q >> 1) * 1024 + (q & 1) * 512))
        if os.environ.get("WBD", "1") == "1" and p < 2:
            L.append(("wb", p))
        for x in L:
            fq.append(("e", p, x))

    def emit_filler():
        kind, g, x = fq.popleft()
        if callable(x):
            x()
        elif isinstance(x, tuple):
            nwb = k.newlab("nwb")
            k("s_cmp_eq_u32 s65, 0")
            k("s_cbranch_scc1 %s" % nwb)
            k("buffer_wbl2 sc1")
            k.lab(nwb)
        else:
            if x.startswith("buffer_store") or x.startswith("buffer_wbl2"):
                vm.issue()
            EXP = os.environ.get("EXP", "")
            if EXP in ("nofill", "memonly") and x.startswith("v_"):
                return
            if EXP == "addfill" and x.startswith("v_"):
                x = "v_add_f32 v%d, 1.0, v%d" % (T + (len(k.L) % 8), T + (len(k.L) % 8))
            if EXP == "e32" and x.startswith("v_"):
                x = "v_lshlrev_b32 v%d, 16, v%d" % (T + (len(k.L) % 8), T + 8 + (len(k.L) % 8))
            k(x)

    def flush_norm(g):
        last = -1
        for i, (kind, gg, x) in enumerate(fq):
            if kind == "n" and gg <= g:
                last = i
        n = last + 1
        for _ in range(n):
            emit_filler()
        if n:
            k("s_nop 1")
    k("s_lshl_b32 s65, s3, 8")
    k("s_add_u32 s65, s65, s2")
    k("s_cmp_lt_u32 s65, 8")
    k("s_cselect_b32 s65, 1, 0")
    k("s_add_u32 s58, s59, 2048")
    k("s_add_u32 s64, s59, 4096")
    k("s_cmp_eq_u32 s49, 14")
    k("s_cselect_b32 s58, 0x%x, s58" % WS_DUMMY)
    k("s_cselect_b32 s64, 0x%x, s64" % WS_DUMMY)
    for g in range(32):
        q_norm(g)

    def read1(gi, j):
        c = gi // 4
        fi = gi * 4 + j
        lds = (c % S) * CH + (fi % 16) * 1024
        k("ds_read_b128 a[%d:%d], v%d offset:%d" % (16 * (gi % 2) + 4 * j, 16 * (gi % 2) + 4 * j + 3, 7 + lds // 65536, lds % 65536))

    def boundary(c):
        if TSMODE == 1 and c >= 1: k.ts(1 + c)
        vflush(c + 1)
        vm.wait(tokA[c + 1])
        if not os.environ.get("NOBAR"):
            k("s_barrier")
        if TSMODE == 2 and c >= 1: k.ts(1 + c)
    boundary(0)
    for j in range(4):
        read1(0, j)
    seen = set()
    NPER = int(os.environ.get("NPER", "4"))
    for gi in range(48):
        if gi + 1 < 48 and (gi + 1) % 8 == 0:
            boundary((gi + 1) // 4)
        for j in range(4):
            t, ks = order[gi * 4 + j]
            flush_norm(ks + 1)
            k("s_waitcnt lgkmcnt(%d)" % (3 if gi + 1 < 48 else 3 - j))
            first = t not in seen
            seen.add(t)
            if os.environ.get("EXP", "") != "memonly":
                k("v_mfma_f32_32x32x16_bf16 %s, a[%d:%d], %s, %s" % (vr(ACC + 16 * t, 16), 16 * (gi % 2) + 4 * j, 16 * (gi % 2) + 4 * j + 3, vr(B + 4 * ks, 4), "0" if first else vr(ACC + 16 * t, 16)))
            if gi + 1 < 48 and os.environ.get("EXP", "") != "memonly":
                read1(gi + 1, j)
            vstep(gi * 4 + j)
            if ks == 31 and t >= 3:
                q_epi(t - 3)
            for _ in range(NPER):
                if fq:
                    emit_filler()
    k.ts(13)
    while fq:
        emit_filler()
    k.ts_flush(14)
    k.lab(end)
    return k


WS_FL = 0x280000
SPIN = 0x20000


def gen_F():
    S = 10
    CH = 16384
    NCH = 12
    ROT = 8
    k = Kern("ffn_kernel", 288, 256, 256, S * CH, accum=256)
    k.kidx = 2
    vm = VM(k)
    FTS = os.environ.get("FTS", "")
    ts0 = k.ts
    def ts_main(i):
        if FTS == "" or i == 0:
            ts0(i)
        elif FTS == "E" and i == 9:
            ts0(1)
    k.ts = ts_main
    end = k.newlab("end")
    FORCE_SLOW = os.environ.get("FSLOW") == "1"
    PF = [int(x) for x in os.environ.get("PF", "0,0,0,0").split(",")]
    PA = int(os.environ.get("PA", "4"))
    PB = int(os.environ.get("PB", "4"))
    NB0 = int(os.environ.get("NB0", "6"))
    BPER = int(os.environ.get("BPER", "3"))
    FST = os.environ.get("FST", " sc1")
    FSTO = os.environ.get("FSTO", "")
    k("s_cmp_ge_u32 s2, 256")
    k("s_cbranch_scc1 %s" % end)
    k.ts(0)
    k("s_load_dwordx2 s[24:25], s[0:1], 32")
    k("s_load_dwordx2 s[26:27], s[0:1], 0")
    k("s_load_dwordx2 s[28:29], s[0:1], 72")
    k("s_load_dwordx2 s[32:33], s[0:1], 88")
    k("s_getreg_b32 s40, hwreg(HW_REG_XCC_ID)")
    k("v_and_b32 v1, 63, v0")
    k("v_lshrrev_b32 v2, 6, v0")
    k("s_nop 1")
    k("v_readfirstlane_b32 s3, v2")
    k("s_and_b32 s48, s2, 7")
    k("s_lshl_b32 s48, s48, 2")
    k("s_bfe_u32 s49, s2, 0x20003")
    k("s_add_u32 s48, s48, s49")
    k("s_lshr_b32 s49, s2, 5")
    k("s_lshr_b32 s38, s48, 1")
    k("s_and_b32 s39, s48, 1")
    k("s_lshl_b32 s37, s49, 1")
    k("s_add_u32 s39, s39, s37")
    k("s_lshl_b32 s42, s38, 10")
    k("s_add_u32 s42, s42, 0x%x" % WS_FL)
    k("s_and_b32 s40, s40, 15")
    k("s_mul_i32 s43, s40, s40")
    k("s_lshl_b32 s43, s43, 16")
    k("s_lshl_b32 s40, s40, 8")
    k("s_add_u32 s40, s40, s43")
    k("s_add_u32 s40, s40, 1")
    k("s_lshl_b32 s43, s40, 4")
    k("s_mul_i32 s34, s39, 196608")
    k("s_add_u32 s34, s34, 0x%x" % WS_WG)
    k("s_lshl_b32 s52, s3, 10")
    k("v_lshlrev_b32 v60, 4, v1")
    k("v_add_u32 v60, s52, v60")
    k("s_lshl_b32 s36, s3, 12")
    k("s_mul_i32 s35, s49, %d" % (86 * 2048))
    k("s_add_u32 s35, s35, s36")
    k("s_add_u32 s35, s35, 0x%x" % WS_WD)
    k("s_waitcnt lgkmcnt(0)")
    k.srd(8, 24, 512 * 1024)
    k.srd(20, 32, WS_SIZE)
    k.srd(12, 26, 2048 * 1024)
    k.srd(16, 28, 2048 * 1024)
    ldx = 1024
    k("v_lshrrev_b32 v3, 4, v1")
    k("s_lshl_b32 s50, s3, 2")
    k("v_add_u32 v3, s50, v3")
    k("v_and_b32 v4, 15, v1")
    k("v_xor_b32 v4, v4, v3")
    k("v_lshlrev_b32 v4, 4, v4")
    k("s_lshl_b32 s51, s48, 6")
    k("v_add_u32 v3, s51, v3")
    k("v_mul_u32_u24 v3, %d, v3" % ldx)
    k("v_add_u32 v4, v3, v4")
    k("v_lshrrev_b32 v3, 3, v1")
    k("s_lshl_b32 s50, s3, 3")
    k("v_add_u32 v3, s50, v3")
    k("v_and_b32 v5, 7, v1")
    k("v_bfe_u32 v6, v1, 4, 1")
    k("v_lshlrev_b32 v6, 2, v6")
    k("v_xor_b32 v5, v5, v6")
    k("v_lshlrev_b32 v5, 4, v5")
    k("v_lshl_add_u32 v5, v3, 10, v5")
    k("s_lshl_b32 s50, s49, 7")
    k("v_add_u32 v5, s50, v5")
    tokC = {}

    def issueC(c):
        st = c * 32768
        for j in range(4):
            k("s_add_u32 m0, s52, %d" % (st + j * 4096))
            k("s_mov_b32 s54, %d" % (WS_O + j * 16 * ldx + c * 256))
            k("buffer_load_dwordx4 v4, s[20:23], s54 offen lds")
            vm.issue()
        for j in range(4):
            k("s_add_u32 m0, s52, %d" % (st + 16384 + j * 4096))
            k("s_mov_b32 s54, %d" % ((c * 128 + 32 * j) * 1024))
            k("buffer_load_dwordx4 v5, s[8:11], s54 offen lds")
            tokC[c] = vm.issue()
    tokA, tokB = {}, {}

    def issueD(c, vreg):
        for j in range(4):
            k("s_add_u32 m0, s52, %d" % (((c + ROT) % S) * CH + j * 4096))
            k("s_add_u32 s54, s34, %d" % (c * CH + j * 4096))
            k("buffer_load_dwordx4 v%d, s[20:23], s54 offen lds" % vreg)
            tokA[c] = vm.issue()

    def issueEW(c, vreg):
        for j in range(4):
            k("s_add_u32 m0, s36, %d" % ((c % 6) * 16384 + j * 1024))
            k("s_add_u32 s54, s35, %d" % (c * 16384 + j * 1024))
            k("buffer_load_dwordx4 v%d, s[20:23], s54 offen lds" % vreg)
            vm.issue()
    for c in range(3):
        issueC(c)
    k("v_mov_b32 v56, s40")
    k("s_cmp_eq_u32 s3, 0")
    k("s_cselect_b64 exec, 1, 0")
    k("buffer_atomic_add v56, off, s[20:23], s42 sc1")
    vm.issue()
    k("s_mov_b64 exec, -1")
    k("s_and_b32 s56, s3, 1")
    k("s_lshr_b32 s57, s3, 1")
    k("s_lshl_b32 s58, s56, 5")
    k("s_add_u32 s58, s58, s51")
    k("v_and_b32 v13, 31, v1")
    k("v_add_u32 v13, s58, v13")
    k("v_lshrrev_b32 v8, 5, v1")
    k("v_lshlrev_b32 v12, 3, v8")
    k("v_lshl_add_u32 v12, v13, 10, v12")
    k("s_lshl_b32 s59, s49, 7")
    k("s_lshl_b32 s60, s57, 6")
    k("s_add_u32 s59, s59, s60")
    ACC, RES, XC, WC = 32, 48, 24, 14
    BF, AF = 64, 96
    for q in range(4):
        k("buffer_load_dwordx2 %s, v12, s[12:15], s59 offen offset:%d" % (vr(RES + 2 * q, 2), 16 * q))
        tokR = vm.issue()
    k("v_and_b32 v7, 31, v1")
    k("s_lshl_b32 s58, s56, 5")
    k("v_add_u32 v7, s58, v7")
    k("v_and_b32 v9, 15, v7")
    k("v_xor_b32 v9, v9, v8")
    k("v_lshlrev_b32 v9, 4, v9")
    k("v_lshl_add_u32 v9, v7, 8, v9")
    XA = 16
    for ks in range(8):
        k("v_xor_b32 v%d, %d, v9" % (XA + ks, ks * 32))
    k("v_lshrrev_b32 v11, 5, v1")
    k("v_lshlrev_b32 v11, 3, v11")
    k("v_bfe_u32 v10, v1, 2, 2")
    k("v_add_u32 v11, v11, v10")
    k("v_bfe_u32 v10, v1, 4, 1")
    k("v_lshlrev_b32 v10, 5, v10")
    k("v_and_b32 v12, 3, v1")
    k("v_lshl_add_u32 v10, v12, 3, v10")
    k("s_lshl_b32 s58, s57, 6")
    k("v_add_u32 v10, s58, v10")
    k("v_bfe_u32 v12, v1, 3, 1")
    k("v_lshlrev_b32 v12, 6, v12")
    k("v_xor_b32 v10, v10, v12")
    k("v_lshl_add_u32 v10, v11, 7, v10")
    k("v_add_u32 v10, 0x4000, v10")
    nxtD = 0
    for c in range(4):
        st = c * 32768
        vm.wait(tokC[c])
        k("s_barrier")
        if c == 0:
            k.ts(1)
            issueC(3)
        if c == 3:
            k("buffer_load_dword v59, off, s[20:23], s42 sc1")
            vm.issue()
        for ks in range(8):
            k("v_add_u32 v%d, %d, v%d" % (XC + ks, st, XA + ks))
        k("v_add_u32 v%d, %d, v10" % (WC, st))
        for ks in range(8):
            k("ds_read_b128 %s, v%d" % (vr(BF + 4 * ks, 4), XC + ks))
            k("ds_read_b64_tr_b16 %s, v%d offset:%d" % (vr(AF + 4 * ks, 2), WC, ks * 2048))
            k("ds_read_b64_tr_b16 %s, v%d offset:%d" % (vr(AF + 4 * ks + 2, 2), WC, ks * 2048 + 512))
        for ks in range(8):
            k("s_waitcnt lgkmcnt(%d)" % min(15, 3 * (7 - ks)))
            first = (c == 0 and ks == 0)
            k("v_mfma_f32_32x32x16_bf16 %s, %s, %s, %s" % (vr(ACC, 16), vr(AF + 4 * ks, 4), vr(BF + 4 * ks, 4), "0" if first else vr(ACC, 16)))
        lim = 2 + 2 * c
        for _ in range(PF[c]):
            if nxtD < lim:
                issueD(nxtD, 60)
                nxtD += 1
    k.ts(2)
    k("s_nop 15")
    for q in range(4):
        for d in range(2):
            r = RES + 2 * q + d
            k("v_lshlrev_b32 v%d, 16, v%d" % (BF, r))
            k("v_and_b32 v%d, 0xffff0000, v%d" % (BF + 1, r))
            k("v_add_f32 v%d, v%d, v%d" % (ACC + 4 * q + 2 * d, ACC + 4 * q + 2 * d, BF))
            k("v_add_f32 v%d, v%d, v%d" % (ACC + 4 * q + 2 * d + 1, ACC + 4 * q + 2 * d + 1, BF + 1))
    for r in range(8):
        k("v_cvt_pk_bf16_f32 v%d, v%d, v%d" % (RES + r, ACC + 2 * r, ACC + 2 * r + 1))
    T = AF
    k("v_and_b32 v%d, 31, v1" % (T + 7))
    k("v_lshlrev_b32 v%d, 4, v%d" % (T + 7, T + 7))
    k("v_lshl_add_u32 v%d, v8, 3, v%d" % (T + 7, T + 7))
    k("s_lshl_b32 s60, s48, 1")
    k("s_add_u32 s60, s60, s56")
    k("s_lshl_b32 s60, s60, 5")
    k("s_lshl_b32 s61, s49, 2")
    k("s_add_u32 s60, s60, s61")
    k("s_lshl_b32 s61, s57, 1")
    k("s_add_u32 s60, s60, s61")
    k("s_lshl_b32 s60, s60, 10")
    k("s_add_u32 s60, s60, 0x%x" % WS_HP)
    for q in range(4):
        k("buffer_store_dwordx2 %s, v%d, s[20:23], s60 offen offset:%d%s" % (vr(RES + 2 * q, 2), T + 7, (q >> 1) * 1024 + (q & 1) * 512, FST))
        vm.issue()
    k("v_mov_b32 v%d, 0x3f803f80" % T)
    for i in range(4):
        k("v_mov_b32 v%d, 0" % (T + 2 + i))
    for r in range(8):
        k("v_dot2c_f32_bf16 v%d, v%d, v%d" % (T + 2 + (r & 1), RES + r, T))
        k("v_dot2c_f32_bf16 v%d, v%d, v%d" % (T + 4 + (r & 1), RES + r, RES + r))
    k("s_nop 4")
    k("v_add_f32 v%d, v%d, v%d" % (T + 2, T + 2, T + 3))
    k("v_add_f32 v%d, v%d, v%d" % (T + 3, T + 4, T + 5))
    k("v_mov_b32 v%d, v%d" % (T + 4, T + 2))
    k("v_mov_b32 v%d, v%d" % (T + 5, T + 3))
    k("s_nop 1")
    k("v_permlane32_swap_b32 v%d, v%d" % (T + 2, T + 4))
    k("v_permlane32_swap_b32 v%d, v%d" % (T + 3, T + 5))
    k("s_nop 1")
    k("v_add_f32 v%d, v%d, v%d" % (T + 2, T + 2, T + 4))
    k("v_add_f32 v%d, v%d, v%d" % (T + 3, T + 3, T + 5))
    k("v_lshlrev_b32 v%d, 7, v13" % (T + 6))
    k("s_lshl_b32 s60, s49, 1")
    k("s_add_u32 s60, s60, s57")
    k("s_lshl_b32 s60, s60, 3")
    k("s_add_u32 s60, s60, 0x%x" % WS_ST)
    k("v_cmp_gt_u32 vcc, 32, v1")
    k("s_and_saveexec_b64 s[62:63], vcc")
    k("buffer_store_dwordx2 %s, v%d, s[20:23], s60 offen%s" % (vr(T + 2, 2), T + 6, FST))
    vm.issue()
    tokSt = vm.issue() - 1
    vm.n -= 1
    k("s_mov_b64 exec, s[62:63]")
    for _ in range(PA):
        if nxtD < 8:
            issueD(nxtD, 60)
            nxtD += 1
    k("s_mov_b32 s30, s48")
    k("s_mov_b32 s31, s49")
    k("s_mov_b32 s48, s38")
    k("s_mov_b32 s49, s39")
    k("v_and_b32 v2, 31, v1")
    k("v_lshrrev_b32 v3, 5, v1")
    k("s_lshl_b32 s50, s3, 5")
    k("s_lshl_b32 s51, s48, 7")
    k("s_add_u32 s50, s50, s51")
    k("v_add_u32 v2, s50, v2")
    k("s_lshl_b32 s57, s50, 10")
    k("v_lshlrev_b32 v6, 7, v2")
    k("v_lshl_add_u32 v6, v3, 6, v6")
    k("v_lshlrev_b32 v7, 4, v1")
    k("v_add_u32 v8, 0x10000, v7")
    k("v_add_u32 v9, 0x20000, v7")
    k("v_add_u32 v4, s52, v7")
    k("s_mov_b32 s55, 0x%x" % WS_ST)
    k("s_add_u32 s57, s57, 0x%x" % WS_HP)
    k("v_and_b32 v10, 31, v1")
    k("v_lshlrev_b32 v10, 4, v10")
    k("v_lshl_add_u32 v10, v3, 3, v10")
    k("s_lshr_b32 s59, s50, 5")
    k("s_mul_i32 s59, s59, 86")
    k("s_mul_i32 s58, s49, 6")
    k("s_add_u32 s59, s59, s58")
    k("s_lshl_b32 s59, s59, 10")
    k("s_add_u32 s59, s59, 0x%x" % WS_ACT)
    k("s_mov_b32 s60, %s" % f32hex(-LOG2E))
    k("s_lshl_b32 s65, s3, 8")
    k("s_add_u32 s65, s65, s2")
    k("s_cmp_lt_u32 s65, 8")
    k("s_cselect_b32 s65, 1, 0")
    k("s_add_u32 s58, s59, 2048")
    k("s_add_u32 s64, s59, 4096")
    k("s_cmp_eq_u32 s49, 14")
    k("s_cselect_b32 s58, 0x%x, s58" % WS_DUMMY)
    k("s_cselect_b32 s64, 0x%x, s64" % WS_DUMMY)

    def resolve():
        lr, ld = k.newlab("rs"), k.newlab("rd")
        k("s_mov_b32 s44, 0x%x" % SPIN)
        k.lab(lr)
        k("v_readfirstlane_b32 s46, v59")
        k("s_and_b32 s47, s46, 0xff")
        k("s_cmp_ge_u32 s47, 16")
        k("s_cbranch_scc1 %s" % ld)
        k("s_sub_u32 s44, s44, 1")
        k("s_cmp_eq_u32 s44, 0")
        k("s_cbranch_scc1 %s" % ld)
        k("buffer_load_dword v59, off, s[20:23], s42 sc1")
        k("s_waitcnt vmcnt(0)")
        k("s_branch %s" % lr)
        k.lab(ld)
        k("s_mov_b32 s4, s46")
        k("s_cmp_eq_u32 s46, s43")
        k("s_cselect_b32 s41, %d, 0" % (0 if FORCE_SLOW else 1))

    def publish(offL, offG, addreg=None):
        skip, slow, done = k.newlab("sk"), k.newlab("sl"), k.newlab("dn")
        k("s_cmp_lg_u32 s3, 0")
        k("s_cbranch_scc1 %s" % skip)
        k("s_mov_b64 exec, 1")
        k("v_mov_b32 v56, %s" % ("1" if addreg is None else addreg))
        k("s_cmp_eq_u32 s41, 0")
        k("s_cbranch_scc1 %s" % slow)
        k("s_add_u32 s45, s42, %d" % offL)
        k("buffer_atomic_add v56, off, s[20:23], s45")
        k("s_branch %s" % done)
        k.lab(slow)
        k("s_add_u32 s45, s42, %d" % offG)
        k("buffer_wbl2 sc1")
        k("s_waitcnt vmcnt(0)")
        k("buffer_atomic_add v56, off, s[20:23], s45 sc1")
        k.lab(done)
        k("s_mov_b64 exec, -1")
        k.lab(skip)

    def poll(target):
        skip, slow, done = k.newlab("sk"), k.newlab("sl"), k.newlab("dn")
        pf, ps = k.newlab("pf"), k.newlab("ps")
        k("s_cmp_lg_u32 s3, 0")
        k("s_cbranch_scc1 %s" % skip)
        k("s_mov_b64 exec, 1")
        k("s_mov_b32 s44, 0x%x" % SPIN)
        k("s_cmp_eq_u32 s41, 0")
        k("s_cbranch_scc1 %s" % slow)
        k.lab(pf)
        k("v_mov_b32 v57, 0")
        k("buffer_atomic_add v57, off, s[20:23], s45 sc0")
        k("s_waitcnt vmcnt(0)")
        k("v_readfirstlane_b32 s46, v57")
        k("s_sub_u32 s44, s44, 1")
        k("s_cmp_eq_u32 s44, 0")
        k("s_cbranch_scc1 %s" % done)
        k("s_cmp_lt_u32 s46, %s" % target)
        k("s_cbranch_scc1 %s" % pf)
        k("s_branch %s" % done)
        k.lab(slow)
        k.lab(ps)
        k("buffer_load_dword v57, off, s[20:23], s45 sc1")
        k("s_waitcnt vmcnt(0)")
        k("v_readfirstlane_b32 s46, v57")
        k("s_sub_u32 s44, s44, 1")
        k("s_cmp_eq_u32 s44, 0")
        k("s_cbranch_scc1 %s" % done)
        k("s_cmp_lt_u32 s46, %s" % target)
        k("s_cbranch_scc1 %s" % ps)
        k.lab(done)
        k("s_mov_b64 exec, -1")
        k.lab(skip)

    def acquire():
        nf = k.newlab("nf")
        k("s_barrier")
        k("s_cmp_lg_u32 s41, 0")
        k("s_cbranch_scc1 %s" % nf)
        k("buffer_inv sc1")
        k("s_waitcnt vmcnt(0)")
        k.lab(nf)
    vm.wait(tokSt)
    k.ts(3)
    resolve()
    k("s_barrier")
    pre0 = nxtD
    publish(384, 128)
    idle = k.newlab("idle")
    dend = k.newlab("dend")
    k("s_cmp_eq_u32 s49, 15")
    k("s_cbranch_scc1 %s" % idle)
    for _ in range(PB):
        if nxtD < 10:
            issueD(nxtD, 60)
            nxtD += 1
    poll("16")
    pre = 0
    acquire()
    k.ts(4)
    ACC, B, T = 16, 112, 240
    order = []
    for ks in range(KS1):
        for t in range(6):
            order.append((t, ks))
    for p in range(3):
        for ks in range(KS1, 32):
            order.append((p, ks))
            order.append((p + 3, ks))
    assert len(order) == 192
    for q in range(4):
        k("buffer_load_dwordx4 %s, v6, s[20:23], s55 offen offset:%d" % (vr(ACC + 4 * q, 4), 16 * q))
        tokS = vm.issue()
    nbq = [0]

    def issueB():
        g = nbq[0]
        if g < 32:
            k("s_add_u32 s56, s57, %d" % (g * 1024))
            k("buffer_load_dwordx4 %s, v7, s[20:23], s56 offen" % vr(B + 4 * g, 4))
            tokB[g] = vm.issue()
            nbq[0] += 1
    for _ in range(NB0):
        issueB()
    vm.wait(tokS)
    for st in (8, 4, 2):
        for i in range(st):
            k("v_add_f32 v%d, v%d, v%d" % (ACC + i, ACC + i, ACC + i + st))
    k("v_mov_b32 v%d, v%d" % (ACC + 2, ACC))
    k("v_mov_b32 v%d, v%d" % (ACC + 3, ACC + 1))
    k("s_nop 1")
    k("v_permlane32_swap_b32 v%d, v%d" % (ACC, ACC + 2))
    k("v_permlane32_swap_b32 v%d, v%d" % (ACC + 1, ACC + 3))
    k("s_nop 1")
    k("v_add_f32 v%d, v%d, v%d" % (ACC, ACC, ACC + 2))
    k("v_add_f32 v%d, v%d, v%d" % (ACC + 1, ACC + 1, ACC + 3))
    k("v_mul_f32 v%d, %s, v%d" % (ACC, f32hex(1.0 / 512), ACC))
    k("v_mul_f32 v%d, %s, v%d" % (ACC + 1, f32hex(1.0 / 512), ACC + 1))
    k("v_fma_f32 v%d, -v%d, v%d, v%d" % (ACC + 1, ACC, ACC, ACC + 1))
    k("v_add_f32 v%d, %s, v%d" % (ACC + 1, f32hex(1e-5), ACC + 1))
    k("v_rsq_f32 v12, v%d" % (ACC + 1))
    k("s_nop 1")
    k("v_mul_f32 v14, v%d, v12" % ACC)
    k("v_xor_b32 v14, 0x80000000, v14")
    from collections import deque
    fq = deque()

    def q_norm(g):
        def w():
            vm.wait(tokB[g])
        fq.append(("n", g, w))
        for r in range(4):
            t0 = T + 2 * (r & 3)
            b = B + 4 * g + r
            fq.append(("n", g, "v_lshlrev_b32 v%d, 16, v%d" % (t0, b)))
            fq.append(("n", g, "v_and_b32 v%d, 0xffff0000, v%d" % (t0 + 1, b)))
            fq.append(("n", g, "v_fma_f32 v%d, v%d, v12, v14" % (t0, t0)))
            fq.append(("n", g, "v_fma_f32 v%d, v%d, v12, v14" % (t0 + 1, t0 + 1)))
            fq.append(("n", g, "v_cvt_pk_bf16_f32 v%d, v%d, v%d" % (b, t0, t0 + 1)))

    def q_epi(p):
        G, U = ACC + 16 * p, ACC + 16 * (3 + p)
        E = T
        L = []
        L.append("s_nop 15")
        for r in range(16):
            L.append("v_mul_f32 v%d, s60, v%d" % (E + r, G + r))
        for r in range(16):
            L.append("v_exp_f32 v%d, v%d" % (E + r, E + r))
        for r in range(16):
            L.append("v_mul_f32 v%d, v%d, v%d" % (G + r, G + r, U + r))
        for r in range(16):
            L.append("v_add_f32 v%d, 1.0, v%d" % (E + r, E + r))
        for r in range(16):
            L.append("v_rcp_f32 v%d, v%d" % (E + r, E + r))
        for r in range(16):
            L.append("v_mul_f32 v%d, v%d, v%d" % (G + r, G + r, E + r))
        for r in range(8):
            L.append("v_cvt_pk_bf16_f32 v%d, v%d, v%d" % (G + r, G + 2 * r, G + 2 * r + 1))
        for q in range(4):
            L.append("buffer_store_dwordx2 %s, v10, s[20:23], s%d offen offset:%d%s" % (vr(G + 2 * q, 2), (59, 58, 64)[p], (q >> 1) * 1024 + (q & 1) * 512, FST))
        if os.environ.get("WBD", "0") == "1" and p < 2:
            L.append(("wb", p))
        for x in L:
            fq.append(("e", p, x))

    def emit_filler():
        kind, g, x = fq.popleft()
        if callable(x):
            x()
        elif isinstance(x, tuple):
            nwb = k.newlab("nwb")
            k("s_cmp_eq_u32 s65, 0")
            k("s_cbranch_scc1 %s" % nwb)
            k("buffer_wbl2 sc1")
            k.lab(nwb)
        else:
            if x.startswith("buffer_store"):
                vm.issue()
            k(x)

    def flush_norm(g):
        last = -1
        for i, (kind, gg, x) in enumerate(fq):
            if kind == "n" and gg <= g:
                last = i
        n = last + 1
        for _ in range(n):
            emit_filler()
        if n:
            k("s_nop 1")
    for g in range(32):
        q_norm(g)

    def read1(gi, j):
        c = gi // 4
        fi = gi * 4 + j
        lds = ((c + ROT) % S) * CH + (fi % 16) * 1024
        k("ds_read_b128 a[%d:%d], v%d offset:%d" % (16 * (gi % 2) + 4 * j, 16 * (gi % 2) + 4 * j + 3, 7 + lds // 65536, lds % 65536))

    def boundary(c):
        nonlocal nxtD
        for cc in (c, c + 1):
            while nxtD <= cc:
                issueD(nxtD, 4)
                nxtD += 1
        vm.wait(tokA[c + 1])
        k("s_barrier")
        if c == 2:
            while nxtD < 10:
                issueD(nxtD, 4)
                nxtD += 1
        if c == 4:
            issueD(10, 4)
            issueD(11, 4)
            nxtD = 12
        if c == 8:
            k.ts(6)
            for cc in range(5):
                issueEW(cc, 7)
        if c == 10:
            issueEW(5, 7)
    boundary(0)
    for j in range(4):
        read1(0, j)
    seen = set()
    NPER = int(os.environ.get("NPER", "4"))
    for gi in range(48):
        if gi + 1 < 48 and (gi + 1) % 8 == 0:
            boundary((gi + 1) // 4)
        for j in range(4):
            t, ks = order[gi * 4 + j]
            flush_norm(ks + 1)
            k("s_waitcnt lgkmcnt(%d)" % (3 if gi + 1 < 48 else 3 - j))
            first = t not in seen
            seen.add(t)
            if gi == 0 and j == 0:
                k.ts(5)
            k("v_mfma_f32_32x32x16_bf16 %s, a[%d:%d], %s, %s" % (vr(ACC + 16 * t, 16), 16 * (gi % 2) + 4 * j, 16 * (gi % 2) + 4 * j + 3, vr(B + 4 * ks, 4), "0" if first else vr(ACC + 16 * t, 16)))
            if gi + 1 < 48:
                read1(gi + 1, j)
            if (gi * 4 + j) % BPER == BPER - 1:
                issueB()
            while nbq[0] <= min(31, ks + 2):
                issueB()
            if ks == 31 and t >= 3:
                q_epi(t - 3)
            for _ in range(NPER):
                if fq:
                    emit_filler()
    k.ts(7)
    while fq:
        emit_filler()
    k("s_branch %s" % dend)
    k.lab(idle)
    k("v_lshlrev_b32 v7, 4, v1")
    k("s_waitcnt vmcnt(0)")
    k("s_barrier")
    for cc in range(6):
        issueEW(cc, 7)
    k.lab(dend)
    NKS = 86
    NC = 11
    k("s_mov_b32 s37, s49")
    k("s_mov_b32 s48, s30")
    k("s_mov_b32 s49, s31")
    k("s_and_b32 s56, s3, 1")
    k("s_lshr_b32 s57, s3, 1")
    k("v_lshlrev_b32 v4, 4, v1")
    k("s_lshl_b32 s50, s56, 13")
    k("s_lshl_b32 s51, s57, 12")
    k("s_add_u32 s50, s50, s51")
    k("s_add_u32 s50, s50, 98304")
    k("s_lshl_b32 s52, s48, 1")
    k("s_add_u32 s52, s52, s56")
    k("s_mul_i32 s52, s52, %d" % (NKS * 1024))
    k("s_add_u32 s52, s52, s51")
    k("s_add_u32 s52, s52, 0x%x" % (0 if os.environ.get("XCLEAN") else WS_ACT))
    k("s_lshl_b32 s58, s48, 6")
    k("s_lshl_b32 s59, s56, 5")
    k("s_add_u32 s58, s58, s59")
    k("v_and_b32 v13, 31, v1")
    k("v_add_u32 v13, s58, v13")
    k("v_lshrrev_b32 v8, 5, v1")
    k("v_lshlrev_b32 v12, 3, v8")
    k("v_lshl_add_u32 v12, v13, 10, v12")
    k("s_lshl_b32 s59, s49, 7")
    k("s_lshl_b32 s60, s57, 6")
    k("s_add_u32 s59, s59, s60")
    k("v_and_b32 v14, 31, v1")
    k("v_lshlrev_b32 v14, 4, v14")
    k("v_lshl_add_u32 v14, v8, 3, v14")
    k("s_lshl_b32 s60, s48, 1")
    k("s_add_u32 s60, s60, s56")
    k("s_lshl_b32 s60, s60, 5")
    k("s_lshl_b32 s61, s49, 2")
    k("s_add_u32 s60, s60, s61")
    k("s_lshl_b32 s61, s57, 1")
    k("s_add_u32 s60, s60, s61")
    k("s_lshl_b32 s60, s60, 10")
    k("s_add_u32 s60, s60, 0x%x" % WS_HP)
    k("s_lshl_b32 s61, s56, 13")
    k("s_add_u32 s61, s61, 98304")
    k("s_lshl_b32 s62, s57, 10")
    k("v_add_u32 v16, s61, v4")
    k("v_add_u32 v20, s62, v4")
    k("v_add_u32 v21, 0x10000, v20")
    k("s_cmp_eq_u32 s37, 15")
    k("s_cselect_b32 s37, 0, 1")
    k("v_mov_b32 v58, s37")
    k("s_waitcnt vmcnt(0)")
    k.ts(8)
    k("s_barrier")
    publish(512, 256, addreg="v58")
    poll("15")
    ACC, RES, FR = 32, 48, 64
    vm2 = VM(k)
    for q in range(4):
        k("buffer_load_dwordx2 %s, v14, s[20:23], s60 offen offset:%d" % (vr(RES + 2 * q, 2), (q >> 1) * 1024 + (q & 1) * 512))
        vm2.issue()
    acquire()
    k.ts(9)
    tokX, tokW = {}, {}

    def issueX(c):
        for j in range(4):
            k("s_add_u32 m0, s50, %d" % ((c % 4) * 16384 + j * 1024))
            k("s_add_u32 s54, s52, %d" % (c * 8192 + j * 1024))
            k("buffer_load_dwordx4 v4, s[20:23], s54 offen lds")
            tokX[c] = vm2.issue()

    def issueW(c):
        for j in range(4):
            k("s_add_u32 m0, s36, %d" % ((c % 6) * 16384 + j * 1024))
            k("s_add_u32 s54, s35, %d" % (c * 16384 + j * 1024))
            k("buffer_load_dwordx4 v4, s[20:23], s54 offen lds")
            tokW[c] = vm2.issue()
    for c in range(4):
        issueX(c)

    def rd(g):
        c, ks = g // 8, g % 8
        oa = (c % 6) * 16384 + ks * 2048
        ob = (c % 4) * 16384 + ks * 1024
        k("ds_read_b128 %s, v%d offset:%d" % (vr(FR + 8 * (g % 4), 4), 20 + oa // 65536, oa % 65536))
        k("ds_read_b128 %s, v16 offset:%d" % (vr(FR + 8 * (g % 4) + 4, 4), ob))
    for c in range(NC):
        n = min(8, NKS - 8 * c)
        vm2.wait(max(tokX[c], tokW.get(c, 0)))
        k("s_barrier")
        if c == 0:
            k.ts(10)
        if FTS == "E":
            ts0(2 + c)
        for ks in range(3):
            rd(8 * c + ks)
        if c >= 1:
            if c + 5 < NC:
                issueW(c + 5)
            if c + 3 < NC:
                issueX(c + 3)
        for ks in range(n):
            g = 8 * c + ks
            k("s_waitcnt lgkmcnt(%d)" % (2 * min(2, n - 1 - ks)))
            k("v_mfma_f32_32x32x16_bf16 %s, %s, %s, %s" % (vr(ACC, 16), vr(FR + 8 * (g % 4), 4), vr(FR + 8 * (g % 4) + 4, 4), "0" if g == 0 else vr(ACC, 16)))
            if ks + 3 < n:
                rd(g + 3)
    k.ts(11)
    k("s_nop 15")
    BF = FR
    for q in range(4):
        for d in range(2):
            r = RES + 2 * q + d
            k("v_lshlrev_b32 v%d, 16, v%d" % (BF + 32, r))
            k("v_and_b32 v%d, 0xffff0000, v%d" % (BF + 33, r))
            k("v_add_f32 v%d, v%d, v%d" % (ACC + 4 * q + 2 * d, ACC + 4 * q + 2 * d, BF + 32))
            k("v_add_f32 v%d, v%d, v%d" % (ACC + 4 * q + 2 * d + 1, ACC + 4 * q + 2 * d + 1, BF + 33))
    for r in range(8):
        k("v_cvt_pk_bf16_f32 v%d, v%d, v%d" % (RES + r, ACC + 2 * r, ACC + 2 * r + 1))
    for q in range(4):
        k("buffer_store_dwordx2 %s, v12, s[16:19], s59 offen offset:%d%s" % (vr(RES + 2 * q, 2), 16 * q, FSTO))
    k.ts(12)
    if os.environ.get("FDBG"):
        k("s_waitcnt lgkmcnt(0)")
        k("s_add_u32 s82, s70, s4")
        k("s_add_u32 s90, s70, s41")
    k.ts_flush(13)
    k.lab(end)
    return k


def build(kerns):
    head = open("cdna_kernels/%s.s.ref" % NAME).read().split("; @launch")[0]
    out = [head.rstrip("\n")]
    for kk in kerns:
        out.append("; @launch kernel=%s grid=(%d,1,1) block=(%d,1,1) lds=%d" % (kk.name, kk.grid, kk.block, kk.lds))
    out.append('.amdgcn_target "amdgcn-amd-amdhsa--gfx950"')
    out.append(".text")
    for kk in kerns:
        out.append(kk.text())
    out.append('.section .rodata,"a"')
    for kk in kerns:
        out.append(".p2align 6")
        out.append(kk.desc())
    return "\n".join(out) + "\n"


def main():
    which = sys.argv[1] if len(sys.argv) > 1 else "ABCDE"
    gens = {"A": gen_A}
    for nm in "BCDEF":
        if "gen_" + nm in globals():
            gens[nm] = globals()["gen_" + nm]
    kerns = [gens[c]() for c in which if c in gens]
    txt = build(kerns)
    open("cdna_kernels/%s.s" % NAME, "w").write(txt)
    print("wrote", len(txt), "bytes;", [kk.name for kk in kerns])


if __name__ == "__main__":
    main()
```

```python
import sys, re

NAME = "sequential_preLN__grouped_kv_mqa__swiglu_ffn__prompt"

WS_Q = 0x000000
WS_K = 0x200000
WS_V = 0x210000
WS_CS = 0x220000
WS_KM = 0x228000
WS_O = 0x300000
WS_H = 0x500000
WS_ACT = 0x800000
ACT_LD = 2816
WS_ST = 0x230000
WS_WG = 0x1000000
WS_WD = 0x1400000
WS_WO = 0x1600000
WS_HP = 0x1800000
WS_DUMMY = 0x2000000
KS1 = int(__import__("os").environ.get("KS1", "16"))
WS_SIZE = 268435456
import os
DEBUG_TS = bool(os.environ.get('TS'))
FUSED = "F" in (sys.argv[1] if len(sys.argv) > 1 else "")
TSMODE = int(os.environ.get('TS', '0'))
SRD3 = "0x00020000"
LOG2E = 1.4426950408889634


def f32hex(x):
    import struct
    return "0x%08x" % struct.unpack("<I", struct.pack("<f", x))[0]


class Kern:
    def __init__(s, name, nvgpr, block, grid, lds, accum=None):
        s.name = name
        s.L = []
        s.nvgpr = nvgpr
        s.block = block
        s.grid = grid
        s.lds = lds
        s.accum = accum if accum is not None else nvgpr
        s.nlab = 0
        s.tsb = 70
        s.kidx = {"attn_kernel": 1, "wo_kernel": 2, "ffn1_kernel": 3, "down_kernel": 4}.get(name, 0)

    def __call__(s, txt):
        for t in txt.split("\n"):
            t = t.strip()
            if t:
                m = re.search(r"offset:(\d+)", t)
                if m:
                    lim = 4095 if t.startswith("buffer") else 65535
                    assert int(m.group(1)) <= lim, t
                if t.startswith("buffer_store") and os.environ.get("STMOD"):
                    t = t + " " + os.environ["STMOD"]
                s.L.append("    " + t)

    def lab(s, l):
        s.L.append(l + ":")

    def newlab(s, p):
        s.nlab += 1
        return "%s_%s%d" % (s.name.replace("_kernel", "")[:8], p, s.nlab)

    def srd(s, reg, preg, size):
        s("s_mov_b32 s%d, s%d" % (reg, preg))
        s("s_and_b32 s%d, s%d, 0xffff" % (reg + 1, preg + 1))
        s("s_mov_b32 s%d, 0x%x" % (reg + 2, size))
        s("s_mov_b32 s%d, %s" % (reg + 3, SRD3))

    def ts(s, idx):
        if not DEBUG_TS:
            return
        if TSMODE == 3:
            if idx == 0:
                s("s_memrealtime s[100:101]")
            return
        if TSMODE == 4:
            s("s_memrealtime s[%d:%d]" % (s.tsb + 2 * idx, s.tsb + 1 + 2 * idx))
            return
        s("s_memtime s[%d:%d]" % (s.tsb + 2 * idx, s.tsb + 1 + 2 * idx))
        if idx == 0:
            s("s_memrealtime s[100:101]")

    def ts_flush(s, n):
        if not DEBUG_TS:
            return
        if TSMODE == 3:
            lab = s.newlab("nots")
            s("s_waitcnt vmcnt(0)")
            s("s_memrealtime s[72:73]")
            s("s_waitcnt lgkmcnt(0)")
            s("s_cmp_lg_u32 s3, 0")
            s("s_cbranch_scc1 %s" % lab)
            s("s_lshl_b32 s69, s2, 3")
            s("s_add_u32 s69, s69, 0x%x" % (0x1F00000 + 4096 * s.kidx))
            s("v_mov_b32 v0, 0")
            s("v_mov_b32 v2, s100")
            s("v_mov_b32 v3, s72")
            s("s_mov_b64 exec, 1")
            s("buffer_store_dwordx2 v[2:3], v0, s[20:23], s69 offen")
            s("s_mov_b64 exec, -1")
            s.lab(lab)
            return
        if TSMODE == 4:
            lab = s.newlab("nots")
            s("s_waitcnt lgkmcnt(0)")
            s("s_cmp_lg_u32 s3, 0")
            s("s_cbranch_scc1 %s" % lab)
            s("s_lshl_b32 s69, s2, 6")
            s("s_add_u32 s69, s69, 0x%x" % (0x1F00000 + 16384 * s.kidx))
            s("v_mov_b32 v0, 0")
            for i in range(n):
                s("v_mov_b32 v1, s%d" % (s.tsb + 2 * i))
                s("buffer_store_dword v1, v0, s[20:23], s69 offen offset:%d" % (4 * i))
                s("s_nop 2")
            s.lab(lab)
            return
        lab = s.newlab("nots")
        s("s_memrealtime s[64:65]")
        s("s_waitcnt lgkmcnt(0)")
        s("s_sub_u32 s67, s2, 100")
        s("s_cmp_ge_u32 s67, 4")
        s("s_cbranch_scc1 %s" % lab)
        s("s_cmp_lg_u32 s3, 0")
        s("s_cbranch_scc1 %s" % lab)
        s("s_load_dwordx2 s[96:97], s[0:1], 80")
        s("s_waitcnt lgkmcnt(0)")
        s("s_mov_b32 s98, 256")
        s("s_mov_b32 s99, 0x00020000")
        s("s_lshl_b32 s69, s67, 6")
        s("v_mov_b32 v0, 0")
        for i in range(n):
            s("s_sub_u32 s68, s%d, s%d" % (s.tsb + 2 * i, s.tsb))
            s("v_mov_b32 v1, s68")
            s("buffer_store_dword v1, v0, s[96:99], s69 offen offset:%d" % (4 * i))
            s("s_nop 2")
        s("s_sub_u32 s68, s64, s100")
        s("v_mov_b32 v1, s68")
        s("buffer_store_dword v1, v0, s[96:99], s69 offen offset:60")
        s.lab(lab)

    def text(s):
        out = []
        out.append(".globl %s" % s.name)
        out.append(".p2align 8")
        out.append(".type %s,@function" % s.name)
        out.append("%s:" % s.name)
        out += s.L
        out.append("    s_endpgm")
        return "\n".join(out)

    def desc(s):
        return "\n".join([
            ".amdhsa_kernel %s" % s.name,
            "  .amdhsa_next_free_vgpr %d" % s.nvgpr,
            "  .amdhsa_next_free_sgpr 102",
            "  .amdhsa_accum_offset %d" % s.accum,
            "  .amdhsa_group_segment_fixed_size 0",
            "  .amdhsa_kernarg_size 96",
            "  .amdhsa_user_sgpr_count 2",
            "  .amdhsa_user_sgpr_kernarg_segment_ptr 1",
            "  .amdhsa_system_sgpr_workgroup_id_x 1",
            ".end_amdhsa_kernel"])


def vr(a, n=1):
    return "v%d" % a if n == 1 else "v[%d:%d]" % (a, a + n - 1)


def sr(a, n=1):
    return "s%d" % a if n == 1 else "s[%d:%d]" % (a, a + n - 1)


def gen_A():
    k = Kern(NAME + "_kernel", 256, 256, 256, 163840)
    end = k.newlab("end")
    k("s_cmp_ge_u32 s2, 256")
    k("s_cbranch_scc1 %s" % end)
    k.ts(0)
    k("s_load_dwordx8 s[24:31], s[0:1], 0")
    k("s_load_dwordx2 s[32:33], s[0:1], 88")
    k("v_and_b32 v1, 63, v0")
    k("v_lshrrev_b32 v2, 6, v0")
    k("s_nop 1")
    k("v_readfirstlane_b32 s3, v2")
    k("s_and_b32 s48, s2, 7")
    k("s_lshl_b32 s48, s48, 2")
    k("s_bfe_u32 s49, s2, 0x20003")
    k("s_add_u32 s48, s48, s49")
    k("s_lshr_b32 s49, s2, 5")
    k("v_lshrrev_b32 v3, 4, v1")
    k("s_lshl_b32 s50, s3, 2")
    k("v_add_u32 v3, s50, v3")
    k("v_and_b32 v4, 15, v1")
    k("v_xor_b32 v4, v4, v3")
    k("v_lshlrev_b32 v4, 4, v4")
    k("s_lshl_b32 s51, s48, 6")
    k("v_add_u32 v3, s51, v3")
    k("v_lshl_add_u32 v4, v3, 10, v4")
    k("v_lshrrev_b32 v3, 3, v1")
    k("s_lshl_b32 s50, s3, 3")
    k("v_add_u32 v3, s50, v3")
    k("v_and_b32 v5, 7, v1")
    k("v_bfe_u32 v6, v1, 4, 1")
    k("v_lshlrev_b32 v6, 2, v6")
    k("v_xor_b32 v5, v5, v6")
    k("v_lshlrev_b32 v5, 4, v5")
    k("v_lshl_add_u32 v5, v3, 10, v5")
    k("s_lshl_b32 s50, s49, 7")
    k("v_add_u32 v5, s50, v5")
    k("v_lshlrev_b32 v6, 4, v1")
    k("s_lshl_b32 s52, s3, 10")
    k("s_and_b32 s56, s3, 1")
    k("s_lshr_b32 s57, s3, 1")
    k("s_lshl_b32 s62, s56, 11")
    k("s_and_b32 s50, s48, 7")
    k("s_lshl_b32 s63, s57, 8")
    k("s_or_b32 s50, s50, s63")
    k("s_cmp_eq_u32 s50, s49")
    k("s_cselect_b32 s53, 1, 0")
    k("s_waitcnt lgkmcnt(0)")
    k.srd(4, 24, 2048 * 512 * 2)
    for c in range(4):
        for j in range(4):
            k("s_add_u32 m0, s52, %d" % (c * 16384 + j * 4096))
            k("s_mov_b32 s54, %d" % (j * 16 * 1024 + c * 256))
            k("buffer_load_dwordx4 v4, s[4:7], s54 offen lds")
    k.srd(8, 26, 512 * 512 * 2)
    k.srd(12, 28, 512 * 16 * 2)
    k.srd(16, 30, 512 * 16 * 2)
    k.srd(20, 32, WS_SIZE)
    k.ts(1)
    k("v_and_b32 v7, 31, v1")
    k("s_lshl_b32 s58, s56, 5")
    k("v_add_u32 v7, s58, v7")
    k("v_lshrrev_b32 v8, 5, v1")
    k("v_and_b32 v9, 15, v7")
    k("v_xor_b32 v9, v9, v8")
    k("v_lshlrev_b32 v9, 4, v9")
    k("v_lshl_add_u32 v9, v7, 8, v9")
    XA = 16
    for ks in range(8):
        k("v_xor_b32 v%d, %d, v9" % (XA + ks, ks * 32))
    k("v_lshrrev_b32 v7, 5, v1")
    k("v_lshlrev_b32 v7, 3, v7")
    k("v_bfe_u32 v10, v1, 2, 2")
    k("v_add_u32 v7, v7, v10")
    k("v_bfe_u32 v10, v1, 4, 1")
    k("v_lshlrev_b32 v10, 5, v10")
    k("v_and_b32 v11, 3, v1")
    k("v_lshl_add_u32 v10, v11, 3, v10")
    k("s_lshl_b32 s58, s57, 6")
    k("v_add_u32 v10, s58, v10")
    k("v_bfe_u32 v11, v1, 3, 1")
    k("v_lshlrev_b32 v11, 6, v11")
    k("v_xor_b32 v10, v10, v11")
    k("v_lshl_add_u32 v10, v7, 7, v10")
    k("v_add_u32 v10, 0x10000, v10")
    k("v_and_b32 v11, 3, v1")
    k("v_lshlrev_b32 v11, 3, v11")
    k("v_lshl_add_u32 v11, v7, 5, v11")
    k("v_bfe_u32 v12, v1, 4, 1")
    k("v_lshl_add_u32 v11, v12, 14, v11")
    k("v_add_u32 v11, 0x20000, v11")
    ONES = 24
    for i in range(4):
        k("v_mov_b32 v%d, 0x3f803f80" % (ONES + i))
    S1, S2 = 28, 29
    for i in range(4):
        k("v_mov_b32 v%d, 0" % (28 + i))
    ACC, CS, ACC2, CS2 = 32, 48, 64, 80
    BF, AF, AK = 96, 224, 240
    done = k.newlab("done")
    kvp = k.newlab("kvp")
    k("s_cmp_lg_u32 s53, 0")
    k("s_cbranch_scc1 %s" % kvp)

    def body(kv):
        nW = 8 if kv else 4

        def issueW(c):
            for j in range(4):
                k("s_add_u32 m0, s52, %d" % (65536 + c * 16384 + j * 4096))
                k("s_mov_b32 s54, %d" % ((c * 128 + 32 * j) * 1024))
                k("buffer_load_dwordx4 v5, s[8:11], s54 offen lds")
            if kv:
                for (srdn, base) in ((12, 131072), (16, 147456)):
                    for j in range(2):
                        k("s_add_u32 s54, s62, %d" % (c * 4096 + j * 1024))
                        k("s_add_u32 m0, s54, %d" % base)
                        k("buffer_load_dwordx4 v6, s[%d:%d], s54 offen lds" % (srdn, srdn + 3))
        for c in range(4):
            k("s_waitcnt vmcnt(%d)" % (4 * (3 - c) + c * nW))
            k("s_barrier")
            if not kv: k.ts(2 + c)
            for ks in range(8):
                k("ds_read_b128 %s, v%d offset:%d" % (vr(BF + 4 * (8 * c + ks), 4), XA + ks, c * 16384))
            issueW(c)
            for ks in range(8):
                k("s_waitcnt lgkmcnt(%d)" % (7 - ks))
                for q in range(4):
                    b = BF + 4 * (8 * c + ks) + q
                    k("v_dot2c_f32_bf16 v%d, v%d, v%d" % (28 + 2 * (q & 1), b, ONES))
                    k("v_dot2c_f32_bf16 v%d, v%d, v%d" % (29 + 2 * (q & 1), b, b))

        def rdA(g):
            c, ks = g // 8, g % 8
            k("ds_read_b64_tr_b16 %s, v10 offset:%d" % (vr(AF + 4 * (g % 4), 2), c * 16384 + ks * 2048))
            k("ds_read_b64_tr_b16 %s, v10 offset:%d" % (vr(AF + 4 * (g % 4) + 2, 2), c * 16384 + ks * 2048 + 512))
            if kv:
                k("ds_read_b64_tr_b16 %s, v11 offset:%d" % (vr(AK + 4 * (g % 4), 2), (c * 128 + ks * 16) * 32))
                k("ds_read_b64_tr_b16 %s, v11 offset:%d" % (vr(AK + 4 * (g % 4) + 2, 2), (c * 128 + ks * 16 + 4) * 32))
        nr = 4 if kv else 2
        for c in range(4):
            k("s_waitcnt vmcnt(%d)" % ((3 - c) * nW))
            k("s_barrier")
            if not kv: k.ts(6 + c)
            for ks in range(3):
                rdA(8 * c + ks)
            if c == 0:
                k("v_add_f32 v28, v28, v30")
                k("v_add_f32 v29, v29, v31")
                k("v_mov_b32 v30, v28")
                k("v_mov_b32 v31, v29")
                k("s_nop 1")
                k("v_permlane32_swap_b32 v28, v30")
                k("v_permlane32_swap_b32 v29, v31")
                k("s_nop 1")
                k("v_add_f32 v28, v28, v30")
                k("v_add_f32 v29, v29, v31")
                k("v_mul_f32 v%d, %s, v%d" % (S1, f32hex(1.0 / 512), S1))
                k("v_mul_f32 v%d, %s, v%d" % (S2, f32hex(1.0 / 512), S2))
                k("v_fma_f32 v%d, -v%d, v%d, v%d" % (S2, S1, S1, S2))
                k("v_add_f32 v%d, %s, v%d" % (S2, f32hex(1e-5), S2))
                k("v_rsq_f32 v%d, v%d" % (S2, S2))
                k("s_nop 1")
                k("v_mul_f32 v30, %s, v%d" % (f32hex(0.25 * LOG2E), S2))
            for ks in range(8):
                g = 8 * c + ks
                ahead = min(2, 7 - ks)
                k("s_waitcnt lgkmcnt(%d)" % (ahead * nr))
                first = g == 0
                k("v_mfma_f32_32x32x16_bf16 %s, %s, %s, %s" % (vr(ACC, 16), vr(AF + 4 * (g % 4), 4), vr(BF + 4 * g, 4), "0" if first else vr(ACC, 16)))
                if ks + 3 < 8:
                    rdA(g + 3)
                k("v_mfma_f32_32x32x16_bf16 %s, %s, %s, %s" % (vr(CS, 16), vr(AF + 4 * (g % 4), 4), vr(ONES, 4), "0" if first else vr(CS, 16)))
                if kv:
                    k("v_mfma_f32_32x32x16_bf16 %s, %s, %s, %s" % (vr(ACC2, 16), vr(AK + 4 * (g % 4), 4), vr(BF + 4 * g, 4), "0" if first else vr(ACC2, 16)))
                    k("v_mfma_f32_32x32x16_bf16 %s, %s, %s, %s" % (vr(CS2, 16), vr(AK + 4 * (g % 4), 4), vr(ONES, 4), "0" if first else vr(CS2, 16)))
    body(False)
    k("s_branch %s" % done)
    k.lab(kvp)
    body(True)
    k.lab(done)
    k.ts(10)
    k("v_and_b32 v7, 31, v1")
    k("s_lshl_b32 s58, s56, 5")
    k("s_add_u32 s58, s58, s51")
    k("v_add_u32 v7, s58, v7")
    k("v_lshrrev_b32 v8, 5, v1")
    k("v_lshlrev_b32 v9, 3, v8")
    k("v_lshl_add_u32 v12, v7, 10, v9")
    k("s_lshl_b32 s59, s49, 7")
    k("s_lshl_b32 s60, s57, 6")
    k("s_add_u32 s59, s59, s60")
    k("s_add_u32 s59, s59, 0x%x" % WS_Q)
    k("s_nop 15")
    TQ = 224
    for r in range(16):
        k("v_fma_f32 v%d, -v%d, v%d, v%d" % (ACC + r, S1, CS + r, ACC + r))
    for r in range(16):
        k("v_mul_f32 v%d, v30, v%d" % (ACC + r, ACC + r))
    for r in range(8):
        k("v_cvt_pk_bf16_f32 v%d, v%d, v%d" % (TQ + r, ACC + 2 * r, ACC + 2 * r + 1))
    for q in range(4):
        k("buffer_store_dwordx2 %s, v12, s[20:23], s59 offen offset:%d" % (vr(TQ + 2 * q, 2), 16 * q))
    k.ts(11)
    k.ts_flush(12)
    k("s_cmp_eq_u32 s53, 0")
    k("s_cbranch_scc1 %s" % end)
    ACC, CS = ACC2, CS2
    for r in range(16):
        k("v_fma_f32 v%d, -v%d, v%d, v%d" % (ACC + r, S1, CS + r, ACC + r))
    for r in range(16):
        k("v_mul_f32 v%d, v%d, v%d" % (ACC + r, S2, ACC + r))
    for r in range(8):
        k("v_cvt_pk_bf16_f32 v%d, v%d, v%d" % (CS + r, ACC + 2 * r, ACC + 2 * r + 1))
    k("v_mov_b32 v14, 0")
    for i in range(4):
        k("v_dot2c_f32_bf16 v14, v%d, v%d" % (CS + i, CS + i))
    k("s_nop 4")
    k("v_mov_b32 v15, v14")
    k("s_nop 1")
    k("v_permlane32_swap_b32 v14, v15")
    k("s_nop 1")
    k("v_add_f32 v14, v14, v15")
    k("s_nop 1")
    for r in (8, 4, 2, 1):
        k("v_max_f32_dpp v14, v14, v14 row_ror:%d row_mask:0xf bank_mask:0xf" % r)
        k("s_nop 1")
    k("v_readlane_b32 s60, v14, 0")
    k("v_readlane_b32 s61, v14, 16")
    k("s_nop 3")
    k("s_max_u32 s60, s60, s61")
    k("v_mov_b32 v14, s60")
    k("v_mov_b32 v15, 0")
    k("s_lshl_b32 s61, s48, 1")
    k("s_add_u32 s61, s61, s56")
    k("s_lshl_b32 s61, s61, 2")
    k("s_add_u32 s61, s61, 0x%x" % WS_KM)
    k("s_mov_b64 exec, 1")
    k("buffer_store_dword v14, v15, s[20:23], s61 offen")
    k("s_mov_b64 exec, -1")
    k("v_and_b32 v13, 31, v1")
    k("v_lshlrev_b32 v13, 4, v13")
    k("v_lshl_add_u32 v13, v8, 3, v13")
    k("s_lshl_b32 s59, s48, 1")
    k("s_add_u32 s59, s59, s56")
    k("s_lshl_b32 s59, s59, 10")
    k("s_add_u32 s59, s59, 0x%x" % WS_K)
    k("buffer_store_dwordx2 %s, v13, s[20:23], s59 offen" % vr(CS, 2))
    k("buffer_store_dwordx2 %s, v13, s[20:23], s59 offen offset:512" % vr(CS + 2, 2))
    k("v_lshrrev_b32 v13, 4, v7")
    k("v_lshlrev_b32 v13, 9, v13")
    k("v_bfe_u32 v14, v7, 2, 1")
    k("v_lshl_add_u32 v13, v14, 8, v13")
    k("v_bfe_u32 v14, v7, 3, 1")
    k("v_lshl_add_u32 v13, v14, 3, v13")
    k("v_and_b32 v14, 3, v7")
    k("v_lshl_add_u32 v13, v14, 1, v13")
    k("v_lshl_add_u32 v13, v8, 6, v13")
    k("s_mov_b32 s59, 0x%x" % WS_V)
    for r in range(8, 16):
        d = (r & 3) + 8 * ((r >> 2) - 2)
        src = CS + r // 2
        op = "buffer_store_short" if r % 2 == 0 else "buffer_store_short_d16_hi"
        k("%s v%d, v13, s[20:23], s59 offen offset:%d" % (op, src, d * 16))
    k.lab(end)
    return k


def gen_B():
    k = Kern("attn_kernel", 128, 1024, 256, 163840)
    end = k.newlab("end")
    k("s_cmp_ge_u32 s2, 256")
    k("s_cbranch_scc1 %s" % end)
    k.tsb = 4
    k.ts(0)
    k("s_load_dwordx2 s[32:33], s[0:1], 88")
    k("s_load_dwordx4 s[36:39], s[0:1], 48")
    k("s_load_dwordx2 s[40:41], s[0:1], 64")
    k("s_load_dwordx2 s[42:43], s[0:1], 32")
    k("v_and_b32 v1, 63, v0")
    k("v_lshrrev_b32 v2, 6, v0")
    k("s_nop 1")
    k("v_readfirstlane_b32 s3, v2")
    k("v_and_b32 v2, 31, v1")
    k("v_lshlrev_b32 v2, 5, v2")
    k("v_lshrrev_b32 v3, 5, v1")
    k("v_lshl_add_u32 v2, v3, 4, v2")
    k("v_lshlrev_b32 v8, 4, v1")
    k("s_and_b32 s48, s3, 7")
    k("s_lshr_b32 s49, s3, 3")
    k("s_lshl_b32 s50, s2, 3")
    k("s_add_u32 s50, s50, s48")
    k("s_lshl_b32 s51, s50, 10")
    k("s_add_u32 s51, s51, 0x%x" % WS_Q)
    k("s_lshr_b32 s52, s3, 3")
    k("s_lshl_b32 s52, s52, 15")
    k("s_and_b32 s53, s3, 7")
    k("s_lshl_b32 s53, s53, 10")
    k("s_add_u32 s52, s52, s53")
    k("s_waitcnt lgkmcnt(0)")
    k.srd(20, 32, WS_SIZE)
    QF = 4
    k("buffer_load_dwordx4 %s, v2, s[20:23], s51 offen" % vr(QF, 4))
    if FUSED:
        zl = k.newlab("zf")
        k("s_lshl_b32 s60, s3, 8")
        k("s_add_u32 s60, s60, s2")
        k("s_cmp_ge_u32 s60, 16")
        k("s_cbranch_scc1 %s" % zl)
        k("s_lshl_b32 s60, s2, 10")
        k("s_add_u32 s60, s60, 0x%x" % WS_FL)
        for i in range(4):
            k("v_mov_b32 v%d, 0" % (12 + i))
        k("buffer_store_dwordx4 v[12:15], v8, s[20:23], s60 offen")
        k.lab(zl)
    k("s_lshl_b32 s54, s49, 7")
    k("s_add_u32 s54, s54, 0x%x" % WS_KM)
    k("s_add_u32 s56, s32, s54")
    k("s_addc_u32 s57, s33, 0")
    k("s_load_dwordx16 s[64:79], s[56:57], 0")
    k("s_load_dwordx16 s[80:95], s[56:57], 64")
    for j in range(4):
        for ss in range(2):
            k("s_add_u32 m0, s52, %d" % (ss * 65536 + j * 8192))
            k("s_add_u32 s53, s52, 0x%x" % (WS_K + ss * 65536 + j * 8192))
            k("buffer_load_dwordx4 v8, s[20:23], s53 offen lds")
    k("s_lshl_b32 s54, s49, 15")
    k("v_add_u32 v9, s54, v8")
    k("v_and_b32 v10, 15, v1")
    k("v_lshlrev_b32 v10, 4, v10")
    k("v_lshl_add_u32 v10, v3, 8, v10")
    k("v_add_u32 v10, s54, v10")
    k("v_add_u32 v10, 0x10000, v10")
    NEG, SA, SB, O, PK, KF, VF = 16, 32, 48, 64, 80, 88, 100
    M = 11
    for i in range(16):
        k("v_mov_b32 v%d, 0x3f803f80" % (VF + i))
    k("s_mov_b32 s58, 0xffff")
    k("s_mov_b32 s59, 0xffff")
    k("s_waitcnt lgkmcnt(0)")
    for i in range(1, 32):
        k("s_max_u32 s64, s64, s%d" % (64 + i))
    k("v_mov_b32 v12, 0")
    k("s_waitcnt vmcnt(8)")
    for i in range(4):
        k("v_dot2c_f32_bf16 v12, v%d, v%d" % (QF + i, QF + i))
    k("s_nop 4")
    k("v_mov_b32 v13, v12")
    k("s_nop 1")
    k("v_permlane32_swap_b32 v12, v13")
    k("s_nop 1")
    k("v_add_f32 v12, v12, v13")
    k("v_mul_f32 v12, s64, v12")
    k("v_sqrt_f32 v%d, v12" % M)
    k("s_nop 1")
    for i in range(16):
        k("v_xor_b32 v%d, 0x80000000, v%d" % (NEG + i, M))
    S = [SA, SB]
    NT = 32

    RP, RQ = 116, 124

    def repack_issue():
        l_dn, l_go = k.newlab("rdn"), k.newlab("rgo")
        k("s_cmp_ge_u32 s64, 2752")
        k("s_cbranch_scc1 %s" % l_dn)
        k("s_lshr_b32 s65, s64, 5")
        k("s_and_b32 s66, s64, 31")
        k("s_cmp_ge_u32 s65, 43")
        k("s_cselect_b32 s67, 1, 0")
        k("s_cselect_b32 s84, s38, s36")
        k("s_cselect_b32 s85, s39, s37")
        k("s_mul_i32 s68, s67, 43")
        k("s_sub_u32 s65, s65, s68")
        k("s_mul_i32 s68, s65, 171")
        k("s_lshr_b32 s68, s68, 9")
        k("s_mul_i32 s69, s68, 3")
        k("s_sub_u32 s69, s65, s69")
        k("s_mul_i32 s70, s66, 6")
        k("s_mul_i32 s71, s67, 3")
        k("s_add_u32 s70, s70, s71")
        k("s_add_u32 s70, s70, s69")
        k("s_mul_i32 s71, s69, %d" % ((32 - KS1) * 2))
        k("s_lshl_b32 s72, s66, 1")
        k("s_add_u32 s71, s71, s72")
        k("s_add_u32 s71, s71, s67")
        k("s_add_u32 s71, s71, %d" % (KS1 * 6 - 2 * KS1))
        k("s_cmp_lt_u32 s66, %d" % KS1)
        k("s_cselect_b32 s70, s70, s71")
        k("s_lshl_b32 s70, s70, 10")
        k("s_mul_i32 s90, s68, 196608")
        k("s_add_u32 s90, s90, s70")
        k("s_add_u32 s90, s90, 0x%x" % WS_WG)
        k("s_mov_b32 s86, %d" % (512 * 2752))
        k("s_mov_b32 s89, 2752")
        k("s_branch %s" % l_go)
        k.lab(l_dn)
        k("s_sub_u32 s64, s64, 2752")
        k("s_cmp_ge_u32 s64, 1376")
        k("s_cselect_b32 s84, s42, s40")
        k("s_cselect_b32 s85, s43, s41")
        k("s_mov_b32 s86, %d" % (1376 * 1024))
        k("s_mov_b32 s68, %d" % (86 * 2048))
        k("s_mov_b32 s90, 0x%x" % WS_WD)
        k("s_cselect_b32 s86, %d, s86" % (512 * 1024))
        k("s_cselect_b32 s67, 1376, 0")
        k("s_cselect_b32 s68, 65536, s68")
        k("s_cselect_b32 s90, 0x%x, s90" % WS_WO)
        k("s_sub_u32 s64, s64, s67")
        k("s_lshr_b32 s66, s64, 4")
        k("s_and_b32 s65, s64, 15")
        k("s_lshr_b32 s69, s65, 1")
        k("s_mul_i32 s69, s69, s68")
        k("s_add_u32 s90, s90, s69")
        k("s_lshl_b32 s69, s66, 11")
        k("s_add_u32 s90, s90, s69")
        k("s_and_b32 s69, s65, 1")
        k("s_lshl_b32 s69, s69, 10")
        k("s_add_u32 s90, s90, s69")
        k("s_mov_b32 s89, 1024")
        k.lab(l_go)
        k("s_and_b32 s85, s85, 0xffff")
        k("s_mov_b32 s87, %s" % SRD3)
        k("s_mul_i32 s88, s66, s89")
        k("s_lshl_b32 s88, s88, 4")
        k("s_lshl_b32 s69, s65, 6")
        k("s_add_u32 s88, s88, s69")
        k("s_lshl_b32 s69, s89, 3")
        k("v_mul_u32_u24 v14, s69, v3")
        k("v_and_b32 v15, 31, v1")
        k("v_lshl_add_u32 v14, v15, 1, v14")
        for j in range(8):
            k("buffer_load_ushort v%d, v14, s[84:87], s88 offen" % (RP + j))
            if j < 7:
                k("s_add_u32 s88, s88, s89")

    def repack_store():
        k("s_waitcnt vmcnt(0)")
        for q in range(4):
            k("v_lshl_or_b32 v%d, v%d, 16, v%d" % (RQ + q, RP + 2 * q + 1, RP + 2 * q))
        k("buffer_store_dwordx4 %s, v8, s[20:23], s90 offen" % vr(RQ, 4))

    EXPB = os.environ.get("EXPB", "")
    PRIO = int(os.environ.get("PRIO", "1"))
    RT = [int(x) for x in os.environ.get("RT", "1,12,24").split(",")]
    repack_wait = [False]
    def rdV(t):
        if "noV" in EXPB and t > 1:
            k("ds_read_b32 v15, v10"); k("ds_read_b32 v15, v10")
            return
        k("s_mov_b64 exec, s[58:59]")
        k("ds_read_b128 %s, v10 offset:%d" % (vr(VF + 8 * (t % 2), 4), t * 1024))
        k("ds_read_b128 %s, v10 offset:%d" % (vr(VF + 8 * (t % 2) + 4, 4), t * 1024 + 512))
        k("s_mov_b64 exec, -1")

    def pass2(bars):
        if bars:
            k("s_waitcnt vmcnt(6)")
            k("s_barrier")
            k.ts(1)
        k("ds_read_b128 %s, v9 offset:0" % vr(KF, 4))
        k("ds_read_b128 %s, v9 offset:1024" % vr(KF + 4, 4))
        rdV(0)
        k("s_waitcnt lgkmcnt(3)")
        k("v_mfma_f32_32x32x16_bf16 %s, %s, %s, %s" % (vr(S[0], 16), vr(KF, 4), vr(QF, 4), vr(NEG, 16)))
        for t in range(NT):
            n_new = 0
            if bars and t == 8: k.ts(2)
            if bars and t == 16: k.ts(3)
            if bars and t == 23: k.ts(4)
            if bars and PRIO and t % 8 in (0, 2, 4, 6):
                k("s_setprio %d" % (3 - ((t + 2) % 8) // 2 if PRIO == 1 else 3 - (t % 8) // 2))
            if bars and t == RT[0]:
                k("s_lshl_b32 s64, s2, 4")
                k("s_add_u32 s64, s64, s3")
                repack_issue()
            if bars and t == RT[1]:
                repack_store()
                k.ts(5)
                nr2 = k.newlab("nr2")
                k("s_lshl_b32 s64, s3, 8")
                k("s_add_u32 s64, s64, s2")
                k("s_cmp_ge_u32 s64, 544")
                k("s_cbranch_scc1 %s" % nr2)
                k("s_add_u32 s64, s64, 4096")
                repack_issue()
                repack_wait[0] = True
                k.lab(nr2)
            if bars and t == int(os.environ.get("WBT", "27")):
                nwb = k.newlab("nwb")
                k("s_lshl_b32 s64, s3, 8")
                k("s_add_u32 s64, s64, s2")
                k("s_cmp_ge_u32 s64, 8")
                k("s_cbranch_scc1 %s" % nwb)
                k("buffer_wbl2 sc1")
                k.lab(nwb)
            if bars and t == RT[2]:
                nr3 = k.newlab("nr3")
                k("s_lshl_b32 s64, s3, 8")
                k("s_add_u32 s64, s64, s2")
                k("s_cmp_ge_u32 s64, 544")
                k("s_cbranch_scc1 %s" % nr3)
                repack_store()
                k.lab(nr3)
            if t + 2 < NT:
                if bars and (t + 2) % 8 == 0:
                    young = 8 if RT[0] <= t < RT[1] else 0
                    if t >= RT[1]:
                        pass
                    else:
                        k("s_waitcnt vmcnt(%d)" % (6 - 2 * ((t + 2) // 8) + young))
                    k("s_barrier")
                k("ds_read_b128 %s, v9 offset:%d" % (vr(KF + 4 * ((t + 2) % 3), 4), (t + 2) * 1024))
                n_new += 1
            if t + 1 < NT:
                k("s_waitcnt lgkmcnt(%d)" % (2 + n_new))
                k("v_mfma_f32_32x32x16_bf16 %s, %s, %s, %s" % (vr(S[(t + 1) % 2], 16), vr(KF + 4 * ((t + 1) % 3), 4), vr(QF, 4), vr(NEG, 16)))
            if t == 0:
                k("s_nop 10")
            s = S[t % 2]
            for i in range(16):
                if "noexp" in EXPB and i >= 8: continue
                k("v_exp_f32 v%d, v%d" % (s + i, s + i))
            for i in range(8):
                if "nocvt" in EXPB: continue
                k("v_cvt_pk_bf16_f32 v%d, v%d, v%d" % (PK + i, s + 2 * i, s + 2 * i + 1))
            k("s_waitcnt lgkmcnt(%d)" % n_new)
            if "nopv" not in EXPB or t == 0:
                k("v_mfma_f32_32x32x16_bf16 %s, %s, %s, %s" % (vr(O, 16), vr(VF + 8 * (t % 2), 4), vr(PK, 4), "0" if t == 0 else vr(O, 16)))
                k("v_mfma_f32_32x32x16_bf16 %s, %s, %s, %s" % (vr(O, 16), vr(VF + 8 * (t % 2) + 4, 4), vr(PK + 4, 4), vr(O, 16)))
            if t + 1 < NT:
                rdV(t + 1)
    pass2(True)
    k.ts(6)
    k("s_nop 15")
    k("v_cmp_gt_f32 vcc, 0x%08x, v%d" % ((127 - 64) << 23, O + 8))
    k("v_cmp_u_f32 s[60:61], v%d, v%d" % (O + 8, O + 8))
    k("s_or_b64 vcc, vcc, s[60:61]")
    comb = k.newlab("comb")
    k("s_cbranch_vccz %s" % comb)
    k("v_mov_b32 v%d, 0xff800000" % M)
    k("ds_read_b128 %s, v9 offset:0" % vr(KF, 4))
    k("ds_read_b128 %s, v9 offset:1024" % vr(KF + 4, 4))
    k("s_waitcnt lgkmcnt(1)")
    k("v_mfma_f32_32x32x16_bf16 %s, %s, %s, 0" % (vr(S[0], 16), vr(KF, 4), vr(QF, 4)))
    for t in range(NT):
        if t + 2 < NT:
            k("ds_read_b128 %s, v9 offset:%d" % (vr(KF + 4 * ((t + 2) % 3), 4), (t + 2) * 1024))
        if t + 1 < NT:
            k("s_waitcnt lgkmcnt(%d)" % (1 if t + 2 < NT else 0))
            k("v_mfma_f32_32x32x16_bf16 %s, %s, %s, 0" % (vr(S[(t + 1) % 2], 16), vr(KF + 4 * ((t + 1) % 3), 4), vr(QF, 4)))
        k("s_nop 10" if t == 0 else "s_nop 3")
        s = S[t % 2]
        for i in range(8):
            k("v_max3_f32 v%d, v%d, v%d, v%d" % (M, s + 2 * i, s + 2 * i + 1, M))
    k("v_mov_b32 v12, v%d" % M)
    k("s_nop 1")
    k("v_permlane32_swap_b32 v%d, v12" % M)
    k("s_nop 1")
    k("v_max_f32 v%d, v%d, v12" % (M, M))
    for i in range(16):
        k("v_xor_b32 v%d, 0x80000000, v%d" % (NEG + i, M))
    k("s_nop 1")
    pass2(False)
    k("s_nop 15")
    k.lab(comb)
    k("s_mul_i32 s60, s48, 2560")
    k("s_add_u32 s60, s60, 0x20000")
    k("v_lshlrev_b32 v12, 2, v1")
    k("v_add_u32 v12, s60, v12")
    w1 = k.newlab("w1")
    k("s_cmp_eq_u32 s49, 0")
    k("s_cbranch_scc1 %s" % w1)
    for i in range(9):
        k("ds_write_b32 v12, v%d offset:%d" % (O + i, i * 256))
    k("ds_write_b32 v12, v%d offset:%d" % (M, 9 * 256))
    k("s_waitcnt lgkmcnt(0)")
    k("s_barrier")
    k("s_branch %s" % end)
    k.lab(w1)
    k("s_barrier")
    for i in range(9):
        k("ds_read_b32 v%d, v12 offset:%d" % (SA + i, i * 256))
    k("ds_read_b32 v%d, v12 offset:%d" % (SA + 9, 9 * 256))
    k("s_waitcnt lgkmcnt(0)")
    m1 = SA + 9
    k("v_max_f32 v13, v%d, v%d" % (M, m1))
    k("v_sub_f32 v14, v%d, v13" % M)
    k("v_sub_f32 v15, v%d, v13" % m1)
    k("v_exp_f32 v14, v14")
    k("v_exp_f32 v15, v15")
    k("s_nop 1")
    for i in range(9):
        k("v_mul_f32 v%d, v14, v%d" % (O + i, O + i))
    for i in range(9):
        k("v_fma_f32 v%d, v15, v%d, v%d" % (O + i, SA + i, O + i))
    k("v_rcp_f32 v13, v%d" % (O + 8))
    k("s_nop 1")
    for i in range(8):
        k("v_mul_f32 v%d, v13, v%d" % (O + i, O + i))
    for i in range(4):
        k("v_cvt_pk_bf16_f32 v%d, v%d, v%d" % (PK + i, O + 2 * i, O + 2 * i + 1))
    k("v_and_b32 v2, 31, v1")
    k("v_lshlrev_b32 v2, 5, v2")
    k("v_lshl_add_u32 v2, v3, 3, v2")
    k("s_lshl_b32 s51, s50, 10")
    k("s_add_u32 s51, s51, 0x%x" % WS_O)
    k("buffer_store_dwordx2 %s, v2, s[20:23], s51 offen" % vr(PK, 2))
    k("buffer_store_dwordx2 %s, v2, s[20:23], s51 offen offset:16" % vr(PK + 2, 2))
    k.ts(7)
    k.ts_flush(8)
    k.lab(end)
    return k


def gen_gemm64(name, x_ws_off, ldx, w_karg, K, resid, outp, S=4, stats=False):
    lds = S * 32768
    k = Kern(name, 128, 256, 256, lds)
    end = k.newlab("end")
    k("s_cmp_ge_u32 s2, 256")
    k("s_cbranch_scc1 %s" % end)
    k.ts(0)
    k("s_load_dwordx2 s[24:25], s[0:1], %d" % w_karg)
    k("s_load_dwordx2 s[32:33], s[0:1], 88")
    if resid[0] == 'karg':
        k("s_load_dwordx2 s[26:27], s[0:1], %d" % resid[1])
    if outp[0] == 'karg':
        k("s_load_dwordx2 s[28:29], s[0:1], %d" % outp[1])
    k("v_and_b32 v1, 63, v0")
    k("v_lshrrev_b32 v2, 6, v0")
    k("s_nop 1")
    k("v_readfirstlane_b32 s3, v2")
    k("s_and_b32 s48, s2, 7")
    k("s_lshl_b32 s48, s48, 2")
    k("s_bfe_u32 s49, s2, 0x20003")
    k("s_add_u32 s48, s48, s49")
    k("s_lshr_b32 s49, s2, 5")
    k("s_waitcnt lgkmcnt(0)")
    k.srd(8, 24, K * 1024)
    k.srd(20, 32, WS_SIZE)
    if resid[0] == 'karg':
        k.srd(12, 26, 2048 * 1024)
        rs, roff = 12, 0
    else:
        rs, roff = 20, resid[1]
    if outp[0] == 'karg':
        k.srd(16, 28, 2048 * 1024)
        os_, ooff = 16, 0
    else:
        os_, ooff = 20, outp[1]
    k("v_lshrrev_b32 v3, 4, v1")
    k("s_lshl_b32 s50, s3, 2")
    k("v_add_u32 v3, s50, v3")
    k("v_and_b32 v4, 15, v1")
    k("v_xor_b32 v4, v4, v3")
    k("v_lshlrev_b32 v4, 4, v4")
    k("s_lshl_b32 s51, s48, 6")
    k("v_add_u32 v3, s51, v3")
    k("v_mul_u32_u24 v3, %d, v3" % ldx)
    k("v_add_u32 v4, v3, v4")
    k("v_lshrrev_b32 v3, 3, v1")
    k("s_lshl_b32 s50, s3, 3")
    k("v_add_u32 v3, s50, v3")
    k("v_and_b32 v5, 7, v1")
    k("v_bfe_u32 v6, v1, 4, 1")
    k("v_lshlrev_b32 v6, 2, v6")
    k("v_xor_b32 v5, v5, v6")
    k("v_lshlrev_b32 v5, 4, v5")
    k("v_lshl_add_u32 v5, v3, 10, v5")
    k("s_lshl_b32 s50, s49, 7")
    k("v_add_u32 v5, s50, v5")
    k("s_lshl_b32 s52, s3, 10")
    chunks = []
    kk = 0
    while kk < K:
        c = min(128, K - kk)
        chunks.append((kk, c))
        kk += c
    NC = len(chunks)

    def issue(c):
        k0, kc = chunks[c]
        st = (c % S) * 32768
        n = 0
        for j in range(4):
            k("s_add_u32 m0, s52, %d" % (st + j * 4096))
            k("s_mov_b32 s54, %d" % (x_ws_off + j * 16 * ldx + k0 * 2))
            k("buffer_load_dwordx4 v4, s[20:23], s54 offen lds")
            n += 1
        for j in range(kc // 32):
            k("s_add_u32 m0, s52, %d" % (st + 16384 + j * 4096))
            k("s_mov_b32 s54, %d" % ((k0 + 32 * j) * 1024))
            k("buffer_load_dwordx4 v5, s[8:11], s54 offen lds")
            n += 1
        return n
    cnt = {}
    for c in range(min(S - 1, NC)):
        cnt[c] = issue(c)
    k("s_and_b32 s56, s3, 1")
    k("s_lshr_b32 s57, s3, 1")
    k("v_and_b32 v7, 31, v1")
    k("s_lshl_b32 s58, s56, 5")
    k("v_add_u32 v7, s58, v7")
    k("v_lshrrev_b32 v8, 5, v1")
    k("v_and_b32 v9, 15, v7")
    k("v_xor_b32 v9, v9, v8")
    k("v_lshlrev_b32 v9, 4, v9")
    k("v_lshl_add_u32 v9, v7, 8, v9")
    XA = 16
    for ks in range(8):
        k("v_xor_b32 v%d, %d, v9" % (XA + ks, ks * 32))
    k("v_lshrrev_b32 v11, 5, v1")
    k("v_lshlrev_b32 v11, 3, v11")
    k("v_bfe_u32 v10, v1, 2, 2")
    k("v_add_u32 v11, v11, v10")
    k("v_bfe_u32 v10, v1, 4, 1")
    k("v_lshlrev_b32 v10, 5, v10")
    k("v_and_b32 v12, 3, v1")
    k("v_lshl_add_u32 v10, v12, 3, v10")
    k("s_lshl_b32 s58, s57, 6")
    k("v_add_u32 v10, s58, v10")
    k("v_bfe_u32 v12, v1, 3, 1")
    k("v_lshlrev_b32 v12, 6, v12")
    k("v_xor_b32 v10, v10, v12")
    k("v_lshl_add_u32 v10, v11, 7, v10")
    k("v_add_u32 v10, 0x4000, v10")
    k("s_lshl_b32 s58, s56, 5")
    k("s_add_u32 s58, s58, s51")
    k("v_and_b32 v13, 31, v1")
    k("v_add_u32 v13, s58, v13")
    k("v_lshlrev_b32 v12, 3, v8")
    k("v_lshl_add_u32 v12, v13, 10, v12")
    k("s_lshl_b32 s59, s49, 7")
    k("s_lshl_b32 s60, s57, 6")
    k("s_add_u32 s59, s59, s60")
    ACC, RES, XC, WC = 32, 48, 24, 14
    BF, AF = 64, 96
    for c in range(NC):
        k0, kc = chunks[c]
        st = (c % S) * 32768
        later = sum(cnt[cc] for cc in range(c + 1, min(c + S - 1, NC)))
        k("s_waitcnt vmcnt(%d)" % later)
        k("s_barrier")
        if c < 11: k.ts(1 + c)
        if c + S - 1 < NC:
            cnt[c + S - 1] = issue(c + S - 1)
        if c == NC - 1:
            k("s_add_u32 s60, s59, 0x%x" % roff)
            for q in range(4):
                k("buffer_load_dwordx2 %s, v12, s[%d:%d], s60 offen offset:%d" % (vr(RES + 2 * q, 2), rs, rs + 3, 16 * q))
        nks = kc // 16
        hi = st >= 65536
        if hi or st + 16384 + 16384 > 65536:
            pass
        for ks in range(nks):
            k("v_add_u32 v%d, %d, v%d" % (XC + ks, st, XA + ks))
        k("v_add_u32 v%d, %d, v10" % (WC, st))
        for ks in range(nks):
            k("ds_read_b128 %s, v%d" % (vr(BF + 4 * ks, 4), XC + ks))
            k("ds_read_b64_tr_b16 %s, v%d offset:%d" % (vr(AF + 4 * ks, 2), WC, ks * 2048))
            k("ds_read_b64_tr_b16 %s, v%d offset:%d" % (vr(AF + 4 * ks + 2, 2), WC, ks * 2048 + 512))
        for ks in range(nks):
            k("s_waitcnt lgkmcnt(%d)" % min(15, 3 * (nks - 1 - ks)))
            first = (c == 0 and ks == 0)
            k("v_mfma_f32_32x32x16_bf16 %s, %s, %s, %s" % (vr(ACC, 16), vr(AF + 4 * ks, 4), vr(BF + 4 * ks, 4), "0" if first else vr(ACC, 16)))
    k.ts(12)
    k("s_waitcnt vmcnt(0)")
    k("s_nop 15")
    for q in range(4):
        for d in range(2):
            r = RES + 2 * q + d
            k("v_lshlrev_b32 v%d, 16, v%d" % (BF, r))
            k("v_and_b32 v%d, 0xffff0000, v%d" % (BF + 1, r))
            k("v_add_f32 v%d, v%d, v%d" % (ACC + 4 * q + 2 * d, ACC + 4 * q + 2 * d, BF))
            k("v_add_f32 v%d, v%d, v%d" % (ACC + 4 * q + 2 * d + 1, ACC + 4 * q + 2 * d + 1, BF + 1))
    for r in range(8):
        k("v_cvt_pk_bf16_f32 v%d, v%d, v%d" % (RES + r, ACC + 2 * r, ACC + 2 * r + 1))
    if not stats or os.environ.get("HROW"):
        k("s_add_u32 s60, s59, 0x%x" % ooff)
        for q in range(4):
            k("buffer_store_dwordx2 %s, v12, s[%d:%d], s60 offen offset:%d" % (vr(RES + 2 * q, 2), os_, os_ + 3, 16 * q))
    if stats:
        T = AF
        k("v_and_b32 v%d, 31, v1" % (T + 7))
        k("v_lshlrev_b32 v%d, 4, v%d" % (T + 7, T + 7))
        k("v_lshl_add_u32 v%d, v8, 3, v%d" % (T + 7, T + 7))
        k("s_lshl_b32 s60, s48, 1")
        k("s_add_u32 s60, s60, s56")
        k("s_lshl_b32 s60, s60, 5")
        k("s_lshl_b32 s61, s49, 2")
        k("s_add_u32 s60, s60, s61")
        k("s_lshl_b32 s61, s57, 1")
        k("s_add_u32 s60, s60, s61")
        k("s_lshl_b32 s60, s60, 10")
        k("s_add_u32 s60, s60, 0x%x" % WS_HP)
        for q in range(4):
            k("buffer_store_dwordx2 %s, v%d, s[20:23], s60 offen offset:%d" % (vr(RES + 2 * q, 2), T + 7, (q >> 1) * 1024 + (q & 1) * 512))
        k("v_mov_b32 v%d, 0x3f803f80" % T)
        for i in range(4):
            k("v_mov_b32 v%d, 0" % (T + 2 + i))
        for r in range(8):
            k("v_dot2c_f32_bf16 v%d, v%d, v%d" % (T + 2 + (r & 1), RES + r, T))
            k("v_dot2c_f32_bf16 v%d, v%d, v%d" % (T + 4 + (r & 1), RES + r, RES + r))
        k("s_nop 4")
        k("v_add_f32 v%d, v%d, v%d" % (T + 2, T + 2, T + 3))
        k("v_add_f32 v%d, v%d, v%d" % (T + 3, T + 4, T + 5))
        k("v_mov_b32 v%d, v%d" % (T + 4, T + 2))
        k("v_mov_b32 v%d, v%d" % (T + 5, T + 3))
        k("s_nop 1")
        k("v_permlane32_swap_b32 v%d, v%d" % (T + 2, T + 4))
        k("v_permlane32_swap_b32 v%d, v%d" % (T + 3, T + 5))
        k("s_nop 1")
        k("v_add_f32 v%d, v%d, v%d" % (T + 2, T + 2, T + 4))
        k("v_add_f32 v%d, v%d, v%d" % (T + 3, T + 3, T + 5))
        k("v_lshlrev_b32 v%d, 7, v13" % (T + 6))
        k("s_lshl_b32 s60, s49, 1")
        k("s_add_u32 s60, s60, s57")
        k("s_lshl_b32 s60, s60, 3")
        k("s_add_u32 s60, s60, 0x%x" % WS_ST)
        k("v_cmp_gt_u32 vcc, 32, v1")
        k("s_and_saveexec_b64 s[62:63], vcc")
        k("buffer_store_dwordx2 %s, v%d, s[20:23], s60 offen" % (vr(T + 2, 2), T + 6))
        k("s_mov_b64 exec, s[62:63]")
    k.ts(13)
    k.ts_flush(14)
    k.lab(end)
    return k


def gen_C():
    return gen_gemm64("wo_kernel", WS_O, 1024, 32, 512, ('karg', 0), ('ws', WS_H), stats=True)


def gen_E():
    S = int(os.environ.get("ES", "4"))
    NKS = 86
    NC = (NKS + 7) // 8
    k = Kern("down_kernel", 128, 256, 256, S * 32768)
    end = k.newlab("end")
    k("s_cmp_ge_u32 s2, 256")
    k("s_cbranch_scc1 %s" % end)
    k.ts(0)
    k("s_load_dwordx2 s[32:33], s[0:1], 88")
    k("s_load_dwordx2 s[28:29], s[0:1], 72")
    k("v_and_b32 v1, 63, v0")
    k("v_lshrrev_b32 v2, 6, v0")
    k("s_nop 1")
    k("v_readfirstlane_b32 s3, v2")
    k("s_and_b32 s48, s2, 7")
    k("s_lshl_b32 s48, s48, 2")
    k("s_bfe_u32 s49, s2, 0x20003")
    k("s_add_u32 s48, s48, s49")
    k("s_lshr_b32 s49, s2, 5")
    k("s_and_b32 s56, s3, 1")
    k("s_lshr_b32 s57, s3, 1")
    k("v_lshlrev_b32 v4, 4, v1")
    k("s_lshl_b32 s50, s56, 13")
    k("s_lshl_b32 s51, s57, 12")
    k("s_add_u32 s50, s50, s51")
    k("s_lshl_b32 s52, s48, 1")
    k("s_add_u32 s52, s52, s56")
    k("s_mul_i32 s52, s52, %d" % (NKS * 1024))
    k("s_add_u32 s52, s52, s51")
    k("s_add_u32 s52, s52, 0x%x" % WS_ACT)
    k("s_lshl_b32 s53, s3, 12")
    k("s_mul_i32 s55, s49, %d" % (NKS * 2048))
    k("s_add_u32 s55, s55, s53")
    k("s_add_u32 s55, s55, 0x%x" % WS_WD)
    k("s_add_u32 s53, s53, 16384")
    k("s_lshl_b32 s58, s48, 6")
    k("s_lshl_b32 s59, s56, 5")
    k("s_add_u32 s58, s58, s59")
    k("v_and_b32 v13, 31, v1")
    k("v_add_u32 v13, s58, v13")
    k("v_lshrrev_b32 v8, 5, v1")
    k("v_lshlrev_b32 v12, 3, v8")
    k("v_lshl_add_u32 v12, v13, 10, v12")
    k("s_lshl_b32 s59, s49, 7")
    k("s_lshl_b32 s60, s57, 6")
    k("s_add_u32 s59, s59, s60")
    k("v_and_b32 v14, 31, v1")
    k("v_lshlrev_b32 v14, 4, v14")
    k("v_lshl_add_u32 v14, v8, 3, v14")
    k("s_lshl_b32 s60, s48, 1")
    k("s_add_u32 s60, s60, s56")
    k("s_lshl_b32 s60, s60, 5")
    k("s_lshl_b32 s61, s49, 2")
    k("s_add_u32 s60, s60, s61")
    k("s_lshl_b32 s61, s57, 1")
    k("s_add_u32 s60, s60, s61")
    k("s_lshl_b32 s60, s60, 10")
    k("s_add_u32 s60, s60, 0x%x" % WS_HP)
    k("s_waitcnt lgkmcnt(0)")
    k.srd(20, 32, WS_SIZE)
    k.srd(16, 28, 2048 * 1024)
    ACC, RES, FR = 32, 48, 64
    for q in range(4):
        k("buffer_load_dwordx2 %s, v14, s[20:23], s60 offen offset:%d" % (vr(RES + 2 * q, 2), (q >> 1) * 1024 + (q & 1) * 512))

    def issue(c):
        st = (c % S) * 32768
        for j in range(4):
            k("s_add_u32 m0, s50, %d" % (st + j * 1024))
            k("s_add_u32 s54, s52, %d" % (c * 8192 + j * 1024))
            k("buffer_load_dwordx4 v4, s[20:23], s54 offen lds")
        for j in range(4):
            k("s_add_u32 m0, s53, %d" % (st + j * 1024))
            k("s_add_u32 s54, s55, %d" % (c * 16384 + j * 1024))
            k("buffer_load_dwordx4 v4, s[20:23], s54 offen lds")
    for c in range(S - 1):
        issue(c)
    k("s_lshl_b32 s61, s56, 13")
    k("s_lshl_b32 s62, s57, 10")
    k("s_add_u32 s62, s62, 16384")
    for i in range(3):
        k("v_add_u32 v%d, s61, v4" % (16 + i))
        k("v_add_u32 v%d, s62, v4" % (20 + i))
        k("s_add_u32 s61, s61, 65536")
        k("s_add_u32 s62, s62, 65536")

    def rd(g):
        c, ks = g // 8, g % 8
        st = (c % S) * 32768
        ob, oa = st + ks * 1024, st + ks * 2048
        k("ds_read_b128 %s, v%d offset:%d" % (vr(FR + 8 * (g % 4), 4), 20 + st // 65536, oa % 65536))
        k("ds_read_b128 %s, v%d offset:%d" % (vr(FR + 8 * (g % 4) + 4, 4), 16 + st // 65536, ob % 65536))
    for c in range(NC):
        n = min(8, NKS - 8 * c)
        later = 8 * (min(c + S - 1, NC) - (c + 1))
        k("s_waitcnt vmcnt(%d)" % later)
        k("s_barrier")
        if c < 11: k.ts(1 + c)
        for ks in range(3):
            rd(8 * c + ks)
        if c + S - 1 < NC:
            issue(c + S - 1)
        for ks in range(n):
            g = 8 * c + ks
            k("s_waitcnt lgkmcnt(%d)" % (2 * min(2, n - 1 - ks)))
            k("v_mfma_f32_32x32x16_bf16 %s, %s, %s, %s" % (vr(ACC, 16), vr(FR + 8 * (g % 4), 4), vr(FR + 8 * (g % 4) + 4, 4), "0" if g == 0 else vr(ACC, 16)))
            if ks + 3 < n:
                rd(g + 3)
    k.ts(12)
    k("s_nop 15")
    BF = FR
    for q in range(4):
        for d in range(2):
            r = RES + 2 * q + d
            k("v_lshlrev_b32 v%d, 16, v%d" % (BF + 32, r))
            k("v_and_b32 v%d, 0xffff0000, v%d" % (BF + 33, r))
            k("v_add_f32 v%d, v%d, v%d" % (ACC + 4 * q + 2 * d, ACC + 4 * q + 2 * d, BF + 32))
            k("v_add_f32 v%d, v%d, v%d" % (ACC + 4 * q + 2 * d + 1, ACC + 4 * q + 2 * d + 1, BF + 33))
    for r in range(8):
        k("v_cvt_pk_bf16_f32 v%d, v%d, v%d" % (RES + r, ACC + 2 * r, ACC + 2 * r + 1))
    for q in range(4):
        k("buffer_store_dwordx2 %s, v12, s[16:19], s59 offen offset:%d" % (vr(RES + 2 * q, 2), 16 * q))
    k.ts(13)
    k.ts_flush(14)
    k.lab(end)
    return k


class VM:
    def __init__(s, k):
        s.k = k
        s.n = 0
    def issue(s):
        s.n += 1
        return s.n
    def wait(s, tok):
        if os.environ.get("EXP", "") == "nomem":
            return
        s.k("s_waitcnt vmcnt(%d)" % min(63, s.n - tok))


def gen_D():
    S = 10
    CH = 16384
    NCH = 12
    k = Kern("ffn1_kernel", 288, 256, 256, S * CH, accum=256)
    vm = VM(k)
    end = k.newlab("end")
    k("s_cmp_ge_u32 s2, 256")
    k("s_cbranch_scc1 %s" % end)
    k.ts(0)
    k("s_load_dwordx2 s[32:33], s[0:1], 88")
    k("v_and_b32 v1, 63, v0")
    k("v_lshrrev_b32 v2, 6, v0")
    k("s_nop 1")
    k("v_readfirstlane_b32 s3, v2")
    k("s_bfe_u32 s48, s2, 0x20001")
    k("s_lshl_b32 s48, s48, 2")
    k("s_bfe_u32 s49, s2, 0x20003")
    k("s_add_u32 s48, s48, s49")
    k("s_and_b32 s49, s2, 1")
    k("s_lshl_b32 s49, s49, 3")
    k("s_lshr_b32 s50, s2, 5")
    k("s_add_u32 s49, s49, s50")
    k("s_cmp_ge_u32 s49, 15")
    k("s_cbranch_scc1 %s" % end)
    k("v_and_b32 v2, 31, v1")
    k("v_lshrrev_b32 v3, 5, v1")
    k("s_lshl_b32 s50, s3, 5")
    k("s_lshl_b32 s51, s48, 7")
    k("s_add_u32 s50, s50, s51")
    k("v_add_u32 v2, s50, v2")
    k("s_lshl_b32 s57, s50, 10")
    k("v_lshlrev_b32 v6, 7, v2")
    k("v_lshl_add_u32 v6, v3, 6, v6")
    k("v_lshlrev_b32 v7, 4, v1")
    k("v_add_u32 v8, 0x10000, v7")
    k("v_add_u32 v9, 0x20000, v7")
    k("s_lshl_b32 s52, s3, 10")
    k("v_add_u32 v4, s52, v7")
    k("s_mul_i32 s53, s49, 196608")
    k("s_add_u32 s53, s53, 0x%x" % WS_WG)
    k("s_mov_b32 s55, 0x%x" % WS_ST)
    k("s_add_u32 s57, s57, 0x%x" % WS_HP)
    k("s_waitcnt lgkmcnt(0)")
    k.srd(20, 32, WS_SIZE)
    ACC, B, T = 16, 112, 240
    order = []
    for ks in range(KS1):
        for t in range(6):
            order.append((t, ks))
    for p in range(3):
        for ks in range(KS1, 32):
            order.append((p, ks))
            order.append((p + 3, ks))
    assert len(order) == 192
    tokA, tokB = {}, {}

    NOMEM = os.environ.get("EXP", "") == "nomem"
    vq = []

    def opA(c, j):
        def f():
            if NOMEM:
                tokA[c] = 0
                return
            k("s_add_u32 m0, s52, %d" % ((c % S) * CH + j * 4096))
            k("s_add_u32 s54, s53, %d" % (c * CH + j * 4096))
            k("buffer_load_dwordx4 v4, s[20:23], s54 offen lds")
            tokA[c] = vm.issue()
        return f

    def opB(g):
        def f():
            if NOMEM:
                tokB[g] = 0
                return
            k("s_add_u32 s56, s57, %d" % (g * 1024))
            k("buffer_load_dwordx4 %s, v7, s[20:23], s56 offen" % vr(B + 4 * g, 4))
            tokB[g] = vm.issue()
        return f
    nb = 0
    for c in range(NCH):
        need = max(ks for (t, ks) in order[:min(192, (c + 1) * 16 + 8)]) + 1
        while nb < need:
            vq.append((c, opB(nb))); nb += 1
        for j in range(4):
            vq.append((c, opA(c, j)))
    W = int(os.environ.get("W", "3"))

    def vflush(c):
        while vq and vq[0][0] <= c:
            vq.pop(0)[1]()

    def vstep(cur_chunk_x16):
        if vq and vq[0][0] * 16 <= cur_chunk_x16 + W * 16:
            vq.pop(0)[1]()
    for q in range(4):
        k("buffer_load_dwordx4 %s, v6, s[20:23], s55 offen offset:%d" % (vr(ACC + 4 * q, 4), 16 * q))
        tokS = vm.issue()
    vflush(W - 1)
    k.ts(1)
    vm.wait(tokS)
    for i in range(2, 8):
        k("v_add_f32 v%d, v%d, v%d" % (ACC + (i & 1), ACC + (i & 1), ACC + 2 * (i // 2) * 1 + (i & 1)) if False else "")
    for st in (8, 4, 2):
        for i in range(st):
            k("v_add_f32 v%d, v%d, v%d" % (ACC + i, ACC + i, ACC + i + st))
    k("v_mov_b32 v%d, v%d" % (ACC + 2, ACC))
    k("v_mov_b32 v%d, v%d" % (ACC + 3, ACC + 1))
    k("s_nop 1")
    k("v_permlane32_swap_b32 v%d, v%d" % (ACC, ACC + 2))
    k("v_permlane32_swap_b32 v%d, v%d" % (ACC + 1, ACC + 3))
    k("s_nop 1")
    k("v_add_f32 v%d, v%d, v%d" % (ACC, ACC, ACC + 2))
    k("v_add_f32 v%d, v%d, v%d" % (ACC + 1, ACC + 1, ACC + 3))
    k("v_mul_f32 v%d, %s, v%d" % (ACC, f32hex(1.0 / 512), ACC))
    k("v_mul_f32 v%d, %s, v%d" % (ACC + 1, f32hex(1.0 / 512), ACC + 1))
    k("v_fma_f32 v%d, -v%d, v%d, v%d" % (ACC + 1, ACC, ACC, ACC + 1))
    k("v_add_f32 v%d, %s, v%d" % (ACC + 1, f32hex(1e-5), ACC + 1))
    k("v_rsq_f32 v12, v%d" % (ACC + 1))
    k("s_nop 1")
    k("v_mov_b32 v13, v12")
    k("v_mul_f32 v14, v%d, v12" % ACC)
    k("v_xor_b32 v14, 0x80000000, v14")
    k("v_mov_b32 v15, v14")
    k("v_and_b32 v10, 31, v1")
    k("v_lshlrev_b32 v10, 4, v10")
    k("v_lshl_add_u32 v10, v3, 3, v10")
    k("s_lshr_b32 s59, s50, 5")
    k("s_mul_i32 s59, s59, 86")
    k("s_mul_i32 s58, s49, 6")
    k("s_add_u32 s59, s59, s58")
    k("s_lshl_b32 s59, s59, 10")
    k("s_add_u32 s59, s59, 0x%x" % WS_ACT)

    from collections import deque
    fq = deque()
    normed = set()

    def q_norm(g):
        def w():
            vm.wait(tokB[g])
        fq.append(("n", g, w))
        for r in range(4):
            t0 = T + 2 * (r & 3)
            b = B + 4 * g + r
            fq.append(("n", g, "v_lshlrev_b32 v%d, 16, v%d" % (t0, b)))
            fq.append(("n", g, "v_and_b32 v%d, 0xffff0000, v%d" % (t0 + 1, b)))
            fq.append(("n", g, "v_fma_f32 v%d, v%d, v12, v14" % (t0, t0)))
            fq.append(("n", g, "v_fma_f32 v%d, v%d, v12, v14" % (t0 + 1, t0 + 1)))
            fq.append(("n", g, "v_cvt_pk_bf16_f32 v%d, v%d, v%d" % (b, t0, t0 + 1)))

    def q_epi(p):
        G, U = ACC + 16 * p, ACC + 16 * (3 + p)
        E = T + 8 if False else T
        fq.append(("e", p, "s_nop 15"))
        for r in range(0, 16, 2):
            fq.append(("e", p, "v_pk_mul_f32 v[%d:%d], v[%d:%d], v[10+X:11+X]" % (E + r, E + r + 1, G + r, G + r + 1)))
    k("s_mov_b32 s60, %s" % f32hex(-LOG2E))
    k("s_mov_b32 s61, %s" % f32hex(-LOG2E))
    k("s_mov_b32 s62, 1.0")
    k("s_mov_b32 s63, 1.0")

    def q_epi(p):
        G, U = ACC + 16 * p, ACC + 16 * (3 + p)
        E = T
        L = []
        L.append("s_nop 15")
        for r in range(16):
            L.append("v_mul_f32 v%d, s60, v%d" % (E + r, G + r))
        for r in range(16):
            L.append("v_exp_f32 v%d, v%d" % (E + r, E + r))
        for r in range(16):
            L.append("v_mul_f32 v%d, v%d, v%d" % (G + r, G + r, U + r))
        for r in range(16):
            L.append("v_add_f32 v%d, 1.0, v%d" % (E + r, E + r))
        for r in range(16):
            L.append("v_rcp_f32 v%d, v%d" % (E + r, E + r))
        for r in range(16):
            L.append("v_mul_f32 v%d, v%d, v%d" % (G + r, G + r, E + r))
        for r in range(8):
            L.append("v_cvt_pk_bf16_f32 v%d, v%d, v%d" % (G + r, G + 2 * r, G + 2 * r + 1))
        for q in range(4):
            L.append("buffer_store_dwordx2 %s, v10, s[20:23], s%d offen offset:%d" % (vr(G + 2 * q, 2), (59, 58, 64)[p], (q >> 1) * 1024 + (q & 1) * 512))
        if os.environ.get("WBD", "1") == "1" and p < 2:
            L.append(("wb", p))
        for x in L:
            fq.append(("e", p, x))

    def emit_filler():
        kind, g, x = fq.popleft()
        if callable(x):
            x()
        elif isinstance(x, tuple):
            nwb = k.newlab("nwb")
            k("s_cmp_eq_u32 s65, 0")
            k("s_cbranch_scc1 %s" % nwb)
            k("buffer_wbl2 sc1")
            k.lab(nwb)
        else:
            if x.startswith("buffer_store") or x.startswith("buffer_wbl2"):
                vm.issue()
            EXP = os.environ.get("EXP", "")
            if EXP in ("nofill", "memonly") and x.startswith("v_"):
                return
            if EXP == "addfill" and x.startswith("v_"):
                x = "v_add_f32 v%d, 1.0, v%d" % (T + (len(k.L) % 8), T + (len(k.L) % 8))
            if EXP == "e32" and x.startswith("v_"):
                x = "v_lshlrev_b32 v%d, 16, v%d" % (T + (len(k.L) % 8), T + 8 + (len(k.L) % 8))
            k(x)

    def flush_norm(g):
        last = -1
        for i, (kind, gg, x) in enumerate(fq):
            if kind == "n" and gg <= g:
                last = i
        n = last + 1
        for _ in range(n):
            emit_filler()
        if n:
            k("s_nop 1")
    k("s_lshl_b32 s65, s3, 8")
    k("s_add_u32 s65, s65, s2")
    k("s_cmp_lt_u32 s65, 8")
    k("s_cselect_b32 s65, 1, 0")
    k("s_add_u32 s58, s59, 2048")
    k("s_add_u32 s64, s59, 4096")
    k("s_cmp_eq_u32 s49, 14")
    k("s_cselect_b32 s58, 0x%x, s58" % WS_DUMMY)
    k("s_cselect_b32 s64, 0x%x, s64" % WS_DUMMY)
    for g in range(32):
        q_norm(g)

    def read1(gi, j):
        c = gi // 4
        fi = gi * 4 + j
        lds = (c % S) * CH + (fi % 16) * 1024
        k("ds_read_b128 a[%d:%d], v%d offset:%d" % (16 * (gi % 2) + 4 * j, 16 * (gi % 2) + 4 * j + 3, 7 + lds // 65536, lds % 65536))

    def boundary(c):
        if TSMODE == 1 and c >= 1: k.ts(1 + c)
        vflush(c + 1)
        vm.wait(tokA[c + 1])
        if not os.environ.get("NOBAR"):
            k("s_barrier")
        if TSMODE == 2 and c >= 1: k.ts(1 + c)
    boundary(0)
    for j in range(4):
        read1(0, j)
    seen = set()
    NPER = int(os.environ.get("NPER", "4"))
    for gi in range(48):
        if gi + 1 < 48 and (gi + 1) % 8 == 0:
            boundary((gi + 1) // 4)
        for j in range(4):
            t, ks = order[gi * 4 + j]
            flush_norm(ks + 1)
            k("s_waitcnt lgkmcnt(%d)" % (3 if gi + 1 < 48 else 3 - j))
            first = t not in seen
            seen.add(t)
            if os.environ.get("EXP", "") != "memonly":
                k("v_mfma_f32_32x32x16_bf16 %s, a[%d:%d], %s, %s" % (vr(ACC + 16 * t, 16), 16 * (gi % 2) + 4 * j, 16 * (gi % 2) + 4 * j + 3, vr(B + 4 * ks, 4), "0" if first else vr(ACC + 16 * t, 16)))
            if gi + 1 < 48 and os.environ.get("EXP", "") != "memonly":
                read1(gi + 1, j)
            vstep(gi * 4 + j)
            if ks == 31 and t >= 3:
                q_epi(t - 3)
            for _ in range(NPER):
                if fq:
                    emit_filler()
    k.ts(13)
    while fq:
        emit_filler()
    k.ts_flush(14)
    k.lab(end)
    return k


WS_FL = 0x280000
SPIN = 0x8000


def gen_F():
    S = 10
    CH = 16384
    NCH = 12
    ROT = 8
    k = Kern("ffn_kernel", 288, 256, 256, S * CH, accum=256)
    k.kidx = 2
    vm = VM(k)
    FTS = os.environ.get("FTS", "")
    ts0 = k.ts
    def ts_main(i):
        if FTS == "" or i == 0:
            ts0(i)
        elif FTS == "E" and i == 9:
            ts0(1)
    k.ts = ts_main
    end = k.newlab("end")
    FORCE_SLOW = os.environ.get("FSLOW") == "1"
    PF = [int(x) for x in os.environ.get("PF", "0,0,0,0").split(",")]
    PA = int(os.environ.get("PA", "4"))
    PB = int(os.environ.get("PB", "4"))
    NB0 = int(os.environ.get("NB0", "6"))
    BPER = int(os.environ.get("BPER", "3"))
    FST = os.environ.get("FST", " sc1")
    FSTO = os.environ.get("FSTO", "")
    k("s_cmp_ge_u32 s2, 256")
    k("s_cbranch_scc1 %s" % end)
    k.ts(0)
    k("s_load_dwordx2 s[24:25], s[0:1], 32")
    k("s_load_dwordx2 s[26:27], s[0:1], 0")
    k("s_load_dwordx2 s[28:29], s[0:1], 72")
    k("s_load_dwordx2 s[32:33], s[0:1], 88")
    k("s_getreg_b32 s40, hwreg(HW_REG_XCC_ID)")
    k("v_and_b32 v1, 63, v0")
    k("v_lshrrev_b32 v2, 6, v0")
    k("s_nop 1")
    k("v_readfirstlane_b32 s3, v2")
    k("s_and_b32 s48, s2, 7")
    k("s_lshl_b32 s48, s48, 2")
    k("s_bfe_u32 s49, s2, 0x20003")
    k("s_add_u32 s48, s48, s49")
    k("s_lshr_b32 s49, s2, 5")
    k("s_lshr_b32 s38, s48, 1")
    k("s_and_b32 s39, s48, 1")
    k("s_lshl_b32 s37, s49, 1")
    k("s_add_u32 s39, s39, s37")
    k("s_lshl_b32 s42, s38, 10")
    k("s_add_u32 s42, s42, 0x%x" % WS_FL)
    k("s_and_b32 s40, s40, 15")
    k("s_mul_i32 s43, s40, s40")
    k("s_lshl_b32 s43, s43, 16")
    k("s_lshl_b32 s40, s40, 8")
    k("s_add_u32 s40, s40, s43")
    k("s_add_u32 s40, s40, 1")
    k("s_lshl_b32 s43, s40, 4")
    k("s_mul_i32 s34, s39, 196608")
    k("s_add_u32 s34, s34, 0x%x" % WS_WG)
    k("s_lshl_b32 s52, s3, 10")
    k("v_lshlrev_b32 v60, 4, v1")
    k("v_add_u32 v60, s52, v60")
    k("s_lshl_b32 s36, s3, 12")
    k("s_mul_i32 s35, s49, %d" % (86 * 2048))
    k("s_add_u32 s35, s35, s36")
    k("s_add_u32 s35, s35, 0x%x" % WS_WD)
    k("s_waitcnt lgkmcnt(0)")
    k.srd(8, 24, 512 * 1024)
    k.srd(20, 32, WS_SIZE)
    k.srd(12, 26, 2048 * 1024)
    k.srd(16, 28, 2048 * 1024)
    ldx = 1024
    k("v_lshrrev_b32 v3, 4, v1")
    k("s_lshl_b32 s50, s3, 2")
    k("v_add_u32 v3, s50, v3")
    k("v_and_b32 v4, 15, v1")
    k("v_xor_b32 v4, v4, v3")
    k("v_lshlrev_b32 v4, 4, v4")
    k("s_lshl_b32 s51, s48, 6")
    k("v_add_u32 v3, s51, v3")
    k("v_mul_u32_u24 v3, %d, v3" % ldx)
    k("v_add_u32 v4, v3, v4")
    k("v_lshrrev_b32 v3, 3, v1")
    k("s_lshl_b32 s50, s3, 3")
    k("v_add_u32 v3, s50, v3")
    k("v_and_b32 v5, 7, v1")
    k("v_bfe_u32 v6, v1, 4, 1")
    k("v_lshlrev_b32 v6, 2, v6")
    k("v_xor_b32 v5, v5, v6")
    k("v_lshlrev_b32 v5, 4, v5")
    k("v_lshl_add_u32 v5, v3, 10, v5")
    k("s_lshl_b32 s50, s49, 7")
    k("v_add_u32 v5, s50, v5")
    tokC = {}

    def issueC(c):
        st = c * 32768
        for j in range(4):
            k("s_add_u32 m0, s52, %d" % (st + j * 4096))
            k("s_mov_b32 s54, %d" % (WS_O + j * 16 * ldx + c * 256))
            k("buffer_load_dwordx4 v4, s[20:23], s54 offen lds")
            vm.issue()
        for j in range(4):
            k("s_add_u32 m0, s52, %d" % (st + 16384 + j * 4096))
            k("s_mov_b32 s54, %d" % ((c * 128 + 32 * j) * 1024))
            k("buffer_load_dwordx4 v5, s[8:11], s54 offen lds")
            tokC[c] = vm.issue()
    tokA, tokB = {}, {}

    def issueD(c, vreg):
        for j in range(4):
            k("s_add_u32 m0, s52, %d" % (((c + ROT) % S) * CH + j * 4096))
            k("s_add_u32 s54, s34, %d" % (c * CH + j * 4096))
            k("buffer_load_dwordx4 v%d, s[20:23], s54 offen lds" % vreg)
            tokA[c] = vm.issue()

    def issueEW(c, vreg):
        for j in range(4):
            k("s_add_u32 m0, s36, %d" % ((c % 6) * 16384 + j * 1024))
            k("s_add_u32 s54, s35, %d" % (c * 16384 + j * 1024))
            k("buffer_load_dwordx4 v%d, s[20:23], s54 offen lds" % vreg)
            vm.issue()
    for c in range(3):
        issueC(c)
    k("v_mov_b32 v56, s40")
    k("s_cmp_eq_u32 s3, 0")
    k("s_cselect_b64 exec, 1, 0")
    k("buffer_atomic_add v56, off, s[20:23], s42 sc1")
    vm.issue()
    k("s_mov_b64 exec, -1")
    k("s_and_b32 s56, s3, 1")
    k("s_lshr_b32 s57, s3, 1")
    k("s_lshl_b32 s58, s56, 5")
    k("s_add_u32 s58, s58, s51")
    k("v_and_b32 v13, 31, v1")
    k("v_add_u32 v13, s58, v13")
    k("v_lshrrev_b32 v8, 5, v1")
    k("v_lshlrev_b32 v12, 3, v8")
    k("v_lshl_add_u32 v12, v13, 10, v12")
    k("s_lshl_b32 s59, s49, 7")
    k("s_lshl_b32 s60, s57, 6")
    k("s_add_u32 s59, s59, s60")
    ACC, RES, XC, WC = 32, 48, 24, 14
    BF, AF = 64, 96
    for q in range(4):
        k("buffer_load_dwordx2 %s, v12, s[12:15], s59 offen offset:%d" % (vr(RES + 2 * q, 2), 16 * q))
        tokR = vm.issue()
    k("v_and_b32 v7, 31, v1")
    k("s_lshl_b32 s58, s56, 5")
    k("v_add_u32 v7, s58, v7")
    k("v_and_b32 v9, 15, v7")
    k("v_xor_b32 v9, v9, v8")
    k("v_lshlrev_b32 v9, 4, v9")
    k("v_lshl_add_u32 v9, v7, 8, v9")
    XA = 16
    for ks in range(8):
        k("v_xor_b32 v%d, %d, v9" % (XA + ks, ks * 32))
    k("v_lshrrev_b32 v11, 5, v1")
    k("v_lshlrev_b32 v11, 3, v11")
    k("v_bfe_u32 v10, v1, 2, 2")
    k("v_add_u32 v11, v11, v10")
    k("v_bfe_u32 v10, v1, 4, 1")
    k("v_lshlrev_b32 v10, 5, v10")
    k("v_and_b32 v12, 3, v1")
    k("v_lshl_add_u32 v10, v12, 3, v10")
    k("s_lshl_b32 s58, s57, 6")
    k("v_add_u32 v10, s58, v10")
    k("v_bfe_u32 v12, v1, 3, 1")
    k("v_lshlrev_b32 v12, 6, v12")
    k("v_xor_b32 v10, v10, v12")
    k("v_lshl_add_u32 v10, v11, 7, v10")
    k("v_add_u32 v10, 0x4000, v10")
    nxtD = 0
    for c in range(4):
        st = c * 32768
        vm.wait(tokC[c])
        k("s_barrier")
        if c == 0:
            k.ts(1)
            issueC(3)
        if c == 3:
            k("buffer_load_dword v59, off, s[20:23], s42 sc1")
            vm.issue()
        for ks in range(8):
            k("v_add_u32 v%d, %d, v%d" % (XC + ks, st, XA + ks))
        k("v_add_u32 v%d, %d, v10" % (WC, st))
        for ks in range(8):
            k("ds_read_b128 %s, v%d" % (vr(BF + 4 * ks, 4), XC + ks))
            k("ds_read_b64_tr_b16 %s, v%d offset:%d" % (vr(AF + 4 * ks, 2), WC, ks * 2048))
            k("ds_read_b64_tr_b16 %s, v%d offset:%d" % (vr(AF + 4 * ks + 2, 2), WC, ks * 2048 + 512))
        for ks in range(8):
            k("s_waitcnt lgkmcnt(%d)" % min(15, 3 * (7 - ks)))
            first = (c == 0 and ks == 0)
            k("v_mfma_f32_32x32x16_bf16 %s, %s, %s, %s" % (vr(ACC, 16), vr(AF + 4 * ks, 4), vr(BF + 4 * ks, 4), "0" if first else vr(ACC, 16)))
        lim = 2 + 2 * c
        for _ in range(PF[c]):
            if nxtD < lim:
                issueD(nxtD, 60)
                nxtD += 1
    k.ts(2)
    k("s_nop 15")
    for q in range(4):
        for d in range(2):
            r = RES + 2 * q + d
            k("v_lshlrev_b32 v%d, 16, v%d" % (BF, r))
            k("v_and_b32 v%d, 0xffff0000, v%d" % (BF + 1, r))
            k("v_add_f32 v%d, v%d, v%d" % (ACC + 4 * q + 2 * d, ACC + 4 * q + 2 * d, BF))
            k("v_add_f32 v%d, v%d, v%d" % (ACC + 4 * q + 2 * d + 1, ACC + 4 * q + 2 * d + 1, BF + 1))
    for r in range(8):
        k("v_cvt_pk_bf16_f32 v%d, v%d, v%d" % (RES + r, ACC + 2 * r, ACC + 2 * r + 1))
    T = AF
    X4 = os.environ.get("X4", "1") == "1"
    if X4:
        k("v_lshlrev_b32 v%d, 4, v1" % (T + 7))
    else:
        k("v_and_b32 v%d, 31, v1" % (T + 7))
        k("v_lshlrev_b32 v%d, 4, v%d" % (T + 7, T + 7))
        k("v_lshl_add_u32 v%d, v8, 3, v%d" % (T + 7, T + 7))
    k("s_lshl_b32 s60, s48, 1")
    k("s_add_u32 s60, s60, s56")
    k("s_lshl_b32 s60, s60, 5")
    k("s_lshl_b32 s61, s49, 2")
    k("s_add_u32 s60, s60, s61")
    k("s_lshl_b32 s61, s57, 1")
    k("s_add_u32 s60, s60, s61")
    k("s_lshl_b32 s60, s60, 10")
    k("s_add_u32 s60, s60, 0x%x" % WS_HP)
    if not X4:
        for q in range(4):
            k("buffer_store_dwordx2 %s, v%d, s[20:23], s60 offen offset:%d%s" % (vr(RES + 2 * q, 2), T + 7, (q >> 1) * 1024 + (q & 1) * 512, FST))
            vm.issue()
    k("v_mov_b32 v%d, 0x3f803f80" % T)
    for i in range(4):
        k("v_mov_b32 v%d, 0" % (T + 2 + i))
    for r in range(8):
        k("v_dot2c_f32_bf16 v%d, v%d, v%d" % (T + 2 + (r & 1), RES + r, T))
        k("v_dot2c_f32_bf16 v%d, v%d, v%d" % (T + 4 + (r & 1), RES + r, RES + r))
    if X4:
        k("s_nop 1")
        for h2 in range(2):
            k("v_permlane32_swap_b32 v%d, v%d" % (RES + 4 * h2, RES + 4 * h2 + 2))
            k("v_permlane32_swap_b32 v%d, v%d" % (RES + 4 * h2 + 1, RES + 4 * h2 + 3))
        k("s_nop 1")
        for h2 in range(2):
            k("buffer_store_dwordx4 %s, v%d, s[20:23], s60 offen offset:%d%s" % (vr(RES + 4 * h2, 4), T + 7, h2 * 1024, FST))
            vm.issue()
    k("s_nop 4")
    k("v_add_f32 v%d, v%d, v%d" % (T + 2, T + 2, T + 3))
    k("v_add_f32 v%d, v%d, v%d" % (T + 3, T + 4, T + 5))
    k("v_mov_b32 v%d, v%d" % (T + 4, T + 2))
    k("v_mov_b32 v%d, v%d" % (T + 5, T + 3))
    k("s_nop 1")
    k("v_permlane32_swap_b32 v%d, v%d" % (T + 2, T + 4))
    k("v_permlane32_swap_b32 v%d, v%d" % (T + 3, T + 5))
    k("s_nop 1")
    k("v_add_f32 v%d, v%d, v%d" % (T + 2, T + 2, T + 4))
    k("v_add_f32 v%d, v%d, v%d" % (T + 3, T + 3, T + 5))
    k("v_lshlrev_b32 v%d, 7, v13" % (T + 6))
    k("s_lshl_b32 s60, s49, 1")
    k("s_add_u32 s60, s60, s57")
    k("s_lshl_b32 s60, s60, 3")
    k("s_add_u32 s60, s60, 0x%x" % WS_ST)
    k("v_cmp_gt_u32 vcc, 32, v1")
    k("s_and_saveexec_b64 s[62:63], vcc")
    k("buffer_store_dwordx2 %s, v%d, s[20:23], s60 offen%s" % (vr(T + 2, 2), T + 6, FST))
    vm.issue()
    tokSt = vm.issue() - 1
    vm.n -= 1
    k("s_mov_b64 exec, s[62:63]")
    for _ in range(PA):
        if nxtD < 8:
            issueD(nxtD, 60)
            nxtD += 1
    k("s_mov_b32 s30, s48")
    k("s_mov_b32 s31, s49")
    k("s_mov_b32 s48, s38")
    k("s_mov_b32 s49, s39")
    k("v_and_b32 v2, 31, v1")
    k("v_lshrrev_b32 v3, 5, v1")
    k("s_lshl_b32 s50, s3, 5")
    k("s_lshl_b32 s51, s48, 7")
    k("s_add_u32 s50, s50, s51")
    k("v_add_u32 v2, s50, v2")
    k("s_lshl_b32 s57, s50, 10")
    k("v_lshlrev_b32 v6, 7, v2")
    k("v_lshl_add_u32 v6, v3, 6, v6")
    k("v_lshlrev_b32 v7, 4, v1")
    k("v_add_u32 v8, 0x10000, v7")
    k("v_add_u32 v9, 0x20000, v7")
    k("v_add_u32 v4, s52, v7")
    k("s_mov_b32 s55, 0x%x" % WS_ST)
    k("s_add_u32 s57, s57, 0x%x" % WS_HP)
    k("v_and_b32 v10, 31, v1")
    k("v_lshlrev_b32 v10, 4, v10")
    k("v_lshl_add_u32 v10, v3, 3, v10")
    k("s_lshr_b32 s59, s50, 5")
    k("s_mul_i32 s59, s59, 86")
    k("s_mul_i32 s58, s49, 6")
    k("s_add_u32 s59, s59, s58")
    k("s_lshl_b32 s59, s59, 10")
    k("s_add_u32 s59, s59, 0x%x" % WS_ACT)
    k("s_mov_b32 s60, %s" % f32hex(-LOG2E))
    k("s_lshl_b32 s65, s3, 8")
    k("s_add_u32 s65, s65, s2")
    k("s_cmp_lt_u32 s65, 8")
    k("s_cselect_b32 s65, 1, 0")
    k("s_add_u32 s58, s59, 2048")
    k("s_add_u32 s64, s59, 4096")
    k("s_cmp_eq_u32 s49, 14")
    k("s_cselect_b32 s58, 0x%x, s58" % WS_DUMMY)
    k("s_cselect_b32 s64, 0x%x, s64" % WS_DUMMY)

    def resolve():
        lr, ld = k.newlab("rs"), k.newlab("rd")
        k("s_mov_b32 s44, 0x%x" % SPIN)
        k.lab(lr)
        k("v_readfirstlane_b32 s46, v59")
        k("s_and_b32 s47, s46, 0xff")
        k("s_cmp_ge_u32 s47, 16")
        k("s_cbranch_scc1 %s" % ld)
        k("s_sub_u32 s44, s44, 1")
        k("s_cmp_eq_u32 s44, 0")
        k("s_cbranch_scc1 %s" % ld)
        k("buffer_load_dword v59, off, s[20:23], s42 sc1")
        k("s_waitcnt vmcnt(0)")
        k("s_branch %s" % lr)
        k.lab(ld)
        k("s_mov_b32 s4, s46")
        k("s_cmp_eq_u32 s46, s43")
        k("s_cselect_b32 s41, %d, 0" % (0 if FORCE_SLOW else 1))

    def publish(offL, offG, addreg=None):
        skip, slow, done = k.newlab("sk"), k.newlab("sl"), k.newlab("dn")
        k("s_cmp_lg_u32 s3, 0")
        k("s_cbranch_scc1 %s" % skip)
        k("s_mov_b64 exec, 1")
        k("v_mov_b32 v56, %s" % ("1" if addreg is None else addreg))
        k("s_cmp_eq_u32 s41, 0")
        k("s_cbranch_scc1 %s" % slow)
        k("s_add_u32 s45, s42, %d" % offL)
        k("buffer_atomic_add v56, off, s[20:23], s45")
        k("s_branch %s" % done)
        k.lab(slow)
        k("s_add_u32 s45, s42, %d" % offG)
        k("buffer_wbl2 sc1")
        k("s_waitcnt vmcnt(0)")
        k("buffer_atomic_add v56, off, s[20:23], s45 sc1")
        k.lab(done)
        k("s_mov_b64 exec, -1")
        k.lab(skip)

    def poll(target):
        skip, slow, done = k.newlab("sk"), k.newlab("sl"), k.newlab("dn")
        pf, ps = k.newlab("pf"), k.newlab("ps")
        k("s_cmp_lg_u32 s3, 0")
        k("s_cbranch_scc1 %s" % skip)
        k("s_mov_b64 exec, 1")
        k("s_mov_b32 s44, 0x%x" % SPIN)
        k("s_cmp_eq_u32 s41, 0")
        k("s_cbranch_scc1 %s" % slow)
        k.lab(pf)
        if os.environ.get("SPOLL", "1") == "1":
            k("s_load_dword s46, s[32:33], s45 glc")
            k("s_waitcnt lgkmcnt(0)")
        else:
            k("v_mov_b32 v57, 0")
            k("buffer_atomic_add v57, off, s[20:23], s45 sc0")
            k("s_waitcnt vmcnt(0)")
            k("v_readfirstlane_b32 s46, v57")
        k("s_sub_u32 s44, s44, 1")
        k("s_cmp_eq_u32 s44, 0")
        k("s_cbranch_scc1 %s" % done)
        k("s_cmp_lt_u32 s46, %s" % target)
        k("s_cbranch_scc1 %s" % pf)
        k("s_branch %s" % done)
        k.lab(slow)
        k.lab(ps)
        k("buffer_load_dword v57, off, s[20:23], s45 sc1")
        k("s_waitcnt vmcnt(0)")
        k("v_readfirstlane_b32 s46, v57")
        k("s_sub_u32 s44, s44, 1")
        k("s_cmp_eq_u32 s44, 0")
        k("s_cbranch_scc1 %s" % done)
        k("s_cmp_lt_u32 s46, %s" % target)
        k("s_cbranch_scc1 %s" % ps)
        k.lab(done)
        k("s_mov_b64 exec, -1")
        k.lab(skip)

    def acquire():
        nf = k.newlab("nf")
        k("s_barrier")
        k("s_cmp_lg_u32 s41, 0")
        k("s_cbranch_scc1 %s" % nf)
        k("buffer_inv sc1")
        k("s_waitcnt vmcnt(0)")
        k.lab(nf)
    vm.wait(tokSt)
    k.ts(3)
    resolve()
    k("s_barrier")
    pre0 = nxtD
    publish(384, 128)
    idle = k.newlab("idle")
    dend = k.newlab("dend")
    k("s_cmp_eq_u32 s49, 15")
    k("s_cbranch_scc1 %s" % idle)
    for _ in range(PB):
        if nxtD < 10:
            issueD(nxtD, 60)
            nxtD += 1
    poll("16")
    pre = 0
    acquire()
    k.ts(4)
    ACC, B, T = 16, 112, 240
    order = []
    for ks in range(KS1):
        for t in range(6):
            order.append((t, ks))
    for p in range(3):
        for ks in range(KS1, 32):
            order.append((p, ks))
            order.append((p + 3, ks))
    assert len(order) == 192
    for q in range(4):
        k("buffer_load_dwordx4 %s, v6, s[20:23], s55 offen offset:%d" % (vr(ACC + 4 * q, 4), 16 * q))
        tokS = vm.issue()
    nbq = [0]

    def issueB():
        g = nbq[0]
        if g < 32:
            k("s_add_u32 s56, s57, %d" % (g * 1024))
            k("buffer_load_dwordx4 %s, v7, s[20:23], s56 offen" % vr(B + 4 * g, 4))
            tokB[g] = vm.issue()
            nbq[0] += 1
    for _ in range(NB0):
        issueB()
    vm.wait(tokS)
    for st in (8, 4, 2):
        for i in range(st):
            k("v_add_f32 v%d, v%d, v%d" % (ACC + i, ACC + i, ACC + i + st))
    k("v_mov_b32 v%d, v%d" % (ACC + 2, ACC))
    k("v_mov_b32 v%d, v%d" % (ACC + 3, ACC + 1))
    k("s_nop 1")
    k("v_permlane32_swap_b32 v%d, v%d" % (ACC, ACC + 2))
    k("v_permlane32_swap_b32 v%d, v%d" % (ACC + 1, ACC + 3))
    k("s_nop 1")
    k("v_add_f32 v%d, v%d, v%d" % (ACC, ACC, ACC + 2))
    k("v_add_f32 v%d, v%d, v%d" % (ACC + 1, ACC + 1, ACC + 3))
    k("v_mul_f32 v%d, %s, v%d" % (ACC, f32hex(1.0 / 512), ACC))
    k("v_mul_f32 v%d, %s, v%d" % (ACC + 1, f32hex(1.0 / 512), ACC + 1))
    k("v_fma_f32 v%d, -v%d, v%d, v%d" % (ACC + 1, ACC, ACC, ACC + 1))
    k("v_add_f32 v%d, %s, v%d" % (ACC + 1, f32hex(1e-5), ACC + 1))
    k("v_rsq_f32 v12, v%d" % (ACC + 1))
    k("s_nop 1")
    k("v_mul_f32 v14, v%d, v12" % ACC)
    k("v_xor_b32 v14, 0x80000000, v14")
    from collections import deque
    fq = deque()

    def q_norm(g):
        def w():
            vm.wait(tokB[g])
        fq.append(("n", g, w))
        for r in range(4):
            t0 = T + 2 * (r & 3)
            b = B + 4 * g + r
            fq.append(("n", g, "v_lshlrev_b32 v%d, 16, v%d" % (t0, b)))
            fq.append(("n", g, "v_and_b32 v%d, 0xffff0000, v%d" % (t0 + 1, b)))
            fq.append(("n", g, "v_fma_f32 v%d, v%d, v12, v14" % (t0, t0)))
            fq.append(("n", g, "v_fma_f32 v%d, v%d, v12, v14" % (t0 + 1, t0 + 1)))
            fq.append(("n", g, "v_cvt_pk_bf16_f32 v%d, v%d, v%d" % (b, t0, t0 + 1)))

    def q_epi(p):
        G, U = ACC + 16 * p, ACC + 16 * (3 + p)
        E = T
        L = []
        L.append("s_nop 15")
        for r in range(16):
            L.append("v_mul_f32 v%d, s60, v%d" % (E + r, G + r))
        for r in range(16):
            L.append("v_exp_f32 v%d, v%d" % (E + r, E + r))
        for r in range(16):
            L.append("v_mul_f32 v%d, v%d, v%d" % (G + r, G + r, U + r))
        for r in range(16):
            L.append("v_add_f32 v%d, 1.0, v%d" % (E + r, E + r))
        for r in range(16):
            L.append("v_rcp_f32 v%d, v%d" % (E + r, E + r))
        for r in range(16):
            L.append("v_mul_f32 v%d, v%d, v%d" % (G + r, G + r, E + r))
        for r in range(8):
            L.append("v_cvt_pk_bf16_f32 v%d, v%d, v%d" % (G + r, G + 2 * r, G + 2 * r + 1))
        if X4:
            L.append("s_nop 1")
            for h2 in range(2):
                L.append("v_permlane32_swap_b32 v%d, v%d" % (G + 4 * h2, G + 4 * h2 + 2))
                L.append("v_permlane32_swap_b32 v%d, v%d" % (G + 4 * h2 + 1, G + 4 * h2 + 3))
            L.append("s_nop 1")
            for h2 in range(2):
                L.append("buffer_store_dwordx4 %s, v7, s[20:23], s%d offen offset:%d%s" % (vr(G + 4 * h2, 4), (59, 58, 64)[p], h2 * 1024, FST))
        else:
            for q in range(4):
                L.append("buffer_store_dwordx2 %s, v10, s[20:23], s%d offen offset:%d%s" % (vr(G + 2 * q, 2), (59, 58, 64)[p], (q >> 1) * 1024 + (q & 1) * 512, FST))
        if os.environ.get("WBD", "0") == "1" and p < 2:
            L.append(("wb", p))
        for x in L:
            fq.append(("e", p, x))

    def emit_filler():
        kind, g, x = fq.popleft()
        if callable(x):
            x()
        elif isinstance(x, tuple):
            nwb = k.newlab("nwb")
            k("s_cmp_eq_u32 s65, 0")
            k("s_cbranch_scc1 %s" % nwb)
            k("buffer_wbl2 sc1")
            k.lab(nwb)
        else:
            if x.startswith("buffer_store"):
                vm.issue()
            k(x)

    def flush_norm(g):
        last = -1
        for i, (kind, gg, x) in enumerate(fq):
            if kind == "n" and gg <= g:
                last = i
        n = last + 1
        for _ in range(n):
            emit_filler()
        if n:
            k("s_nop 1")
    for g in range(32):
        q_norm(g)

    def read1(gi, j):
        c = gi // 4
        fi = gi * 4 + j
        lds = ((c + ROT) % S) * CH + (fi % 16) * 1024
        k("ds_read_b128 a[%d:%d], v%d offset:%d" % (16 * (gi % 2) + 4 * j, 16 * (gi % 2) + 4 * j + 3, 7 + lds // 65536, lds % 65536))

    def boundary(c):
        nonlocal nxtD
        for cc in (c, c + 1):
            while nxtD <= cc:
                issueD(nxtD, 4)
                nxtD += 1
        vm.wait(tokA[c + 1])
        k("s_barrier")
        if c == 2:
            while nxtD < 10:
                issueD(nxtD, 4)
                nxtD += 1
        if c == 4:
            issueD(10, 4)
            issueD(11, 4)
            nxtD = 12
        if c == 8:
            k.ts(6)
            for cc in range(5):
                issueEW(cc, 7)
        if c == 10:
            issueEW(5, 7)
    boundary(0)
    for j in range(4):
        read1(0, j)
    seen = set()
    NPER = int(os.environ.get("NPER", "4"))
    for gi in range(48):
        if gi + 1 < 48 and (gi + 1) % 8 == 0:
            boundary((gi + 1) // 4)
        for j in range(4):
            t, ks = order[gi * 4 + j]
            flush_norm(ks + 1)
            k("s_waitcnt lgkmcnt(%d)" % (3 if gi + 1 < 48 else 3 - j))
            first = t not in seen
            seen.add(t)
            if gi == 0 and j == 0:
                k.ts(5)
            k("v_mfma_f32_32x32x16_bf16 %s, a[%d:%d], %s, %s" % (vr(ACC + 16 * t, 16), 16 * (gi % 2) + 4 * j, 16 * (gi % 2) + 4 * j + 3, vr(B + 4 * ks, 4), "0" if first else vr(ACC + 16 * t, 16)))
            if gi + 1 < 48:
                read1(gi + 1, j)
            if (gi * 4 + j) % BPER == BPER - 1:
                issueB()
            while nbq[0] <= min(31, ks + 2):
                issueB()
            if ks == 31 and t >= 3:
                q_epi(t - 3)
            for _ in range(NPER):
                if fq:
                    emit_filler()
    k.ts(7)
    while fq:
        emit_filler()
    k("s_branch %s" % dend)
    k.lab(idle)
    k("v_lshlrev_b32 v7, 4, v1")
    k("s_waitcnt vmcnt(0)")
    k("s_barrier")
    for cc in range(6):
        issueEW(cc, 7)
    k.lab(dend)
    NKS = 86
    NC = 11
    k("s_mov_b32 s37, s49")
    k("s_mov_b32 s48, s30")
    k("s_mov_b32 s49, s31")
    k("s_and_b32 s56, s3, 1")
    k("s_lshr_b32 s57, s3, 1")
    k("v_lshlrev_b32 v4, 4, v1")
    k("s_lshl_b32 s50, s56, 13")
    k("s_lshl_b32 s51, s57, 12")
    k("s_add_u32 s50, s50, s51")
    k("s_add_u32 s50, s50, 98304")
    k("s_lshl_b32 s52, s48, 1")
    k("s_add_u32 s52, s52, s56")
    k("s_mul_i32 s52, s52, %d" % (NKS * 1024))
    k("s_add_u32 s52, s52, s51")
    k("s_add_u32 s52, s52, 0x%x" % (0 if os.environ.get("XCLEAN") else WS_ACT))
    k("s_lshl_b32 s58, s48, 6")
    k("s_lshl_b32 s59, s56, 5")
    k("s_add_u32 s58, s58, s59")
    k("v_and_b32 v13, 31, v1")
    k("v_add_u32 v13, s58, v13")
    k("v_lshrrev_b32 v8, 5, v1")
    k("v_lshlrev_b32 v12, 3, v8")
    k("v_lshl_add_u32 v12, v13, 10, v12")
    k("s_lshl_b32 s59, s49, 7")
    k("s_lshl_b32 s60, s57, 6")
    k("s_add_u32 s59, s59, s60")
    k("v_and_b32 v14, 31, v1")
    k("v_lshlrev_b32 v14, 4, v14")
    k("v_lshl_add_u32 v14, v8, 3, v14")
    k("s_lshl_b32 s60, s48, 1")
    k("s_add_u32 s60, s60, s56")
    k("s_lshl_b32 s60, s60, 5")
    k("s_lshl_b32 s61, s49, 2")
    k("s_add_u32 s60, s60, s61")
    k("s_lshl_b32 s61, s57, 1")
    k("s_add_u32 s60, s60, s61")
    k("s_lshl_b32 s60, s60, 10")
    k("s_add_u32 s60, s60, 0x%x" % WS_HP)
    k("s_lshl_b32 s61, s56, 13")
    k("s_add_u32 s61, s61, 98304")
    k("s_lshl_b32 s62, s57, 10")
    k("v_add_u32 v16, s61, v4")
    k("v_add_u32 v20, s62, v4")
    k("v_add_u32 v21, 0x10000, v20")
    k("s_cmp_eq_u32 s37, 15")
    k("s_cselect_b32 s37, 0, 1")
    k("v_mov_b32 v58, s37")
    k("s_waitcnt vmcnt(0)")
    k.ts(8)
    k("s_barrier")
    publish(512, 256, addreg="v58")
    poll("15")
    ACC, RES, FR = 32, 48, 64
    vm2 = VM(k)
    for q in range(4):
        k("buffer_load_dwordx2 %s, v14, s[20:23], s60 offen offset:%d" % (vr(RES + 2 * q, 2), (q >> 1) * 1024 + (q & 1) * 512))
        vm2.issue()
    acquire()
    k.ts(9)
    tokX, tokW = {}, {}

    def issueX(c):
        for j in range(4):
            k("s_add_u32 m0, s50, %d" % ((c % 4) * 16384 + j * 1024))
            k("s_add_u32 s54, s52, %d" % (c * 8192 + j * 1024))
            k("buffer_load_dwordx4 v4, s[20:23], s54 offen lds")
            tokX[c] = vm2.issue()

    def issueW(c):
        for j in range(4):
            k("s_add_u32 m0, s36, %d" % ((c % 6) * 16384 + j * 1024))
            k("s_add_u32 s54, s35, %d" % (c * 16384 + j * 1024))
            k("buffer_load_dwordx4 v4, s[20:23], s54 offen lds")
            tokW[c] = vm2.issue()
    for c in range(4):
        issueX(c)

    def rd(g):
        c, ks = g // 8, g % 8
        oa = (c % 6) * 16384 + ks * 2048
        ob = (c % 4) * 16384 + ks * 1024
        k("ds_read_b128 %s, v%d offset:%d" % (vr(FR + 8 * (g % 4), 4), 20 + oa // 65536, oa % 65536))
        k("ds_read_b128 %s, v16 offset:%d" % (vr(FR + 8 * (g % 4) + 4, 4), ob))
    for c in range(NC):
        n = min(8, NKS - 8 * c)
        vm2.wait(max(tokX[c], tokW.get(c, 0)))
        k("s_barrier")
        if c == 0:
            k.ts(10)
        if FTS == "E":
            ts0(2 + c)
        for ks in range(3):
            rd(8 * c + ks)
        if c >= 1:
            if c + 5 < NC:
                issueW(c + 5)
            if c + 3 < NC:
                issueX(c + 3)
        for ks in range(n):
            g = 8 * c + ks
            k("s_waitcnt lgkmcnt(%d)" % (2 * min(2, n - 1 - ks)))
            k("v_mfma_f32_32x32x16_bf16 %s, %s, %s, %s" % (vr(ACC, 16), vr(FR + 8 * (g % 4), 4), vr(FR + 8 * (g % 4) + 4, 4), "0" if g == 0 else vr(ACC, 16)))
            if ks + 3 < n:
                rd(g + 3)
    k.ts(11)
    k("s_nop 15")
    BF = FR
    for q in range(4):
        for d in range(2):
            r = RES + 2 * q + d
            k("v_lshlrev_b32 v%d, 16, v%d" % (BF + 32, r))
            k("v_and_b32 v%d, 0xffff0000, v%d" % (BF + 33, r))
            k("v_add_f32 v%d, v%d, v%d" % (ACC + 4 * q + 2 * d, ACC + 4 * q + 2 * d, BF + 32))
            k("v_add_f32 v%d, v%d, v%d" % (ACC + 4 * q + 2 * d + 1, ACC + 4 * q + 2 * d + 1, BF + 33))
    for r in range(8):
        k("v_cvt_pk_bf16_f32 v%d, v%d, v%d" % (RES + r, ACC + 2 * r, ACC + 2 * r + 1))
    for q in range(4):
        k("buffer_store_dwordx2 %s, v12, s[16:19], s59 offen offset:%d%s" % (vr(RES + 2 * q, 2), 16 * q, FSTO))
    k.ts(12)
    if os.environ.get("FDBG"):
        k("s_waitcnt lgkmcnt(0)")
        k("s_add_u32 s82, s70, s4")
        k("s_add_u32 s90, s70, s41")
    k.ts_flush(13)
    k.lab(end)
    return k


def build(kerns):
    head = open("cdna_kernels/%s.s.ref" % NAME).read().split("; @launch")[0]
    out = [head.rstrip("\n")]
    for kk in kerns:
        out.append("; @launch kernel=%s grid=(%d,1,1) block=(%d,1,1) lds=%d" % (kk.name, kk.grid, kk.block, kk.lds))
    out.append('.amdgcn_target "amdgcn-amd-amdhsa--gfx950"')
    out.append(".text")
    for kk in kerns:
        out.append(kk.text())
    out.append('.section .rodata,"a"')
    for kk in kerns:
        out.append(".p2align 6")
        out.append(kk.desc())
    return "\n".join(out) + "\n"


def main():
    which = sys.argv[1] if len(sys.argv) > 1 else "ABCDE"
    gens = {"A": gen_A}
    for nm in "BCDEF":
        if "gen_" + nm in globals():
            gens[nm] = globals()["gen_" + nm]
    kerns = [gens[c]() for c in which if c in gens]
    txt = build(kerns)
    open("cdna_kernels/%s.s" % NAME, "w").write(txt)
    print("wrote", len(txt), "bytes;", [kk.name for kk in kerns])


if __name__ == "__main__":
    main()
```

```python
import sys, re

NAME = "sequential_preLN__grouped_kv_mqa__swiglu_ffn__prompt"

WS_Q = 0x000000
WS_K = 0x200000
WS_V = 0x210000
WS_CS = 0x220000
WS_KM = 0x228000
WS_O = 0x300000
WS_H = 0x500000
WS_ACT = 0x800000
ACT_LD = 2816
WS_ST = 0x230000
WS_WG = 0x1000000
WS_WD = 0x1400000
WS_WO = 0x1600000
WS_HP = 0x1800000
WS_DUMMY = 0x2000000
KS1 = int(__import__("os").environ.get("KS1", "16"))
WS_SIZE = 268435456
import os
DEBUG_TS = bool(os.environ.get('TS'))
FUSED = "F" in (sys.argv[1] if len(sys.argv) > 1 else "")
TSMODE = int(os.environ.get('TS', '0'))
SRD3 = "0x00020000"
LOG2E = 1.4426950408889634


def f32hex(x):
    import struct
    return "0x%08x" % struct.unpack("<I", struct.pack("<f", x))[0]


class Kern:
    def __init__(s, name, nvgpr, block, grid, lds, accum=None):
        s.name = name
        s.L = []
        s.nvgpr = nvgpr
        s.block = block
        s.grid = grid
        s.lds = lds
        s.accum = accum if accum is not None else nvgpr
        s.nlab = 0
        s.tsb = 70
        s.kidx = {"attn_kernel": 1, "wo_kernel": 2, "ffn1_kernel": 3, "down_kernel": 4}.get(name, 0)

    def __call__(s, txt):
        for t in txt.split("\n"):
            t = t.strip()
            if t:
                m = re.search(r"offset:(\d+)", t)
                if m:
                    lim = 4095 if t.startswith("buffer") else 65535
                    assert int(m.group(1)) <= lim, t
                if t.startswith("buffer_store") and os.environ.get("STMOD"):
                    t = t + " " + os.environ["STMOD"]
                s.L.append("    " + t)

    def lab(s, l):
        s.L.append(l + ":")

    def newlab(s, p):
        s.nlab += 1
        return "%s_%s%d" % (s.name.replace("_kernel", "")[:8], p, s.nlab)

    def srd(s, reg, preg, size):
        s("s_mov_b32 s%d, s%d" % (reg, preg))
        s("s_and_b32 s%d, s%d, 0xffff" % (reg + 1, preg + 1))
        s("s_mov_b32 s%d, 0x%x" % (reg + 2, size))
        s("s_mov_b32 s%d, %s" % (reg + 3, SRD3))

    def ts(s, idx):
        if not DEBUG_TS:
            return
        if TSMODE == 3:
            if idx == 0:
                s("s_memrealtime s[100:101]")
            return
        if TSMODE == 4:
            s("s_memrealtime s[%d:%d]" % (s.tsb + 2 * idx, s.tsb + 1 + 2 * idx))
            return
        s("s_memtime s[%d:%d]" % (s.tsb + 2 * idx, s.tsb + 1 + 2 * idx))
        if idx == 0:
            s("s_memrealtime s[100:101]")

    def ts_flush(s, n):
        if not DEBUG_TS:
            return
        if TSMODE == 3:
            lab = s.newlab("nots")
            s("s_waitcnt vmcnt(0)")
            s("s_memrealtime s[72:73]")
            s("s_waitcnt lgkmcnt(0)")
            s("s_cmp_lg_u32 s3, 0")
            s("s_cbranch_scc1 %s" % lab)
            s("s_lshl_b32 s69, s2, 3")
            s("s_add_u32 s69, s69, 0x%x" % (0x1F00000 + 4096 * s.kidx))
            s("v_mov_b32 v0, 0")
            s("v_mov_b32 v2, s100")
            s("v_mov_b32 v3, s72")
            s("s_mov_b64 exec, 1")
            s("buffer_store_dwordx2 v[2:3], v0, s[20:23], s69 offen")
            s("s_mov_b64 exec, -1")
            s.lab(lab)
            return
        if TSMODE == 4:
            lab = s.newlab("nots")
            s("s_waitcnt lgkmcnt(0)")
            s("s_cmp_lg_u32 s3, 0")
            s("s_cbranch_scc1 %s" % lab)
            s("s_lshl_b32 s69, s2, 6")
            s("s_add_u32 s69, s69, 0x%x" % (0x1F00000 + 16384 * s.kidx))
            s("v_mov_b32 v0, 0")
            for i in range(n):
                s("v_mov_b32 v1, s%d" % (s.tsb + 2 * i))
                s("buffer_store_dword v1, v0, s[20:23], s69 offen offset:%d" % (4 * i))
                s("s_nop 2")
            s.lab(lab)
            return
        lab = s.newlab("nots")
        s("s_memrealtime s[64:65]")
        s("s_waitcnt lgkmcnt(0)")
        s("s_sub_u32 s67, s2, 100")
        s("s_cmp_ge_u32 s67, 4")
        s("s_cbranch_scc1 %s" % lab)
        s("s_cmp_lg_u32 s3, 0")
        s("s_cbranch_scc1 %s" % lab)
        s("s_load_dwordx2 s[96:97], s[0:1], 80")
        s("s_waitcnt lgkmcnt(0)")
        s("s_mov_b32 s98, 256")
        s("s_mov_b32 s99, 0x00020000")
        s("s_lshl_b32 s69, s67, 6")
        s("v_mov_b32 v0, 0")
        for i in range(n):
            s("s_sub_u32 s68, s%d, s%d" % (s.tsb + 2 * i, s.tsb))
            s("v_mov_b32 v1, s68")
            s("buffer_store_dword v1, v0, s[96:99], s69 offen offset:%d" % (4 * i))
            s("s_nop 2")
        s("s_sub_u32 s68, s64, s100")
        s("v_mov_b32 v1, s68")
        s("buffer_store_dword v1, v0, s[96:99], s69 offen offset:60")
        s.lab(lab)

    def text(s):
        out = []
        out.append(".globl %s" % s.name)
        out.append(".p2align 8")
        out.append(".type %s,@function" % s.name)
        out.append("%s:" % s.name)
        out += s.L
        out.append("    s_endpgm")
        return "\n".join(out)

    def desc(s):
        return "\n".join([
            ".amdhsa_kernel %s" % s.name,
            "  .amdhsa_next_free_vgpr %d" % s.nvgpr,
            "  .amdhsa_next_free_sgpr 102",
            "  .amdhsa_accum_offset %d" % s.accum,
            "  .amdhsa_group_segment_fixed_size 0",
            "  .amdhsa_kernarg_size 96",
            "  .amdhsa_user_sgpr_count 2",
            "  .amdhsa_user_sgpr_kernarg_segment_ptr 1",
            "  .amdhsa_system_sgpr_workgroup_id_x 1",
            ".end_amdhsa_kernel"])


def vr(a, n=1):
    return "v%d" % a if n == 1 else "v[%d:%d]" % (a, a + n - 1)


def sr(a, n=1):
    return "s%d" % a if n == 1 else "s[%d:%d]" % (a, a + n - 1)


def gen_A():
    k = Kern(NAME + "_kernel", 256, 256, 256, 163840)
    end = k.newlab("end")
    k("s_cmp_ge_u32 s2, 256")
    k("s_cbranch_scc1 %s" % end)
    k.ts(0)
    k("s_load_dwordx8 s[24:31], s[0:1], 0")
    k("s_load_dwordx2 s[32:33], s[0:1], 88")
    k("v_and_b32 v1, 63, v0")
    k("v_lshrrev_b32 v2, 6, v0")
    k("s_nop 1")
    k("v_readfirstlane_b32 s3, v2")
    k("s_and_b32 s48, s2, 7")
    k("s_lshl_b32 s48, s48, 2")
    k("s_bfe_u32 s49, s2, 0x20003")
    k("s_add_u32 s48, s48, s49")
    k("s_lshr_b32 s49, s2, 5")
    k("v_lshrrev_b32 v3, 4, v1")
    k("s_lshl_b32 s50, s3, 2")
    k("v_add_u32 v3, s50, v3")
    k("v_and_b32 v4, 15, v1")
    k("v_xor_b32 v4, v4, v3")
    k("v_lshlrev_b32 v4, 4, v4")
    k("s_lshl_b32 s51, s48, 6")
    k("v_add_u32 v3, s51, v3")
    k("v_lshl_add_u32 v4, v3, 10, v4")
    k("v_lshrrev_b32 v3, 3, v1")
    k("s_lshl_b32 s50, s3, 3")
    k("v_add_u32 v3, s50, v3")
    k("v_and_b32 v5, 7, v1")
    k("v_bfe_u32 v6, v1, 4, 1")
    k("v_lshlrev_b32 v6, 2, v6")
    k("v_xor_b32 v5, v5, v6")
    k("v_lshlrev_b32 v5, 4, v5")
    k("v_lshl_add_u32 v5, v3, 10, v5")
    k("s_lshl_b32 s50, s49, 7")
    k("v_add_u32 v5, s50, v5")
    k("v_lshlrev_b32 v6, 4, v1")
    k("s_lshl_b32 s52, s3, 10")
    k("s_and_b32 s56, s3, 1")
    k("s_lshr_b32 s57, s3, 1")
    k("s_lshl_b32 s62, s56, 11")
    k("s_and_b32 s50, s48, 7")
    k("s_lshl_b32 s63, s57, 8")
    k("s_or_b32 s50, s50, s63")
    k("s_cmp_eq_u32 s50, s49")
    k("s_cselect_b32 s53, 1, 0")
    k("s_waitcnt lgkmcnt(0)")
    k.srd(4, 24, 2048 * 512 * 2)
    AIL = int(os.environ.get("AIL", "0"))

    def issueX(c):
        for j in range(4):
            k("s_add_u32 m0, s52, %d" % (c * 16384 + j * 4096))
            k("s_mov_b32 s54, %d" % (j * 16 * 1024 + c * 256))
            k("buffer_load_dwordx4 v4, s[4:7], s54 offen lds")
    for c in range(4 if not AIL else 1):
        issueX(c)
    k.srd(8, 26, 512 * 512 * 2)
    k.srd(12, 28, 512 * 16 * 2)
    k.srd(16, 30, 512 * 16 * 2)
    k.srd(20, 32, WS_SIZE)
    k.ts(1)
    k("v_and_b32 v7, 31, v1")
    k("s_lshl_b32 s58, s56, 5")
    k("v_add_u32 v7, s58, v7")
    k("v_lshrrev_b32 v8, 5, v1")
    k("v_and_b32 v9, 15, v7")
    k("v_xor_b32 v9, v9, v8")
    k("v_lshlrev_b32 v9, 4, v9")
    k("v_lshl_add_u32 v9, v7, 8, v9")
    XA = 16
    for ks in range(8):
        k("v_xor_b32 v%d, %d, v9" % (XA + ks, ks * 32))
    k("v_lshrrev_b32 v7, 5, v1")
    k("v_lshlrev_b32 v7, 3, v7")
    k("v_bfe_u32 v10, v1, 2, 2")
    k("v_add_u32 v7, v7, v10")
    k("v_bfe_u32 v10, v1, 4, 1")
    k("v_lshlrev_b32 v10, 5, v10")
    k("v_and_b32 v11, 3, v1")
    k("v_lshl_add_u32 v10, v11, 3, v10")
    k("s_lshl_b32 s58, s57, 6")
    k("v_add_u32 v10, s58, v10")
    k("v_bfe_u32 v11, v1, 3, 1")
    k("v_lshlrev_b32 v11, 6, v11")
    k("v_xor_b32 v10, v10, v11")
    k("v_lshl_add_u32 v10, v7, 7, v10")
    k("v_add_u32 v10, 0x10000, v10")
    k("v_and_b32 v11, 3, v1")
    k("v_lshlrev_b32 v11, 3, v11")
    k("v_lshl_add_u32 v11, v7, 5, v11")
    k("v_bfe_u32 v12, v1, 4, 1")
    k("v_lshl_add_u32 v11, v12, 14, v11")
    k("v_add_u32 v11, 0x20000, v11")
    ONES = 24
    for i in range(4):
        k("v_mov_b32 v%d, 0x3f803f80" % (ONES + i))
    S1, S2 = 28, 29
    for i in range(4):
        k("v_mov_b32 v%d, 0" % (28 + i))
    ACC, CS, ACC2, CS2 = 32, 48, 64, 80
    BF, AF, AK = 96, 224, 240
    done = k.newlab("done")
    kvp = k.newlab("kvp")
    k("s_cmp_lg_u32 s53, 0")
    k("s_cbranch_scc1 %s" % kvp)

    def body(kv):
        nW = 8 if kv else 4

        def issueW(c):
            for j in range(4):
                k("s_add_u32 m0, s52, %d" % (65536 + c * 16384 + j * 4096))
                k("s_mov_b32 s54, %d" % ((c * 128 + 32 * j) * 1024))
                k("buffer_load_dwordx4 v5, s[8:11], s54 offen lds")
            if kv:
                for (srdn, base) in ((12, 131072), (16, 147456)):
                    for j in range(2):
                        k("s_add_u32 s54, s62, %d" % (c * 4096 + j * 1024))
                        k("s_add_u32 m0, s54, %d" % base)
                        k("buffer_load_dwordx4 v6, s[%d:%d], s54 offen lds" % (srdn, srdn + 3))
        nr = 4 if kv else 2

        def rdA(g):
            c, ks = g // 8, g % 8
            k("ds_read_b64_tr_b16 %s, v10 offset:%d" % (vr(AF + 4 * (g % 4), 2), c * 16384 + ks * 2048))
            k("ds_read_b64_tr_b16 %s, v10 offset:%d" % (vr(AF + 4 * (g % 4) + 2, 2), c * 16384 + ks * 2048 + 512))
            if kv:
                k("ds_read_b64_tr_b16 %s, v11 offset:%d" % (vr(AK + 4 * (g % 4), 2), (c * 128 + ks * 16) * 32))
                k("ds_read_b64_tr_b16 %s, v11 offset:%d" % (vr(AK + 4 * (g % 4) + 2, 2), (c * 128 + ks * 16 + 4) * 32))

        def stats():
            k("v_add_f32 v28, v28, v30")
            k("v_add_f32 v29, v29, v31")
            k("v_mov_b32 v30, v28")
            k("v_mov_b32 v31, v29")
            k("s_nop 1")
            k("v_permlane32_swap_b32 v28, v30")
            k("v_permlane32_swap_b32 v29, v31")
            k("s_nop 1")
            k("v_add_f32 v28, v28, v30")
            k("v_add_f32 v29, v29, v31")
            k("v_mul_f32 v%d, %s, v%d" % (S1, f32hex(1.0 / 512), S1))
            k("v_mul_f32 v%d, %s, v%d" % (S2, f32hex(1.0 / 512), S2))
            k("v_fma_f32 v%d, -v%d, v%d, v%d" % (S2, S1, S1, S2))
            k("v_add_f32 v%d, %s, v%d" % (S2, f32hex(1e-5), S2))
            k("v_rsq_f32 v%d, v%d" % (S2, S2))
            k("s_nop 1")
            k("v_mul_f32 v30, %s, v%d" % (f32hex(0.25 * LOG2E), S2))
        if AIL:
            issueW(0)
            for c in range(1, 4):
                issueX(c)
                issueW(c)
            for c in range(4):
                k("s_waitcnt vmcnt(%d)" % ((3 - c) * (4 + nW)))
                k("s_barrier")
                if not kv: k.ts(2 + c)

                def rdB(ks):
                    k("ds_read_b128 %s, v%d offset:%d" % (vr(BF + 4 * (8 * c + ks), 4), XA + ks, c * 16384))
                for ks in range(3):
                    rdB(ks)
                    rdA(8 * c + ks)
                for ks in range(3, 8):
                    rdB(ks)
                for ks in range(8):
                    g = 8 * c + ks
                    allow = [7 + 2 * nr, 6 + 2 * nr, 5 + 2 * nr, 2 * nr, 2 * nr, 2 * nr, nr, 0][ks]
                    k("s_waitcnt lgkmcnt(%d)" % allow)
                    first = g == 0
                    k("v_mfma_f32_32x32x16_bf16 %s, %s, %s, %s" % (vr(ACC, 16), vr(AF + 4 * (g % 4), 4), vr(BF + 4 * g, 4), "0" if first else vr(ACC, 16)))
                    if ks + 3 < 8:
                        rdA(g + 3)
                    k("v_mfma_f32_32x32x16_bf16 %s, %s, %s, %s" % (vr(CS, 16), vr(AF + 4 * (g % 4), 4), vr(ONES, 4), "0" if first else vr(CS, 16)))
                    if kv:
                        k("v_mfma_f32_32x32x16_bf16 %s, %s, %s, %s" % (vr(ACC2, 16), vr(AK + 4 * (g % 4), 4), vr(BF + 4 * g, 4), "0" if first else vr(ACC2, 16)))
                        k("v_mfma_f32_32x32x16_bf16 %s, %s, %s, %s" % (vr(CS2, 16), vr(AK + 4 * (g % 4), 4), vr(ONES, 4), "0" if first else vr(CS2, 16)))
                    for q in range(4):
                        b = BF + 4 * g + q
                        k("v_dot2c_f32_bf16 v%d, v%d, v%d" % (28 + 2 * (q & 1), b, ONES))
                        k("v_dot2c_f32_bf16 v%d, v%d, v%d" % (29 + 2 * (q & 1), b, b))
            k("s_nop 4")
            stats()
            return
        for c in range(4):
            k("s_waitcnt vmcnt(%d)" % (4 * (3 - c) + c * nW))
            k("s_barrier")
            if not kv: k.ts(2 + c)
            for ks in range(8):
                k("ds_read_b128 %s, v%d offset:%d" % (vr(BF + 4 * (8 * c + ks), 4), XA + ks, c * 16384))
            issueW(c)
            for ks in range(8):
                k("s_waitcnt lgkmcnt(%d)" % (7 - ks))
                for q in range(4):
                    b = BF + 4 * (8 * c + ks) + q
                    k("v_dot2c_f32_bf16 v%d, v%d, v%d" % (28 + 2 * (q & 1), b, ONES))
                    k("v_dot2c_f32_bf16 v%d, v%d, v%d" % (29 + 2 * (q & 1), b, b))

        def rdA(g):
            c, ks = g // 8, g % 8
            k("ds_read_b64_tr_b16 %s, v10 offset:%d" % (vr(AF + 4 * (g % 4), 2), c * 16384 + ks * 2048))
            k("ds_read_b64_tr_b16 %s, v10 offset:%d" % (vr(AF + 4 * (g % 4) + 2, 2), c * 16384 + ks * 2048 + 512))
            if kv:
                k("ds_read_b64_tr_b16 %s, v11 offset:%d" % (vr(AK + 4 * (g % 4), 2), (c * 128 + ks * 16) * 32))
                k("ds_read_b64_tr_b16 %s, v11 offset:%d" % (vr(AK + 4 * (g % 4) + 2, 2), (c * 128 + ks * 16 + 4) * 32))
        nr = 4 if kv else 2
        for c in range(4):
            k("s_waitcnt vmcnt(%d)" % ((3 - c) * nW))
            k("s_barrier")
            if not kv: k.ts(6 + c)
            for ks in range(3):
                rdA(8 * c + ks)
            if c == 0:
                k("v_add_f32 v28, v28, v30")
                k("v_add_f32 v29, v29, v31")
                k("v_mov_b32 v30, v28")
                k("v_mov_b32 v31, v29")
                k("s_nop 1")
                k("v_permlane32_swap_b32 v28, v30")
                k("v_permlane32_swap_b32 v29, v31")
                k("s_nop 1")
                k("v_add_f32 v28, v28, v30")
                k("v_add_f32 v29, v29, v31")
                k("v_mul_f32 v%d, %s, v%d" % (S1, f32hex(1.0 / 512), S1))
                k("v_mul_f32 v%d, %s, v%d" % (S2, f32hex(1.0 / 512), S2))
                k("v_fma_f32 v%d, -v%d, v%d, v%d" % (S2, S1, S1, S2))
                k("v_add_f32 v%d, %s, v%d" % (S2, f32hex(1e-5), S2))
                k("v_rsq_f32 v%d, v%d" % (S2, S2))
                k("s_nop 1")
                k("v_mul_f32 v30, %s, v%d" % (f32hex(0.25 * LOG2E), S2))
            for ks in range(8):
                g = 8 * c + ks
                ahead = min(2, 7 - ks)
                k("s_waitcnt lgkmcnt(%d)" % (ahead * nr))
                first = g == 0
                k("v_mfma_f32_32x32x16_bf16 %s, %s, %s, %s" % (vr(ACC, 16), vr(AF + 4 * (g % 4), 4), vr(BF + 4 * g, 4), "0" if first else vr(ACC, 16)))
                if ks + 3 < 8:
                    rdA(g + 3)
                k("v_mfma_f32_32x32x16_bf16 %s, %s, %s, %s" % (vr(CS, 16), vr(AF + 4 * (g % 4), 4), vr(ONES, 4), "0" if first else vr(CS, 16)))
                if kv:
                    k("v_mfma_f32_32x32x16_bf16 %s, %s, %s, %s" % (vr(ACC2, 16), vr(AK + 4 * (g % 4), 4), vr(BF + 4 * g, 4), "0" if first else vr(ACC2, 16)))
                    k("v_mfma_f32_32x32x16_bf16 %s, %s, %s, %s" % (vr(CS2, 16), vr(AK + 4 * (g % 4), 4), vr(ONES, 4), "0" if first else vr(CS2, 16)))
    body(False)
    k("s_branch %s" % done)
    k.lab(kvp)
    body(True)
    k.lab(done)
    k.ts(10)
    k("v_and_b32 v7, 31, v1")
    k("s_lshl_b32 s58, s56, 5")
    k("s_add_u32 s58, s58, s51")
    k("v_add_u32 v7, s58, v7")
    k("v_lshrrev_b32 v8, 5, v1")
    k("v_lshlrev_b32 v9, 3, v8")
    k("v_lshl_add_u32 v12, v7, 10, v9")
    k("s_lshl_b32 s59, s49, 7")
    k("s_lshl_b32 s60, s57, 6")
    k("s_add_u32 s59, s59, s60")
    k("s_add_u32 s59, s59, 0x%x" % WS_Q)
    k("s_nop 15")
    TQ = 224
    for r in range(16):
        k("v_fma_f32 v%d, -v%d, v%d, v%d" % (ACC + r, S1, CS + r, ACC + r))
    for r in range(16):
        k("v_mul_f32 v%d, v30, v%d" % (ACC + r, ACC + r))
    for r in range(8):
        k("v_cvt_pk_bf16_f32 v%d, v%d, v%d" % (TQ + r, ACC + 2 * r, ACC + 2 * r + 1))
    for q in range(4):
        k("buffer_store_dwordx2 %s, v12, s[20:23], s59 offen offset:%d" % (vr(TQ + 2 * q, 2), 16 * q))
    k.ts(11)
    k.ts_flush(12)
    k("s_cmp_eq_u32 s53, 0")
    k("s_cbranch_scc1 %s" % end)
    ACC, CS = ACC2, CS2
    for r in range(16):
        k("v_fma_f32 v%d, -v%d, v%d, v%d" % (ACC + r, S1, CS + r, ACC + r))
    for r in range(16):
        k("v_mul_f32 v%d, v%d, v%d" % (ACC + r, S2, ACC + r))
    for r in range(8):
        k("v_cvt_pk_bf16_f32 v%d, v%d, v%d" % (CS + r, ACC + 2 * r, ACC + 2 * r + 1))
    k("v_mov_b32 v14, 0")
    for i in range(4):
        k("v_dot2c_f32_bf16 v14, v%d, v%d" % (CS + i, CS + i))
    k("s_nop 4")
    k("v_mov_b32 v15, v14")
    k("s_nop 1")
    k("v_permlane32_swap_b32 v14, v15")
    k("s_nop 1")
    k("v_add_f32 v14, v14, v15")
    k("s_nop 1")
    for r in (8, 4, 2, 1):
        k("v_max_f32_dpp v14, v14, v14 row_ror:%d row_mask:0xf bank_mask:0xf" % r)
        k("s_nop 1")
    k("v_readlane_b32 s60, v14, 0")
    k("v_readlane_b32 s61, v14, 16")
    k("s_nop 3")
    k("s_max_u32 s60, s60, s61")
    k("v_mov_b32 v14, s60")
    k("v_mov_b32 v15, 0")
    k("s_lshl_b32 s61, s48, 1")
    k("s_add_u32 s61, s61, s56")
    k("s_lshl_b32 s61, s61, 2")
    k("s_add_u32 s61, s61, 0x%x" % WS_KM)
    k("s_mov_b64 exec, 1")
    k("buffer_store_dword v14, v15, s[20:23], s61 offen")
    k("s_mov_b64 exec, -1")
    k("v_and_b32 v13, 31, v1")
    k("v_lshlrev_b32 v13, 4, v13")
    k("v_lshl_add_u32 v13, v8, 3, v13")
    k("s_lshl_b32 s59, s48, 1")
    k("s_add_u32 s59, s59, s56")
    k("s_lshl_b32 s59, s59, 10")
    k("s_add_u32 s59, s59, 0x%x" % WS_K)
    k("buffer_store_dwordx2 %s, v13, s[20:23], s59 offen" % vr(CS, 2))
    k("buffer_store_dwordx2 %s, v13, s[20:23], s59 offen offset:512" % vr(CS + 2, 2))
    k("v_lshrrev_b32 v13, 4, v7")
    k("v_lshlrev_b32 v13, 9, v13")
    k("v_bfe_u32 v14, v7, 2, 1")
    k("v_lshl_add_u32 v13, v14, 8, v13")
    k("v_bfe_u32 v14, v7, 3, 1")
    k("v_lshl_add_u32 v13, v14, 3, v13")
    k("v_and_b32 v14, 3, v7")
    k("v_lshl_add_u32 v13, v14, 1, v13")
    k("v_lshl_add_u32 v13, v8, 6, v13")
    k("s_mov_b32 s59, 0x%x" % WS_V)
    for r in range(8, 16):
        d = (r & 3) + 8 * ((r >> 2) - 2)
        src = CS + r // 2
        op = "buffer_store_short" if r % 2 == 0 else "buffer_store_short_d16_hi"
        k("%s v%d, v13, s[20:23], s59 offen offset:%d" % (op, src, d * 16))
    k.lab(end)
    return k


def gen_B():
    k = Kern("attn_kernel", 128, 1024, 256, 163840)
    end = k.newlab("end")
    k("s_cmp_ge_u32 s2, 256")
    k("s_cbranch_scc1 %s" % end)
    k.tsb = 4
    k.ts(0)
    k("s_load_dwordx2 s[32:33], s[0:1], 88")
    k("s_load_dwordx4 s[36:39], s[0:1], 48")
    k("s_load_dwordx2 s[40:41], s[0:1], 64")
    k("s_load_dwordx2 s[42:43], s[0:1], 32")
    k("v_and_b32 v1, 63, v0")
    k("v_lshrrev_b32 v2, 6, v0")
    k("s_nop 1")
    k("v_readfirstlane_b32 s3, v2")
    k("v_and_b32 v2, 31, v1")
    k("v_lshlrev_b32 v2, 5, v2")
    k("v_lshrrev_b32 v3, 5, v1")
    k("v_lshl_add_u32 v2, v3, 4, v2")
    k("v_lshlrev_b32 v8, 4, v1")
    k("s_and_b32 s48, s3, 7")
    k("s_lshr_b32 s49, s3, 3")
    k("s_lshl_b32 s50, s2, 3")
    k("s_add_u32 s50, s50, s48")
    k("s_lshl_b32 s51, s50, 10")
    k("s_add_u32 s51, s51, 0x%x" % WS_Q)
    k("s_lshr_b32 s52, s3, 3")
    k("s_lshl_b32 s52, s52, 15")
    k("s_and_b32 s53, s3, 7")
    k("s_lshl_b32 s53, s53, 10")
    k("s_add_u32 s52, s52, s53")
    k("s_waitcnt lgkmcnt(0)")
    k.srd(20, 32, WS_SIZE)
    QF = 4
    k("buffer_load_dwordx4 %s, v2, s[20:23], s51 offen" % vr(QF, 4))
    if FUSED:
        zl = k.newlab("zf")
        k("s_lshr_b32 s60, s3, 3")
        k("s_lshl_b32 s60, s60, 8")
        k("s_add_u32 s60, s60, s2")
        k("s_cmp_ge_u32 s60, 16")
        k("s_cbranch_scc1 %s" % zl)
        k("s_lshl_b32 s60, s2, 13")
        k("s_lshl_b32 s61, s3, 10")
        k("s_add_u32 s60, s60, s61")
        k("s_add_u32 s60, s60, 0x%x" % WS_FL)
        for i in range(4):
            k("v_mov_b32 v%d, 0" % (12 + i))
        k("buffer_store_dwordx4 v[12:15], v8, s[20:23], s60 offen")
        k.lab(zl)
    k("s_lshl_b32 s54, s49, 7")
    k("s_add_u32 s54, s54, 0x%x" % WS_KM)
    k("s_add_u32 s56, s32, s54")
    k("s_addc_u32 s57, s33, 0")
    k("s_load_dwordx16 s[64:79], s[56:57], 0")
    k("s_load_dwordx16 s[80:95], s[56:57], 64")
    for j in range(4):
        for ss in range(2):
            k("s_add_u32 m0, s52, %d" % (ss * 65536 + j * 8192))
            k("s_add_u32 s53, s52, 0x%x" % (WS_K + ss * 65536 + j * 8192))
            k("buffer_load_dwordx4 v8, s[20:23], s53 offen lds")
    k("s_lshl_b32 s54, s49, 15")
    k("v_add_u32 v9, s54, v8")
    k("v_and_b32 v10, 15, v1")
    k("v_lshlrev_b32 v10, 4, v10")
    k("v_lshl_add_u32 v10, v3, 8, v10")
    k("v_add_u32 v10, s54, v10")
    k("v_add_u32 v10, 0x10000, v10")
    NEG, SA, SB, O, PK, KF, VF = 16, 32, 48, 64, 80, 88, 100
    M = 11
    for i in range(16):
        k("v_mov_b32 v%d, 0x3f803f80" % (VF + i))
    k("s_mov_b32 s58, 0xffff")
    k("s_mov_b32 s59, 0xffff")
    k("s_waitcnt lgkmcnt(0)")
    for i in range(1, 32):
        k("s_max_u32 s64, s64, s%d" % (64 + i))
    k("v_mov_b32 v12, 0")
    k("s_waitcnt vmcnt(8)")
    for i in range(4):
        k("v_dot2c_f32_bf16 v12, v%d, v%d" % (QF + i, QF + i))
    k("s_nop 4")
    k("v_mov_b32 v13, v12")
    k("s_nop 1")
    k("v_permlane32_swap_b32 v12, v13")
    k("s_nop 1")
    k("v_add_f32 v12, v12, v13")
    k("v_mul_f32 v12, s64, v12")
    k("v_sqrt_f32 v%d, v12" % M)
    k("s_nop 1")
    for i in range(16):
        k("v_xor_b32 v%d, 0x80000000, v%d" % (NEG + i, M))
    S = [SA, SB]
    NT = 32

    RP, RQ = 116, 124

    def repack_issue():
        l_dn, l_go = k.newlab("rdn"), k.newlab("rgo")
        k("s_cmp_ge_u32 s64, 2752")
        k("s_cbranch_scc1 %s" % l_dn)
        k("s_lshr_b32 s65, s64, 5")
        k("s_and_b32 s66, s64, 31")
        k("s_cmp_ge_u32 s65, 43")
        k("s_cselect_b32 s67, 1, 0")
        k("s_cselect_b32 s84, s38, s36")
        k("s_cselect_b32 s85, s39, s37")
        k("s_mul_i32 s68, s67, 43")
        k("s_sub_u32 s65, s65, s68")
        k("s_mul_i32 s68, s65, 171")
        k("s_lshr_b32 s68, s68, 9")
        k("s_mul_i32 s69, s68, 3")
        k("s_sub_u32 s69, s65, s69")
        k("s_mul_i32 s70, s66, 6")
        k("s_mul_i32 s71, s67, 3")
        k("s_add_u32 s70, s70, s71")
        k("s_add_u32 s70, s70, s69")
        k("s_mul_i32 s71, s69, %d" % ((32 - KS1) * 2))
        k("s_lshl_b32 s72, s66, 1")
        k("s_add_u32 s71, s71, s72")
        k("s_add_u32 s71, s71, s67")
        k("s_add_u32 s71, s71, %d" % (KS1 * 6 - 2 * KS1))
        k("s_cmp_lt_u32 s66, %d" % KS1)
        k("s_cselect_b32 s70, s70, s71")
        k("s_lshl_b32 s70, s70, 10")
        k("s_mul_i32 s90, s68, 196608")
        k("s_add_u32 s90, s90, s70")
        k("s_add_u32 s90, s90, 0x%x" % WS_WG)
        k("s_mov_b32 s86, %d" % (512 * 2752))
        k("s_mov_b32 s89, 2752")
        k("s_branch %s" % l_go)
        k.lab(l_dn)
        k("s_sub_u32 s64, s64, 2752")
        k("s_cmp_ge_u32 s64, 1376")
        k("s_cselect_b32 s84, s42, s40")
        k("s_cselect_b32 s85, s43, s41")
        k("s_mov_b32 s86, %d" % (1376 * 1024))
        k("s_mov_b32 s68, %d" % (86 * 2048))
        k("s_mov_b32 s90, 0x%x" % WS_WD)
        k("s_cselect_b32 s86, %d, s86" % (512 * 1024))
        k("s_cselect_b32 s67, 1376, 0")
        k("s_cselect_b32 s68, 65536, s68")
        k("s_cselect_b32 s90, 0x%x, s90" % WS_WO)
        k("s_sub_u32 s64, s64, s67")
        k("s_lshr_b32 s66, s64, 4")
        k("s_and_b32 s65, s64, 15")
        k("s_lshr_b32 s69, s65, 1")
        k("s_mul_i32 s69, s69, s68")
        k("s_add_u32 s90, s90, s69")
        k("s_lshl_b32 s69, s66, 11")
        k("s_add_u32 s90, s90, s69")
        k("s_and_b32 s69, s65, 1")
        k("s_lshl_b32 s69, s69, 10")
        k("s_add_u32 s90, s90, s69")
        k("s_mov_b32 s89, 1024")
        k.lab(l_go)
        k("s_and_b32 s85, s85, 0xffff")
        k("s_mov_b32 s87, %s" % SRD3)
        k("s_mul_i32 s88, s66, s89")
        k("s_lshl_b32 s88, s88, 4")
        k("s_lshl_b32 s69, s65, 6")
        k("s_add_u32 s88, s88, s69")
        k("s_lshl_b32 s69, s89, 3")
        k("v_mul_u32_u24 v14, s69, v3")
        k("v_and_b32 v15, 31, v1")
        k("v_lshl_add_u32 v14, v15, 1, v14")
        for j in range(8):
            k("buffer_load_ushort v%d, v14, s[84:87], s88 offen" % (RP + j))
            if j < 7:
                k("s_add_u32 s88, s88, s89")

    def repack_store():
        k("s_waitcnt vmcnt(0)")
        for q in range(4):
            k("v_lshl_or_b32 v%d, v%d, 16, v%d" % (RQ + q, RP + 2 * q + 1, RP + 2 * q))
        k("buffer_store_dwordx4 %s, v8, s[20:23], s90 offen" % vr(RQ, 4))

    EXPB = os.environ.get("EXPB", "")
    PRIO = int(os.environ.get("PRIO", "1"))
    RT = [int(x) for x in os.environ.get("RT", "1,12,24").split(",")]
    repack_wait = [False]
    def rdV(t):
        if "noV" in EXPB and t > 1:
            k("ds_read_b32 v15, v10"); k("ds_read_b32 v15, v10")
            return
        k("s_mov_b64 exec, s[58:59]")
        k("ds_read_b128 %s, v10 offset:%d" % (vr(VF + 8 * (t % 2), 4), t * 1024))
        k("ds_read_b128 %s, v10 offset:%d" % (vr(VF + 8 * (t % 2) + 4, 4), t * 1024 + 512))
        k("s_mov_b64 exec, -1")

    def pass2(bars):
        if bars:
            k("s_waitcnt vmcnt(6)")
            k("s_barrier")
            k.ts(1)
        k("ds_read_b128 %s, v9 offset:0" % vr(KF, 4))
        k("ds_read_b128 %s, v9 offset:1024" % vr(KF + 4, 4))
        rdV(0)
        k("s_waitcnt lgkmcnt(3)")
        k("v_mfma_f32_32x32x16_bf16 %s, %s, %s, %s" % (vr(S[0], 16), vr(KF, 4), vr(QF, 4), vr(NEG, 16)))
        for t in range(NT):
            n_new = 0
            if bars and t == 8: k.ts(2)
            if bars and t == 16: k.ts(3)
            if bars and t == 23: k.ts(4)
            if bars and PRIO and t % 8 in (0, 2, 4, 6):
                k("s_setprio %d" % (3 - ((t + 2) % 8) // 2 if PRIO == 1 else 3 - (t % 8) // 2))
            if bars and t == RT[0]:
                k("s_lshl_b32 s64, s2, 4")
                k("s_add_u32 s64, s64, s3")
                repack_issue()
            if bars and t == RT[1]:
                repack_store()
                k.ts(5)
                nr2 = k.newlab("nr2")
                k("s_lshl_b32 s64, s3, 8")
                k("s_add_u32 s64, s64, s2")
                k("s_cmp_ge_u32 s64, 544")
                k("s_cbranch_scc1 %s" % nr2)
                k("s_add_u32 s64, s64, 4096")
                repack_issue()
                repack_wait[0] = True
                k.lab(nr2)
            if bars and t == int(os.environ.get("WBT", "27")):
                nwb = k.newlab("nwb")
                k("s_lshl_b32 s64, s3, 8")
                k("s_add_u32 s64, s64, s2")
                k("s_cmp_ge_u32 s64, 8")
                k("s_cbranch_scc1 %s" % nwb)
                k("buffer_wbl2 sc1")
                k.lab(nwb)
            if bars and t == RT[2]:
                nr3 = k.newlab("nr3")
                k("s_lshl_b32 s64, s3, 8")
                k("s_add_u32 s64, s64, s2")
                k("s_cmp_ge_u32 s64, 544")
                k("s_cbranch_scc1 %s" % nr3)
                repack_store()
                k.lab(nr3)
            if t + 2 < NT:
                if bars and (t + 2) % 8 == 0:
                    young = 8 if RT[0] <= t < RT[1] else 0
                    if t >= RT[1]:
                        pass
                    else:
                        k("s_waitcnt vmcnt(%d)" % (6 - 2 * ((t + 2) // 8) + young))
                    k("s_barrier")
                k("ds_read_b128 %s, v9 offset:%d" % (vr(KF + 4 * ((t + 2) % 3), 4), (t + 2) * 1024))
                n_new += 1
            if t + 1 < NT:
                k("s_waitcnt lgkmcnt(%d)" % (2 + n_new))
                k("v_mfma_f32_32x32x16_bf16 %s, %s, %s, %s" % (vr(S[(t + 1) % 2], 16), vr(KF + 4 * ((t + 1) % 3), 4), vr(QF, 4), vr(NEG, 16)))
            if t == 0:
                k("s_nop 10")
            s = S[t % 2]
            for i in range(16):
                if "noexp" in EXPB and i >= 8: continue
                k("v_exp_f32 v%d, v%d" % (s + i, s + i))
            for i in range(8):
                if "nocvt" in EXPB: continue
                k("v_cvt_pk_bf16_f32 v%d, v%d, v%d" % (PK + i, s + 2 * i, s + 2 * i + 1))
            k("s_waitcnt lgkmcnt(%d)" % n_new)
            if "nopv" not in EXPB or t == 0:
                k("v_mfma_f32_32x32x16_bf16 %s, %s, %s, %s" % (vr(O, 16), vr(VF + 8 * (t % 2), 4), vr(PK, 4), "0" if t == 0 else vr(O, 16)))
                k("v_mfma_f32_32x32x16_bf16 %s, %s, %s, %s" % (vr(O, 16), vr(VF + 8 * (t % 2) + 4, 4), vr(PK + 4, 4), vr(O, 16)))
            if t + 1 < NT:
                rdV(t + 1)
    pass2(True)
    k.ts(6)
    k("s_nop 15")
    k("v_cmp_gt_f32 vcc, 0x%08x, v%d" % ((127 - 64) << 23, O + 8))
    k("v_cmp_u_f32 s[60:61], v%d, v%d" % (O + 8, O + 8))
    k("s_or_b64 vcc, vcc, s[60:61]")
    comb = k.newlab("comb")
    k("s_cbranch_vccz %s" % comb)
    k("v_mov_b32 v%d, 0xff800000" % M)
    k("ds_read_b128 %s, v9 offset:0" % vr(KF, 4))
    k("ds_read_b128 %s, v9 offset:1024" % vr(KF + 4, 4))
    k("s_waitcnt lgkmcnt(1)")
    k("v_mfma_f32_32x32x16_bf16 %s, %s, %s, 0" % (vr(S[0], 16), vr(KF, 4), vr(QF, 4)))
    for t in range(NT):
        if t + 2 < NT:
            k("ds_read_b128 %s, v9 offset:%d" % (vr(KF + 4 * ((t + 2) % 3), 4), (t + 2) * 1024))
        if t + 1 < NT:
            k("s_waitcnt lgkmcnt(%d)" % (1 if t + 2 < NT else 0))
            k("v_mfma_f32_32x32x16_bf16 %s, %s, %s, 0" % (vr(S[(t + 1) % 2], 16), vr(KF + 4 * ((t + 1) % 3), 4), vr(QF, 4)))
        k("s_nop 10" if t == 0 else "s_nop 3")
        s = S[t % 2]
        for i in range(8):
            k("v_max3_f32 v%d, v%d, v%d, v%d" % (M, s + 2 * i, s + 2 * i + 1, M))
    k("v_mov_b32 v12, v%d" % M)
    k("s_nop 1")
    k("v_permlane32_swap_b32 v%d, v12" % M)
    k("s_nop 1")
    k("v_max_f32 v%d, v%d, v12" % (M, M))
    for i in range(16):
        k("v_xor_b32 v%d, 0x80000000, v%d" % (NEG + i, M))
    k("s_nop 1")
    pass2(False)
    k("s_nop 15")
    k.lab(comb)
    k("s_mul_i32 s60, s48, 2560")
    k("s_add_u32 s60, s60, 0x20000")
    k("v_lshlrev_b32 v12, 2, v1")
    k("v_add_u32 v12, s60, v12")
    w1 = k.newlab("w1")
    k("s_cmp_eq_u32 s49, 0")
    k("s_cbranch_scc1 %s" % w1)
    for i in range(9):
        k("ds_write_b32 v12, v%d offset:%d" % (O + i, i * 256))
    k("ds_write_b32 v12, v%d offset:%d" % (M, 9 * 256))
    k("s_waitcnt lgkmcnt(0)")
    k("s_barrier")
    k("s_branch %s" % end)
    k.lab(w1)
    k("s_barrier")
    for i in range(9):
        k("ds_read_b32 v%d, v12 offset:%d" % (SA + i, i * 256))
    k("ds_read_b32 v%d, v12 offset:%d" % (SA + 9, 9 * 256))
    k("s_waitcnt lgkmcnt(0)")
    m1 = SA + 9
    k("v_max_f32 v13, v%d, v%d" % (M, m1))
    k("v_sub_f32 v14, v%d, v13" % M)
    k("v_sub_f32 v15, v%d, v13" % m1)
    k("v_exp_f32 v14, v14")
    k("v_exp_f32 v15, v15")
    k("s_nop 1")
    for i in range(9):
        k("v_mul_f32 v%d, v14, v%d" % (O + i, O + i))
    for i in range(9):
        k("v_fma_f32 v%d, v15, v%d, v%d" % (O + i, SA + i, O + i))
    k("v_rcp_f32 v13, v%d" % (O + 8))
    k("s_nop 1")
    for i in range(8):
        k("v_mul_f32 v%d, v13, v%d" % (O + i, O + i))
    for i in range(4):
        k("v_cvt_pk_bf16_f32 v%d, v%d, v%d" % (PK + i, O + 2 * i, O + 2 * i + 1))
    k("v_and_b32 v2, 31, v1")
    k("v_lshlrev_b32 v2, 5, v2")
    k("v_lshl_add_u32 v2, v3, 3, v2")
    k("s_lshl_b32 s51, s50, 10")
    k("s_add_u32 s51, s51, 0x%x" % WS_O)
    k("buffer_store_dwordx2 %s, v2, s[20:23], s51 offen" % vr(PK, 2))
    k("buffer_store_dwordx2 %s, v2, s[20:23], s51 offen offset:16" % vr(PK + 2, 2))
    k.ts(7)
    k.ts_flush(8)
    k.lab(end)
    return k


def gen_gemm64(name, x_ws_off, ldx, w_karg, K, resid, outp, S=4, stats=False):
    lds = S * 32768
    k = Kern(name, 128, 256, 256, lds)
    end = k.newlab("end")
    k("s_cmp_ge_u32 s2, 256")
    k("s_cbranch_scc1 %s" % end)
    k.ts(0)
    k("s_load_dwordx2 s[24:25], s[0:1], %d" % w_karg)
    k("s_load_dwordx2 s[32:33], s[0:1], 88")
    if resid[0] == 'karg':
        k("s_load_dwordx2 s[26:27], s[0:1], %d" % resid[1])
    if outp[0] == 'karg':
        k("s_load_dwordx2 s[28:29], s[0:1], %d" % outp[1])
    k("v_and_b32 v1, 63, v0")
    k("v_lshrrev_b32 v2, 6, v0")
    k("s_nop 1")
    k("v_readfirstlane_b32 s3, v2")
    k("s_and_b32 s48, s2, 7")
    k("s_lshl_b32 s48, s48, 2")
    k("s_bfe_u32 s49, s2, 0x20003")
    k("s_add_u32 s48, s48, s49")
    k("s_lshr_b32 s49, s2, 5")
    k("s_waitcnt lgkmcnt(0)")
    k.srd(8, 24, K * 1024)
    k.srd(20, 32, WS_SIZE)
    if resid[0] == 'karg':
        k.srd(12, 26, 2048 * 1024)
        rs, roff = 12, 0
    else:
        rs, roff = 20, resid[1]
    if outp[0] == 'karg':
        k.srd(16, 28, 2048 * 1024)
        os_, ooff = 16, 0
    else:
        os_, ooff = 20, outp[1]
    k("v_lshrrev_b32 v3, 4, v1")
    k("s_lshl_b32 s50, s3, 2")
    k("v_add_u32 v3, s50, v3")
    k("v_and_b32 v4, 15, v1")
    k("v_xor_b32 v4, v4, v3")
    k("v_lshlrev_b32 v4, 4, v4")
    k("s_lshl_b32 s51, s48, 6")
    k("v_add_u32 v3, s51, v3")
    k("v_mul_u32_u24 v3, %d, v3" % ldx)
    k("v_add_u32 v4, v3, v4")
    k("v_lshrrev_b32 v3, 3, v1")
    k("s_lshl_b32 s50, s3, 3")
    k("v_add_u32 v3, s50, v3")
    k("v_and_b32 v5, 7, v1")
    k("v_bfe_u32 v6, v1, 4, 1")
    k("v_lshlrev_b32 v6, 2, v6")
    k("v_xor_b32 v5, v5, v6")
    k("v_lshlrev_b32 v5, 4, v5")
    k("v_lshl_add_u32 v5, v3, 10, v5")
    k("s_lshl_b32 s50, s49, 7")
    k("v_add_u32 v5, s50, v5")
    k("s_lshl_b32 s52, s3, 10")
    chunks = []
    kk = 0
    while kk < K:
        c = min(128, K - kk)
        chunks.append((kk, c))
        kk += c
    NC = len(chunks)

    def issue(c):
        k0, kc = chunks[c]
        st = (c % S) * 32768
        n = 0
        for j in range(4):
            k("s_add_u32 m0, s52, %d" % (st + j * 4096))
            k("s_mov_b32 s54, %d" % (x_ws_off + j * 16 * ldx + k0 * 2))
            k("buffer_load_dwordx4 v4, s[20:23], s54 offen lds")
            n += 1
        for j in range(kc // 32):
            k("s_add_u32 m0, s52, %d" % (st + 16384 + j * 4096))
            k("s_mov_b32 s54, %d" % ((k0 + 32 * j) * 1024))
            k("buffer_load_dwordx4 v5, s[8:11], s54 offen lds")
            n += 1
        return n
    cnt = {}
    for c in range(min(S - 1, NC)):
        cnt[c] = issue(c)
    k("s_and_b32 s56, s3, 1")
    k("s_lshr_b32 s57, s3, 1")
    k("v_and_b32 v7, 31, v1")
    k("s_lshl_b32 s58, s56, 5")
    k("v_add_u32 v7, s58, v7")
    k("v_lshrrev_b32 v8, 5, v1")
    k("v_and_b32 v9, 15, v7")
    k("v_xor_b32 v9, v9, v8")
    k("v_lshlrev_b32 v9, 4, v9")
    k("v_lshl_add_u32 v9, v7, 8, v9")
    XA = 16
    for ks in range(8):
        k("v_xor_b32 v%d, %d, v9" % (XA + ks, ks * 32))
    k("v_lshrrev_b32 v11, 5, v1")
    k("v_lshlrev_b32 v11, 3, v11")
    k("v_bfe_u32 v10, v1, 2, 2")
    k("v_add_u32 v11, v11, v10")
    k("v_bfe_u32 v10, v1, 4, 1")
    k("v_lshlrev_b32 v10, 5, v10")
    k("v_and_b32 v12, 3, v1")
    k("v_lshl_add_u32 v10, v12, 3, v10")
    k("s_lshl_b32 s58, s57, 6")
    k("v_add_u32 v10, s58, v10")
    k("v_bfe_u32 v12, v1, 3, 1")
    k("v_lshlrev_b32 v12, 6, v12")
    k("v_xor_b32 v10, v10, v12")
    k("v_lshl_add_u32 v10, v11, 7, v10")
    k("v_add_u32 v10, 0x4000, v10")
    k("s_lshl_b32 s58, s56, 5")
    k("s_add_u32 s58, s58, s51")
    k("v_and_b32 v13, 31, v1")
    k("v_add_u32 v13, s58, v13")
    k("v_lshlrev_b32 v12, 3, v8")
    k("v_lshl_add_u32 v12, v13, 10, v12")
    k("s_lshl_b32 s59, s49, 7")
    k("s_lshl_b32 s60, s57, 6")
    k("s_add_u32 s59, s59, s60")
    ACC, RES, XC, WC = 32, 48, 24, 14
    BF, AF = 64, 96
    for c in range(NC):
        k0, kc = chunks[c]
        st = (c % S) * 32768
        later = sum(cnt[cc] for cc in range(c + 1, min(c + S - 1, NC)))
        k("s_waitcnt vmcnt(%d)" % later)
        k("s_barrier")
        if c < 11: k.ts(1 + c)
        if c + S - 1 < NC:
            cnt[c + S - 1] = issue(c + S - 1)
        if c == NC - 1:
            k("s_add_u32 s60, s59, 0x%x" % roff)
            for q in range(4):
                k("buffer_load_dwordx2 %s, v12, s[%d:%d], s60 offen offset:%d" % (vr(RES + 2 * q, 2), rs, rs + 3, 16 * q))
        nks = kc // 16
        hi = st >= 65536
        if hi or st + 16384 + 16384 > 65536:
            pass
        for ks in range(nks):
            k("v_add_u32 v%d, %d, v%d" % (XC + ks, st, XA + ks))
        k("v_add_u32 v%d, %d, v10" % (WC, st))
        for ks in range(nks):
            k("ds_read_b128 %s, v%d" % (vr(BF + 4 * ks, 4), XC + ks))
            k("ds_read_b64_tr_b16 %s, v%d offset:%d" % (vr(AF + 4 * ks, 2), WC, ks * 2048))
            k("ds_read_b64_tr_b16 %s, v%d offset:%d" % (vr(AF + 4 * ks + 2, 2), WC, ks * 2048 + 512))
        for ks in range(nks):
            k("s_waitcnt lgkmcnt(%d)" % min(15, 3 * (nks - 1 - ks)))
            first = (c == 0 and ks == 0)
            k("v_mfma_f32_32x32x16_bf16 %s, %s, %s, %s" % (vr(ACC, 16), vr(AF + 4 * ks, 4), vr(BF + 4 * ks, 4), "0" if first else vr(ACC, 16)))
    k.ts(12)
    k("s_waitcnt vmcnt(0)")
    k("s_nop 15")
    for q in range(4):
        for d in range(2):
            r = RES + 2 * q + d
            k("v_lshlrev_b32 v%d, 16, v%d" % (BF, r))
            k("v_and_b32 v%d, 0xffff0000, v%d" % (BF + 1, r))
            k("v_add_f32 v%d, v%d, v%d" % (ACC + 4 * q + 2 * d, ACC + 4 * q + 2 * d, BF))
            k("v_add_f32 v%d, v%d, v%d" % (ACC + 4 * q + 2 * d + 1, ACC + 4 * q + 2 * d + 1, BF + 1))
    for r in range(8):
        k("v_cvt_pk_bf16_f32 v%d, v%d, v%d" % (RES + r, ACC + 2 * r, ACC + 2 * r + 1))
    if not stats or os.environ.get("HROW"):
        k("s_add_u32 s60, s59, 0x%x" % ooff)
        for q in range(4):
            k("buffer_store_dwordx2 %s, v12, s[%d:%d], s60 offen offset:%d" % (vr(RES + 2 * q, 2), os_, os_ + 3, 16 * q))
    if stats:
        T = AF
        k("v_and_b32 v%d, 31, v1" % (T + 7))
        k("v_lshlrev_b32 v%d, 4, v%d" % (T + 7, T + 7))
        k("v_lshl_add_u32 v%d, v8, 3, v%d" % (T + 7, T + 7))
        k("s_lshl_b32 s60, s48, 1")
        k("s_add_u32 s60, s60, s56")
        k("s_lshl_b32 s60, s60, 5")
        k("s_lshl_b32 s61, s49, 2")
        k("s_add_u32 s60, s60, s61")
        k("s_lshl_b32 s61, s57, 1")
        k("s_add_u32 s60, s60, s61")
        k("s_lshl_b32 s60, s60, 10")
        k("s_add_u32 s60, s60, 0x%x" % WS_HP)
        for q in range(4):
            k("buffer_store_dwordx2 %s, v%d, s[20:23], s60 offen offset:%d" % (vr(RES + 2 * q, 2), T + 7, (q >> 1) * 1024 + (q & 1) * 512))
        k("v_mov_b32 v%d, 0x3f803f80" % T)
        for i in range(4):
            k("v_mov_b32 v%d, 0" % (T + 2 + i))
        for r in range(8):
            k("v_dot2c_f32_bf16 v%d, v%d, v%d" % (T + 2 + (r & 1), RES + r, T))
            k("v_dot2c_f32_bf16 v%d, v%d, v%d" % (T + 4 + (r & 1), RES + r, RES + r))
        k("s_nop 4")
        k("v_add_f32 v%d, v%d, v%d" % (T + 2, T + 2, T + 3))
        k("v_add_f32 v%d, v%d, v%d" % (T + 3, T + 4, T + 5))
        k("v_mov_b32 v%d, v%d" % (T + 4, T + 2))
        k("v_mov_b32 v%d, v%d" % (T + 5, T + 3))
        k("s_nop 1")
        k("v_permlane32_swap_b32 v%d, v%d" % (T + 2, T + 4))
        k("v_permlane32_swap_b32 v%d, v%d" % (T + 3, T + 5))
        k("s_nop 1")
        k("v_add_f32 v%d, v%d, v%d" % (T + 2, T + 2, T + 4))
        k("v_add_f32 v%d, v%d, v%d" % (T + 3, T + 3, T + 5))
        k("v_lshlrev_b32 v%d, 7, v13" % (T + 6))
        k("s_lshl_b32 s60, s49, 1")
        k("s_add_u32 s60, s60, s57")
        k("s_lshl_b32 s60, s60, 3")
        k("s_add_u32 s60, s60, 0x%x" % WS_ST)
        k("v_cmp_gt_u32 vcc, 32, v1")
        k("s_and_saveexec_b64 s[62:63], vcc")
        k("buffer_store_dwordx2 %s, v%d, s[20:23], s60 offen" % (vr(T + 2, 2), T + 6))
        k("s_mov_b64 exec, s[62:63]")
    k.ts(13)
    k.ts_flush(14)
    k.lab(end)
    return k


def gen_C():
    return gen_gemm64("wo_kernel", WS_O, 1024, 32, 512, ('karg', 0), ('ws', WS_H), stats=True)


def gen_E():
    S = int(os.environ.get("ES", "4"))
    NKS = 86
    NC = (NKS + 7) // 8
    k = Kern("down_kernel", 128, 256, 256, S * 32768)
    end = k.newlab("end")
    k("s_cmp_ge_u32 s2, 256")
    k("s_cbranch_scc1 %s" % end)
    k.ts(0)
    k("s_load_dwordx2 s[32:33], s[0:1], 88")
    k("s_load_dwordx2 s[28:29], s[0:1], 72")
    k("v_and_b32 v1, 63, v0")
    k("v_lshrrev_b32 v2, 6, v0")
    k("s_nop 1")
    k("v_readfirstlane_b32 s3, v2")
    k("s_and_b32 s48, s2, 7")
    k("s_lshl_b32 s48, s48, 2")
    k("s_bfe_u32 s49, s2, 0x20003")
    k("s_add_u32 s48, s48, s49")
    k("s_lshr_b32 s49, s2, 5")
    k("s_and_b32 s56, s3, 1")
    k("s_lshr_b32 s57, s3, 1")
    k("v_lshlrev_b32 v4, 4, v1")
    k("s_lshl_b32 s50, s56, 13")
    k("s_lshl_b32 s51, s57, 12")
    k("s_add_u32 s50, s50, s51")
    k("s_lshl_b32 s52, s48, 1")
    k("s_add_u32 s52, s52, s56")
    k("s_mul_i32 s52, s52, %d" % (NKS * 1024))
    k("s_add_u32 s52, s52, s51")
    k("s_add_u32 s52, s52, 0x%x" % WS_ACT)
    k("s_lshl_b32 s53, s3, 12")
    k("s_mul_i32 s55, s49, %d" % (NKS * 2048))
    k("s_add_u32 s55, s55, s53")
    k("s_add_u32 s55, s55, 0x%x" % WS_WD)
    k("s_add_u32 s53, s53, 16384")
    k("s_lshl_b32 s58, s48, 6")
    k("s_lshl_b32 s59, s56, 5")
    k("s_add_u32 s58, s58, s59")
    k("v_and_b32 v13, 31, v1")
    k("v_add_u32 v13, s58, v13")
    k("v_lshrrev_b32 v8, 5, v1")
    k("v_lshlrev_b32 v12, 3, v8")
    k("v_lshl_add_u32 v12, v13, 10, v12")
    k("s_lshl_b32 s59, s49, 7")
    k("s_lshl_b32 s60, s57, 6")
    k("s_add_u32 s59, s59, s60")
    k("v_and_b32 v14, 31, v1")
    k("v_lshlrev_b32 v14, 4, v14")
    k("v_lshl_add_u32 v14, v8, 3, v14")
    k("s_lshl_b32 s60, s48, 1")
    k("s_add_u32 s60, s60, s56")
    k("s_lshl_b32 s60, s60, 5")
    k("s_lshl_b32 s61, s49, 2")
    k("s_add_u32 s60, s60, s61")
    k("s_lshl_b32 s61, s57, 1")
    k("s_add_u32 s60, s60, s61")
    k("s_lshl_b32 s60, s60, 10")
    k("s_add_u32 s60, s60, 0x%x" % WS_HP)
    k("s_waitcnt lgkmcnt(0)")
    k.srd(20, 32, WS_SIZE)
    k.srd(16, 28, 2048 * 1024)
    ACC, RES, FR = 32, 48, 64
    for q in range(4):
        k("buffer_load_dwordx2 %s, v14, s[20:23], s60 offen offset:%d" % (vr(RES + 2 * q, 2), (q >> 1) * 1024 + (q & 1) * 512))

    def issue(c):
        st = (c % S) * 32768
        for j in range(4):
            k("s_add_u32 m0, s50, %d" % (st + j * 1024))
            k("s_add_u32 s54, s52, %d" % (c * 8192 + j * 1024))
            k("buffer_load_dwordx4 v4, s[20:23], s54 offen lds")
        for j in range(4):
            k("s_add_u32 m0, s53, %d" % (st + j * 1024))
            k("s_add_u32 s54, s55, %d" % (c * 16384 + j * 1024))
            k("buffer_load_dwordx4 v4, s[20:23], s54 offen lds")
    for c in range(S - 1):
        issue(c)
    k("s_lshl_b32 s61, s56, 13")
    k("s_lshl_b32 s62, s57, 10")
    k("s_add_u32 s62, s62, 16384")
    for i in range(3):
        k("v_add_u32 v%d, s61, v4" % (16 + i))
        k("v_add_u32 v%d, s62, v4" % (20 + i))
        k("s_add_u32 s61, s61, 65536")
        k("s_add_u32 s62, s62, 65536")

    def rd(g):
        c, ks = g // 8, g % 8
        st = (c % S) * 32768
        ob, oa = st + ks * 1024, st + ks * 2048
        k("ds_read_b128 %s, v%d offset:%d" % (vr(FR + 8 * (g % 4), 4), 20 + st // 65536, oa % 65536))
        k("ds_read_b128 %s, v%d offset:%d" % (vr(FR + 8 * (g % 4) + 4, 4), 16 + st // 65536, ob % 65536))
    for c in range(NC):
        n = min(8, NKS - 8 * c)
        later = 8 * (min(c + S - 1, NC) - (c + 1))
        k("s_waitcnt vmcnt(%d)" % later)
        k("s_barrier")
        if c < 11: k.ts(1 + c)
        for ks in range(3):
            rd(8 * c + ks)
        if c + S - 1 < NC:
            issue(c + S - 1)
        for ks in range(n):
            g = 8 * c + ks
            k("s_waitcnt lgkmcnt(%d)" % (2 * min(2, n - 1 - ks)))
            k("v_mfma_f32_32x32x16_bf16 %s, %s, %s, %s" % (vr(ACC, 16), vr(FR + 8 * (g % 4), 4), vr(FR + 8 * (g % 4) + 4, 4), "0" if g == 0 else vr(ACC, 16)))
            if ks + 3 < n:
                rd(g + 3)
    k.ts(12)
    k("s_nop 15")
    BF = FR
    for q in range(4):
        for d in range(2):
            r = RES + 2 * q + d
            k("v_lshlrev_b32 v%d, 16, v%d" % (BF + 32, r))
            k("v_and_b32 v%d, 0xffff0000, v%d" % (BF + 33, r))
            k("v_add_f32 v%d, v%d, v%d" % (ACC + 4 * q + 2 * d, ACC + 4 * q + 2 * d, BF + 32))
            k("v_add_f32 v%d, v%d, v%d" % (ACC + 4 * q + 2 * d + 1, ACC + 4 * q + 2 * d + 1, BF + 33))
    for r in range(8):
        k("v_cvt_pk_bf16_f32 v%d, v%d, v%d" % (RES + r, ACC + 2 * r, ACC + 2 * r + 1))
    for q in range(4):
        k("buffer_store_dwordx2 %s, v12, s[16:19], s59 offen offset:%d" % (vr(RES + 2 * q, 2), 16 * q))
    k.ts(13)
    k.ts_flush(14)
    k.lab(end)
    return k


class VM:
    def __init__(s, k):
        s.k = k
        s.n = 0
    def issue(s):
        s.n += 1
        return s.n
    def wait(s, tok):
        if os.environ.get("EXP", "") == "nomem":
            return
        s.k("s_waitcnt vmcnt(%d)" % min(63, s.n - tok))


def gen_D():
    S = 10
    CH = 16384
    NCH = 12
    k = Kern("ffn1_kernel", 288, 256, 256, S * CH, accum=256)
    vm = VM(k)
    end = k.newlab("end")
    k("s_cmp_ge_u32 s2, 256")
    k("s_cbranch_scc1 %s" % end)
    k.ts(0)
    k("s_load_dwordx2 s[32:33], s[0:1], 88")
    k("v_and_b32 v1, 63, v0")
    k("v_lshrrev_b32 v2, 6, v0")
    k("s_nop 1")
    k("v_readfirstlane_b32 s3, v2")
    k("s_bfe_u32 s48, s2, 0x20001")
    k("s_lshl_b32 s48, s48, 2")
    k("s_bfe_u32 s49, s2, 0x20003")
    k("s_add_u32 s48, s48, s49")
    k("s_and_b32 s49, s2, 1")
    k("s_lshl_b32 s49, s49, 3")
    k("s_lshr_b32 s50, s2, 5")
    k("s_add_u32 s49, s49, s50")
    k("s_cmp_ge_u32 s49, 15")
    k("s_cbranch_scc1 %s" % end)
    k("v_and_b32 v2, 31, v1")
    k("v_lshrrev_b32 v3, 5, v1")
    k("s_lshl_b32 s50, s3, 5")
    k("s_lshl_b32 s51, s48, 7")
    k("s_add_u32 s50, s50, s51")
    k("v_add_u32 v2, s50, v2")
    k("s_lshl_b32 s57, s50, 10")
    k("v_lshlrev_b32 v6, 7, v2")
    k("v_lshl_add_u32 v6, v3, 6, v6")
    k("v_lshlrev_b32 v7, 4, v1")
    k("v_add_u32 v8, 0x10000, v7")
    k("v_add_u32 v9, 0x20000, v7")
    k("s_lshl_b32 s52, s3, 10")
    k("v_add_u32 v4, s52, v7")
    k("s_mul_i32 s53, s49, 196608")
    k("s_add_u32 s53, s53, 0x%x" % WS_WG)
    k("s_mov_b32 s55, 0x%x" % WS_ST)
    k("s_add_u32 s57, s57, 0x%x" % WS_HP)
    k("s_waitcnt lgkmcnt(0)")
    k.srd(20, 32, WS_SIZE)
    ACC, B, T = 16, 112, 240
    order = []
    for ks in range(KS1):
        for t in range(6):
            order.append((t, ks))
    for p in range(3):
        for ks in range(KS1, 32):
            order.append((p, ks))
            order.append((p + 3, ks))
    assert len(order) == 192
    tokA, tokB = {}, {}

    NOMEM = os.environ.get("EXP", "") == "nomem"
    vq = []

    def opA(c, j):
        def f():
            if NOMEM:
                tokA[c] = 0
                return
            k("s_add_u32 m0, s52, %d" % ((c % S) * CH + j * 4096))
            k("s_add_u32 s54, s53, %d" % (c * CH + j * 4096))
            k("buffer_load_dwordx4 v4, s[20:23], s54 offen lds")
            tokA[c] = vm.issue()
        return f

    def opB(g):
        def f():
            if NOMEM:
                tokB[g] = 0
                return
            k("s_add_u32 s56, s57, %d" % (g * 1024))
            k("buffer_load_dwordx4 %s, v7, s[20:23], s56 offen" % vr(B + 4 * g, 4))
            tokB[g] = vm.issue()
        return f
    nb = 0
    for c in range(NCH):
        need = max(ks for (t, ks) in order[:min(192, (c + 1) * 16 + 8)]) + 1
        while nb < need:
            vq.append((c, opB(nb))); nb += 1
        for j in range(4):
            vq.append((c, opA(c, j)))
    W = int(os.environ.get("W", "3"))

    def vflush(c):
        while vq and vq[0][0] <= c:
            vq.pop(0)[1]()

    def vstep(cur_chunk_x16):
        if vq and vq[0][0] * 16 <= cur_chunk_x16 + W * 16:
            vq.pop(0)[1]()
    for q in range(4):
        k("buffer_load_dwordx4 %s, v6, s[20:23], s55 offen offset:%d" % (vr(ACC + 4 * q, 4), 16 * q))
        tokS = vm.issue()
    vflush(W - 1)
    k.ts(1)
    vm.wait(tokS)
    for i in range(2, 8):
        k("v_add_f32 v%d, v%d, v%d" % (ACC + (i & 1), ACC + (i & 1), ACC + 2 * (i // 2) * 1 + (i & 1)) if False else "")
    for st in (8, 4, 2):
        for i in range(st):
            k("v_add_f32 v%d, v%d, v%d" % (ACC + i, ACC + i, ACC + i + st))
    k("v_mov_b32 v%d, v%d" % (ACC + 2, ACC))
    k("v_mov_b32 v%d, v%d" % (ACC + 3, ACC + 1))
    k("s_nop 1")
    k("v_permlane32_swap_b32 v%d, v%d" % (ACC, ACC + 2))
    k("v_permlane32_swap_b32 v%d, v%d" % (ACC + 1, ACC + 3))
    k("s_nop 1")
    k("v_add_f32 v%d, v%d, v%d" % (ACC, ACC, ACC + 2))
    k("v_add_f32 v%d, v%d, v%d" % (ACC + 1, ACC + 1, ACC + 3))
    k("v_mul_f32 v%d, %s, v%d" % (ACC, f32hex(1.0 / 512), ACC))
    k("v_mul_f32 v%d, %s, v%d" % (ACC + 1, f32hex(1.0 / 512), ACC + 1))
    k("v_fma_f32 v%d, -v%d, v%d, v%d" % (ACC + 1, ACC, ACC, ACC + 1))
    k("v_add_f32 v%d, %s, v%d" % (ACC + 1, f32hex(1e-5), ACC + 1))
    k("v_rsq_f32 v12, v%d" % (ACC + 1))
    k("s_nop 1")
    k("v_mov_b32 v13, v12")
    k("v_mul_f32 v14, v%d, v12" % ACC)
    k("v_xor_b32 v14, 0x80000000, v14")
    k("v_mov_b32 v15, v14")
    k("v_and_b32 v10, 31, v1")
    k("v_lshlrev_b32 v10, 4, v10")
    k("v_lshl_add_u32 v10, v3, 3, v10")
    k("s_lshr_b32 s59, s50, 5")
    k("s_mul_i32 s59, s59, 86")
    k("s_mul_i32 s58, s49, 6")
    k("s_add_u32 s59, s59, s58")
    k("s_lshl_b32 s59, s59, 10")
    k("s_add_u32 s59, s59, 0x%x" % WS_ACT)

    from collections import deque
    fq = deque()
    normed = set()

    def q_norm(g):
        def w():
            vm.wait(tokB[g])
        fq.append(("n", g, w))
        for r in range(4):
            t0 = T + 2 * (r & 3)
            b = B + 4 * g + r
            fq.append(("n", g, "v_lshlrev_b32 v%d, 16, v%d" % (t0, b)))
            fq.append(("n", g, "v_and_b32 v%d, 0xffff0000, v%d" % (t0 + 1, b)))
            fq.append(("n", g, "v_fma_f32 v%d, v%d, v12, v14" % (t0, t0)))
            fq.append(("n", g, "v_fma_f32 v%d, v%d, v12, v14" % (t0 + 1, t0 + 1)))
            fq.append(("n", g, "v_cvt_pk_bf16_f32 v%d, v%d, v%d" % (b, t0, t0 + 1)))

    def q_epi(p):
        G, U = ACC + 16 * p, ACC + 16 * (3 + p)
        E = T + 8 if False else T
        fq.append(("e", p, "s_nop 15"))
        for r in range(0, 16, 2):
            fq.append(("e", p, "v_pk_mul_f32 v[%d:%d], v[%d:%d], v[10+X:11+X]" % (E + r, E + r + 1, G + r, G + r + 1)))
    k("s_mov_b32 s60, %s" % f32hex(-LOG2E))
    k("s_mov_b32 s61, %s" % f32hex(-LOG2E))
    k("s_mov_b32 s62, 1.0")
    k("s_mov_b32 s63, 1.0")

    def q_epi(p):
        G, U = ACC + 16 * p, ACC + 16 * (3 + p)
        E = T
        L = []
        L.append("s_nop 15")
        for r in range(16):
            L.append("v_mul_f32 v%d, s60, v%d" % (E + r, G + r))
        for r in range(16):
            L.append("v_exp_f32 v%d, v%d" % (E + r, E + r))
        for r in range(16):
            L.append("v_mul_f32 v%d, v%d, v%d" % (G + r, G + r, U + r))
        for r in range(16):
            L.append("v_add_f32 v%d, 1.0, v%d" % (E + r, E + r))
        for r in range(16):
            L.append("v_rcp_f32 v%d, v%d" % (E + r, E + r))
        for r in range(16):
            L.append("v_mul_f32 v%d, v%d, v%d" % (G + r, G + r, E + r))
        for r in range(8):
            L.append("v_cvt_pk_bf16_f32 v%d, v%d, v%d" % (G + r, G + 2 * r, G + 2 * r + 1))
        for q in range(4):
            L.append("buffer_store_dwordx2 %s, v10, s[20:23], s%d offen offset:%d" % (vr(G + 2 * q, 2), (59, 58, 64)[p], (q >> 1) * 1024 + (q & 1) * 512))
        if os.environ.get("WBD", "1") == "1" and p < 2:
            L.append(("wb", p))
        for x in L:
            fq.append(("e", p, x))

    def emit_filler():
        kind, g, x = fq.popleft()
        if callable(x):
            x()
        elif isinstance(x, tuple):
            nwb = k.newlab("nwb")
            k("s_cmp_eq_u32 s65, 0")
            k("s_cbranch_scc1 %s" % nwb)
            k("buffer_wbl2 sc1")
            k.lab(nwb)
        else:
            if x.startswith("buffer_store") or x.startswith("buffer_wbl2"):
                vm.issue()
            EXP = os.environ.get("EXP", "")
            if EXP in ("nofill", "memonly") and x.startswith("v_"):
                return
            if EXP == "addfill" and x.startswith("v_"):
                x = "v_add_f32 v%d, 1.0, v%d" % (T + (len(k.L) % 8), T + (len(k.L) % 8))
            if EXP == "e32" and x.startswith("v_"):
                x = "v_lshlrev_b32 v%d, 16, v%d" % (T + (len(k.L) % 8), T + 8 + (len(k.L) % 8))
            k(x)

    def flush_norm(g):
        last = -1
        for i, (kind, gg, x) in enumerate(fq):
            if kind == "n" and gg <= g:
                last = i
        n = last + 1
        for _ in range(n):
            emit_filler()
        if n:
            k("s_nop 1")
    k("s_lshl_b32 s65, s3, 8")
    k("s_add_u32 s65, s65, s2")
    k("s_cmp_lt_u32 s65, 8")
    k("s_cselect_b32 s65, 1, 0")
    k("s_add_u32 s58, s59, 2048")
    k("s_add_u32 s64, s59, 4096")
    k("s_cmp_eq_u32 s49, 14")
    k("s_cselect_b32 s58, 0x%x, s58" % WS_DUMMY)
    k("s_cselect_b32 s64, 0x%x, s64" % WS_DUMMY)
    for g in range(32):
        q_norm(g)

    def read1(gi, j):
        c = gi // 4
        fi = gi * 4 + j
        lds = (c % S) * CH + (fi % 16) * 1024
        k("ds_read_b128 a[%d:%d], v%d offset:%d" % (16 * (gi % 2) + 4 * j, 16 * (gi % 2) + 4 * j + 3, 7 + lds // 65536, lds % 65536))

    def boundary(c):
        if TSMODE == 1 and c >= 1: k.ts(1 + c)
        vflush(c + 1)
        vm.wait(tokA[c + 1])
        if not os.environ.get("NOBAR"):
            k("s_barrier")
        if TSMODE == 2 and c >= 1: k.ts(1 + c)
    boundary(0)
    for j in range(4):
        read1(0, j)
    seen = set()
    NPER = int(os.environ.get("NPER", "4"))
    for gi in range(48):
        if gi + 1 < 48 and (gi + 1) % 8 == 0:
            boundary((gi + 1) // 4)
        for j in range(4):
            t, ks = order[gi * 4 + j]
            flush_norm(ks + 1)
            k("s_waitcnt lgkmcnt(%d)" % (3 if gi + 1 < 48 else 3 - j))
            first = t not in seen
            seen.add(t)
            if os.environ.get("EXP", "") != "memonly":
                k("v_mfma_f32_32x32x16_bf16 %s, a[%d:%d], %s, %s" % (vr(ACC + 16 * t, 16), 16 * (gi % 2) + 4 * j, 16 * (gi % 2) + 4 * j + 3, vr(B + 4 * ks, 4), "0" if first else vr(ACC + 16 * t, 16)))
            if gi + 1 < 48 and os.environ.get("EXP", "") != "memonly":
                read1(gi + 1, j)
            vstep(gi * 4 + j)
            if ks == 31 and t >= 3:
                q_epi(t - 3)
            for _ in range(NPER):
                if fq:
                    emit_filler()
    k.ts(13)
    while fq:
        emit_filler()
    k.ts_flush(14)
    k.lab(end)
    return k


WS_FL = 0x280000
SPIN = 0x8000


def gen_F():
    S = 10
    CH = 16384
    NCH = 12
    ROT = 8
    k = Kern("ffn_kernel", 288, 256, 256, S * CH, accum=256)
    k.kidx = 2
    vm = VM(k)
    FTS = os.environ.get("FTS", "")
    ts0 = k.ts
    def ts_main(i):
        if FTS == "" or i == 0:
            ts0(i)
        elif FTS == "E" and i == 9:
            ts0(1)
        elif FTS == "E2" and i in (7, 8, 9):
            ts0(i - 6)
        elif FTS == "D" and i == 7:
            ts0(12)
    k.ts = ts_main
    end = k.newlab("end")
    FORCE_SLOW = os.environ.get("FSLOW") == "1"
    PF = [int(x) for x in os.environ.get("PF", "0,0,0,0").split(",")]
    PA = int(os.environ.get("PA", "4"))
    PB = int(os.environ.get("PB", "4"))
    NB0 = int(os.environ.get("NB0", "6"))
    BPER = int(os.environ.get("BPER", "3"))
    FST = os.environ.get("FST", " sc1")
    FSTO = os.environ.get("FSTO", "")
    FSTC = os.environ.get("FSTC", FST)
    STG = int(os.environ.get("STG", "1"))
    PFL = int(os.environ.get("PFL", "0"))
    PC = int(os.environ.get("PC", "0"))
    PFLC = int(os.environ.get("PFLC", "0"))
    FLG = int(os.environ.get("FLG", "1"))
    PDLY = int(os.environ.get("PDLY", "11"))
    AKS = 96 if STG else 86

    def wofs(c):
        return ((24 * (c & 3) + 2 * (c >> 2)) * 2048) if STG else c * 16384
    k("s_cmp_ge_u32 s2, 256")
    k("s_cbranch_scc1 %s" % end)
    k.ts(0)
    k("s_load_dwordx2 s[24:25], s[0:1], 32")
    k("s_load_dwordx2 s[26:27], s[0:1], 0")
    k("s_load_dwordx2 s[28:29], s[0:1], 72")
    k("s_load_dwordx2 s[32:33], s[0:1], 88")
    k("s_getreg_b32 s40, hwreg(HW_REG_XCC_ID)")
    k("v_and_b32 v1, 63, v0")
    k("v_lshrrev_b32 v2, 6, v0")
    k("s_nop 1")
    k("v_readfirstlane_b32 s3, v2")
    k("s_and_b32 s48, s2, 7")
    k("s_lshl_b32 s48, s48, 2")
    k("s_bfe_u32 s49, s2, 0x20003")
    k("s_add_u32 s48, s48, s49")
    k("s_lshr_b32 s49, s2, 5")
    k("s_lshr_b32 s38, s48, 1")
    k("s_and_b32 s39, s48, 1")
    k("s_lshl_b32 s37, s49, 1")
    k("s_add_u32 s39, s39, s37")
    k("s_lshl_b32 s42, s38, 13")
    k("s_add_u32 s42, s42, 0x%x" % WS_FL)
    k("s_and_b32 s40, s40, 15")
    k("s_or_b32 s40, s40, 0x80")
    k("s_mul_i32 s43, s40, 0x01010101")
    k("s_mul_i32 s34, s39, 196608")
    k("s_add_u32 s34, s34, 0x%x" % WS_WG)
    k("s_lshl_b32 s52, s3, 10")
    k("v_lshlrev_b32 v60, 4, v1")
    k("v_add_u32 v60, s52, v60")
    k("s_lshl_b32 s36, s3, 12")
    k("s_mul_i32 s35, s49, %d" % (86 * 2048))
    if STG:
        k("s_mul_i32 s54, s3, %d" % (6 * 2048))
        k("s_add_u32 s35, s35, s54")
    else:
        k("s_add_u32 s35, s35, s36")
    k("s_add_u32 s35, s35, 0x%x" % WS_WD)
    k("s_waitcnt lgkmcnt(0)")
    k.srd(8, 24, 512 * 1024)
    k.srd(20, 32, WS_SIZE)
    k.srd(12, 26, 2048 * 1024)
    k.srd(16, 28, 2048 * 1024)
    if FTS == "L":
        k("s_lshl_b32 s69, s2, 13")
        k("s_lshl_b32 s68, s3, 11")
        k("s_add_u32 s69, s69, s68")
        k("s_add_u32 s69, s69, 0x%x" % (WS_DUMMY + 0x100000))
        for i in range(1, 6):
            k("s_add_u32 s68, s69, %d" % (128 * i))
            k("s_load_dword s67, s[32:33], s68")
        k("s_waitcnt lgkmcnt(0)")
    ldx = 1024
    k("v_lshrrev_b32 v3, 4, v1")
    k("s_lshl_b32 s50, s3, 2")
    k("v_add_u32 v3, s50, v3")
    k("v_and_b32 v4, 15, v1")
    k("v_xor_b32 v4, v4, v3")
    k("v_lshlrev_b32 v4, 4, v4")
    k("s_lshl_b32 s51, s48, 6")
    k("v_add_u32 v3, s51, v3")
    k("v_mul_u32_u24 v3, %d, v3" % ldx)
    k("v_add_u32 v4, v3, v4")
    k("v_lshrrev_b32 v3, 3, v1")
    k("s_lshl_b32 s50, s3, 3")
    k("v_add_u32 v3, s50, v3")
    k("v_and_b32 v5, 7, v1")
    k("v_bfe_u32 v6, v1, 4, 1")
    k("v_lshlrev_b32 v6, 2, v6")
    k("v_xor_b32 v5, v5, v6")
    k("v_lshlrev_b32 v5, 4, v5")
    k("v_lshl_add_u32 v5, v3, 10, v5")
    k("s_lshl_b32 s50, s49, 7")
    k("v_add_u32 v5, s50, v5")
    tokC = {}

    def issueC(c):
        st = c * 32768
        for j in range(4):
            k("s_add_u32 m0, s52, %d" % (st + j * 4096))
            k("s_mov_b32 s54, %d" % (WS_O + j * 16 * ldx + c * 256))
            k("buffer_load_dwordx4 v4, s[20:23], s54 offen lds")
            vm.issue()
        for j in range(4):
            k("s_add_u32 m0, s52, %d" % (st + 16384 + j * 4096))
            k("s_mov_b32 s54, %d" % ((c * 128 + 32 * j) * 1024))
            k("buffer_load_dwordx4 v5, s[8:11], s54 offen lds")
            tokC[c] = vm.issue()
    tokA, tokB = {}, {}

    def issueD(c, vreg):
        for j in range(4):
            k("s_add_u32 m0, s52, %d" % (((c + ROT) % S) * CH + j * 4096))
            k("s_add_u32 s54, s34, %d" % (c * CH + j * 4096))
            k("buffer_load_dwordx4 v%d, s[20:23], s54 offen lds" % vreg)
            tokA[c] = vm.issue()

    def issueEW(c, vreg):
        for j in range(4):
            k("s_add_u32 m0, s36, %d" % ((c % 6) * 16384 + j * 1024))
            k("s_add_u32 s54, s35, %d" % (wofs(c) + j * 1024))
            k("buffer_load_dwordx4 v%d, s[20:23], s54 offen lds" % vreg)
            vm.issue()
    for c in range(3):
        issueC(c)
    k("v_mov_b32 v56, s40")
    k("s_cmp_eq_u32 s3, 0")
    k("s_cselect_b64 exec, 1, 0")
    k("s_add_u32 s44, s42, s39")
    k("buffer_store_byte v56, off, s[20:23], s44 sc1")
    vm.issue()
    k("s_mov_b64 exec, -1")
    k("s_and_b32 s56, s3, 1")
    k("s_lshr_b32 s57, s3, 1")
    k("s_lshl_b32 s58, s56, 5")
    k("s_add_u32 s58, s58, s51")
    k("v_and_b32 v13, 31, v1")
    k("v_add_u32 v13, s58, v13")
    k("v_lshrrev_b32 v8, 5, v1")
    k("v_lshlrev_b32 v12, 3, v8")
    k("v_lshl_add_u32 v12, v13, 10, v12")
    k("s_lshl_b32 s59, s49, 7")
    k("s_lshl_b32 s60, s57, 6")
    k("s_add_u32 s59, s59, s60")
    ACC, RES, XC, WC = 32, 48, 24, 14
    BF, AF = 64, 96
    for q in range(4):
        k("buffer_load_dwordx2 %s, v12, s[12:15], s59 offen offset:%d" % (vr(RES + 2 * q, 2), 16 * q))
        tokR = vm.issue()
    k("v_and_b32 v7, 31, v1")
    k("s_lshl_b32 s58, s56, 5")
    k("v_add_u32 v7, s58, v7")
    k("v_and_b32 v9, 15, v7")
    k("v_xor_b32 v9, v9, v8")
    k("v_lshlrev_b32 v9, 4, v9")
    k("v_lshl_add_u32 v9, v7, 8, v9")
    XA = 16
    for ks in range(8):
        k("v_xor_b32 v%d, %d, v9" % (XA + ks, ks * 32))
    k("v_lshrrev_b32 v11, 5, v1")
    k("v_lshlrev_b32 v11, 3, v11")
    k("v_bfe_u32 v10, v1, 2, 2")
    k("v_add_u32 v11, v11, v10")
    k("v_bfe_u32 v10, v1, 4, 1")
    k("v_lshlrev_b32 v10, 5, v10")
    k("v_and_b32 v12, 3, v1")
    k("v_lshl_add_u32 v10, v12, 3, v10")
    k("s_lshl_b32 s58, s57, 6")
    k("v_add_u32 v10, s58, v10")
    k("v_bfe_u32 v12, v1, 3, 1")
    k("v_lshlrev_b32 v12, 6, v12")
    k("v_xor_b32 v10, v10, v12")
    k("v_lshl_add_u32 v10, v11, 7, v10")
    k("v_add_u32 v10, 0x4000, v10")
    nxtD = 0
    for c in range(4):
        st = c * 32768
        vm.wait(tokC[c])
        k("s_barrier")
        if c == 0:
            k.ts(1)
            issueC(3)
        if c == PFLC and PFL:
            k("v_lshlrev_b32 v252, 7, v1")
            k("s_and_b32 s44, s38, 1")
            k("s_lshl_b32 s44, s44, 14")
            k("s_lshr_b32 s45, s3, 1")
            k("s_lshl_b32 s45, s45, 15")
            k("s_add_u32 s44, s44, s45")
            k("s_and_b32 s45, s3, 1")
            k("s_lshl_b32 s45, s45, 13")
            k("s_add_u32 s44, s44, s45")
            k("s_add_u32 s44, s44, s34")
            for j in range(PFL):
                k("s_add_u32 s45, s44, %d" % (j * 65536))
                k("buffer_load_dword v253, v252, s[20:23], s45 offen")
                vm.issue()
        if c == 3:
            k("buffer_load_dwordx4 v[248:251], off, s[20:23], s42 sc1")
            vm.issue()
        for ks in range(8):
            k("v_add_u32 v%d, %d, v%d" % (XC + ks, st, XA + ks))
        k("v_add_u32 v%d, %d, v10" % (WC, st))
        for ks in range(8):
            k("ds_read_b128 %s, v%d" % (vr(BF + 4 * ks, 4), XC + ks))
            k("ds_read_b64_tr_b16 %s, v%d offset:%d" % (vr(AF + 4 * ks, 2), WC, ks * 2048))
            k("ds_read_b64_tr_b16 %s, v%d offset:%d" % (vr(AF + 4 * ks + 2, 2), WC, ks * 2048 + 512))
        for ks in range(8):
            k("s_waitcnt lgkmcnt(%d)" % min(15, 3 * (7 - ks)))
            first = (c == 0 and ks == 0)
            k("v_mfma_f32_32x32x16_bf16 %s, %s, %s, %s" % (vr(ACC, 16), vr(AF + 4 * ks, 4), vr(BF + 4 * ks, 4), "0" if first else vr(ACC, 16)))
        lim = 2 + 2 * c
        for _ in range(PF[c]):
            if nxtD < lim:
                issueD(nxtD, 60)
                nxtD += 1
    k.ts(2)
    k("s_nop 15")
    for q in range(4):
        for d in range(2):
            r = RES + 2 * q + d
            k("v_lshlrev_b32 v%d, 16, v%d" % (BF, r))
            k("v_and_b32 v%d, 0xffff0000, v%d" % (BF + 1, r))
            k("v_add_f32 v%d, v%d, v%d" % (ACC + 4 * q + 2 * d, ACC + 4 * q + 2 * d, BF))
            k("v_add_f32 v%d, v%d, v%d" % (ACC + 4 * q + 2 * d + 1, ACC + 4 * q + 2 * d + 1, BF + 1))
    for r in range(8):
        k("v_cvt_pk_bf16_f32 v%d, v%d, v%d" % (RES + r, ACC + 2 * r, ACC + 2 * r + 1))
    T = AF
    X4 = os.environ.get("X4", "1") == "1"
    if X4:
        k("v_lshlrev_b32 v%d, 4, v1" % (T + 7))
    else:
        k("v_and_b32 v%d, 31, v1" % (T + 7))
        k("v_lshlrev_b32 v%d, 4, v%d" % (T + 7, T + 7))
        k("v_lshl_add_u32 v%d, v8, 3, v%d" % (T + 7, T + 7))
    k("s_lshl_b32 s60, s48, 1")
    k("s_add_u32 s60, s60, s56")
    k("s_lshl_b32 s60, s60, 5")
    k("s_lshl_b32 s61, s49, 2")
    k("s_add_u32 s60, s60, s61")
    k("s_lshl_b32 s61, s57, 1")
    k("s_add_u32 s60, s60, s61")
    k("s_lshl_b32 s60, s60, 10")
    k("s_add_u32 s60, s60, 0x%x" % WS_HP)
    if not X4:
        for q in range(4):
            k("buffer_store_dwordx2 %s, v%d, s[20:23], s60 offen offset:%d%s" % (vr(RES + 2 * q, 2), T + 7, (q >> 1) * 1024 + (q & 1) * 512, FSTC))
            vm.issue()
    k("v_mov_b32 v%d, 0x3f803f80" % T)
    for i in range(4):
        k("v_mov_b32 v%d, 0" % (T + 2 + i))
    for r in range(8):
        k("v_dot2c_f32_bf16 v%d, v%d, v%d" % (T + 2 + (r & 1), RES + r, T))
        k("v_dot2c_f32_bf16 v%d, v%d, v%d" % (T + 4 + (r & 1), RES + r, RES + r))
    if X4:
        k("s_nop 1")
        for h2 in range(2):
            k("v_permlane32_swap_b32 v%d, v%d" % (RES + 4 * h2, RES + 4 * h2 + 2))
            k("v_permlane32_swap_b32 v%d, v%d" % (RES + 4 * h2 + 1, RES + 4 * h2 + 3))
        k("s_nop 1")
        for h2 in range(2):
            k("buffer_store_dwordx4 %s, v%d, s[20:23], s60 offen offset:%d%s" % (vr(RES + 4 * h2, 4), T + 7, h2 * 1024, FSTC))
            vm.issue()
    k("s_nop 4")
    k("v_add_f32 v%d, v%d, v%d" % (T + 2, T + 2, T + 3))
    k("v_add_f32 v%d, v%d, v%d" % (T + 3, T + 4, T + 5))
    k("v_mov_b32 v%d, v%d" % (T + 4, T + 2))
    k("v_mov_b32 v%d, v%d" % (T + 5, T + 3))
    k("s_nop 1")
    k("v_permlane32_swap_b32 v%d, v%d" % (T + 2, T + 4))
    k("v_permlane32_swap_b32 v%d, v%d" % (T + 3, T + 5))
    k("s_nop 1")
    k("v_add_f32 v%d, v%d, v%d" % (T + 2, T + 2, T + 4))
    k("v_add_f32 v%d, v%d, v%d" % (T + 3, T + 3, T + 5))
    k("v_lshlrev_b32 v%d, 7, v13" % (T + 6))
    k("s_lshl_b32 s60, s49, 1")
    k("s_add_u32 s60, s60, s57")
    k("s_lshl_b32 s60, s60, 3")
    k("s_add_u32 s60, s60, 0x%x" % WS_ST)
    k("v_cmp_gt_u32 vcc, 32, v1")
    k("s_and_saveexec_b64 s[62:63], vcc")
    k("buffer_store_dwordx2 %s, v%d, s[20:23], s60 offen%s" % (vr(T + 2, 2), T + 6, FSTC))
    vm.issue()
    tokSt = vm.issue() - 1
    vm.n -= 1
    k("s_mov_b64 exec, s[62:63]")
    for _ in range(PA):
        if nxtD < 8:
            issueD(nxtD, 60)
            nxtD += 1
    k("s_mov_b32 s30, s48")
    k("s_mov_b32 s31, s49")
    k("s_mov_b32 s48, s38")
    k("s_mov_b32 s49, s39")
    k("v_and_b32 v2, 31, v1")
    k("v_lshrrev_b32 v3, 5, v1")
    k("s_lshl_b32 s50, s3, 5")
    k("s_lshl_b32 s51, s48, 7")
    k("s_add_u32 s50, s50, s51")
    k("v_add_u32 v2, s50, v2")
    k("s_lshl_b32 s57, s50, 10")
    k("v_lshlrev_b32 v6, 7, v2")
    k("v_lshl_add_u32 v6, v3, 6, v6")
    k("v_lshlrev_b32 v7, 4, v1")
    k("v_add_u32 v8, 0x10000, v7")
    k("v_add_u32 v9, 0x20000, v7")
    k("v_add_u32 v4, s52, v7")
    k("s_mov_b32 s55, 0x%x" % WS_ST)
    k("s_add_u32 s57, s57, 0x%x" % WS_HP)
    k("v_and_b32 v10, 31, v1")
    k("v_lshlrev_b32 v10, 4, v10")
    k("v_lshl_add_u32 v10, v3, 3, v10")
    k("s_lshr_b32 s59, s50, 5")
    k("s_mul_i32 s59, s59, %d" % AKS)
    k("s_mul_i32 s58, s49, %d" % (2 if STG else 6))
    k("s_add_u32 s59, s59, s58")
    k("s_lshl_b32 s59, s59, 10")
    k("s_add_u32 s59, s59, 0x%x" % WS_ACT)
    k("s_mov_b32 s60, %s" % f32hex(-LOG2E))
    k("s_lshl_b32 s65, s3, 8")
    k("s_add_u32 s65, s65, s2")
    k("s_cmp_lt_u32 s65, 8")
    k("s_cselect_b32 s65, 1, 0")
    k("s_add_u32 s58, s59, %d" % (32768 if STG else 2048))
    k("s_add_u32 s64, s59, %d" % (65536 if STG else 4096))
    k("s_lshl_b32 s61, s50, 8")
    k("s_add_u32 s61, s61, 0x%x" % WS_DUMMY)
    k("s_add_u32 s62, s61, 2048")
    k("s_cmp_eq_u32 s49, 15")
    k("s_cselect_b32 s61, 4096, 0")
    k("s_add_u32 s62, s62, s61")
    k("s_lshl_b32 s61, s50, 8")
    k("s_add_u32 s61, s61, 0x%x" % WS_DUMMY)
    k("v_mov_b32 v15, 1")
    k("s_add_u32 s66, s42, 512")
    k("s_add_u32 s67, s42, 640")
    k("s_add_u32 s68, s42, 768")
    k("s_cmp_ge_u32 s49, 14")
    k("s_cselect_b32 s58, s61, s58")
    k("s_cselect_b32 s64, s62, s64")

    def resolve():
        lr, ld = k.newlab("rs"), k.newlab("rd")
        k("s_mov_b32 s44, 0x%x" % SPIN)
        k.lab(lr)
        for i in range(4):
            k("v_readfirstlane_b32 s%d, v%d" % (4 + i, 248 + i))
        k("s_nop 3")
        k("s_and_b32 s46, s4, s5")
        k("s_and_b32 s47, s6, s7")
        k("s_and_b32 s46, s46, s47")
        k("s_and_b32 s47, s46, 0x80808080")
        k("s_cmp_eq_u32 s47, 0x80808080")
        k("s_cbranch_scc1 %s" % ld)
        k("s_sub_u32 s44, s44, 1")
        k("s_cmp_eq_u32 s44, 0")
        k("s_cbranch_scc1 %s" % ld)
        k("buffer_load_dwordx4 v[248:251], off, s[20:23], s42 sc1")
        k("s_waitcnt vmcnt(0)")
        k("s_branch %s" % lr)
        k.lab(ld)
        k("s_or_b32 s47, s4, s5")
        k("s_or_b32 s47, s47, s6")
        k("s_or_b32 s47, s47, s7")
        k("s_xor_b32 s47, s47, s43")
        k("s_xor_b32 s46, s46, s43")
        k("s_or_b32 s46, s46, s47")
        k("s_cmp_eq_u32 s46, 0")
        k("s_cselect_b32 s41, %d, 0" % (0 if FORCE_SLOW else 1))

    def publish(offL, offG, addreg=None):
        skip, slow, done = k.newlab("sk"), k.newlab("sl"), k.newlab("dn")
        k("s_cmp_lg_u32 s3, 0")
        k("s_cbranch_scc1 %s" % skip)
        k("s_mov_b64 exec, 1")
        k("v_mov_b32 v56, %s" % ("1" if addreg is None else addreg))
        k("s_cmp_eq_u32 s41, 0")
        k("s_cbranch_scc1 %s" % slow)
        k("s_add_u32 s45, s42, %d" % offL)
        if FLG:
            k("s_add_u32 s47, s42, %d" % (2048 if offL == 384 else 4096))
            k("s_lshl_b32 s45, s39, 7")
            k("s_add_u32 s45, s45, s47")
            k("s_add_u32 s47, s47, s39")
            k("s_mov_b64 exec, 0xffff")
            k("v_mov_b32 v56, 1")
            k("v_lshlrev_b32 v57, 7, v1")
            k("buffer_store_byte v56, v57, s[20:23], s47 offen%s" % os.environ.get("FLS", ""))
        else:
            k("buffer_atomic_add v56, off, s[20:23], s45")
        k("s_branch %s" % done)
        k.lab(slow)
        k("s_add_u32 s45, s42, %d" % offG)
        k("buffer_wbl2 sc1")
        k("s_waitcnt vmcnt(0)")
        k("buffer_atomic_add v56, off, s[20:23], s45 sc1")
        k.lab(done)
        k("s_mov_b64 exec, -1")
        k.lab(skip)

    def poll(target):
        skip, slow, done = k.newlab("sk"), k.newlab("sl"), k.newlab("dn")
        pf, ps = k.newlab("pf"), k.newlab("ps")
        k("s_cmp_lg_u32 s3, 0")
        k("s_cbranch_scc1 %s" % skip)
        k("s_mov_b64 exec, 1")
        k("s_mov_b32 s44, 0x%x" % SPIN)
        k("s_cmp_eq_u32 s41, 0")
        k("s_cbranch_scc1 %s" % slow)
        k.lab(pf)
        if FLG:
            k("s_load_dwordx4 s[8:11], s[32:33], s45 glc")
            k("s_waitcnt lgkmcnt(0)")
            k("s_and_b32 s8, s8, s9")
            k("s_and_b32 s10, s10, s11")
            k("s_and_b32 s8, s8, s10")
            k("s_cmp_eq_u32 s8, 0x01010101")
            k("s_cselect_b32 s46, 64, 0")
        elif os.environ.get("SPOLL", "1") == "1":
            k("s_load_dword s46, s[32:33], s45 glc")
            k("s_waitcnt lgkmcnt(0)")
        else:
            k("v_mov_b32 v57, 0")
            k("buffer_atomic_add v57, off, s[20:23], s45 sc0")
            k("s_waitcnt vmcnt(0)")
            k("v_readfirstlane_b32 s46, v57")
        k("s_sub_u32 s44, s44, 1")
        k("s_cmp_eq_u32 s44, 0")
        k("s_cbranch_scc1 %s" % done)
        k("s_cmp_lt_u32 s46, %s" % target)
        k("s_cbranch_scc1 %s" % pf)
        k("s_branch %s" % done)
        k.lab(slow)
        k.lab(ps)
        k("buffer_load_dword v57, off, s[20:23], s45 sc1")
        k("s_waitcnt vmcnt(0)")
        k("v_readfirstlane_b32 s46, v57")
        k("s_sub_u32 s44, s44, 1")
        k("s_cmp_eq_u32 s44, 0")
        k("s_cbranch_scc1 %s" % done)
        k("s_cmp_lt_u32 s46, %s" % target)
        k("s_cbranch_scc1 %s" % ps)
        k.lab(done)
        k("s_mov_b64 exec, -1")
        k.lab(skip)

    def acquire():
        nf = k.newlab("nf")
        k("s_barrier")
        k("s_cmp_lg_u32 s41, 0")
        k("s_cbranch_scc1 %s" % nf)
        k("buffer_inv sc1")
        k("s_waitcnt vmcnt(0)")
        k.lab(nf)
    vm.wait(tokSt)
    k.ts(3)
    resolve()
    k("s_barrier")
    pre0 = nxtD
    publish(384, 128)
    idle = k.newlab("idle")
    dend = k.newlab("dend")
    k("s_cmp_eq_u32 s49, 15")
    k("s_cbranch_scc1 %s" % idle)
    for _ in range(PB):
        if nxtD < 10:
            issueD(nxtD, 60)
            nxtD += 1
    poll("16")
    pre = 0
    acquire()
    k.ts(4)
    ACC, B, T = 16, 112, 240
    order = []
    for ks in range(KS1):
        for t in range(6):
            order.append((t, ks))
    for p in range(3):
        for ks in range(KS1, 32):
            order.append((p, ks))
            order.append((p + 3, ks))
    assert len(order) == 192
    for q in range(4):
        k("buffer_load_dwordx4 %s, v6, s[20:23], s55 offen offset:%d" % (vr(ACC + 4 * q, 4), 16 * q))
        tokS = vm.issue()
    nbq = [0]

    def issueB():
        g = nbq[0]
        if g < 32:
            k("s_add_u32 s56, s57, %d" % (g * 1024))
            k("buffer_load_dwordx4 %s, v7, s[20:23], s56 offen" % vr(B + 4 * g, 4))
            tokB[g] = vm.issue()
            nbq[0] += 1
    for _ in range(NB0):
        issueB()
    for _ in range(PC):
        if nxtD < 10:
            issueD(nxtD, 4)
            nxtD += 1
    vm.wait(tokS)
    for st in (8, 4, 2):
        for i in range(st):
            k("v_add_f32 v%d, v%d, v%d" % (ACC + i, ACC + i, ACC + i + st))
    k("v_mov_b32 v%d, v%d" % (ACC + 2, ACC))
    k("v_mov_b32 v%d, v%d" % (ACC + 3, ACC + 1))
    k("s_nop 1")
    k("v_permlane32_swap_b32 v%d, v%d" % (ACC, ACC + 2))
    k("v_permlane32_swap_b32 v%d, v%d" % (ACC + 1, ACC + 3))
    k("s_nop 1")
    k("v_add_f32 v%d, v%d, v%d" % (ACC, ACC, ACC + 2))
    k("v_add_f32 v%d, v%d, v%d" % (ACC + 1, ACC + 1, ACC + 3))
    k("v_mul_f32 v%d, %s, v%d" % (ACC, f32hex(1.0 / 512), ACC))
    k("v_mul_f32 v%d, %s, v%d" % (ACC + 1, f32hex(1.0 / 512), ACC + 1))
    k("v_fma_f32 v%d, -v%d, v%d, v%d" % (ACC + 1, ACC, ACC, ACC + 1))
    k("v_add_f32 v%d, %s, v%d" % (ACC + 1, f32hex(1e-5), ACC + 1))
    k("v_rsq_f32 v12, v%d" % (ACC + 1))
    k("s_nop 1")
    k("v_mul_f32 v14, v%d, v12" % ACC)
    k("v_xor_b32 v14, 0x80000000, v14")
    from collections import deque
    fq = deque()

    def q_norm(g):
        def w():
            vm.wait(tokB[g])
        fq.append(("n", g, w))
        for r in range(4):
            t0 = T + 2 * (r & 3)
            b = B + 4 * g + r
            fq.append(("n", g, "v_lshlrev_b32 v%d, 16, v%d" % (t0, b)))
            fq.append(("n", g, "v_and_b32 v%d, 0xffff0000, v%d" % (t0 + 1, b)))
            fq.append(("n", g, "v_fma_f32 v%d, v%d, v12, v14" % (t0, t0)))
            fq.append(("n", g, "v_fma_f32 v%d, v%d, v12, v14" % (t0 + 1, t0 + 1)))
            fq.append(("n", g, "v_cvt_pk_bf16_f32 v%d, v%d, v%d" % (b, t0, t0 + 1)))

    def q_epi(p):
        G, U = ACC + 16 * p, ACC + 16 * (3 + p)
        E = T
        L = []
        L.append("s_nop 15")
        for r in range(16):
            L.append("v_mul_f32 v%d, s60, v%d" % (E + r, G + r))
        for r in range(16):
            L.append("v_exp_f32 v%d, v%d" % (E + r, E + r))
        for r in range(16):
            L.append("v_mul_f32 v%d, v%d, v%d" % (G + r, G + r, U + r))
        for r in range(16):
            L.append("v_add_f32 v%d, 1.0, v%d" % (E + r, E + r))
        for r in range(16):
            L.append("v_rcp_f32 v%d, v%d" % (E + r, E + r))
        for r in range(16):
            L.append("v_mul_f32 v%d, v%d, v%d" % (G + r, G + r, E + r))
        for r in range(8):
            L.append("v_cvt_pk_bf16_f32 v%d, v%d, v%d" % (G + r, G + 2 * r, G + 2 * r + 1))
        if X4:
            L.append("s_nop 1")
            for h2 in range(2):
                L.append("v_permlane32_swap_b32 v%d, v%d" % (G + 4 * h2, G + 4 * h2 + 2))
                L.append("v_permlane32_swap_b32 v%d, v%d" % (G + 4 * h2 + 1, G + 4 * h2 + 3))
            L.append("s_nop 1")
            for h2 in range(2):
                L.append("buffer_store_dwordx4 %s, v7, s[20:23], s%d offen offset:%d%s" % (vr(G + 4 * h2, 4), (59, 58, 64)[p], h2 * 1024, FST))
        else:
            for q in range(4):
                L.append("buffer_store_dwordx2 %s, v10, s[20:23], s%d offen offset:%d%s" % (vr(G + 2 * q, 2), (59, 58, 64)[p], (q >> 1) * 1024 + (q & 1) * 512, FST))
        if os.environ.get("WBD", "0") == "1" and p < 2:
            L.append(("wb", p))
        for x in L:
            fq.append(("e", p, x))

    def emit_filler():
        kind, g, x = fq.popleft()
        if callable(x):
            x()
        elif isinstance(x, tuple):
            nwb = k.newlab("nwb")
            k("s_cmp_eq_u32 s65, 0")
            k("s_cbranch_scc1 %s" % nwb)
            k("buffer_wbl2 sc1")
            k.lab(nwb)
        else:
            if x.startswith("buffer_store"):
                tokE[g] = (curvm[0].issue(), curgi[0])
            k(x)
    tokE = {}
    curvm = [vm]
    curgi = [0]

    def wpub(sreg):
        k("s_mov_b64 exec, 1")
        k("buffer_atomic_add v15, off, s[20:23], %s" % sreg)
        k("s_mov_b64 exec, -1")

    def flush_norm(g):
        last = -1
        for i, (kind, gg, x) in enumerate(fq):
            if kind == "n" and gg <= g:
                last = i
        n = last + 1
        for _ in range(n):
            emit_filler()
        if n:
            k("s_nop 1")
    for g in range(32):
        q_norm(g)

    def read1(gi, j):
        c = gi // 4
        fi = gi * 4 + j
        lds = ((c + ROT) % S) * CH + (fi % 16) * 1024
        k("ds_read_b128 a[%d:%d], v%d offset:%d" % (16 * (gi % 2) + 4 * j, 16 * (gi % 2) + 4 * j + 3, 7 + lds // 65536, lds % 65536))

    def boundary(c):
        nonlocal nxtD
        for cc in (c, c + 1):
            while nxtD <= cc:
                issueD(nxtD, 4)
                nxtD += 1
        vm.wait(tokA[c + 1])
        k("s_barrier")
        if c == 2:
            while nxtD < 10:
                issueD(nxtD, 4)
                nxtD += 1
        if c == 4:
            issueD(10, 4)
            issueD(11, 4)
            nxtD = 12
        if c == 8:
            k.ts(6)
            for cc in range(5):
                issueEW(cc, 7)
        if c == 10:
            issueEW(5, 7)
    boundary(0)
    for j in range(4):
        read1(0, j)
    seen = set()
    NPER = int(os.environ.get("NPER", "4"))
    ex14 = [int(os.environ.get("EX14", "1"))]
    pubd = set()
    stub14 = k.newlab("st14")
    for gi in range(48):
        curgi[0] = gi
        if FTS == "D" and gi in (8, 16, 24, 28, 32, 35, 38, 40, 42, 44, 46):
            ts0(1 + (8, 16, 24, 28, 32, 35, 38, 40, 42, 44, 46).index(gi))
        if STG and gi == int(os.environ.get("CK0", "45")):
            k("s_load_dword s46, s[32:33], s66 glc")
        if STG:
            for p in (0, 1):
                if p in tokE and p not in pubd and not any(kind == "e" and gg == p for (kind, gg, x) in fq) and gi >= tokE[p][1] + PDLY:
                    vm.wait(tokE[p][0])
                    wpub("s%d" % (66 + p))
                    vm.issue()
                    pubd.add(p)
        if ex14[0] and gi >= 40 and not any(kind == "e" and gg == 0 for (kind, gg, x) in fq) and (not STG or 0 in pubd):
            assert 1 not in pubd
            k("s_cmp_eq_u32 s49, 14")
            k("s_cbranch_scc1 %s" % (stub14 if STG else dend))
            ex14[0] = 0
        if gi + 1 < 48 and (gi + 1) % 8 == 0:
            boundary((gi + 1) // 4)
        for j in range(4):
            t, ks = order[gi * 4 + j]
            flush_norm(ks + 1)
            k("s_waitcnt lgkmcnt(%d)" % (3 if gi + 1 < 48 else 3 - j))
            first = t not in seen
            seen.add(t)
            if gi == 0 and j == 0:
                k.ts(5)
            k("v_mfma_f32_32x32x16_bf16 %s, a[%d:%d], %s, %s" % (vr(ACC + 16 * t, 16), 16 * (gi % 2) + 4 * j, 16 * (gi % 2) + 4 * j + 3, vr(B + 4 * ks, 4), "0" if first else vr(ACC + 16 * t, 16)))
            if gi + 1 < 48:
                read1(gi + 1, j)
            if (gi * 4 + j) % BPER == BPER - 1:
                issueB()
            while nbq[0] <= min(31, ks + 2):
                issueB()
            if ks == 31 and t >= 3 and not (STG and t == 5):
                q_epi(t - 3)
            for _ in range(NPER):
                if fq:
                    emit_filler()
    def e_setup(hp):
        k("s_mov_b32 s48, s30")
        k("s_mov_b32 s49, s31")
        k("s_and_b32 s56, s3, 1")
        k("s_lshr_b32 s57, s3, 1")
        k("v_lshlrev_b32 v4, 4, v1")
        k("s_lshl_b32 s50, s56, 13")
        k("s_lshl_b32 s51, s57, 12")
        k("s_add_u32 s50, s50, s51")
        k("s_add_u32 s50, s50, 98304")
        k("s_lshl_b32 s52, s48, 1")
        k("s_add_u32 s52, s52, s56")
        k("s_mul_i32 s52, s52, %d" % (AKS * 1024))
        k("s_add_u32 s52, s52, s51")
        k("s_add_u32 s52, s52, 0x%x" % WS_ACT)
        k("s_lshl_b32 s58, s48, 6")
        k("s_lshl_b32 s59, s56, 5")
        k("s_add_u32 s58, s58, s59")
        k("v_and_b32 v13, 31, v1")
        k("v_add_u32 v13, s58, v13")
        k("v_lshrrev_b32 v8, 5, v1")
        k("v_lshlrev_b32 v12, 3, v8")
        k("v_lshl_add_u32 v12, v13, 10, v12")
        k("s_lshl_b32 s59, s49, 7")
        k("s_lshl_b32 s58, s57, 6")
        k("s_add_u32 s59, s59, s58")
        k("v_and_b32 v14, 31, v1")
        k("v_lshlrev_b32 v14, 4, v14")
        k("v_lshl_add_u32 v14, v8, 3, v14")
        k("s_lshl_b32 %s, s48, 1" % hp)
        k("s_add_u32 %s, %s, s56" % (hp, hp))
        k("s_lshl_b32 %s, %s, 5" % (hp, hp))
        k("s_lshl_b32 s61, s49, 2")
        k("s_add_u32 %s, %s, s61" % (hp, hp))
        k("s_lshl_b32 s61, s57, 1")
        k("s_add_u32 %s, %s, s61" % (hp, hp))
        k("s_lshl_b32 %s, %s, 10" % (hp, hp))
        k("s_add_u32 %s, %s, 0x%x" % (hp, hp, WS_HP))
        k("s_lshl_b32 s61, s56, 13")
        k("s_add_u32 s61, s61, 98304")
        k("s_lshl_b32 s62, s57, 10")
        k("v_add_u32 v16, s61, v4")
        k("v_add_u32 v20, s62, v4")
        k("v_add_u32 v21, 0x10000, v20")
    if STG:
        k.ts(7)
        while fq:
            emit_filler()
        assert 0 in pubd
        p1_late = 1 not in pubd
        k("s_branch %s" % dend)
        k.lab(stub14)
        if not p1_late:
            wpub("s67")
        k("s_load_dword s46, s[32:33], s66 glc")
        k("s_branch %s" % dend)
        k.lab(idle)
        k("v_lshlrev_b32 v7, 4, v1")
        k("s_waitcnt vmcnt(0)")
        k("s_barrier")
        for cc in range(6):
            issueEW(cc, 7)
        wpub("s66")
        if not p1_late:
            wpub("s67")
        k("s_load_dword s46, s[32:33], s66 glc")
        k.lab(dend)
        e_setup("s63")
        ACCD = ACC
        ACC, RES, FR = 32, 24, 64
        cn = [min(8, n0 - 8 * q) for n0 in (30, 28, 28) for q in range(4)]
        NC = 12
        tokX, tokW = {}, {}
        vm2 = VM(k)

        def issueX(c):
            for j in range(4):
                k("s_add_u32 m0, s50, %d" % ((c % 4) * 16384 + j * 1024))
                k("s_add_u32 s54, s52, %d" % (c * 8192 + j * 1024))
                k("buffer_load_dwordx4 v4, s[20:23], s54 offen lds")
                tokX[c] = vm2.issue()

        def issueW(c):
            for j in range(4):
                k("s_add_u32 m0, s36, %d" % ((c % 6) * 16384 + j * 1024))
                k("s_add_u32 s54, s35, %d" % (wofs(c) + j * 1024))
                k("buffer_load_dwordx4 v4, s[20:23], s54 offen lds")
                tokW[c] = vm2.issue()

        def check(sreg):
            dn, lp = k.newlab("cd"), k.newlab("cl")
            k("s_waitcnt lgkmcnt(0)")
            k("s_cmp_eq_u32 s41, 0")
            k("s_cbranch_scc1 %s" % dn)
            k("s_mov_b32 s44, 0x%x" % SPIN)
            k.lab(lp)
            k("s_cmp_ge_u32 s46, 64")
            k("s_cbranch_scc1 %s" % dn)
            k("s_sub_u32 s44, s44, 1")
            k("s_cmp_eq_u32 s44, 0")
            k("s_cbranch_scc1 %s" % dn)
            k("s_load_dword s46, s[32:33], %s glc" % sreg)
            k("s_waitcnt lgkmcnt(0)")
            k("s_branch %s" % lp)
            k.lab(dn)

        def first_loads():
            for c in range(4):
                issueX(c)
            for q in range(4):
                k("buffer_load_dwordx2 %s, v14, s[20:23], s63 offen offset:%d" % (vr(RES + 2 * q, 2), (q >> 1) * 1024 + (q & 1) * 512))
                vm2.issue()

        def epi2():
            sv = ACC
            q_epi(2)
            curvm[0] = vm2
            while fq:
                emit_filler()
        slowT, join = k.newlab("slowT"), k.newlab("join")
        k("s_cmp_eq_u32 s41, 0")
        k("s_cbranch_scc1 %s" % slowT)
        check("s66")
        k("s_barrier")
        k.ts(8)
        first_loads()
        ACC = ACCD
        epi2()
        ACC = 32
        nfast = vm2.n
        tokE2 = tokE[2][0]
        k("s_branch %s" % join)
        k.lab(slowT)
        ACC = ACCD
        epi2()
        ACC = 32
        k("s_waitcnt vmcnt(0)")
        k("s_barrier")
        publish(512, 256)
        poll("16")
        acquire()
        vm2.n = 0
        first_loads()
        for _ in range(nfast - vm2.n):
            k("buffer_load_dword v57, off, s[20:23], s42")
            vm2.issue()
        k.lab(join)
        k.ts(9)

        def rd(g):
            c, ks = g // 8, g % 8
            oa = (c % 6) * 16384 + ks * 2048
            ob = (c % 4) * 16384 + ks * 1024
            k("ds_read_b128 %s, v%d offset:%d" % (vr(FR + 8 * (g % 4), 4), 20 + oa // 65536, oa % 65536))
            k("ds_read_b128 %s, v16 offset:%d" % (vr(FR + 8 * (g % 4) + 4, 4), ob))
        PB1 = int(os.environ.get("PB1", "0"))
        PB2 = int(os.environ.get("PB2", "4"))
        G1 = int(os.environ.get("G1", "3"))
        G2 = int(os.environ.get("G2", "7"))
        gate = lambda x: 0 if x < 4 else (G1 if x < 8 else G2)
        nxtX = 4
        for c in range(NC):
            n = cn[c]
            if c == G1:
                check("s67")
            if c == G2:
                check("s68")
            vm2.wait(max(tokX[c], tokW.get(c, 0)))
            k("s_barrier")
            if c == 0:
                k.ts(10)
            if FTS == "E2" and c < 9:
                ts0(4 + c)
            for ks in range(3):
                rd(8 * c + ks)
            if c == PB1 and p1_late:
                wpub("s67")
                vm2.issue()
            if c == PB2:
                vm2.wait(tokE2)
                wpub("s68")
                vm2.issue()
            if c >= 1:
                while nxtX <= c + 3 and nxtX < NC and gate(nxtX) <= c:
                    issueX(nxtX)
                    nxtX += 1
                if c + 5 < NC:
                    issueW(c + 5)
            if c + 1 in (G1, G2):
                k("s_load_dword s46, s[32:33], %s glc" % ("s67" if c + 1 == G1 else "s68"))
            for ks in range(n):
                g = 8 * c + ks
                k("s_waitcnt lgkmcnt(%d)" % (2 * min(2, n - 1 - ks)))
                k("v_mfma_f32_32x32x16_bf16 %s, %s, %s, %s" % (vr(ACC, 16), vr(FR + 8 * (g % 4), 4), vr(FR + 8 * (g % 4) + 4, 4), "0" if g == 0 else vr(ACC, 16)))
                if ks + 3 < n:
                    rd(g + 3)
    if not STG:
        k.ts(7)
        while fq:
            emit_filler()
        k("s_branch %s" % dend)
        k.lab(idle)
        k("v_lshlrev_b32 v7, 4, v1")
        k("s_waitcnt vmcnt(0)")
        k("s_barrier")
        for cc in range(6):
            issueEW(cc, 7)
        k.lab(dend)
        NKS = 86
        NC = 11
        k("s_mov_b32 s37, s49")
        k("s_mov_b32 s48, s30")
        k("s_mov_b32 s49, s31")
        k("s_and_b32 s56, s3, 1")
        k("s_lshr_b32 s57, s3, 1")
        k("v_lshlrev_b32 v4, 4, v1")
        k("s_lshl_b32 s50, s56, 13")
        k("s_lshl_b32 s51, s57, 12")
        k("s_add_u32 s50, s50, s51")
        k("s_add_u32 s50, s50, 98304")
        k("s_lshl_b32 s52, s48, 1")
        k("s_add_u32 s52, s52, s56")
        k("s_mul_i32 s52, s52, %d" % (NKS * 1024))
        k("s_add_u32 s52, s52, s51")
        k("s_add_u32 s52, s52, 0x%x" % (0 if os.environ.get("XCLEAN") else WS_ACT))
        k("s_lshl_b32 s58, s48, 6")
        k("s_lshl_b32 s59, s56, 5")
        k("s_add_u32 s58, s58, s59")
        k("v_and_b32 v13, 31, v1")
        k("v_add_u32 v13, s58, v13")
        k("v_lshrrev_b32 v8, 5, v1")
        k("v_lshlrev_b32 v12, 3, v8")
        k("v_lshl_add_u32 v12, v13, 10, v12")
        k("s_lshl_b32 s59, s49, 7")
        k("s_lshl_b32 s60, s57, 6")
        k("s_add_u32 s59, s59, s60")
        k("v_and_b32 v14, 31, v1")
        k("v_lshlrev_b32 v14, 4, v14")
        k("v_lshl_add_u32 v14, v8, 3, v14")
        k("s_lshl_b32 s60, s48, 1")
        k("s_add_u32 s60, s60, s56")
        k("s_lshl_b32 s60, s60, 5")
        k("s_lshl_b32 s61, s49, 2")
        k("s_add_u32 s60, s60, s61")
        k("s_lshl_b32 s61, s57, 1")
        k("s_add_u32 s60, s60, s61")
        k("s_lshl_b32 s60, s60, 10")
        k("s_add_u32 s60, s60, 0x%x" % WS_HP)
        k("s_lshl_b32 s61, s56, 13")
        k("s_add_u32 s61, s61, 98304")
        k("s_lshl_b32 s62, s57, 10")
        k("v_add_u32 v16, s61, v4")
        k("v_add_u32 v20, s62, v4")
        k("v_add_u32 v21, 0x10000, v20")
        k("s_cmp_eq_u32 s37, 15")
        k("s_cselect_b32 s37, 0, 1")
        k("v_mov_b32 v58, s37")
        k("s_waitcnt vmcnt(0)")
        k.ts(8)
        if FTS == "L":
            def off(i):
                k("s_add_u32 s45, s69, %d" % (128 * i))
            k("v_mov_b32 v57, 0")
            ts0(1)
            off(0)
            k("buffer_load_dword v57, off, s[20:23], s45")
            k("s_waitcnt vmcnt(0)")
            ts0(2)
            off(1)
            k("buffer_load_dword v57, off, s[20:23], s45")
            k("s_waitcnt vmcnt(0)")
            ts0(3)
            k("s_load_dword s46, s[32:33], s45 glc")
            k("s_waitcnt lgkmcnt(0)")
            ts0(4)
            off(2)
            k("buffer_store_dword v57, off, s[20:23], s45")
            k("s_waitcnt vmcnt(0)")
            ts0(5)
            off(3)
            k("buffer_store_dword v57, off, s[20:23], s45 sc1")
            k("s_waitcnt vmcnt(0)")
            ts0(6)
            off(2)
            k("buffer_load_dword v57, off, s[20:23], s45")
            k("s_waitcnt vmcnt(0)")
            ts0(7)
            off(3)
            k("buffer_load_dword v57, off, s[20:23], s45")
            k("s_waitcnt vmcnt(0)")
            ts0(8)
            off(4)
            k("v_mov_b32 v57, 0")
            k("buffer_atomic_add v57, off, s[20:23], s45 sc0")
            k("s_waitcnt vmcnt(0)")
            ts0(9)
            k("v_mov_b32 v57, 0")
            k("buffer_atomic_add v57, off, s[20:23], s45 sc0")
            k("s_waitcnt vmcnt(0)")
            ts0(10)
            off(5)
            k("buffer_load_dword v57, off, s[20:23], s45 sc1")
            k("s_waitcnt vmcnt(0)")
            ts0(11)
            off(4)
            k("s_load_dword s46, s[32:33], s45 glc")
            k("s_waitcnt lgkmcnt(0)")
            ts0(12)
        k("s_barrier")
        publish(512, 256, addreg="v58")
        poll("15")
        ACC, RES, FR = 32, 48, 64
        vm2 = VM(k)
        for q in range(4):
            k("buffer_load_dwordx2 %s, v14, s[20:23], s60 offen offset:%d" % (vr(RES + 2 * q, 2), (q >> 1) * 1024 + (q & 1) * 512))
            vm2.issue()
        acquire()
        k.ts(9)
        tokX, tokW = {}, {}

        def issueX(c):
            for j in range(4):
                k("s_add_u32 m0, s50, %d" % ((c % 4) * 16384 + j * 1024))
                k("s_add_u32 s54, s52, %d" % (c * 8192 + j * 1024))
                k("buffer_load_dwordx4 v4, s[20:23], s54 offen lds")
                tokX[c] = vm2.issue()

        def issueW(c):
            for j in range(4):
                k("s_add_u32 m0, s36, %d" % ((c % 6) * 16384 + j * 1024))
                k("s_add_u32 s54, s35, %d" % (c * 16384 + j * 1024))
                k("buffer_load_dwordx4 v4, s[20:23], s54 offen lds")
                tokW[c] = vm2.issue()
        for c in range(4):
            issueX(c)

        def rd(g):
            c, ks = g // 8, g % 8
            oa = (c % 6) * 16384 + ks * 2048
            ob = (c % 4) * 16384 + ks * 1024
            k("ds_read_b128 %s, v%d offset:%d" % (vr(FR + 8 * (g % 4), 4), 20 + oa // 65536, oa % 65536))
            k("ds_read_b128 %s, v16 offset:%d" % (vr(FR + 8 * (g % 4) + 4, 4), ob))
        for c in range(NC):
            n = min(8, NKS - 8 * c)
            vm2.wait(max(tokX[c], tokW.get(c, 0)))
            k("s_barrier")
            if c == 0:
                k.ts(10)
            if FTS == "E":
                ts0(2 + c)
            for ks in range(3):
                rd(8 * c + ks)
            if c >= 1:
                if c + 5 < NC:
                    issueW(c + 5)
                if c + 3 < NC:
                    issueX(c + 3)
            for ks in range(n):
                g = 8 * c + ks
                k("s_waitcnt lgkmcnt(%d)" % (2 * min(2, n - 1 - ks)))
                k("v_mfma_f32_32x32x16_bf16 %s, %s, %s, %s" % (vr(ACC, 16), vr(FR + 8 * (g % 4), 4), vr(FR + 8 * (g % 4) + 4, 4), "0" if g == 0 else vr(ACC, 16)))
                if ks + 3 < n:
                    rd(g + 3)
    k.ts(11)
    k("s_nop 15")
    BF = FR
    for q in range(4):
        for d in range(2):
            r = RES + 2 * q + d
            k("v_lshlrev_b32 v%d, 16, v%d" % (BF + 32, r))
            k("v_and_b32 v%d, 0xffff0000, v%d" % (BF + 33, r))
            k("v_add_f32 v%d, v%d, v%d" % (ACC + 4 * q + 2 * d, ACC + 4 * q + 2 * d, BF + 32))
            k("v_add_f32 v%d, v%d, v%d" % (ACC + 4 * q + 2 * d + 1, ACC + 4 * q + 2 * d + 1, BF + 33))
    for r in range(8):
        k("v_cvt_pk_bf16_f32 v%d, v%d, v%d" % (RES + r, ACC + 2 * r, ACC + 2 * r + 1))
    for q in range(4):
        k("buffer_store_dwordx2 %s, v12, s[16:19], s59 offen offset:%d%s" % (vr(RES + 2 * q, 2), 16 * q, FSTO))
    k.ts(12)
    if os.environ.get("FDBG"):
        k("s_waitcnt lgkmcnt(0)")
        k("s_add_u32 s82, s70, s4")
        k("s_add_u32 s90, s70, s41")
    k.ts_flush(13)
    k.lab(end)
    return k


def build(kerns):
    head = open("cdna_kernels/%s.s.ref" % NAME).read().split("; @launch")[0]
    out = [head.rstrip("\n")]
    for kk in kerns:
        out.append("; @launch kernel=%s grid=(%d,1,1) block=(%d,1,1) lds=%d" % (kk.name, kk.grid, kk.block, kk.lds))
    out.append('.amdgcn_target "amdgcn-amd-amdhsa--gfx950"')
    out.append(".text")
    for kk in kerns:
        out.append(kk.text())
    out.append('.section .rodata,"a"')
    for kk in kerns:
        out.append(".p2align 6")
        out.append(kk.desc())
    return "\n".join(out) + "\n"


def main():
    which = sys.argv[1] if len(sys.argv) > 1 else "ABCDE"
    gens = {"A": gen_A}
    for nm in "BCDEF":
        if "gen_" + nm in globals():
            gens[nm] = globals()["gen_" + nm]
    kerns = [gens[c]() for c in which if c in gens]
    txt = build(kerns)
    open("cdna_kernels/%s.s" % NAME, "w").write(txt)
    print("wrote", len(txt), "bytes;", [kk.name for kk in kerns])


if __name__ == "__main__":
    main()
```

```python
import sys, re

NAME = "sequential_preLN__grouped_kv_mqa__swiglu_ffn__prompt"

WS_Q = 0x000000
WS_K = 0x200000
WS_V = 0x210000
WS_CS = 0x220000
WS_KM = 0x228000
WS_O = 0x300000
WS_H = 0x500000
WS_ACT = 0x800000
ACT_LD = 2816
WS_ST = 0x230000
WS_WG = 0x1000000
WS_WD = 0x1400000
WS_WO = 0x1600000
WS_HP = 0x1800000
WS_DUMMY = 0x2000000
KS1 = int(__import__("os").environ.get("KS1", "16"))
WS_SIZE = 268435456
import os
DEBUG_TS = bool(os.environ.get('TS'))
FUSED = "F" in (sys.argv[1] if len(sys.argv) > 1 else "")
TSMODE = int(os.environ.get('TS', '0'))
SRD3 = "0x00020000"
LOG2E = 1.4426950408889634


def f32hex(x):
    import struct
    return "0x%08x" % struct.unpack("<I", struct.pack("<f", x))[0]


class Kern:
    def __init__(s, name, nvgpr, block, grid, lds, accum=None):
        s.name = name
        s.L = []
        s.nvgpr = nvgpr
        s.block = block
        s.grid = grid
        s.lds = lds
        s.accum = accum if accum is not None else nvgpr
        s.nlab = 0
        s.tsb = 70
        s.kidx = {"attn_kernel": 1, "wo_kernel": 2, "ffn1_kernel": 3, "down_kernel": 4}.get(name, 0)

    def __call__(s, txt):
        for t in txt.split("\n"):
            t = t.strip()
            if t:
                m = re.search(r"offset:(\d+)", t)
                if m:
                    lim = 4095 if t.startswith("buffer") else 65535
                    assert int(m.group(1)) <= lim, t
                if t.startswith("buffer_store") and os.environ.get("STMOD"):
                    t = t + " " + os.environ["STMOD"]
                s.L.append("    " + t)

    def lab(s, l):
        s.L.append(l + ":")

    def newlab(s, p):
        s.nlab += 1
        return "%s_%s%d" % (s.name.replace("_kernel", "")[:8], p, s.nlab)

    def srd(s, reg, preg, size):
        s("s_mov_b32 s%d, s%d" % (reg, preg))
        s("s_and_b32 s%d, s%d, 0xffff" % (reg + 1, preg + 1))
        s("s_mov_b32 s%d, 0x%x" % (reg + 2, size))
        s("s_mov_b32 s%d, %s" % (reg + 3, SRD3))

    def ts(s, idx):
        if not DEBUG_TS:
            return
        if TSMODE == 3:
            if idx == 0:
                s("s_memrealtime s[100:101]")
            return
        if TSMODE == 4:
            s("s_memrealtime s[%d:%d]" % (s.tsb + 2 * idx, s.tsb + 1 + 2 * idx))
            return
        s("s_memtime s[%d:%d]" % (s.tsb + 2 * idx, s.tsb + 1 + 2 * idx))
        if idx == 0:
            s("s_memrealtime s[100:101]")

    def ts_flush(s, n):
        if not DEBUG_TS:
            return
        if TSMODE == 3:
            lab = s.newlab("nots")
            s("s_waitcnt vmcnt(0)")
            s("s_memrealtime s[72:73]")
            s("s_waitcnt lgkmcnt(0)")
            s("s_cmp_lg_u32 s3, 0")
            s("s_cbranch_scc1 %s" % lab)
            s("s_lshl_b32 s69, s2, 3")
            s("s_add_u32 s69, s69, 0x%x" % (0x1F00000 + 4096 * s.kidx))
            s("v_mov_b32 v0, 0")
            s("v_mov_b32 v2, s100")
            s("v_mov_b32 v3, s72")
            s("s_mov_b64 exec, 1")
            s("buffer_store_dwordx2 v[2:3], v0, s[20:23], s69 offen")
            s("s_mov_b64 exec, -1")
            s.lab(lab)
            return
        if TSMODE == 4:
            lab = s.newlab("nots")
            s("s_waitcnt lgkmcnt(0)")
            s("s_cmp_lg_u32 s3, 0")
            s("s_cbranch_scc1 %s" % lab)
            s("s_lshl_b32 s69, s2, 6")
            s("s_add_u32 s69, s69, 0x%x" % (0x1F00000 + 16384 * s.kidx))
            s("v_mov_b32 v0, 0")
            for i in range(n):
                s("v_mov_b32 v1, s%d" % (s.tsb + 2 * i))
                s("buffer_store_dword v1, v0, s[20:23], s69 offen offset:%d" % (4 * i))
                s("s_nop 2")
            s.lab(lab)
            return
        lab = s.newlab("nots")
        s("s_memrealtime s[64:65]")
        s("s_waitcnt lgkmcnt(0)")
        s("s_sub_u32 s67, s2, 100")
        s("s_cmp_ge_u32 s67, 4")
        s("s_cbranch_scc1 %s" % lab)
        s("s_cmp_lg_u32 s3, 0")
        s("s_cbranch_scc1 %s" % lab)
        s("s_load_dwordx2 s[96:97], s[0:1], 80")
        s("s_waitcnt lgkmcnt(0)")
        s("s_mov_b32 s98, 256")
        s("s_mov_b32 s99, 0x00020000")
        s("s_lshl_b32 s69, s67, 6")
        s("v_mov_b32 v0, 0")
        for i in range(n):
            s("s_sub_u32 s68, s%d, s%d" % (s.tsb + 2 * i, s.tsb))
            s("v_mov_b32 v1, s68")
            s("buffer_store_dword v1, v0, s[96:99], s69 offen offset:%d" % (4 * i))
            s("s_nop 2")
        s("s_sub_u32 s68, s64, s100")
        s("v_mov_b32 v1, s68")
        s("buffer_store_dword v1, v0, s[96:99], s69 offen offset:60")
        s.lab(lab)

    def text(s):
        out = []
        out.append(".globl %s" % s.name)
        out.append(".p2align 8")
        out.append(".type %s,@function" % s.name)
        out.append("%s:" % s.name)
        out += s.L
        out.append("    s_endpgm")
        return "\n".join(out)

    def desc(s):
        return "\n".join([
            ".amdhsa_kernel %s" % s.name,
            "  .amdhsa_next_free_vgpr %d" % s.nvgpr,
            "  .amdhsa_next_free_sgpr 102",
            "  .amdhsa_accum_offset %d" % s.accum,
            "  .amdhsa_group_segment_fixed_size 0",
            "  .amdhsa_kernarg_size 96",
            "  .amdhsa_user_sgpr_count 2",
            "  .amdhsa_user_sgpr_kernarg_segment_ptr 1",
            "  .amdhsa_system_sgpr_workgroup_id_x 1",
            ".end_amdhsa_kernel"])


def vr(a, n=1):
    return "v%d" % a if n == 1 else "v[%d:%d]" % (a, a + n - 1)


def sr(a, n=1):
    return "s%d" % a if n == 1 else "s[%d:%d]" % (a, a + n - 1)


def gen_A():
    k = Kern(NAME + "_kernel", 256, 256, 256, 163840)
    end = k.newlab("end")
    k("s_cmp_ge_u32 s2, 256")
    k("s_cbranch_scc1 %s" % end)
    k.ts(0)
    k("s_load_dwordx8 s[24:31], s[0:1], 0")
    k("s_load_dwordx2 s[32:33], s[0:1], 88")
    k("v_and_b32 v1, 63, v0")
    k("v_lshrrev_b32 v2, 6, v0")
    k("s_nop 1")
    k("v_readfirstlane_b32 s3, v2")
    k("s_and_b32 s48, s2, 7")
    k("s_lshl_b32 s48, s48, 2")
    k("s_bfe_u32 s49, s2, 0x20003")
    k("s_add_u32 s48, s48, s49")
    k("s_lshr_b32 s49, s2, 5")
    k("v_lshrrev_b32 v3, 4, v1")
    k("s_lshl_b32 s50, s3, 2")
    k("v_add_u32 v3, s50, v3")
    k("v_and_b32 v4, 15, v1")
    k("v_xor_b32 v4, v4, v3")
    k("v_lshlrev_b32 v4, 4, v4")
    k("s_lshl_b32 s51, s48, 6")
    k("v_add_u32 v3, s51, v3")
    k("v_lshl_add_u32 v4, v3, 10, v4")
    k("v_lshrrev_b32 v3, 3, v1")
    k("s_lshl_b32 s50, s3, 3")
    k("v_add_u32 v3, s50, v3")
    k("v_and_b32 v5, 7, v1")
    k("v_bfe_u32 v6, v1, 4, 1")
    k("v_lshlrev_b32 v6, 2, v6")
    k("v_xor_b32 v5, v5, v6")
    k("v_lshlrev_b32 v5, 4, v5")
    k("v_lshl_add_u32 v5, v3, 10, v5")
    k("s_lshl_b32 s50, s49, 7")
    k("v_add_u32 v5, s50, v5")
    k("v_lshlrev_b32 v6, 4, v1")
    k("s_lshl_b32 s52, s3, 10")
    k("s_and_b32 s56, s3, 1")
    k("s_lshr_b32 s57, s3, 1")
    k("s_lshl_b32 s62, s56, 11")
    k("s_and_b32 s50, s48, 7")
    k("s_lshl_b32 s63, s57, 8")
    k("s_or_b32 s50, s50, s63")
    k("s_cmp_eq_u32 s50, s49")
    k("s_cselect_b32 s53, 1, 0")
    k("s_waitcnt lgkmcnt(0)")
    k.srd(4, 24, 2048 * 512 * 2)
    AIL = int(os.environ.get("AIL", "0"))

    def issueX(c):
        for j in range(4):
            k("s_add_u32 m0, s52, %d" % (c * 16384 + j * 4096))
            k("s_mov_b32 s54, %d" % (j * 16 * 1024 + c * 256))
            k("buffer_load_dwordx4 v4, s[4:7], s54 offen lds")
    for c in range(4 if not AIL else 1):
        issueX(c)
    k.srd(8, 26, 512 * 512 * 2)
    k.srd(12, 28, 512 * 16 * 2)
    k.srd(16, 30, 512 * 16 * 2)
    k.srd(20, 32, WS_SIZE)
    k.ts(1)
    k("v_and_b32 v7, 31, v1")
    k("s_lshl_b32 s58, s56, 5")
    k("v_add_u32 v7, s58, v7")
    k("v_lshrrev_b32 v8, 5, v1")
    k("v_and_b32 v9, 15, v7")
    k("v_xor_b32 v9, v9, v8")
    k("v_lshlrev_b32 v9, 4, v9")
    k("v_lshl_add_u32 v9, v7, 8, v9")
    XA = 16
    for ks in range(8):
        k("v_xor_b32 v%d, %d, v9" % (XA + ks, ks * 32))
    k("v_lshrrev_b32 v7, 5, v1")
    k("v_lshlrev_b32 v7, 3, v7")
    k("v_bfe_u32 v10, v1, 2, 2")
    k("v_add_u32 v7, v7, v10")
    k("v_bfe_u32 v10, v1, 4, 1")
    k("v_lshlrev_b32 v10, 5, v10")
    k("v_and_b32 v11, 3, v1")
    k("v_lshl_add_u32 v10, v11, 3, v10")
    k("s_lshl_b32 s58, s57, 6")
    k("v_add_u32 v10, s58, v10")
    k("v_bfe_u32 v11, v1, 3, 1")
    k("v_lshlrev_b32 v11, 6, v11")
    k("v_xor_b32 v10, v10, v11")
    k("v_lshl_add_u32 v10, v7, 7, v10")
    k("v_add_u32 v10, 0x10000, v10")
    k("v_and_b32 v11, 3, v1")
    k("v_lshlrev_b32 v11, 3, v11")
    k("v_lshl_add_u32 v11, v7, 5, v11")
    k("v_bfe_u32 v12, v1, 4, 1")
    k("v_lshl_add_u32 v11, v12, 14, v11")
    k("v_add_u32 v11, 0x20000, v11")
    ONES = 24
    for i in range(4):
        k("v_mov_b32 v%d, 0x3f803f80" % (ONES + i))
    S1, S2 = 28, 29
    for i in range(4):
        k("v_mov_b32 v%d, 0" % (28 + i))
    ACC, CS, ACC2, CS2 = 32, 48, 64, 80
    BF, AF, AK = 96, 224, 240
    done = k.newlab("done")
    kvp = k.newlab("kvp")
    k("s_cmp_lg_u32 s53, 0")
    k("s_cbranch_scc1 %s" % kvp)

    def body(kv):
        nW = 8 if kv else 4

        def issueW(c):
            for j in range(4):
                k("s_add_u32 m0, s52, %d" % (65536 + c * 16384 + j * 4096))
                k("s_mov_b32 s54, %d" % ((c * 128 + 32 * j) * 1024))
                k("buffer_load_dwordx4 v5, s[8:11], s54 offen lds")
            if kv:
                for (srdn, base) in ((12, 131072), (16, 147456)):
                    for j in range(2):
                        k("s_add_u32 s54, s62, %d" % (c * 4096 + j * 1024))
                        k("s_add_u32 m0, s54, %d" % base)
                        k("buffer_load_dwordx4 v6, s[%d:%d], s54 offen lds" % (srdn, srdn + 3))
        nr = 4 if kv else 2

        def rdA(g):
            c, ks = g // 8, g % 8
            k("ds_read_b64_tr_b16 %s, v10 offset:%d" % (vr(AF + 4 * (g % 4), 2), c * 16384 + ks * 2048))
            k("ds_read_b64_tr_b16 %s, v10 offset:%d" % (vr(AF + 4 * (g % 4) + 2, 2), c * 16384 + ks * 2048 + 512))
            if kv:
                k("ds_read_b64_tr_b16 %s, v11 offset:%d" % (vr(AK + 4 * (g % 4), 2), (c * 128 + ks * 16) * 32))
                k("ds_read_b64_tr_b16 %s, v11 offset:%d" % (vr(AK + 4 * (g % 4) + 2, 2), (c * 128 + ks * 16 + 4) * 32))

        def stats():
            k("v_add_f32 v28, v28, v30")
            k("v_add_f32 v29, v29, v31")
            k("v_mov_b32 v30, v28")
            k("v_mov_b32 v31, v29")
            k("s_nop 1")
            k("v_permlane32_swap_b32 v28, v30")
            k("v_permlane32_swap_b32 v29, v31")
            k("s_nop 1")
            k("v_add_f32 v28, v28, v30")
            k("v_add_f32 v29, v29, v31")
            k("v_mul_f32 v%d, %s, v%d" % (S1, f32hex(1.0 / 512), S1))
            k("v_mul_f32 v%d, %s, v%d" % (S2, f32hex(1.0 / 512), S2))
            k("v_fma_f32 v%d, -v%d, v%d, v%d" % (S2, S1, S1, S2))
            k("v_add_f32 v%d, %s, v%d" % (S2, f32hex(1e-5), S2))
            k("v_rsq_f32 v%d, v%d" % (S2, S2))
            k("s_nop 1")
            k("v_mul_f32 v30, %s, v%d" % (f32hex(0.25 * LOG2E), S2))
        if AIL:
            issueW(0)
            for c in range(1, 4):
                issueX(c)
                issueW(c)
            for c in range(4):
                k("s_waitcnt vmcnt(%d)" % ((3 - c) * (4 + nW)))
                k("s_barrier")
                if not kv: k.ts(2 + c)

                def rdB(ks):
                    k("ds_read_b128 %s, v%d offset:%d" % (vr(BF + 4 * (8 * c + ks), 4), XA + ks, c * 16384))
                for ks in range(3):
                    rdB(ks)
                    rdA(8 * c + ks)
                for ks in range(3, 8):
                    rdB(ks)
                for ks in range(8):
                    g = 8 * c + ks
                    allow = [7 + 2 * nr, 6 + 2 * nr, 5 + 2 * nr, 2 * nr, 2 * nr, 2 * nr, nr, 0][ks]
                    k("s_waitcnt lgkmcnt(%d)" % allow)
                    first = g == 0
                    k("v_mfma_f32_32x32x16_bf16 %s, %s, %s, %s" % (vr(ACC, 16), vr(AF + 4 * (g % 4), 4), vr(BF + 4 * g, 4), "0" if first else vr(ACC, 16)))
                    if ks + 3 < 8:
                        rdA(g + 3)
                    k("v_mfma_f32_32x32x16_bf16 %s, %s, %s, %s" % (vr(CS, 16), vr(AF + 4 * (g % 4), 4), vr(ONES, 4), "0" if first else vr(CS, 16)))
                    if kv:
                        k("v_mfma_f32_32x32x16_bf16 %s, %s, %s, %s" % (vr(ACC2, 16), vr(AK + 4 * (g % 4), 4), vr(BF + 4 * g, 4), "0" if first else vr(ACC2, 16)))
                        k("v_mfma_f32_32x32x16_bf16 %s, %s, %s, %s" % (vr(CS2, 16), vr(AK + 4 * (g % 4), 4), vr(ONES, 4), "0" if first else vr(CS2, 16)))
                    for q in range(4):
                        b = BF + 4 * g + q
                        k("v_dot2c_f32_bf16 v%d, v%d, v%d" % (28 + 2 * (q & 1), b, ONES))
                        k("v_dot2c_f32_bf16 v%d, v%d, v%d" % (29 + 2 * (q & 1), b, b))
            k("s_nop 4")
            stats()
            return
        for c in range(4):
            k("s_waitcnt vmcnt(%d)" % (4 * (3 - c) + c * nW))
            k("s_barrier")
            if not kv: k.ts(2 + c)
            for ks in range(8):
                k("ds_read_b128 %s, v%d offset:%d" % (vr(BF + 4 * (8 * c + ks), 4), XA + ks, c * 16384))
            issueW(c)
            for ks in range(8):
                k("s_waitcnt lgkmcnt(%d)" % (7 - ks))
                for q in range(4):
                    b = BF + 4 * (8 * c + ks) + q
                    k("v_dot2c_f32_bf16 v%d, v%d, v%d" % (28 + 2 * (q & 1), b, ONES))
                    k("v_dot2c_f32_bf16 v%d, v%d, v%d" % (29 + 2 * (q & 1), b, b))

        def rdA(g):
            c, ks = g // 8, g % 8
            k("ds_read_b64_tr_b16 %s, v10 offset:%d" % (vr(AF + 4 * (g % 4), 2), c * 16384 + ks * 2048))
            k("ds_read_b64_tr_b16 %s, v10 offset:%d" % (vr(AF + 4 * (g % 4) + 2, 2), c * 16384 + ks * 2048 + 512))
            if kv:
                k("ds_read_b64_tr_b16 %s, v11 offset:%d" % (vr(AK + 4 * (g % 4), 2), (c * 128 + ks * 16) * 32))
                k("ds_read_b64_tr_b16 %s, v11 offset:%d" % (vr(AK + 4 * (g % 4) + 2, 2), (c * 128 + ks * 16 + 4) * 32))
        nr = 4 if kv else 2
        for c in range(4):
            k("s_waitcnt vmcnt(%d)" % ((3 - c) * nW))
            k("s_barrier")
            if not kv: k.ts(6 + c)
            for ks in range(3):
                rdA(8 * c + ks)
            if c == 0:
                k("v_add_f32 v28, v28, v30")
                k("v_add_f32 v29, v29, v31")
                k("v_mov_b32 v30, v28")
                k("v_mov_b32 v31, v29")
                k("s_nop 1")
                k("v_permlane32_swap_b32 v28, v30")
                k("v_permlane32_swap_b32 v29, v31")
                k("s_nop 1")
                k("v_add_f32 v28, v28, v30")
                k("v_add_f32 v29, v29, v31")
                k("v_mul_f32 v%d, %s, v%d" % (S1, f32hex(1.0 / 512), S1))
                k("v_mul_f32 v%d, %s, v%d" % (S2, f32hex(1.0 / 512), S2))
                k("v_fma_f32 v%d, -v%d, v%d, v%d" % (S2, S1, S1, S2))
                k("v_add_f32 v%d, %s, v%d" % (S2, f32hex(1e-5), S2))
                k("v_rsq_f32 v%d, v%d" % (S2, S2))
                k("s_nop 1")
                k("v_mul_f32 v30, %s, v%d" % (f32hex(0.25 * LOG2E), S2))
            for ks in range(8):
                g = 8 * c + ks
                ahead = min(2, 7 - ks)
                k("s_waitcnt lgkmcnt(%d)" % (ahead * nr))
                first = g == 0
                k("v_mfma_f32_32x32x16_bf16 %s, %s, %s, %s" % (vr(ACC, 16), vr(AF + 4 * (g % 4), 4), vr(BF + 4 * g, 4), "0" if first else vr(ACC, 16)))
                if ks + 3 < 8:
                    rdA(g + 3)
                k("v_mfma_f32_32x32x16_bf16 %s, %s, %s, %s" % (vr(CS, 16), vr(AF + 4 * (g % 4), 4), vr(ONES, 4), "0" if first else vr(CS, 16)))
                if kv:
                    k("v_mfma_f32_32x32x16_bf16 %s, %s, %s, %s" % (vr(ACC2, 16), vr(AK + 4 * (g % 4), 4), vr(BF + 4 * g, 4), "0" if first else vr(ACC2, 16)))
                    k("v_mfma_f32_32x32x16_bf16 %s, %s, %s, %s" % (vr(CS2, 16), vr(AK + 4 * (g % 4), 4), vr(ONES, 4), "0" if first else vr(CS2, 16)))
    body(False)
    k("s_branch %s" % done)
    k.lab(kvp)
    body(True)
    k.lab(done)
    k.ts(10)
    k("v_and_b32 v7, 31, v1")
    k("s_lshl_b32 s58, s56, 5")
    k("s_add_u32 s58, s58, s51")
    k("v_add_u32 v7, s58, v7")
    k("v_lshrrev_b32 v8, 5, v1")
    k("v_lshlrev_b32 v9, 3, v8")
    k("v_lshl_add_u32 v12, v7, 10, v9")
    k("s_lshl_b32 s59, s49, 7")
    k("s_lshl_b32 s60, s57, 6")
    k("s_add_u32 s59, s59, s60")
    k("s_add_u32 s59, s59, 0x%x" % WS_Q)
    k("s_nop 15")
    TQ = 224
    for r in range(16):
        k("v_fma_f32 v%d, -v%d, v%d, v%d" % (ACC + r, S1, CS + r, ACC + r))
    for r in range(16):
        k("v_mul_f32 v%d, v30, v%d" % (ACC + r, ACC + r))
    for r in range(8):
        k("v_cvt_pk_bf16_f32 v%d, v%d, v%d" % (TQ + r, ACC + 2 * r, ACC + 2 * r + 1))
    for q in range(4):
        k("buffer_store_dwordx2 %s, v12, s[20:23], s59 offen offset:%d" % (vr(TQ + 2 * q, 2), 16 * q))
    k.ts(11)
    k.ts_flush(12)
    k("s_cmp_eq_u32 s53, 0")
    k("s_cbranch_scc1 %s" % end)
    ACC, CS = ACC2, CS2
    for r in range(16):
        k("v_fma_f32 v%d, -v%d, v%d, v%d" % (ACC + r, S1, CS + r, ACC + r))
    for r in range(16):
        k("v_mul_f32 v%d, v%d, v%d" % (ACC + r, S2, ACC + r))
    for r in range(8):
        k("v_cvt_pk_bf16_f32 v%d, v%d, v%d" % (CS + r, ACC + 2 * r, ACC + 2 * r + 1))
    k("v_mov_b32 v14, 0")
    for i in range(4):
        k("v_dot2c_f32_bf16 v14, v%d, v%d" % (CS + i, CS + i))
    k("s_nop 4")
    k("v_mov_b32 v15, v14")
    k("s_nop 1")
    k("v_permlane32_swap_b32 v14, v15")
    k("s_nop 1")
    k("v_add_f32 v14, v14, v15")
    k("s_nop 1")
    for r in (8, 4, 2, 1):
        k("v_max_f32_dpp v14, v14, v14 row_ror:%d row_mask:0xf bank_mask:0xf" % r)
        k("s_nop 1")
    k("v_readlane_b32 s60, v14, 0")
    k("v_readlane_b32 s61, v14, 16")
    k("s_nop 3")
    k("s_max_u32 s60, s60, s61")
    k("v_mov_b32 v14, s60")
    k("v_mov_b32 v15, 0")
    k("s_lshl_b32 s61, s48, 1")
    k("s_add_u32 s61, s61, s56")
    k("s_lshl_b32 s61, s61, 2")
    k("s_add_u32 s61, s61, 0x%x" % WS_KM)
    k("s_mov_b64 exec, 1")
    k("buffer_store_dword v14, v15, s[20:23], s61 offen")
    k("s_mov_b64 exec, -1")
    k("v_and_b32 v13, 31, v1")
    k("v_lshlrev_b32 v13, 4, v13")
    k("v_lshl_add_u32 v13, v8, 3, v13")
    k("s_lshl_b32 s59, s48, 1")
    k("s_add_u32 s59, s59, s56")
    k("s_lshl_b32 s59, s59, 10")
    k("s_add_u32 s59, s59, 0x%x" % WS_K)
    k("buffer_store_dwordx2 %s, v13, s[20:23], s59 offen" % vr(CS, 2))
    k("buffer_store_dwordx2 %s, v13, s[20:23], s59 offen offset:512" % vr(CS + 2, 2))
    k("v_lshrrev_b32 v13, 4, v7")
    k("v_lshlrev_b32 v13, 9, v13")
    k("v_bfe_u32 v14, v7, 2, 1")
    k("v_lshl_add_u32 v13, v14, 8, v13")
    k("v_bfe_u32 v14, v7, 3, 1")
    k("v_lshl_add_u32 v13, v14, 3, v13")
    k("v_and_b32 v14, 3, v7")
    k("v_lshl_add_u32 v13, v14, 1, v13")
    k("v_lshl_add_u32 v13, v8, 6, v13")
    k("s_mov_b32 s59, 0x%x" % WS_V)
    for r in range(8, 16):
        d = (r & 3) + 8 * ((r >> 2) - 2)
        src = CS + r // 2
        op = "buffer_store_short" if r % 2 == 0 else "buffer_store_short_d16_hi"
        k("%s v%d, v13, s[20:23], s59 offen offset:%d" % (op, src, d * 16))
    k.lab(end)
    return k


def gen_B():
    k = Kern("attn_kernel", 128, 1024, 256, 163840)
    end = k.newlab("end")
    k("s_cmp_ge_u32 s2, 256")
    k("s_cbranch_scc1 %s" % end)
    k.tsb = 4
    k.ts(0)
    k("s_load_dwordx2 s[32:33], s[0:1], 88")
    k("s_load_dwordx4 s[36:39], s[0:1], 48")
    k("s_load_dwordx2 s[40:41], s[0:1], 64")
    k("s_load_dwordx2 s[42:43], s[0:1], 32")
    k("v_and_b32 v1, 63, v0")
    k("v_lshrrev_b32 v2, 6, v0")
    k("s_nop 1")
    k("v_readfirstlane_b32 s3, v2")
    k("v_and_b32 v2, 31, v1")
    k("v_lshlrev_b32 v2, 5, v2")
    k("v_lshrrev_b32 v3, 5, v1")
    k("v_lshl_add_u32 v2, v3, 4, v2")
    k("v_lshlrev_b32 v8, 4, v1")
    k("s_and_b32 s48, s3, 7")
    k("s_lshr_b32 s49, s3, 3")
    k("s_lshl_b32 s50, s2, 3")
    k("s_add_u32 s50, s50, s48")
    k("s_lshl_b32 s51, s50, 10")
    k("s_add_u32 s51, s51, 0x%x" % WS_Q)
    k("s_lshr_b32 s52, s3, 3")
    k("s_lshl_b32 s52, s52, 15")
    k("s_and_b32 s53, s3, 7")
    k("s_lshl_b32 s53, s53, 10")
    k("s_add_u32 s52, s52, s53")
    k("s_waitcnt lgkmcnt(0)")
    k.srd(20, 32, WS_SIZE)
    QF = 4
    k("buffer_load_dwordx4 %s, v2, s[20:23], s51 offen" % vr(QF, 4))
    if FUSED:
        zl = k.newlab("zf")
        k("s_lshr_b32 s60, s3, 3")
        k("s_lshl_b32 s60, s60, 8")
        k("s_add_u32 s60, s60, s2")
        k("s_cmp_ge_u32 s60, 16")
        k("s_cbranch_scc1 %s" % zl)
        k("s_lshl_b32 s60, s2, 13")
        k("s_lshl_b32 s61, s3, 10")
        k("s_add_u32 s60, s60, s61")
        k("s_add_u32 s60, s60, 0x%x" % WS_FL)
        for i in range(4):
            k("v_mov_b32 v%d, 0" % (12 + i))
        k("buffer_store_dwordx4 v[12:15], v8, s[20:23], s60 offen")
        k.lab(zl)
    k("s_lshl_b32 s54, s49, 7")
    k("s_add_u32 s54, s54, 0x%x" % WS_KM)
    k("s_add_u32 s56, s32, s54")
    k("s_addc_u32 s57, s33, 0")
    k("s_load_dwordx16 s[64:79], s[56:57], 0")
    k("s_load_dwordx16 s[80:95], s[56:57], 64")
    for j in range(4):
        for ss in range(2):
            k("s_add_u32 m0, s52, %d" % (ss * 65536 + j * 8192))
            k("s_add_u32 s53, s52, 0x%x" % (WS_K + ss * 65536 + j * 8192))
            k("buffer_load_dwordx4 v8, s[20:23], s53 offen lds")
    k("s_lshl_b32 s54, s49, 15")
    k("v_add_u32 v9, s54, v8")
    k("v_and_b32 v10, 15, v1")
    k("v_lshlrev_b32 v10, 4, v10")
    k("v_lshl_add_u32 v10, v3, 8, v10")
    k("v_add_u32 v10, s54, v10")
    k("v_add_u32 v10, 0x10000, v10")
    NEG, SA, SB, O, PK, KF, VF = 16, 32, 48, 64, 80, 88, 100
    M = 11
    for i in range(16):
        k("v_mov_b32 v%d, 0x3f803f80" % (VF + i))
    k("s_mov_b32 s58, 0xffff")
    k("s_mov_b32 s59, 0xffff")
    k("s_waitcnt lgkmcnt(0)")
    for i in range(1, 32):
        k("s_max_u32 s64, s64, s%d" % (64 + i))
    k("v_mov_b32 v12, 0")
    k("s_waitcnt vmcnt(8)")
    for i in range(4):
        k("v_dot2c_f32_bf16 v12, v%d, v%d" % (QF + i, QF + i))
    k("s_nop 4")
    k("v_mov_b32 v13, v12")
    k("s_nop 1")
    k("v_permlane32_swap_b32 v12, v13")
    k("s_nop 1")
    k("v_add_f32 v12, v12, v13")
    k("v_mul_f32 v12, s64, v12")
    k("v_sqrt_f32 v%d, v12" % M)
    k("s_nop 1")
    for i in range(16):
        k("v_xor_b32 v%d, 0x80000000, v%d" % (NEG + i, M))
    S = [SA, SB]
    NT = 32

    RP, RQ = 116, 124

    def repack_issue():
        l_dn, l_go = k.newlab("rdn"), k.newlab("rgo")
        k("s_cmp_ge_u32 s64, 2752")
        k("s_cbranch_scc1 %s" % l_dn)
        k("s_lshr_b32 s65, s64, 5")
        k("s_and_b32 s66, s64, 31")
        k("s_cmp_ge_u32 s65, 43")
        k("s_cselect_b32 s67, 1, 0")
        k("s_cselect_b32 s84, s38, s36")
        k("s_cselect_b32 s85, s39, s37")
        k("s_mul_i32 s68, s67, 43")
        k("s_sub_u32 s65, s65, s68")
        k("s_mul_i32 s68, s65, 171")
        k("s_lshr_b32 s68, s68, 9")
        k("s_mul_i32 s69, s68, 3")
        k("s_sub_u32 s69, s65, s69")
        k("s_mul_i32 s70, s66, 6")
        k("s_mul_i32 s71, s67, 3")
        k("s_add_u32 s70, s70, s71")
        k("s_add_u32 s70, s70, s69")
        k("s_mul_i32 s71, s69, %d" % ((32 - KS1) * 2))
        k("s_lshl_b32 s72, s66, 1")
        k("s_add_u32 s71, s71, s72")
        k("s_add_u32 s71, s71, s67")
        k("s_add_u32 s71, s71, %d" % (KS1 * 6 - 2 * KS1))
        k("s_cmp_lt_u32 s66, %d" % KS1)
        k("s_cselect_b32 s70, s70, s71")
        k("s_lshl_b32 s70, s70, 10")
        k("s_mul_i32 s90, s68, 196608")
        k("s_add_u32 s90, s90, s70")
        k("s_add_u32 s90, s90, 0x%x" % WS_WG)
        k("s_mov_b32 s86, %d" % (512 * 2752))
        k("s_mov_b32 s89, 2752")
        k("s_branch %s" % l_go)
        k.lab(l_dn)
        k("s_sub_u32 s64, s64, 2752")
        k("s_cmp_ge_u32 s64, 1376")
        k("s_cselect_b32 s84, s42, s40")
        k("s_cselect_b32 s85, s43, s41")
        k("s_mov_b32 s86, %d" % (1376 * 1024))
        k("s_mov_b32 s68, %d" % (86 * 2048))
        k("s_mov_b32 s90, 0x%x" % WS_WD)
        k("s_cselect_b32 s86, %d, s86" % (512 * 1024))
        k("s_cselect_b32 s67, 1376, 0")
        k("s_cselect_b32 s68, 65536, s68")
        k("s_cselect_b32 s90, 0x%x, s90" % WS_WO)
        k("s_sub_u32 s64, s64, s67")
        k("s_lshr_b32 s66, s64, 4")
        k("s_and_b32 s65, s64, 15")
        k("s_lshr_b32 s69, s65, 1")
        k("s_mul_i32 s69, s69, s68")
        k("s_add_u32 s90, s90, s69")
        k("s_lshl_b32 s69, s66, 11")
        k("s_add_u32 s90, s90, s69")
        k("s_and_b32 s69, s65, 1")
        k("s_lshl_b32 s69, s69, 10")
        k("s_add_u32 s90, s90, s69")
        k("s_mov_b32 s89, 1024")
        k.lab(l_go)
        k("s_and_b32 s85, s85, 0xffff")
        k("s_mov_b32 s87, %s" % SRD3)
        k("s_mul_i32 s88, s66, s89")
        k("s_lshl_b32 s88, s88, 4")
        k("s_lshl_b32 s69, s65, 6")
        k("s_add_u32 s88, s88, s69")
        k("s_lshl_b32 s69, s89, 3")
        k("v_mul_u32_u24 v14, s69, v3")
        k("v_and_b32 v15, 31, v1")
        k("v_lshl_add_u32 v14, v15, 1, v14")
        for j in range(8):
            k("buffer_load_ushort v%d, v14, s[84:87], s88 offen" % (RP + j))
            if j < 7:
                k("s_add_u32 s88, s88, s89")

    def repack_store():
        k("s_waitcnt vmcnt(0)")
        for q in range(4):
            k("v_lshl_or_b32 v%d, v%d, 16, v%d" % (RQ + q, RP + 2 * q + 1, RP + 2 * q))
        k("buffer_store_dwordx4 %s, v8, s[20:23], s90 offen" % vr(RQ, 4))

    EXPB = os.environ.get("EXPB", "")
    PRIO = int(os.environ.get("PRIO", "1"))
    RT = [int(x) for x in os.environ.get("RT", "1,12,24").split(",")]
    repack_wait = [False]
    def rdV(t):
        if "noV" in EXPB and t > 1:
            k("ds_read_b32 v15, v10"); k("ds_read_b32 v15, v10")
            return
        k("s_mov_b64 exec, s[58:59]")
        k("ds_read_b128 %s, v10 offset:%d" % (vr(VF + 8 * (t % 2), 4), t * 1024))
        k("ds_read_b128 %s, v10 offset:%d" % (vr(VF + 8 * (t % 2) + 4, 4), t * 1024 + 512))
        k("s_mov_b64 exec, -1")

    def pass2(bars):
        if bars:
            k("s_waitcnt vmcnt(6)")
            k("s_barrier")
            k.ts(1)
        k("ds_read_b128 %s, v9 offset:0" % vr(KF, 4))
        k("ds_read_b128 %s, v9 offset:1024" % vr(KF + 4, 4))
        rdV(0)
        k("s_waitcnt lgkmcnt(3)")
        k("v_mfma_f32_32x32x16_bf16 %s, %s, %s, %s" % (vr(S[0], 16), vr(KF, 4), vr(QF, 4), vr(NEG, 16)))
        for t in range(NT):
            n_new = 0
            if bars and t == 8: k.ts(2)
            if bars and t == 16: k.ts(3)
            if bars and t == 23: k.ts(4)
            if bars and PRIO and t % 8 in (0, 2, 4, 6):
                k("s_setprio %d" % (3 - ((t + 2) % 8) // 2 if PRIO == 1 else 3 - (t % 8) // 2))
            if bars and t == RT[0]:
                k("s_lshl_b32 s64, s2, 4")
                k("s_add_u32 s64, s64, s3")
                repack_issue()
            if bars and t == RT[1]:
                repack_store()
                k.ts(5)
                nr2 = k.newlab("nr2")
                k("s_lshl_b32 s64, s3, 8")
                k("s_add_u32 s64, s64, s2")
                k("s_cmp_ge_u32 s64, 544")
                k("s_cbranch_scc1 %s" % nr2)
                k("s_add_u32 s64, s64, 4096")
                repack_issue()
                repack_wait[0] = True
                k.lab(nr2)
            if bars and t == int(os.environ.get("WBT", "27")):
                nwb = k.newlab("nwb")
                k("s_lshl_b32 s64, s3, 8")
                k("s_add_u32 s64, s64, s2")
                k("s_cmp_ge_u32 s64, 8")
                k("s_cbranch_scc1 %s" % nwb)
                k("buffer_wbl2 sc1")
                k.lab(nwb)
            if bars and t == RT[2]:
                nr3 = k.newlab("nr3")
                k("s_lshl_b32 s64, s3, 8")
                k("s_add_u32 s64, s64, s2")
                k("s_cmp_ge_u32 s64, 544")
                k("s_cbranch_scc1 %s" % nr3)
                repack_store()
                k.lab(nr3)
            if t + 2 < NT:
                if bars and (t + 2) % 8 == 0:
                    young = 8 if RT[0] <= t < RT[1] else 0
                    if t >= RT[1]:
                        pass
                    else:
                        k("s_waitcnt vmcnt(%d)" % (6 - 2 * ((t + 2) // 8) + young))
                    k("s_barrier")
                k("ds_read_b128 %s, v9 offset:%d" % (vr(KF + 4 * ((t + 2) % 3), 4), (t + 2) * 1024))
                n_new += 1
            if t + 1 < NT:
                k("s_waitcnt lgkmcnt(%d)" % (2 + n_new))
                k("v_mfma_f32_32x32x16_bf16 %s, %s, %s, %s" % (vr(S[(t + 1) % 2], 16), vr(KF + 4 * ((t + 1) % 3), 4), vr(QF, 4), vr(NEG, 16)))
            if t == 0:
                k("s_nop 10")
            s = S[t % 2]
            for i in range(16):
                if "noexp" in EXPB and i >= 8: continue
                k("v_exp_f32 v%d, v%d" % (s + i, s + i))
                if "xtra" in EXPB: k("v_fma_f32 v15, v15, v15, v15")
                if "xtr2" in EXPB: k("v_fma_f32 v15, v15, v15, v15"); k("v_fma_f32 v14, v14, v14, v14")
            for i in range(8):
                if "nocvt" in EXPB: continue
                k("v_cvt_pk_bf16_f32 v%d, v%d, v%d" % (PK + i, s + 2 * i, s + 2 * i + 1))
            k("s_waitcnt lgkmcnt(%d)" % n_new)
            if "nopv" not in EXPB or t == 0:
                k("v_mfma_f32_32x32x16_bf16 %s, %s, %s, %s" % (vr(O, 16), vr(VF + 8 * (t % 2), 4), vr(PK, 4), "0" if t == 0 else vr(O, 16)))
                k("v_mfma_f32_32x32x16_bf16 %s, %s, %s, %s" % (vr(O, 16), vr(VF + 8 * (t % 2) + 4, 4), vr(PK + 4, 4), vr(O, 16)))
            if t + 1 < NT:
                rdV(t + 1)
    pass2(True)
    k.ts(6)
    k("s_nop 15")
    k("v_cmp_gt_f32 vcc, 0x%08x, v%d" % ((127 - 64) << 23, O + 8))
    k("v_cmp_u_f32 s[60:61], v%d, v%d" % (O + 8, O + 8))
    k("s_or_b64 vcc, vcc, s[60:61]")
    comb = k.newlab("comb")
    k("s_cbranch_vccz %s" % comb)
    k("v_mov_b32 v%d, 0xff800000" % M)
    k("ds_read_b128 %s, v9 offset:0" % vr(KF, 4))
    k("ds_read_b128 %s, v9 offset:1024" % vr(KF + 4, 4))
    k("s_waitcnt lgkmcnt(1)")
    k("v_mfma_f32_32x32x16_bf16 %s, %s, %s, 0" % (vr(S[0], 16), vr(KF, 4), vr(QF, 4)))
    for t in range(NT):
        if t + 2 < NT:
            k("ds_read_b128 %s, v9 offset:%d" % (vr(KF + 4 * ((t + 2) % 3), 4), (t + 2) * 1024))
        if t + 1 < NT:
            k("s_waitcnt lgkmcnt(%d)" % (1 if t + 2 < NT else 0))
            k("v_mfma_f32_32x32x16_bf16 %s, %s, %s, 0" % (vr(S[(t + 1) % 2], 16), vr(KF + 4 * ((t + 1) % 3), 4), vr(QF, 4)))
        k("s_nop 10" if t == 0 else "s_nop 3")
        s = S[t % 2]
        for i in range(8):
            k("v_max3_f32 v%d, v%d, v%d, v%d" % (M, s + 2 * i, s + 2 * i + 1, M))
    k("v_mov_b32 v12, v%d" % M)
    k("s_nop 1")
    k("v_permlane32_swap_b32 v%d, v12" % M)
    k("s_nop 1")
    k("v_max_f32 v%d, v%d, v12" % (M, M))
    for i in range(16):
        k("v_xor_b32 v%d, 0x80000000, v%d" % (NEG + i, M))
    k("s_nop 1")
    pass2(False)
    k("s_nop 15")
    k.lab(comb)
    k("s_mul_i32 s60, s48, 2560")
    k("s_add_u32 s60, s60, 0x20000")
    k("v_lshlrev_b32 v12, 2, v1")
    k("v_add_u32 v12, s60, v12")
    w1 = k.newlab("w1")
    k("s_cmp_eq_u32 s49, 0")
    k("s_cbranch_scc1 %s" % w1)
    for i in range(9):
        k("ds_write_b32 v12, v%d offset:%d" % (O + i, i * 256))
    k("ds_write_b32 v12, v%d offset:%d" % (M, 9 * 256))
    k("s_waitcnt lgkmcnt(0)")
    k("s_barrier")
    k("s_branch %s" % end)
    k.lab(w1)
    k("s_barrier")
    for i in range(9):
        k("ds_read_b32 v%d, v12 offset:%d" % (SA + i, i * 256))
    k("ds_read_b32 v%d, v12 offset:%d" % (SA + 9, 9 * 256))
    k("s_waitcnt lgkmcnt(0)")
    m1 = SA + 9
    k("v_max_f32 v13, v%d, v%d" % (M, m1))
    k("v_sub_f32 v14, v%d, v13" % M)
    k("v_sub_f32 v15, v%d, v13" % m1)
    k("v_exp_f32 v14, v14")
    k("v_exp_f32 v15, v15")
    k("s_nop 1")
    for i in range(9):
        k("v_mul_f32 v%d, v14, v%d" % (O + i, O + i))
    for i in range(9):
        k("v_fma_f32 v%d, v15, v%d, v%d" % (O + i, SA + i, O + i))
    k("v_rcp_f32 v13, v%d" % (O + 8))
    k("s_nop 1")
    for i in range(8):
        k("v_mul_f32 v%d, v13, v%d" % (O + i, O + i))
    for i in range(4):
        k("v_cvt_pk_bf16_f32 v%d, v%d, v%d" % (PK + i, O + 2 * i, O + 2 * i + 1))
    k("v_and_b32 v2, 31, v1")
    k("v_lshlrev_b32 v2, 5, v2")
    k("v_lshl_add_u32 v2, v3, 3, v2")
    k("s_lshl_b32 s51, s50, 10")
    k("s_add_u32 s51, s51, 0x%x" % WS_O)
    k("buffer_store_dwordx2 %s, v2, s[20:23], s51 offen" % vr(PK, 2))
    k("buffer_store_dwordx2 %s, v2, s[20:23], s51 offen offset:16" % vr(PK + 2, 2))
    k.ts(7)
    k.ts_flush(8)
    k.lab(end)
    return k


def gen_gemm64(name, x_ws_off, ldx, w_karg, K, resid, outp, S=4, stats=False):
    lds = S * 32768
    k = Kern(name, 128, 256, 256, lds)
    end = k.newlab("end")
    k("s_cmp_ge_u32 s2, 256")
    k("s_cbranch_scc1 %s" % end)
    k.ts(0)
    k("s_load_dwordx2 s[24:25], s[0:1], %d" % w_karg)
    k("s_load_dwordx2 s[32:33], s[0:1], 88")
    if resid[0] == 'karg':
        k("s_load_dwordx2 s[26:27], s[0:1], %d" % resid[1])
    if outp[0] == 'karg':
        k("s_load_dwordx2 s[28:29], s[0:1], %d" % outp[1])
    k("v_and_b32 v1, 63, v0")
    k("v_lshrrev_b32 v2, 6, v0")
    k("s_nop 1")
    k("v_readfirstlane_b32 s3, v2")
    k("s_and_b32 s48, s2, 7")
    k("s_lshl_b32 s48, s48, 2")
    k("s_bfe_u32 s49, s2, 0x20003")
    k("s_add_u32 s48, s48, s49")
    k("s_lshr_b32 s49, s2, 5")
    k("s_waitcnt lgkmcnt(0)")
    k.srd(8, 24, K * 1024)
    k.srd(20, 32, WS_SIZE)
    if resid[0] == 'karg':
        k.srd(12, 26, 2048 * 1024)
        rs, roff = 12, 0
    else:
        rs, roff = 20, resid[1]
    if outp[0] == 'karg':
        k.srd(16, 28, 2048 * 1024)
        os_, ooff = 16, 0
    else:
        os_, ooff = 20, outp[1]
    k("v_lshrrev_b32 v3, 4, v1")
    k("s_lshl_b32 s50, s3, 2")
    k("v_add_u32 v3, s50, v3")
    k("v_and_b32 v4, 15, v1")
    k("v_xor_b32 v4, v4, v3")
    k("v_lshlrev_b32 v4, 4, v4")
    k("s_lshl_b32 s51, s48, 6")
    k("v_add_u32 v3, s51, v3")
    k("v_mul_u32_u24 v3, %d, v3" % ldx)
    k("v_add_u32 v4, v3, v4")
    k("v_lshrrev_b32 v3, 3, v1")
    k("s_lshl_b32 s50, s3, 3")
    k("v_add_u32 v3, s50, v3")
    k("v_and_b32 v5, 7, v1")
    k("v_bfe_u32 v6, v1, 4, 1")
    k("v_lshlrev_b32 v6, 2, v6")
    k("v_xor_b32 v5, v5, v6")
    k("v_lshlrev_b32 v5, 4, v5")
    k("v_lshl_add_u32 v5, v3, 10, v5")
    k("s_lshl_b32 s50, s49, 7")
    k("v_add_u32 v5, s50, v5")
    k("s_lshl_b32 s52, s3, 10")
    chunks = []
    kk = 0
    while kk < K:
        c = min(128, K - kk)
        chunks.append((kk, c))
        kk += c
    NC = len(chunks)

    def issue(c):
        k0, kc = chunks[c]
        st = (c % S) * 32768
        n = 0
        for j in range(4):
            k("s_add_u32 m0, s52, %d" % (st + j * 4096))
            k("s_mov_b32 s54, %d" % (x_ws_off + j * 16 * ldx + k0 * 2))
            k("buffer_load_dwordx4 v4, s[20:23], s54 offen lds")
            n += 1
        for j in range(kc // 32):
            k("s_add_u32 m0, s52, %d" % (st + 16384 + j * 4096))
            k("s_mov_b32 s54, %d" % ((k0 + 32 * j) * 1024))
            k("buffer_load_dwordx4 v5, s[8:11], s54 offen lds")
            n += 1
        return n
    cnt = {}
    for c in range(min(S - 1, NC)):
        cnt[c] = issue(c)
    k("s_and_b32 s56, s3, 1")
    k("s_lshr_b32 s57, s3, 1")
    k("v_and_b32 v7, 31, v1")
    k("s_lshl_b32 s58, s56, 5")
    k("v_add_u32 v7, s58, v7")
    k("v_lshrrev_b32 v8, 5, v1")
    k("v_and_b32 v9, 15, v7")
    k("v_xor_b32 v9, v9, v8")
    k("v_lshlrev_b32 v9, 4, v9")
    k("v_lshl_add_u32 v9, v7, 8, v9")
    XA = 16
    for ks in range(8):
        k("v_xor_b32 v%d, %d, v9" % (XA + ks, ks * 32))
    k("v_lshrrev_b32 v11, 5, v1")
    k("v_lshlrev_b32 v11, 3, v11")
    k("v_bfe_u32 v10, v1, 2, 2")
    k("v_add_u32 v11, v11, v10")
    k("v_bfe_u32 v10, v1, 4, 1")
    k("v_lshlrev_b32 v10, 5, v10")
    k("v_and_b32 v12, 3, v1")
    k("v_lshl_add_u32 v10, v12, 3, v10")
    k("s_lshl_b32 s58, s57, 6")
    k("v_add_u32 v10, s58, v10")
    k("v_bfe_u32 v12, v1, 3, 1")
    k("v_lshlrev_b32 v12, 6, v12")
    k("v_xor_b32 v10, v10, v12")
    k("v_lshl_add_u32 v10, v11, 7, v10")
    k("v_add_u32 v10, 0x4000, v10")
    k("s_lshl_b32 s58, s56, 5")
    k("s_add_u32 s58, s58, s51")
    k("v_and_b32 v13, 31, v1")
    k("v_add_u32 v13, s58, v13")
    k("v_lshlrev_b32 v12, 3, v8")
    k("v_lshl_add_u32 v12, v13, 10, v12")
    k("s_lshl_b32 s59, s49, 7")
    k("s_lshl_b32 s60, s57, 6")
    k("s_add_u32 s59, s59, s60")
    ACC, RES, XC, WC = 32, 48, 24, 14
    BF, AF = 64, 96
    for c in range(NC):
        k0, kc = chunks[c]
        st = (c % S) * 32768
        later = sum(cnt[cc] for cc in range(c + 1, min(c + S - 1, NC)))
        k("s_waitcnt vmcnt(%d)" % later)
        k("s_barrier")
        if c < 11: k.ts(1 + c)
        if c + S - 1 < NC:
            cnt[c + S - 1] = issue(c + S - 1)
        if c == NC - 1:
            k("s_add_u32 s60, s59, 0x%x" % roff)
            for q in range(4):
                k("buffer_load_dwordx2 %s, v12, s[%d:%d], s60 offen offset:%d" % (vr(RES + 2 * q, 2), rs, rs + 3, 16 * q))
        nks = kc // 16
        hi = st >= 65536
        if hi or st + 16384 + 16384 > 65536:
            pass
        for ks in range(nks):
            k("v_add_u32 v%d, %d, v%d" % (XC + ks, st, XA + ks))
        k("v_add_u32 v%d, %d, v10" % (WC, st))
        for ks in range(nks):
            k("ds_read_b128 %s, v%d" % (vr(BF + 4 * ks, 4), XC + ks))
            k("ds_read_b64_tr_b16 %s, v%d offset:%d" % (vr(AF + 4 * ks, 2), WC, ks * 2048))
            k("ds_read_b64_tr_b16 %s, v%d offset:%d" % (vr(AF + 4 * ks + 2, 2), WC, ks * 2048 + 512))
        for ks in range(nks):
            k("s_waitcnt lgkmcnt(%d)" % min(15, 3 * (nks - 1 - ks)))
            first = (c == 0 and ks == 0)
            k("v_mfma_f32_32x32x16_bf16 %s, %s, %s, %s" % (vr(ACC, 16), vr(AF + 4 * ks, 4), vr(BF + 4 * ks, 4), "0" if first else vr(ACC, 16)))
    k.ts(12)
    k("s_waitcnt vmcnt(0)")
    k("s_nop 15")
    for q in range(4):
        for d in range(2):
            r = RES + 2 * q + d
            k("v_lshlrev_b32 v%d, 16, v%d" % (BF, r))
            k("v_and_b32 v%d, 0xffff0000, v%d" % (BF + 1, r))
            k("v_add_f32 v%d, v%d, v%d" % (ACC + 4 * q + 2 * d, ACC + 4 * q + 2 * d, BF))
            k("v_add_f32 v%d, v%d, v%d" % (ACC + 4 * q + 2 * d + 1, ACC + 4 * q + 2 * d + 1, BF + 1))
    for r in range(8):
        k("v_cvt_pk_bf16_f32 v%d, v%d, v%d" % (RES + r, ACC + 2 * r, ACC + 2 * r + 1))
    if not stats or os.environ.get("HROW"):
        k("s_add_u32 s60, s59, 0x%x" % ooff)
        for q in range(4):
            k("buffer_store_dwordx2 %s, v12, s[%d:%d], s60 offen offset:%d" % (vr(RES + 2 * q, 2), os_, os_ + 3, 16 * q))
    if stats:
        T = AF
        k("v_and_b32 v%d, 31, v1" % (T + 7))
        k("v_lshlrev_b32 v%d, 4, v%d" % (T + 7, T + 7))
        k("v_lshl_add_u32 v%d, v8, 3, v%d" % (T + 7, T + 7))
        k("s_lshl_b32 s60, s48, 1")
        k("s_add_u32 s60, s60, s56")
        k("s_lshl_b32 s60, s60, 5")
        k("s_lshl_b32 s61, s49, 2")
        k("s_add_u32 s60, s60, s61")
        k("s_lshl_b32 s61, s57, 1")
        k("s_add_u32 s60, s60, s61")
        k("s_lshl_b32 s60, s60, 10")
        k("s_add_u32 s60, s60, 0x%x" % WS_HP)
        for q in range(4):
            k("buffer_store_dwordx2 %s, v%d, s[20:23], s60 offen offset:%d" % (vr(RES + 2 * q, 2), T + 7, (q >> 1) * 1024 + (q & 1) * 512))
        k("v_mov_b32 v%d, 0x3f803f80" % T)
        for i in range(4):
            k("v_mov_b32 v%d, 0" % (T + 2 + i))
        for r in range(8):
            k("v_dot2c_f32_bf16 v%d, v%d, v%d" % (T + 2 + (r & 1), RES + r, T))
            k("v_dot2c_f32_bf16 v%d, v%d, v%d" % (T + 4 + (r & 1), RES + r, RES + r))
        k("s_nop 4")
        k("v_add_f32 v%d, v%d, v%d" % (T + 2, T + 2, T + 3))
        k("v_add_f32 v%d, v%d, v%d" % (T + 3, T + 4, T + 5))
        k("v_mov_b32 v%d, v%d" % (T + 4, T + 2))
        k("v_mov_b32 v%d, v%d" % (T + 5, T + 3))
        k("s_nop 1")
        k("v_permlane32_swap_b32 v%d, v%d" % (T + 2, T + 4))
        k("v_permlane32_swap_b32 v%d, v%d" % (T + 3, T + 5))
        k("s_nop 1")
        k("v_add_f32 v%d, v%d, v%d" % (T + 2, T + 2, T + 4))
        k("v_add_f32 v%d, v%d, v%d" % (T + 3, T + 3, T + 5))
        k("v_lshlrev_b32 v%d, 7, v13" % (T + 6))
        k("s_lshl_b32 s60, s49, 1")
        k("s_add_u32 s60, s60, s57")
        k("s_lshl_b32 s60, s60, 3")
        k("s_add_u32 s60, s60, 0x%x" % WS_ST)
        k("v_cmp_gt_u32 vcc, 32, v1")
        k("s_and_saveexec_b64 s[62:63], vcc")
        k("buffer_store_dwordx2 %s, v%d, s[20:23], s60 offen" % (vr(T + 2, 2), T + 6))
        k("s_mov_b64 exec, s[62:63]")
    k.ts(13)
    k.ts_flush(14)
    k.lab(end)
    return k


def gen_C():
    return gen_gemm64("wo_kernel", WS_O, 1024, 32, 512, ('karg', 0), ('ws', WS_H), stats=True)


def gen_E():
    S = int(os.environ.get("ES", "4"))
    NKS = 86
    NC = (NKS + 7) // 8
    k = Kern("down_kernel", 128, 256, 256, S * 32768)
    end = k.newlab("end")
    k("s_cmp_ge_u32 s2, 256")
    k("s_cbranch_scc1 %s" % end)
    k.ts(0)
    k("s_load_dwordx2 s[32:33], s[0:1], 88")
    k("s_load_dwordx2 s[28:29], s[0:1], 72")
    k("v_and_b32 v1, 63, v0")
    k("v_lshrrev_b32 v2, 6, v0")
    k("s_nop 1")
    k("v_readfirstlane_b32 s3, v2")
    k("s_and_b32 s48, s2, 7")
    k("s_lshl_b32 s48, s48, 2")
    k("s_bfe_u32 s49, s2, 0x20003")
    k("s_add_u32 s48, s48, s49")
    k("s_lshr_b32 s49, s2, 5")
    k("s_and_b32 s56, s3, 1")
    k("s_lshr_b32 s57, s3, 1")
    k("v_lshlrev_b32 v4, 4, v1")
    k("s_lshl_b32 s50, s56, 13")
    k("s_lshl_b32 s51, s57, 12")
    k("s_add_u32 s50, s50, s51")
    k("s_lshl_b32 s52, s48, 1")
    k("s_add_u32 s52, s52, s56")
    k("s_mul_i32 s52, s52, %d" % (NKS * 1024))
    k("s_add_u32 s52, s52, s51")
    k("s_add_u32 s52, s52, 0x%x" % WS_ACT)
    k("s_lshl_b32 s53, s3, 12")
    k("s_mul_i32 s55, s49, %d" % (NKS * 2048))
    k("s_add_u32 s55, s55, s53")
    k("s_add_u32 s55, s55, 0x%x" % WS_WD)
    k("s_add_u32 s53, s53, 16384")
    k("s_lshl_b32 s58, s48, 6")
    k("s_lshl_b32 s59, s56, 5")
    k("s_add_u32 s58, s58, s59")
    k("v_and_b32 v13, 31, v1")
    k("v_add_u32 v13, s58, v13")
    k("v_lshrrev_b32 v8, 5, v1")
    k("v_lshlrev_b32 v12, 3, v8")
    k("v_lshl_add_u32 v12, v13, 10, v12")
    k("s_lshl_b32 s59, s49, 7")
    k("s_lshl_b32 s60, s57, 6")
    k("s_add_u32 s59, s59, s60")
    k("v_and_b32 v14, 31, v1")
    k("v_lshlrev_b32 v14, 4, v14")
    k("v_lshl_add_u32 v14, v8, 3, v14")
    k("s_lshl_b32 s60, s48, 1")
    k("s_add_u32 s60, s60, s56")
    k("s_lshl_b32 s60, s60, 5")
    k("s_lshl_b32 s61, s49, 2")
    k("s_add_u32 s60, s60, s61")
    k("s_lshl_b32 s61, s57, 1")
    k("s_add_u32 s60, s60, s61")
    k("s_lshl_b32 s60, s60, 10")
    k("s_add_u32 s60, s60, 0x%x" % WS_HP)
    k("s_waitcnt lgkmcnt(0)")
    k.srd(20, 32, WS_SIZE)
    k.srd(16, 28, 2048 * 1024)
    ACC, RES, FR = 32, 48, 64
    for q in range(4):
        k("buffer_load_dwordx2 %s, v14, s[20:23], s60 offen offset:%d" % (vr(RES + 2 * q, 2), (q >> 1) * 1024 + (q & 1) * 512))

    def issue(c):
        st = (c % S) * 32768
        for j in range(4):
            k("s_add_u32 m0, s50, %d" % (st + j * 1024))
            k("s_add_u32 s54, s52, %d" % (c * 8192 + j * 1024))
            k("buffer_load_dwordx4 v4, s[20:23], s54 offen lds")
        for j in range(4):
            k("s_add_u32 m0, s53, %d" % (st + j * 1024))
            k("s_add_u32 s54, s55, %d" % (c * 16384 + j * 1024))
            k("buffer_load_dwordx4 v4, s[20:23], s54 offen lds")
    for c in range(S - 1):
        issue(c)
    k("s_lshl_b32 s61, s56, 13")
    k("s_lshl_b32 s62, s57, 10")
    k("s_add_u32 s62, s62, 16384")
    for i in range(3):
        k("v_add_u32 v%d, s61, v4" % (16 + i))
        k("v_add_u32 v%d, s62, v4" % (20 + i))
        k("s_add_u32 s61, s61, 65536")
        k("s_add_u32 s62, s62, 65536")

    def rd(g):
        c, ks = g // 8, g % 8
        st = (c % S) * 32768
        ob, oa = st + ks * 1024, st + ks * 2048
        k("ds_read_b128 %s, v%d offset:%d" % (vr(FR + 8 * (g % 4), 4), 20 + st // 65536, oa % 65536))
        k("ds_read_b128 %s, v%d offset:%d" % (vr(FR + 8 * (g % 4) + 4, 4), 16 + st // 65536, ob % 65536))
    for c in range(NC):
        n = min(8, NKS - 8 * c)
        later = 8 * (min(c + S - 1, NC) - (c + 1))
        k("s_waitcnt vmcnt(%d)" % later)
        k("s_barrier")
        if c < 11: k.ts(1 + c)
        for ks in range(3):
            rd(8 * c + ks)
        if c + S - 1 < NC:
            issue(c + S - 1)
        for ks in range(n):
            g = 8 * c + ks
            k("s_waitcnt lgkmcnt(%d)" % (2 * min(2, n - 1 - ks)))
            k("v_mfma_f32_32x32x16_bf16 %s, %s, %s, %s" % (vr(ACC, 16), vr(FR + 8 * (g % 4), 4), vr(FR + 8 * (g % 4) + 4, 4), "0" if g == 0 else vr(ACC, 16)))
            if ks + 3 < n:
                rd(g + 3)
    k.ts(12)
    k("s_nop 15")
    BF = FR
    for q in range(4):
        for d in range(2):
            r = RES + 2 * q + d
            k("v_lshlrev_b32 v%d, 16, v%d" % (BF + 32, r))
            k("v_and_b32 v%d, 0xffff0000, v%d" % (BF + 33, r))
            k("v_add_f32 v%d, v%d, v%d" % (ACC + 4 * q + 2 * d, ACC + 4 * q + 2 * d, BF + 32))
            k("v_add_f32 v%d, v%d, v%d" % (ACC + 4 * q + 2 * d + 1, ACC + 4 * q + 2 * d + 1, BF + 33))
    for r in range(8):
        k("v_cvt_pk_bf16_f32 v%d, v%d, v%d" % (RES + r, ACC + 2 * r, ACC + 2 * r + 1))
    for q in range(4):
        k("buffer_store_dwordx2 %s, v12, s[16:19], s59 offen offset:%d" % (vr(RES + 2 * q, 2), 16 * q))
    k.ts(13)
    k.ts_flush(14)
    k.lab(end)
    return k


class VM:
    def __init__(s, k):
        s.k = k
        s.n = 0
    def issue(s):
        s.n += 1
        return s.n
    def wait(s, tok):
        if os.environ.get("EXP", "") == "nomem":
            return
        s.k("s_waitcnt vmcnt(%d)" % min(63, s.n - tok))


def gen_D():
    S = 10
    CH = 16384
    NCH = 12
    k = Kern("ffn1_kernel", 288, 256, 256, S * CH, accum=256)
    vm = VM(k)
    end = k.newlab("end")
    k("s_cmp_ge_u32 s2, 256")
    k("s_cbranch_scc1 %s" % end)
    k.ts(0)
    k("s_load_dwordx2 s[32:33], s[0:1], 88")
    k("v_and_b32 v1, 63, v0")
    k("v_lshrrev_b32 v2, 6, v0")
    k("s_nop 1")
    k("v_readfirstlane_b32 s3, v2")
    k("s_bfe_u32 s48, s2, 0x20001")
    k("s_lshl_b32 s48, s48, 2")
    k("s_bfe_u32 s49, s2, 0x20003")
    k("s_add_u32 s48, s48, s49")
    k("s_and_b32 s49, s2, 1")
    k("s_lshl_b32 s49, s49, 3")
    k("s_lshr_b32 s50, s2, 5")
    k("s_add_u32 s49, s49, s50")
    k("s_cmp_ge_u32 s49, 15")
    k("s_cbranch_scc1 %s" % end)
    k("v_and_b32 v2, 31, v1")
    k("v_lshrrev_b32 v3, 5, v1")
    k("s_lshl_b32 s50, s3, 5")
    k("s_lshl_b32 s51, s48, 7")
    k("s_add_u32 s50, s50, s51")
    k("v_add_u32 v2, s50, v2")
    k("s_lshl_b32 s57, s50, 10")
    k("v_lshlrev_b32 v6, 7, v2")
    k("v_lshl_add_u32 v6, v3, 6, v6")
    k("v_lshlrev_b32 v7, 4, v1")
    k("v_add_u32 v8, 0x10000, v7")
    k("v_add_u32 v9, 0x20000, v7")
    k("s_lshl_b32 s52, s3, 10")
    k("v_add_u32 v4, s52, v7")
    k("s_mul_i32 s53, s49, 196608")
    k("s_add_u32 s53, s53, 0x%x" % WS_WG)
    k("s_mov_b32 s55, 0x%x" % WS_ST)
    k("s_add_u32 s57, s57, 0x%x" % WS_HP)
    k("s_waitcnt lgkmcnt(0)")
    k.srd(20, 32, WS_SIZE)
    ACC, B, T = 16, 112, 240
    order = []
    for ks in range(KS1):
        for t in range(6):
            order.append((t, ks))
    for p in range(3):
        for ks in range(KS1, 32):
            order.append((p, ks))
            order.append((p + 3, ks))
    assert len(order) == 192
    tokA, tokB = {}, {}

    NOMEM = os.environ.get("EXP", "") == "nomem"
    vq = []

    def opA(c, j):
        def f():
            if NOMEM:
                tokA[c] = 0
                return
            k("s_add_u32 m0, s52, %d" % ((c % S) * CH + j * 4096))
            k("s_add_u32 s54, s53, %d" % (c * CH + j * 4096))
            k("buffer_load_dwordx4 v4, s[20:23], s54 offen lds")
            tokA[c] = vm.issue()
        return f

    def opB(g):
        def f():
            if NOMEM:
                tokB[g] = 0
                return
            k("s_add_u32 s56, s57, %d" % (g * 1024))
            k("buffer_load_dwordx4 %s, v7, s[20:23], s56 offen" % vr(B + 4 * g, 4))
            tokB[g] = vm.issue()
        return f
    nb = 0
    for c in range(NCH):
        need = max(ks for (t, ks) in order[:min(192, (c + 1) * 16 + 8)]) + 1
        while nb < need:
            vq.append((c, opB(nb))); nb += 1
        for j in range(4):
            vq.append((c, opA(c, j)))
    W = int(os.environ.get("W", "3"))

    def vflush(c):
        while vq and vq[0][0] <= c:
            vq.pop(0)[1]()

    def vstep(cur_chunk_x16):
        if vq and vq[0][0] * 16 <= cur_chunk_x16 + W * 16:
            vq.pop(0)[1]()
    for q in range(4):
        k("buffer_load_dwordx4 %s, v6, s[20:23], s55 offen offset:%d" % (vr(ACC + 4 * q, 4), 16 * q))
        tokS = vm.issue()
    vflush(W - 1)
    k.ts(1)
    vm.wait(tokS)
    for i in range(2, 8):
        k("v_add_f32 v%d, v%d, v%d" % (ACC + (i & 1), ACC + (i & 1), ACC + 2 * (i // 2) * 1 + (i & 1)) if False else "")
    for st in (8, 4, 2):
        for i in range(st):
            k("v_add_f32 v%d, v%d, v%d" % (ACC + i, ACC + i, ACC + i + st))
    k("v_mov_b32 v%d, v%d" % (ACC + 2, ACC))
    k("v_mov_b32 v%d, v%d" % (ACC + 3, ACC + 1))
    k("s_nop 1")
    k("v_permlane32_swap_b32 v%d, v%d" % (ACC, ACC + 2))
    k("v_permlane32_swap_b32 v%d, v%d" % (ACC + 1, ACC + 3))
    k("s_nop 1")
    k("v_add_f32 v%d, v%d, v%d" % (ACC, ACC, ACC + 2))
    k("v_add_f32 v%d, v%d, v%d" % (ACC + 1, ACC + 1, ACC + 3))
    k("v_mul_f32 v%d, %s, v%d" % (ACC, f32hex(1.0 / 512), ACC))
    k("v_mul_f32 v%d, %s, v%d" % (ACC + 1, f32hex(1.0 / 512), ACC + 1))
    k("v_fma_f32 v%d, -v%d, v%d, v%d" % (ACC + 1, ACC, ACC, ACC + 1))
    k("v_add_f32 v%d, %s, v%d" % (ACC + 1, f32hex(1e-5), ACC + 1))
    k("v_rsq_f32 v12, v%d" % (ACC + 1))
    k("s_nop 1")
    k("v_mov_b32 v13, v12")
    k("v_mul_f32 v14, v%d, v12" % ACC)
    k("v_xor_b32 v14, 0x80000000, v14")
    k("v_mov_b32 v15, v14")
    k("v_and_b32 v10, 31, v1")
    k("v_lshlrev_b32 v10, 4, v10")
    k("v_lshl_add_u32 v10, v3, 3, v10")
    k("s_lshr_b32 s59, s50, 5")
    k("s_mul_i32 s59, s59, 86")
    k("s_mul_i32 s58, s49, 6")
    k("s_add_u32 s59, s59, s58")
    k("s_lshl_b32 s59, s59, 10")
    k("s_add_u32 s59, s59, 0x%x" % WS_ACT)

    from collections import deque
    fq = deque()
    normed = set()

    def q_norm(g):
        def w():
            vm.wait(tokB[g])
        fq.append(("n", g, w))
        for r in range(4):
            t0 = T + 2 * (r & 3)
            b = B + 4 * g + r
            fq.append(("n", g, "v_lshlrev_b32 v%d, 16, v%d" % (t0, b)))
            fq.append(("n", g, "v_and_b32 v%d, 0xffff0000, v%d" % (t0 + 1, b)))
            fq.append(("n", g, "v_fma_f32 v%d, v%d, v12, v14" % (t0, t0)))
            fq.append(("n", g, "v_fma_f32 v%d, v%d, v12, v14" % (t0 + 1, t0 + 1)))
            fq.append(("n", g, "v_cvt_pk_bf16_f32 v%d, v%d, v%d" % (b, t0, t0 + 1)))

    def q_epi(p):
        G, U = ACC + 16 * p, ACC + 16 * (3 + p)
        E = T + 8 if False else T
        fq.append(("e", p, "s_nop 15"))
        for r in range(0, 16, 2):
            fq.append(("e", p, "v_pk_mul_f32 v[%d:%d], v[%d:%d], v[10+X:11+X]" % (E + r, E + r + 1, G + r, G + r + 1)))
    k("s_mov_b32 s60, %s" % f32hex(-LOG2E))
    k("s_mov_b32 s61, %s" % f32hex(-LOG2E))
    k("s_mov_b32 s62, 1.0")
    k("s_mov_b32 s63, 1.0")

    def q_epi(p):
        G, U = ACC + 16 * p, ACC + 16 * (3 + p)
        E = T
        L = []
        L.append("s_nop 15")
        for r in range(16):
            L.append("v_mul_f32 v%d, s60, v%d" % (E + r, G + r))
        for r in range(16):
            L.append("v_exp_f32 v%d, v%d" % (E + r, E + r))
        for r in range(16):
            L.append("v_mul_f32 v%d, v%d, v%d" % (G + r, G + r, U + r))
        for r in range(16):
            L.append("v_add_f32 v%d, 1.0, v%d" % (E + r, E + r))
        for r in range(16):
            L.append("v_rcp_f32 v%d, v%d" % (E + r, E + r))
        for r in range(16):
            L.append("v_mul_f32 v%d, v%d, v%d" % (G + r, G + r, E + r))
        for r in range(8):
            L.append("v_cvt_pk_bf16_f32 v%d, v%d, v%d" % (G + r, G + 2 * r, G + 2 * r + 1))
        for q in range(4):
            L.append("buffer_store_dwordx2 %s, v10, s[20:23], s%d offen offset:%d" % (vr(G + 2 * q, 2), (59, 58, 64)[p], (q >> 1) * 1024 + (q & 1) * 512))
        if os.environ.get("WBD", "1") == "1" and p < 2:
            L.append(("wb", p))
        for x in L:
            fq.append(("e", p, x))

    def emit_filler():
        kind, g, x = fq.popleft()
        if callable(x):
            x()
        elif isinstance(x, tuple):
            nwb = k.newlab("nwb")
            k("s_cmp_eq_u32 s65, 0")
            k("s_cbranch_scc1 %s" % nwb)
            k("buffer_wbl2 sc1")
            k.lab(nwb)
        else:
            if x.startswith("buffer_store") or x.startswith("buffer_wbl2"):
                vm.issue()
            EXP = os.environ.get("EXP", "")
            if EXP in ("nofill", "memonly") and x.startswith("v_"):
                return
            if EXP == "addfill" and x.startswith("v_"):
                x = "v_add_f32 v%d, 1.0, v%d" % (T + (len(k.L) % 8), T + (len(k.L) % 8))
            if EXP == "e32" and x.startswith("v_"):
                x = "v_lshlrev_b32 v%d, 16, v%d" % (T + (len(k.L) % 8), T + 8 + (len(k.L) % 8))
            k(x)

    def flush_norm(g):
        last = -1
        for i, (kind, gg, x) in enumerate(fq):
            if kind == "n" and gg <= g:
                last = i
        n = last + 1
        for _ in range(n):
            emit_filler()
        if n:
            k("s_nop 1")
    k("s_lshl_b32 s65, s3, 8")
    k("s_add_u32 s65, s65, s2")
    k("s_cmp_lt_u32 s65, 8")
    k("s_cselect_b32 s65, 1, 0")
    k("s_add_u32 s58, s59, 2048")
    k("s_add_u32 s64, s59, 4096")
    k("s_cmp_eq_u32 s49, 14")
    k("s_cselect_b32 s58, 0x%x, s58" % WS_DUMMY)
    k("s_cselect_b32 s64, 0x%x, s64" % WS_DUMMY)
    for g in range(32):
        q_norm(g)

    def read1(gi, j):
        c = gi // 4
        fi = gi * 4 + j
        lds = (c % S) * CH + (fi % 16) * 1024
        k("ds_read_b128 a[%d:%d], v%d offset:%d" % (16 * (gi % 2) + 4 * j, 16 * (gi % 2) + 4 * j + 3, 7 + lds // 65536, lds % 65536))

    def boundary(c):
        if TSMODE == 1 and c >= 1: k.ts(1 + c)
        vflush(c + 1)
        vm.wait(tokA[c + 1])
        if not os.environ.get("NOBAR"):
            k("s_barrier")
        if TSMODE == 2 and c >= 1: k.ts(1 + c)
    boundary(0)
    for j in range(4):
        read1(0, j)
    seen = set()
    NPER = int(os.environ.get("NPER", "4"))
    for gi in range(48):
        if gi + 1 < 48 and (gi + 1) % 8 == 0:
            boundary((gi + 1) // 4)
        for j in range(4):
            t, ks = order[gi * 4 + j]
            flush_norm(ks + 1)
            k("s_waitcnt lgkmcnt(%d)" % (3 if gi + 1 < 48 else 3 - j))
            first = t not in seen
            seen.add(t)
            if os.environ.get("EXP", "") != "memonly":
                k("v_mfma_f32_32x32x16_bf16 %s, a[%d:%d], %s, %s" % (vr(ACC + 16 * t, 16), 16 * (gi % 2) + 4 * j, 16 * (gi % 2) + 4 * j + 3, vr(B + 4 * ks, 4), "0" if first else vr(ACC + 16 * t, 16)))
            if gi + 1 < 48 and os.environ.get("EXP", "") != "memonly":
                read1(gi + 1, j)
            vstep(gi * 4 + j)
            if ks == 31 and t >= 3:
                q_epi(t - 3)
            for _ in range(NPER):
                if fq:
                    emit_filler()
    k.ts(13)
    while fq:
        emit_filler()
    k.ts_flush(14)
    k.lab(end)
    return k


WS_FL = 0x280000
SPIN = 0x8000


def gen_F():
    S = 10
    CH = 16384
    NCH = 12
    ROT = 8
    k = Kern("ffn_kernel", 288, 256, 256, S * CH, accum=256)
    k.kidx = 2
    vm = VM(k)
    FTS = os.environ.get("FTS", "")
    ts0 = k.ts
    def ts_main(i):
        if FTS == "" or i == 0:
            ts0(i)
        elif FTS == "E" and i == 9:
            ts0(1)
        elif FTS == "E2" and i in (7, 8, 9):
            ts0(i - 6)
        elif FTS == "D" and i == 7:
            ts0(12)
    k.ts = ts_main
    end = k.newlab("end")
    FORCE_SLOW = os.environ.get("FSLOW") == "1"
    PF = [int(x) for x in os.environ.get("PF", "0,0,0,0").split(",")]
    PA = int(os.environ.get("PA", "4"))
    PB = int(os.environ.get("PB", "4"))
    NB0 = int(os.environ.get("NB0", "6"))
    BPER = int(os.environ.get("BPER", "3"))
    FST = os.environ.get("FST", " sc1")
    FSTO = os.environ.get("FSTO", "")
    FSTC = os.environ.get("FSTC", FST)
    STG = int(os.environ.get("STG", "0"))
    PFL = int(os.environ.get("PFL", "0"))
    PC = int(os.environ.get("PC", "0"))
    PFLC = int(os.environ.get("PFLC", "0"))
    FLG = int(os.environ.get("FLG", "1"))
    PDLY = int(os.environ.get("PDLY", "11"))
    AKS = 96 if STG else 86

    def wofs(c):
        return ((24 * (c & 3) + 2 * (c >> 2)) * 2048) if STG else c * 16384
    k("s_cmp_ge_u32 s2, 256")
    k("s_cbranch_scc1 %s" % end)
    k.ts(0)
    k("s_load_dwordx2 s[24:25], s[0:1], 32")
    k("s_load_dwordx2 s[26:27], s[0:1], 0")
    k("s_load_dwordx2 s[28:29], s[0:1], 72")
    k("s_load_dwordx2 s[32:33], s[0:1], 88")
    k("s_getreg_b32 s40, hwreg(HW_REG_XCC_ID)")
    k("v_and_b32 v1, 63, v0")
    k("v_lshrrev_b32 v2, 6, v0")
    k("s_nop 1")
    k("v_readfirstlane_b32 s3, v2")
    k("s_and_b32 s48, s2, 7")
    k("s_lshl_b32 s48, s48, 2")
    k("s_bfe_u32 s49, s2, 0x20003")
    k("s_add_u32 s48, s48, s49")
    k("s_lshr_b32 s49, s2, 5")
    k("s_lshr_b32 s38, s48, 1")
    k("s_and_b32 s39, s48, 1")
    k("s_lshl_b32 s37, s49, 1")
    k("s_add_u32 s39, s39, s37")
    k("s_lshl_b32 s42, s38, 13")
    k("s_add_u32 s42, s42, 0x%x" % WS_FL)
    k("s_and_b32 s40, s40, 15")
    k("s_or_b32 s40, s40, 0x80")
    k("s_mul_i32 s43, s40, 0x01010101")
    k("s_mul_i32 s34, s39, 196608")
    k("s_add_u32 s34, s34, 0x%x" % WS_WG)
    k("s_lshl_b32 s52, s3, 10")
    k("v_lshlrev_b32 v60, 4, v1")
    k("v_add_u32 v60, s52, v60")
    k("s_lshl_b32 s36, s3, 12")
    k("s_mul_i32 s35, s49, %d" % (86 * 2048))
    if STG:
        k("s_mul_i32 s54, s3, %d" % (6 * 2048))
        k("s_add_u32 s35, s35, s54")
    else:
        k("s_add_u32 s35, s35, s36")
    k("s_add_u32 s35, s35, 0x%x" % WS_WD)
    k("s_waitcnt lgkmcnt(0)")
    k.srd(8, 24, 512 * 1024)
    k.srd(20, 32, WS_SIZE)
    k.srd(12, 26, 2048 * 1024)
    k.srd(16, 28, 2048 * 1024)
    if FTS == "L":
        k("s_lshl_b32 s69, s2, 13")
        k("s_lshl_b32 s68, s3, 11")
        k("s_add_u32 s69, s69, s68")
        k("s_add_u32 s69, s69, 0x%x" % (WS_DUMMY + 0x100000))
        for i in range(1, 6):
            k("s_add_u32 s68, s69, %d" % (128 * i))
            k("s_load_dword s67, s[32:33], s68")
        k("s_waitcnt lgkmcnt(0)")
    ldx = 1024
    k("v_lshrrev_b32 v3, 4, v1")
    k("s_lshl_b32 s50, s3, 2")
    k("v_add_u32 v3, s50, v3")
    k("v_and_b32 v4, 15, v1")
    k("v_xor_b32 v4, v4, v3")
    k("v_lshlrev_b32 v4, 4, v4")
    k("s_lshl_b32 s51, s48, 6")
    k("v_add_u32 v3, s51, v3")
    k("v_mul_u32_u24 v3, %d, v3" % ldx)
    k("v_add_u32 v4, v3, v4")
    k("v_lshrrev_b32 v3, 3, v1")
    k("s_lshl_b32 s50, s3, 3")
    k("v_add_u32 v3, s50, v3")
    k("v_and_b32 v5, 7, v1")
    k("v_bfe_u32 v6, v1, 4, 1")
    k("v_lshlrev_b32 v6, 2, v6")
    k("v_xor_b32 v5, v5, v6")
    k("v_lshlrev_b32 v5, 4, v5")
    k("v_lshl_add_u32 v5, v3, 10, v5")
    k("s_lshl_b32 s50, s49, 7")
    k("v_add_u32 v5, s50, v5")
    tokC = {}

    def issueC(c):
        st = c * 32768
        for j in range(4):
            k("s_add_u32 m0, s52, %d" % (st + j * 4096))
            k("s_mov_b32 s54, %d" % (WS_O + j * 16 * ldx + c * 256))
            k("buffer_load_dwordx4 v4, s[20:23], s54 offen lds")
            vm.issue()
        for j in range(4):
            k("s_add_u32 m0, s52, %d" % (st + 16384 + j * 4096))
            k("s_mov_b32 s54, %d" % ((c * 128 + 32 * j) * 1024))
            k("buffer_load_dwordx4 v5, s[8:11], s54 offen lds")
            tokC[c] = vm.issue()
    tokA, tokB = {}, {}

    def issueD(c, vreg):
        for j in range(4):
            k("s_add_u32 m0, s52, %d" % (((c + ROT) % S) * CH + j * 4096))
            k("s_add_u32 s54, s34, %d" % (c * CH + j * 4096))
            k("buffer_load_dwordx4 v%d, s[20:23], s54 offen lds" % vreg)
            tokA[c] = vm.issue()

    def issueEW(c, vreg):
        for j in range(4):
            k("s_add_u32 m0, s36, %d" % ((c % 6) * 16384 + j * 1024))
            k("s_add_u32 s54, s35, %d" % (wofs(c) + j * 1024))
            k("buffer_load_dwordx4 v%d, s[20:23], s54 offen lds" % vreg)
            vm.issue()
    for c in range(3):
        issueC(c)
    k("v_mov_b32 v56, s40")
    k("s_cmp_eq_u32 s3, 0")
    k("s_cselect_b64 exec, 1, 0")
    k("s_add_u32 s44, s42, s39")
    k("buffer_store_byte v56, off, s[20:23], s44 sc1")
    vm.issue()
    k("s_mov_b64 exec, -1")
    k("s_and_b32 s56, s3, 1")
    k("s_lshr_b32 s57, s3, 1")
    k("s_lshl_b32 s58, s56, 5")
    k("s_add_u32 s58, s58, s51")
    k("v_and_b32 v13, 31, v1")
    k("v_add_u32 v13, s58, v13")
    k("v_lshrrev_b32 v8, 5, v1")
    k("v_lshlrev_b32 v12, 3, v8")
    k("v_lshl_add_u32 v12, v13, 10, v12")
    k("s_lshl_b32 s59, s49, 7")
    k("s_lshl_b32 s60, s57, 6")
    k("s_add_u32 s59, s59, s60")
    ACC, RES, XC, WC = 32, 48, 24, 14
    BF, AF = 64, 96
    for q in range(4):
        k("buffer_load_dwordx2 %s, v12, s[12:15], s59 offen offset:%d" % (vr(RES + 2 * q, 2), 16 * q))
        tokR = vm.issue()
    k("v_and_b32 v7, 31, v1")
    k("s_lshl_b32 s58, s56, 5")
    k("v_add_u32 v7, s58, v7")
    k("v_and_b32 v9, 15, v7")
    k("v_xor_b32 v9, v9, v8")
    k("v_lshlrev_b32 v9, 4, v9")
    k("v_lshl_add_u32 v9, v7, 8, v9")
    XA = 16
    for ks in range(8):
        k("v_xor_b32 v%d, %d, v9" % (XA + ks, ks * 32))
    k("v_lshrrev_b32 v11, 5, v1")
    k("v_lshlrev_b32 v11, 3, v11")
    k("v_bfe_u32 v10, v1, 2, 2")
    k("v_add_u32 v11, v11, v10")
    k("v_bfe_u32 v10, v1, 4, 1")
    k("v_lshlrev_b32 v10, 5, v10")
    k("v_and_b32 v12, 3, v1")
    k("v_lshl_add_u32 v10, v12, 3, v10")
    k("s_lshl_b32 s58, s57, 6")
    k("v_add_u32 v10, s58, v10")
    k("v_bfe_u32 v12, v1, 3, 1")
    k("v_lshlrev_b32 v12, 6, v12")
    k("v_xor_b32 v10, v10, v12")
    k("v_lshl_add_u32 v10, v11, 7, v10")
    k("v_add_u32 v10, 0x4000, v10")
    nxtD = 0
    for c in range(4):
        st = c * 32768
        vm.wait(tokC[c])
        k("s_barrier")
        if c == 0:
            k.ts(1)
            issueC(3)
        if c == PFLC and PFL:
            k("v_lshlrev_b32 v252, 7, v1")
            k("s_and_b32 s44, s38, 1")
            k("s_lshl_b32 s44, s44, 14")
            k("s_lshr_b32 s45, s3, 1")
            k("s_lshl_b32 s45, s45, 15")
            k("s_add_u32 s44, s44, s45")
            k("s_and_b32 s45, s3, 1")
            k("s_lshl_b32 s45, s45, 13")
            k("s_add_u32 s44, s44, s45")
            k("s_add_u32 s44, s44, s34")
            for j in range(PFL):
                k("s_add_u32 s45, s44, %d" % (j * 65536))
                k("buffer_load_dword v253, v252, s[20:23], s45 offen")
                vm.issue()
        if c == 3:
            k("buffer_load_dwordx4 v[248:251], off, s[20:23], s42 sc1")
            vm.issue()
        for ks in range(8):
            k("v_add_u32 v%d, %d, v%d" % (XC + ks, st, XA + ks))
        k("v_add_u32 v%d, %d, v10" % (WC, st))
        for ks in range(8):
            k("ds_read_b128 %s, v%d" % (vr(BF + 4 * ks, 4), XC + ks))
            k("ds_read_b64_tr_b16 %s, v%d offset:%d" % (vr(AF + 4 * ks, 2), WC, ks * 2048))
            k("ds_read_b64_tr_b16 %s, v%d offset:%d" % (vr(AF + 4 * ks + 2, 2), WC, ks * 2048 + 512))
        for ks in range(8):
            k("s_waitcnt lgkmcnt(%d)" % min(15, 3 * (7 - ks)))
            first = (c == 0 and ks == 0)
            k("v_mfma_f32_32x32x16_bf16 %s, %s, %s, %s" % (vr(ACC, 16), vr(AF + 4 * ks, 4), vr(BF + 4 * ks, 4), "0" if first else vr(ACC, 16)))
        lim = 2 + 2 * c
        for _ in range(PF[c]):
            if nxtD < lim:
                issueD(nxtD, 60)
                nxtD += 1
    k.ts(2)
    k("s_nop 15")
    for q in range(4):
        for d in range(2):
            r = RES + 2 * q + d
            k("v_lshlrev_b32 v%d, 16, v%d" % (BF, r))
            k("v_and_b32 v%d, 0xffff0000, v%d" % (BF + 1, r))
            k("v_add_f32 v%d, v%d, v%d" % (ACC + 4 * q + 2 * d, ACC + 4 * q + 2 * d, BF))
            k("v_add_f32 v%d, v%d, v%d" % (ACC + 4 * q + 2 * d + 1, ACC + 4 * q + 2 * d + 1, BF + 1))
    for r in range(8):
        k("v_cvt_pk_bf16_f32 v%d, v%d, v%d" % (RES + r, ACC + 2 * r, ACC + 2 * r + 1))
    T = AF
    X4 = os.environ.get("X4", "1") == "1"
    if X4:
        k("v_lshlrev_b32 v%d, 4, v1" % (T + 7))
    else:
        k("v_and_b32 v%d, 31, v1" % (T + 7))
        k("v_lshlrev_b32 v%d, 4, v%d" % (T + 7, T + 7))
        k("v_lshl_add_u32 v%d, v8, 3, v%d" % (T + 7, T + 7))
    k("s_lshl_b32 s60, s48, 1")
    k("s_add_u32 s60, s60, s56")
    k("s_lshl_b32 s60, s60, 5")
    k("s_lshl_b32 s61, s49, 2")
    k("s_add_u32 s60, s60, s61")
    k("s_lshl_b32 s61, s57, 1")
    k("s_add_u32 s60, s60, s61")
    k("s_lshl_b32 s60, s60, 10")
    k("s_add_u32 s60, s60, 0x%x" % WS_HP)
    if not X4:
        for q in range(4):
            k("buffer_store_dwordx2 %s, v%d, s[20:23], s60 offen offset:%d%s" % (vr(RES + 2 * q, 2), T + 7, (q >> 1) * 1024 + (q & 1) * 512, FSTC))
            vm.issue()
    k("v_mov_b32 v%d, 0x3f803f80" % T)
    for i in range(4):
        k("v_mov_b32 v%d, 0" % (T + 2 + i))
    for r in range(8):
        k("v_dot2c_f32_bf16 v%d, v%d, v%d" % (T + 2 + (r & 1), RES + r, T))
        k("v_dot2c_f32_bf16 v%d, v%d, v%d" % (T + 4 + (r & 1), RES + r, RES + r))
    if X4:
        k("s_nop 1")
        for h2 in range(2):
            k("v_permlane32_swap_b32 v%d, v%d" % (RES + 4 * h2, RES + 4 * h2 + 2))
            k("v_permlane32_swap_b32 v%d, v%d" % (RES + 4 * h2 + 1, RES + 4 * h2 + 3))
        k("s_nop 1")
        for h2 in range(2):
            k("buffer_store_dwordx4 %s, v%d, s[20:23], s60 offen offset:%d%s" % (vr(RES + 4 * h2, 4), T + 7, h2 * 1024, FSTC))
            vm.issue()
    k("s_nop 4")
    k("v_add_f32 v%d, v%d, v%d" % (T + 2, T + 2, T + 3))
    k("v_add_f32 v%d, v%d, v%d" % (T + 3, T + 4, T + 5))
    k("v_mov_b32 v%d, v%d" % (T + 4, T + 2))
    k("v_mov_b32 v%d, v%d" % (T + 5, T + 3))
    k("s_nop 1")
    k("v_permlane32_swap_b32 v%d, v%d" % (T + 2, T + 4))
    k("v_permlane32_swap_b32 v%d, v%d" % (T + 3, T + 5))
    k("s_nop 1")
    k("v_add_f32 v%d, v%d, v%d" % (T + 2, T + 2, T + 4))
    k("v_add_f32 v%d, v%d, v%d" % (T + 3, T + 3, T + 5))
    k("v_lshlrev_b32 v%d, 7, v13" % (T + 6))
    k("s_lshl_b32 s60, s49, 1")
    k("s_add_u32 s60, s60, s57")
    k("s_lshl_b32 s60, s60, 3")
    k("s_add_u32 s60, s60, 0x%x" % WS_ST)
    k("v_cmp_gt_u32 vcc, 32, v1")
    k("s_and_saveexec_b64 s[62:63], vcc")
    k("buffer_store_dwordx2 %s, v%d, s[20:23], s60 offen%s" % (vr(T + 2, 2), T + 6, FSTC))
    vm.issue()
    tokSt = vm.issue() - 1
    vm.n -= 1
    k("s_mov_b64 exec, s[62:63]")
    for _ in range(PA):
        if nxtD < 8:
            issueD(nxtD, 60)
            nxtD += 1
    k("s_mov_b32 s30, s48")
    k("s_mov_b32 s31, s49")
    k("s_mov_b32 s48, s38")
    k("s_mov_b32 s49, s39")
    k("v_and_b32 v2, 31, v1")
    k("v_lshrrev_b32 v3, 5, v1")
    k("s_lshl_b32 s50, s3, 5")
    k("s_lshl_b32 s51, s48, 7")
    k("s_add_u32 s50, s50, s51")
    k("v_add_u32 v2, s50, v2")
    k("s_lshl_b32 s57, s50, 10")
    k("v_lshlrev_b32 v6, 7, v2")
    k("v_lshl_add_u32 v6, v3, 6, v6")
    k("v_lshlrev_b32 v7, 4, v1")
    k("v_add_u32 v8, 0x10000, v7")
    k("v_add_u32 v9, 0x20000, v7")
    k("v_add_u32 v4, s52, v7")
    k("s_mov_b32 s55, 0x%x" % WS_ST)
    k("s_add_u32 s57, s57, 0x%x" % WS_HP)
    k("v_and_b32 v10, 31, v1")
    k("v_lshlrev_b32 v10, 4, v10")
    k("v_lshl_add_u32 v10, v3, 3, v10")
    k("s_lshr_b32 s59, s50, 5")
    k("s_mul_i32 s59, s59, %d" % AKS)
    k("s_mul_i32 s58, s49, %d" % (2 if STG else 6))
    k("s_add_u32 s59, s59, s58")
    k("s_lshl_b32 s59, s59, 10")
    k("s_add_u32 s59, s59, 0x%x" % WS_ACT)
    k("s_mov_b32 s60, %s" % f32hex(-LOG2E))
    k("s_lshl_b32 s65, s3, 8")
    k("s_add_u32 s65, s65, s2")
    k("s_cmp_lt_u32 s65, 8")
    k("s_cselect_b32 s65, 1, 0")
    k("s_add_u32 s58, s59, %d" % (32768 if STG else 2048))
    k("s_add_u32 s64, s59, %d" % (65536 if STG else 4096))
    k("s_lshl_b32 s61, s50, 8")
    k("s_add_u32 s61, s61, 0x%x" % WS_DUMMY)
    k("s_add_u32 s62, s61, 2048")
    k("s_cmp_eq_u32 s49, 15")
    k("s_cselect_b32 s61, 4096, 0")
    k("s_add_u32 s62, s62, s61")
    k("s_lshl_b32 s61, s50, 8")
    k("s_add_u32 s61, s61, 0x%x" % WS_DUMMY)
    k("v_mov_b32 v15, 1")
    k("s_add_u32 s66, s42, 512")
    k("s_add_u32 s67, s42, 640")
    k("s_add_u32 s68, s42, 768")
    k("s_cmp_ge_u32 s49, 14")
    k("s_cselect_b32 s58, s61, s58")
    k("s_cselect_b32 s64, s62, s64")

    def resolve():
        lr, ld = k.newlab("rs"), k.newlab("rd")
        k("s_mov_b32 s44, 0x%x" % SPIN)
        k.lab(lr)
        for i in range(4):
            k("v_readfirstlane_b32 s%d, v%d" % (4 + i, 248 + i))
        k("s_nop 3")
        k("s_and_b32 s46, s4, s5")
        k("s_and_b32 s47, s6, s7")
        k("s_and_b32 s46, s46, s47")
        k("s_and_b32 s47, s46, 0x80808080")
        k("s_cmp_eq_u32 s47, 0x80808080")
        k("s_cbranch_scc1 %s" % ld)
        k("s_sub_u32 s44, s44, 1")
        k("s_cmp_eq_u32 s44, 0")
        k("s_cbranch_scc1 %s" % ld)
        k("buffer_load_dwordx4 v[248:251], off, s[20:23], s42 sc1")
        k("s_waitcnt vmcnt(0)")
        k("s_branch %s" % lr)
        k.lab(ld)
        k("s_or_b32 s47, s4, s5")
        k("s_or_b32 s47, s47, s6")
        k("s_or_b32 s47, s47, s7")
        k("s_xor_b32 s47, s47, s43")
        k("s_xor_b32 s46, s46, s43")
        k("s_or_b32 s46, s46, s47")
        k("s_cmp_eq_u32 s46, 0")
        k("s_cselect_b32 s41, %d, 0" % (0 if FORCE_SLOW else 1))

    def publish(offL, offG, addreg=None):
        skip, slow, done = k.newlab("sk"), k.newlab("sl"), k.newlab("dn")
        k("s_cmp_lg_u32 s3, 0")
        k("s_cbranch_scc1 %s" % skip)
        k("s_mov_b64 exec, 1")
        k("v_mov_b32 v56, %s" % ("1" if addreg is None else addreg))
        k("s_cmp_eq_u32 s41, 0")
        k("s_cbranch_scc1 %s" % slow)
        k("s_add_u32 s45, s42, %d" % offL)
        if FLG:
            k("s_add_u32 s47, s42, %d" % (2048 if offL == 384 else 4096))
            k("s_lshl_b32 s45, s39, 7")
            k("s_add_u32 s45, s45, s47")
            k("s_add_u32 s47, s47, s39")
            k("s_mov_b64 exec, 0xffff")
            k("v_mov_b32 v56, 1")
            k("v_lshlrev_b32 v57, 7, v1")
            k("buffer_store_byte v56, v57, s[20:23], s47 offen%s" % os.environ.get("FLS", ""))
        else:
            k("buffer_atomic_add v56, off, s[20:23], s45")
        k("s_branch %s" % done)
        k.lab(slow)
        k("s_add_u32 s45, s42, %d" % offG)
        k("buffer_wbl2 sc1")
        k("s_waitcnt vmcnt(0)")
        k("buffer_atomic_add v56, off, s[20:23], s45 sc1")
        k.lab(done)
        k("s_mov_b64 exec, -1")
        k.lab(skip)

    def poll(target):
        skip, slow, done = k.newlab("sk"), k.newlab("sl"), k.newlab("dn")
        pf, ps = k.newlab("pf"), k.newlab("ps")
        k("s_cmp_lg_u32 s3, 0")
        k("s_cbranch_scc1 %s" % skip)
        k("s_mov_b64 exec, 1")
        k("s_mov_b32 s44, 0x%x" % SPIN)
        k("s_cmp_eq_u32 s41, 0")
        k("s_cbranch_scc1 %s" % slow)
        k.lab(pf)
        if FLG:
            k("s_load_dwordx4 s[8:11], s[32:33], s45 glc")
            k("s_waitcnt lgkmcnt(0)")
            k("s_and_b32 s8, s8, s9")
            k("s_and_b32 s10, s10, s11")
            k("s_and_b32 s8, s8, s10")
            k("s_cmp_eq_u32 s8, 0x01010101")
            k("s_cselect_b32 s46, 64, 0")
        elif os.environ.get("SPOLL", "1") == "1":
            k("s_load_dword s46, s[32:33], s45 glc")
            k("s_waitcnt lgkmcnt(0)")
        else:
            k("v_mov_b32 v57, 0")
            k("buffer_atomic_add v57, off, s[20:23], s45 sc0")
            k("s_waitcnt vmcnt(0)")
            k("v_readfirstlane_b32 s46, v57")
        k("s_sub_u32 s44, s44, 1")
        k("s_cmp_eq_u32 s44, 0")
        k("s_cbranch_scc1 %s" % done)
        k("s_cmp_lt_u32 s46, %s" % target)
        k("s_cbranch_scc1 %s" % pf)
        k("s_branch %s" % done)
        k.lab(slow)
        k.lab(ps)
        k("buffer_load_dword v57, off, s[20:23], s45 sc1")
        k("s_waitcnt vmcnt(0)")
        k("v_readfirstlane_b32 s46, v57")
        k("s_sub_u32 s44, s44, 1")
        k("s_cmp_eq_u32 s44, 0")
        k("s_cbranch_scc1 %s" % done)
        k("s_cmp_lt_u32 s46, %s" % target)
        k("s_cbranch_scc1 %s" % ps)
        k.lab(done)
        k("s_mov_b64 exec, -1")
        k.lab(skip)

    def acquire():
        nf = k.newlab("nf")
        k("s_barrier")
        k("s_cmp_lg_u32 s41, 0")
        k("s_cbranch_scc1 %s" % nf)
        k("buffer_inv sc1")
        k("s_waitcnt vmcnt(0)")
        k.lab(nf)
    vm.wait(tokSt)
    k.ts(3)
    resolve()
    k("s_barrier")
    pre0 = nxtD
    publish(384, 128)
    idle = k.newlab("idle")
    dend = k.newlab("dend")
    k("s_cmp_eq_u32 s49, 15")
    k("s_cbranch_scc1 %s" % idle)
    for _ in range(PB):
        if nxtD < 10:
            issueD(nxtD, 60)
            nxtD += 1
    poll("16")
    pre = 0
    acquire()
    k.ts(4)
    ACC, B, T = 16, 112, 240
    order = []
    for ks in range(KS1):
        for t in range(6):
            order.append((t, ks))
    for p in range(3):
        for ks in range(KS1, 32):
            order.append((p, ks))
            order.append((p + 3, ks))
    assert len(order) == 192
    for q in range(4):
        k("buffer_load_dwordx4 %s, v6, s[20:23], s55 offen offset:%d" % (vr(ACC + 4 * q, 4), 16 * q))
        tokS = vm.issue()
    nbq = [0]

    def issueB():
        g = nbq[0]
        if g < 32:
            k("s_add_u32 s56, s57, %d" % (g * 1024))
            k("buffer_load_dwordx4 %s, v7, s[20:23], s56 offen" % vr(B + 4 * g, 4))
            tokB[g] = vm.issue()
            nbq[0] += 1
    for _ in range(NB0):
        issueB()
    for _ in range(PC):
        if nxtD < 10:
            issueD(nxtD, 4)
            nxtD += 1
    vm.wait(tokS)
    for st in (8, 4, 2):
        for i in range(st):
            k("v_add_f32 v%d, v%d, v%d" % (ACC + i, ACC + i, ACC + i + st))
    k("v_mov_b32 v%d, v%d" % (ACC + 2, ACC))
    k("v_mov_b32 v%d, v%d" % (ACC + 3, ACC + 1))
    k("s_nop 1")
    k("v_permlane32_swap_b32 v%d, v%d" % (ACC, ACC + 2))
    k("v_permlane32_swap_b32 v%d, v%d" % (ACC + 1, ACC + 3))
    k("s_nop 1")
    k("v_add_f32 v%d, v%d, v%d" % (ACC, ACC, ACC + 2))
    k("v_add_f32 v%d, v%d, v%d" % (ACC + 1, ACC + 1, ACC + 3))
    k("v_mul_f32 v%d, %s, v%d" % (ACC, f32hex(1.0 / 512), ACC))
    k("v_mul_f32 v%d, %s, v%d" % (ACC + 1, f32hex(1.0 / 512), ACC + 1))
    k("v_fma_f32 v%d, -v%d, v%d, v%d" % (ACC + 1, ACC, ACC, ACC + 1))
    k("v_add_f32 v%d, %s, v%d" % (ACC + 1, f32hex(1e-5), ACC + 1))
    k("v_rsq_f32 v12, v%d" % (ACC + 1))
    k("s_nop 1")
    k("v_mul_f32 v14, v%d, v12" % ACC)
    k("v_xor_b32 v14, 0x80000000, v14")
    from collections import deque
    fq = deque()

    def q_norm(g):
        def w():
            vm.wait(tokB[g])
        fq.append(("n", g, w))
        for r in range(4):
            t0 = T + 2 * (r & 3)
            b = B + 4 * g + r
            fq.append(("n", g, "v_lshlrev_b32 v%d, 16, v%d" % (t0, b)))
            fq.append(("n", g, "v_and_b32 v%d, 0xffff0000, v%d" % (t0 + 1, b)))
            fq.append(("n", g, "v_fma_f32 v%d, v%d, v12, v14" % (t0, t0)))
            fq.append(("n", g, "v_fma_f32 v%d, v%d, v12, v14" % (t0 + 1, t0 + 1)))
            fq.append(("n", g, "v_cvt_pk_bf16_f32 v%d, v%d, v%d" % (b, t0, t0 + 1)))

    def q_epi(p):
        G, U = ACC + 16 * p, ACC + 16 * (3 + p)
        E = T
        L = []
        L.append("s_nop 15")
        for r in range(16):
            L.append("v_mul_f32 v%d, s60, v%d" % (E + r, G + r))
        for r in range(16):
            L.append("v_exp_f32 v%d, v%d" % (E + r, E + r))
        for r in range(16):
            L.append("v_mul_f32 v%d, v%d, v%d" % (G + r, G + r, U + r))
        for r in range(16):
            L.append("v_add_f32 v%d, 1.0, v%d" % (E + r, E + r))
        for r in range(16):
            L.append("v_rcp_f32 v%d, v%d" % (E + r, E + r))
        for r in range(16):
            L.append("v_mul_f32 v%d, v%d, v%d" % (G + r, G + r, E + r))
        for r in range(8):
            L.append("v_cvt_pk_bf16_f32 v%d, v%d, v%d" % (G + r, G + 2 * r, G + 2 * r + 1))
        if X4:
            L.append("s_nop 1")
            for h2 in range(2):
                L.append("v_permlane32_swap_b32 v%d, v%d" % (G + 4 * h2, G + 4 * h2 + 2))
                L.append("v_permlane32_swap_b32 v%d, v%d" % (G + 4 * h2 + 1, G + 4 * h2 + 3))
            L.append("s_nop 1")
            for h2 in range(2):
                L.append("buffer_store_dwordx4 %s, v7, s[20:23], s%d offen offset:%d%s" % (vr(G + 4 * h2, 4), (59, 58, 64)[p], h2 * 1024, FST))
        else:
            for q in range(4):
                L.append("buffer_store_dwordx2 %s, v10, s[20:23], s%d offen offset:%d%s" % (vr(G + 2 * q, 2), (59, 58, 64)[p], (q >> 1) * 1024 + (q & 1) * 512, FST))
        if os.environ.get("WBD", "0") == "1" and p < 2:
            L.append(("wb", p))
        for x in L:
            fq.append(("e", p, x))

    def emit_filler():
        kind, g, x = fq.popleft()
        if callable(x):
            x()
        elif isinstance(x, tuple):
            nwb = k.newlab("nwb")
            k("s_cmp_eq_u32 s65, 0")
            k("s_cbranch_scc1 %s" % nwb)
            k("buffer_wbl2 sc1")
            k.lab(nwb)
        else:
            if x.startswith("buffer_store"):
                tokE[g] = (curvm[0].issue(), curgi[0])
            k(x)
    tokE = {}
    curvm = [vm]
    curgi = [0]

    def wpub(sreg):
        k("s_mov_b64 exec, 1")
        k("buffer_atomic_add v15, off, s[20:23], %s" % sreg)
        k("s_mov_b64 exec, -1")

    def flush_norm(g):
        last = -1
        for i, (kind, gg, x) in enumerate(fq):
            if kind == "n" and gg <= g:
                last = i
        n = last + 1
        for _ in range(n):
            emit_filler()
        if n:
            k("s_nop 1")
    for g in range(32):
        q_norm(g)

    def read1(gi, j):
        c = gi // 4
        fi = gi * 4 + j
        lds = ((c + ROT) % S) * CH + (fi % 16) * 1024
        k("ds_read_b128 a[%d:%d], v%d offset:%d" % (16 * (gi % 2) + 4 * j, 16 * (gi % 2) + 4 * j + 3, 7 + lds // 65536, lds % 65536))

    def boundary(c):
        nonlocal nxtD
        for cc in (c, c + 1):
            while nxtD <= cc:
                issueD(nxtD, 4)
                nxtD += 1
        while dq and dq[0][0] <= c + 1:
            dq.popleft()[1]()
        vm.wait(tokA[c + 1])
        k("s_barrier")
        if c == 2:
            while nxtD < 10:
                if DTR: queueD(nxtD)
                else: issueD(nxtD, 4)
                nxtD += 1
        if c == 4:
            if DTR:
                queueD(10); queueD(11)
            else:
                issueD(10, 4)
                issueD(11, 4)
            nxtD = 12
        if c == 8:
            k.ts(6)
            for cc in range(5):
                if ETR: queueEW(cc)
                else: issueEW(cc, 7)
        if c == 10:
            while dq:
                dq.popleft()[1]()
            issueEW(5, 7)
    DTR = int(os.environ.get("DTR", "0"))
    ETR = int(os.environ.get("ETR", "0"))
    dq = deque()

    def queueD(c):
        for j in range(4):
            def f(c=c, j=j):
                k("s_add_u32 m0, s52, %d" % (((c + ROT) % S) * CH + j * 4096))
                k("s_add_u32 s54, s34, %d" % (c * CH + j * 4096))
                k("buffer_load_dwordx4 v4, s[20:23], s54 offen lds")
                tokA[c] = vm.issue()
            dq.append((c, f))

    def queueEW(c):
        for j in range(4):
            def f(c=c, j=j):
                k("s_add_u32 m0, s36, %d" % ((c % 6) * 16384 + j * 1024))
                k("s_add_u32 s54, s35, %d" % (wofs(c) + j * 1024))
                k("buffer_load_dwordx4 v7, s[20:23], s54 offen lds")
                vm.issue()
            dq.append((100 + c, f))
    boundary(0)
    for j in range(4):
        read1(0, j)
    seen = set()
    NPER = int(os.environ.get("NPER", "4"))
    ex14 = [int(os.environ.get("EX14", "1"))]
    pubd = set()
    stub14 = k.newlab("st14")
    for gi in range(48):
        curgi[0] = gi
        if FTS == "D" and gi in (8, 16, 24, 28, 32, 35, 38, 40, 42, 44, 46):
            ts0(1 + (8, 16, 24, 28, 32, 35, 38, 40, 42, 44, 46).index(gi))
        if STG and gi == int(os.environ.get("CK0", "45")):
            k("s_load_dword s46, s[32:33], s66 glc")
        if STG:
            for p in (0, 1):
                if p in tokE and p not in pubd and not any(kind == "e" and gg == p for (kind, gg, x) in fq) and gi >= tokE[p][1] + PDLY:
                    vm.wait(tokE[p][0])
                    wpub("s%d" % (66 + p))
                    vm.issue()
                    pubd.add(p)
        if ex14[0] and gi >= 40 and not any(kind == "e" and gg == 0 for (kind, gg, x) in fq) and (not STG or 0 in pubd):
            assert 1 not in pubd
            k("s_cmp_eq_u32 s49, 14")
            k("s_cbranch_scc1 %s" % (stub14 if STG else dend))
            ex14[0] = 0
        if gi + 1 < 48 and (gi + 1) % 8 == 0:
            boundary((gi + 1) // 4)
        for j in range(4):
            t, ks = order[gi * 4 + j]
            flush_norm(ks + 1)
            k("s_waitcnt lgkmcnt(%d)" % (3 if gi + 1 < 48 else 3 - j))
            first = t not in seen
            seen.add(t)
            if gi == 0 and j == 0:
                k.ts(5)
            k("v_mfma_f32_32x32x16_bf16 %s, a[%d:%d], %s, %s" % (vr(ACC + 16 * t, 16), 16 * (gi % 2) + 4 * j, 16 * (gi % 2) + 4 * j + 3, vr(B + 4 * ks, 4), "0" if first else vr(ACC + 16 * t, 16)))
            if gi + 1 < 48:
                read1(gi + 1, j)
            if dq:
                per = DTR if dq[0][0] < 100 else ETR
                if (gi * 4 + j) % per == per - 1:
                    dq.popleft()[1]()
            if (gi * 4 + j) % BPER == BPER - 1:
                issueB()
            while nbq[0] <= min(31, ks + 2):
                issueB()
            if ks == 31 and t >= 3 and not (STG and t == 5):
                q_epi(t - 3)
            for _ in range(NPER):
                if fq:
                    emit_filler()
    def e_setup(hp):
        k("s_mov_b32 s48, s30")
        k("s_mov_b32 s49, s31")
        k("s_and_b32 s56, s3, 1")
        k("s_lshr_b32 s57, s3, 1")
        k("v_lshlrev_b32 v4, 4, v1")
        k("s_lshl_b32 s50, s56, 13")
        k("s_lshl_b32 s51, s57, 12")
        k("s_add_u32 s50, s50, s51")
        k("s_add_u32 s50, s50, 98304")
        k("s_lshl_b32 s52, s48, 1")
        k("s_add_u32 s52, s52, s56")
        k("s_mul_i32 s52, s52, %d" % (AKS * 1024))
        k("s_add_u32 s52, s52, s51")
        k("s_add_u32 s52, s52, 0x%x" % WS_ACT)
        k("s_lshl_b32 s58, s48, 6")
        k("s_lshl_b32 s59, s56, 5")
        k("s_add_u32 s58, s58, s59")
        k("v_and_b32 v13, 31, v1")
        k("v_add_u32 v13, s58, v13")
        k("v_lshrrev_b32 v8, 5, v1")
        k("v_lshlrev_b32 v12, 3, v8")
        k("v_lshl_add_u32 v12, v13, 10, v12")
        k("s_lshl_b32 s59, s49, 7")
        k("s_lshl_b32 s58, s57, 6")
        k("s_add_u32 s59, s59, s58")
        k("v_and_b32 v14, 31, v1")
        k("v_lshlrev_b32 v14, 4, v14")
        k("v_lshl_add_u32 v14, v8, 3, v14")
        k("s_lshl_b32 %s, s48, 1" % hp)
        k("s_add_u32 %s, %s, s56" % (hp, hp))
        k("s_lshl_b32 %s, %s, 5" % (hp, hp))
        k("s_lshl_b32 s61, s49, 2")
        k("s_add_u32 %s, %s, s61" % (hp, hp))
        k("s_lshl_b32 s61, s57, 1")
        k("s_add_u32 %s, %s, s61" % (hp, hp))
        k("s_lshl_b32 %s, %s, 10" % (hp, hp))
        k("s_add_u32 %s, %s, 0x%x" % (hp, hp, WS_HP))
        k("s_lshl_b32 s61, s56, 13")
        k("s_add_u32 s61, s61, 98304")
        k("s_lshl_b32 s62, s57, 10")
        k("v_add_u32 v16, s61, v4")
        k("v_add_u32 v20, s62, v4")
        k("v_add_u32 v21, 0x10000, v20")
    if STG:
        k.ts(7)
        while fq:
            emit_filler()
        assert 0 in pubd
        p1_late = 1 not in pubd
        k("s_branch %s" % dend)
        k.lab(stub14)
        if not p1_late:
            wpub("s67")
        k("s_load_dword s46, s[32:33], s66 glc")
        k("s_branch %s" % dend)
        k.lab(idle)
        k("v_lshlrev_b32 v7, 4, v1")
        k("s_waitcnt vmcnt(0)")
        k("s_barrier")
        for cc in range(6):
            issueEW(cc, 7)
        wpub("s66")
        if not p1_late:
            wpub("s67")
        k("s_load_dword s46, s[32:33], s66 glc")
        k.lab(dend)
        e_setup("s63")
        ACCD = ACC
        ACC, RES, FR = 32, 24, 64
        cn = [min(8, n0 - 8 * q) for n0 in (30, 28, 28) for q in range(4)]
        NC = 12
        tokX, tokW = {}, {}
        vm2 = VM(k)

        def issueX(c):
            for j in range(4):
                k("s_add_u32 m0, s50, %d" % ((c % 4) * 16384 + j * 1024))
                k("s_add_u32 s54, s52, %d" % (c * 8192 + j * 1024))
                k("buffer_load_dwordx4 v4, s[20:23], s54 offen lds")
                tokX[c] = vm2.issue()

        def issueW(c):
            for j in range(4):
                k("s_add_u32 m0, s36, %d" % ((c % 6) * 16384 + j * 1024))
                k("s_add_u32 s54, s35, %d" % (wofs(c) + j * 1024))
                k("buffer_load_dwordx4 v4, s[20:23], s54 offen lds")
                tokW[c] = vm2.issue()

        def check(sreg):
            dn, lp = k.newlab("cd"), k.newlab("cl")
            k("s_waitcnt lgkmcnt(0)")
            k("s_cmp_eq_u32 s41, 0")
            k("s_cbranch_scc1 %s" % dn)
            k("s_mov_b32 s44, 0x%x" % SPIN)
            k.lab(lp)
            k("s_cmp_ge_u32 s46, 64")
            k("s_cbranch_scc1 %s" % dn)
            k("s_sub_u32 s44, s44, 1")
            k("s_cmp_eq_u32 s44, 0")
            k("s_cbranch_scc1 %s" % dn)
            k("s_load_dword s46, s[32:33], %s glc" % sreg)
            k("s_waitcnt lgkmcnt(0)")
            k("s_branch %s" % lp)
            k.lab(dn)

        def first_loads():
            for c in range(4):
                issueX(c)
            for q in range(4):
                k("buffer_load_dwordx2 %s, v14, s[20:23], s63 offen offset:%d" % (vr(RES + 2 * q, 2), (q >> 1) * 1024 + (q & 1) * 512))
                vm2.issue()

        def epi2():
            sv = ACC
            q_epi(2)
            curvm[0] = vm2
            while fq:
                emit_filler()
        slowT, join = k.newlab("slowT"), k.newlab("join")
        k("s_cmp_eq_u32 s41, 0")
        k("s_cbranch_scc1 %s" % slowT)
        check("s66")
        k("s_barrier")
        k.ts(8)
        first_loads()
        ACC = ACCD
        epi2()
        ACC = 32
        nfast = vm2.n
        tokE2 = tokE[2][0]
        k("s_branch %s" % join)
        k.lab(slowT)
        ACC = ACCD
        epi2()
        ACC = 32
        k("s_waitcnt vmcnt(0)")
        k("s_barrier")
        publish(512, 256)
        poll("16")
        acquire()
        vm2.n = 0
        first_loads()
        for _ in range(nfast - vm2.n):
            k("buffer_load_dword v57, off, s[20:23], s42")
            vm2.issue()
        k.lab(join)
        k.ts(9)

        def rd(g):
            c, ks = g // 8, g % 8
            oa = (c % 6) * 16384 + ks * 2048
            ob = (c % 4) * 16384 + ks * 1024
            k("ds_read_b128 %s, v%d offset:%d" % (vr(FR + 8 * (g % 4), 4), 20 + oa // 65536, oa % 65536))
            k("ds_read_b128 %s, v16 offset:%d" % (vr(FR + 8 * (g % 4) + 4, 4), ob))
        PB1 = int(os.environ.get("PB1", "0"))
        PB2 = int(os.environ.get("PB2", "4"))
        G1 = int(os.environ.get("G1", "3"))
        G2 = int(os.environ.get("G2", "7"))
        gate = lambda x: 0 if x < 4 else (G1 if x < 8 else G2)
        nxtX = 4
        for c in range(NC):
            n = cn[c]
            if c == G1:
                check("s67")
            if c == G2:
                check("s68")
            vm2.wait(max(tokX[c], tokW.get(c, 0)))
            k("s_barrier")
            if c == 0:
                k.ts(10)
            if FTS == "E2" and c < 9:
                ts0(4 + c)
            for ks in range(3):
                rd(8 * c + ks)
            if c == PB1 and p1_late:
                wpub("s67")
                vm2.issue()
            if c == PB2:
                vm2.wait(tokE2)
                wpub("s68")
                vm2.issue()
            if c >= 1:
                while nxtX <= c + 3 and nxtX < NC and gate(nxtX) <= c:
                    issueX(nxtX)
                    nxtX += 1
                if c + 5 < NC:
                    issueW(c + 5)
            if c + 1 in (G1, G2):
                k("s_load_dword s46, s[32:33], %s glc" % ("s67" if c + 1 == G1 else "s68"))
            for ks in range(n):
                g = 8 * c + ks
                k("s_waitcnt lgkmcnt(%d)" % (2 * min(2, n - 1 - ks)))
                k("v_mfma_f32_32x32x16_bf16 %s, %s, %s, %s" % (vr(ACC, 16), vr(FR + 8 * (g % 4), 4), vr(FR + 8 * (g % 4) + 4, 4), "0" if g == 0 else vr(ACC, 16)))
                if ks + 3 < n:
                    rd(g + 3)
    if not STG:
        k.ts(7)
        while fq:
            emit_filler()
        k("s_branch %s" % dend)
        k.lab(idle)
        k("v_lshlrev_b32 v7, 4, v1")
        k("s_waitcnt vmcnt(0)")
        k("s_barrier")
        for cc in range(6):
            issueEW(cc, 7)
        k.lab(dend)
        NKS = 86
        NC = 11
        k("s_mov_b32 s37, s49")
        k("s_mov_b32 s48, s30")
        k("s_mov_b32 s49, s31")
        k("s_and_b32 s56, s3, 1")
        k("s_lshr_b32 s57, s3, 1")
        k("v_lshlrev_b32 v4, 4, v1")
        k("s_lshl_b32 s50, s56, 13")
        k("s_lshl_b32 s51, s57, 12")
        k("s_add_u32 s50, s50, s51")
        k("s_add_u32 s50, s50, 98304")
        k("s_lshl_b32 s52, s48, 1")
        k("s_add_u32 s52, s52, s56")
        k("s_mul_i32 s52, s52, %d" % (NKS * 1024))
        k("s_add_u32 s52, s52, s51")
        k("s_add_u32 s52, s52, 0x%x" % (0 if os.environ.get("XCLEAN") else WS_ACT))
        k("s_lshl_b32 s58, s48, 6")
        k("s_lshl_b32 s59, s56, 5")
        k("s_add_u32 s58, s58, s59")
        k("v_and_b32 v13, 31, v1")
        k("v_add_u32 v13, s58, v13")
        k("v_lshrrev_b32 v8, 5, v1")
        k("v_lshlrev_b32 v12, 3, v8")
        k("v_lshl_add_u32 v12, v13, 10, v12")
        k("s_lshl_b32 s59, s49, 7")
        k("s_lshl_b32 s60, s57, 6")
        k("s_add_u32 s59, s59, s60")
        k("v_and_b32 v14, 31, v1")
        k("v_lshlrev_b32 v14, 4, v14")
        k("v_lshl_add_u32 v14, v8, 3, v14")
        k("s_lshl_b32 s60, s48, 1")
        k("s_add_u32 s60, s60, s56")
        k("s_lshl_b32 s60, s60, 5")
        k("s_lshl_b32 s61, s49, 2")
        k("s_add_u32 s60, s60, s61")
        k("s_lshl_b32 s61, s57, 1")
        k("s_add_u32 s60, s60, s61")
        k("s_lshl_b32 s60, s60, 10")
        k("s_add_u32 s60, s60, 0x%x" % WS_HP)
        k("s_lshl_b32 s61, s56, 13")
        k("s_add_u32 s61, s61, 98304")
        k("s_lshl_b32 s62, s57, 10")
        k("v_add_u32 v16, s61, v4")
        k("v_add_u32 v20, s62, v4")
        k("v_add_u32 v21, 0x10000, v20")
        k("s_cmp_eq_u32 s37, 15")
        k("s_cselect_b32 s37, 0, 1")
        k("v_mov_b32 v58, s37")
        k("s_waitcnt vmcnt(0)")
        k.ts(8)
        if FTS == "L":
            def off(i):
                k("s_add_u32 s45, s69, %d" % (128 * i))
            k("v_mov_b32 v57, 0")
            ts0(1)
            off(0)
            k("buffer_load_dword v57, off, s[20:23], s45")
            k("s_waitcnt vmcnt(0)")
            ts0(2)
            off(1)
            k("buffer_load_dword v57, off, s[20:23], s45")
            k("s_waitcnt vmcnt(0)")
            ts0(3)
            k("s_load_dword s46, s[32:33], s45 glc")
            k("s_waitcnt lgkmcnt(0)")
            ts0(4)
            off(2)
            k("buffer_store_dword v57, off, s[20:23], s45")
            k("s_waitcnt vmcnt(0)")
            ts0(5)
            off(3)
            k("buffer_store_dword v57, off, s[20:23], s45 sc1")
            k("s_waitcnt vmcnt(0)")
            ts0(6)
            off(2)
            k("buffer_load_dword v57, off, s[20:23], s45")
            k("s_waitcnt vmcnt(0)")
            ts0(7)
            off(3)
            k("buffer_load_dword v57, off, s[20:23], s45")
            k("s_waitcnt vmcnt(0)")
            ts0(8)
            off(4)
            k("v_mov_b32 v57, 0")
            k("buffer_atomic_add v57, off, s[20:23], s45 sc0")
            k("s_waitcnt vmcnt(0)")
            ts0(9)
            k("v_mov_b32 v57, 0")
            k("buffer_atomic_add v57, off, s[20:23], s45 sc0")
            k("s_waitcnt vmcnt(0)")
            ts0(10)
            off(5)
            k("buffer_load_dword v57, off, s[20:23], s45 sc1")
            k("s_waitcnt vmcnt(0)")
            ts0(11)
            off(4)
            k("s_load_dword s46, s[32:33], s45 glc")
            k("s_waitcnt lgkmcnt(0)")
            ts0(12)
        k("s_barrier")
        publish(512, 256, addreg="v58")
        poll("15")
        ACC, RES, FR = 32, 48, 64
        vm2 = VM(k)
        for q in range(4):
            k("buffer_load_dwordx2 %s, v14, s[20:23], s60 offen offset:%d" % (vr(RES + 2 * q, 2), (q >> 1) * 1024 + (q & 1) * 512))
            vm2.issue()
        acquire()
        k.ts(9)
        tokX, tokW = {}, {}

        def issueX(c):
            for j in range(4):
                k("s_add_u32 m0, s50, %d" % ((c % 4) * 16384 + j * 1024))
                k("s_add_u32 s54, s52, %d" % (c * 8192 + j * 1024))
                k("buffer_load_dwordx4 v4, s[20:23], s54 offen lds")
                tokX[c] = vm2.issue()

        def issueW(c):
            for j in range(4):
                k("s_add_u32 m0, s36, %d" % ((c % 6) * 16384 + j * 1024))
                k("s_add_u32 s54, s35, %d" % (c * 16384 + j * 1024))
                k("buffer_load_dwordx4 v4, s[20:23], s54 offen lds")
                tokW[c] = vm2.issue()
        for c in range(4):
            issueX(c)

        def rd(g):
            c, ks = g // 8, g % 8
            oa = (c % 6) * 16384 + ks * 2048
            ob = (c % 4) * 16384 + ks * 1024
            k("ds_read_b128 %s, v%d offset:%d" % (vr(FR + 8 * (g % 4), 4), 20 + oa // 65536, oa % 65536))
            k("ds_read_b128 %s, v16 offset:%d" % (vr(FR + 8 * (g % 4) + 4, 4), ob))
        for c in range(NC):
            n = min(8, NKS - 8 * c)
            vm2.wait(max(tokX[c], tokW.get(c, 0)))
            k("s_barrier")
            if c == 0:
                k.ts(10)
            if FTS == "E":
                ts0(2 + c)
            for ks in range(3):
                rd(8 * c + ks)
            if c >= 1:
                if c + 5 < NC:
                    issueW(c + 5)
                if c + 3 < NC:
                    issueX(c + 3)
            for ks in range(n):
                g = 8 * c + ks
                k("s_waitcnt lgkmcnt(%d)" % (2 * min(2, n - 1 - ks)))
                k("v_mfma_f32_32x32x16_bf16 %s, %s, %s, %s" % (vr(ACC, 16), vr(FR + 8 * (g % 4), 4), vr(FR + 8 * (g % 4) + 4, 4), "0" if g == 0 else vr(ACC, 16)))
                if ks + 3 < n:
                    rd(g + 3)
    k.ts(11)
    k("s_nop 15")
    BF = FR
    for q in range(4):
        for d in range(2):
            r = RES + 2 * q + d
            k("v_lshlrev_b32 v%d, 16, v%d" % (BF + 32, r))
            k("v_and_b32 v%d, 0xffff0000, v%d" % (BF + 33, r))
            k("v_add_f32 v%d, v%d, v%d" % (ACC + 4 * q + 2 * d, ACC + 4 * q + 2 * d, BF + 32))
            k("v_add_f32 v%d, v%d, v%d" % (ACC + 4 * q + 2 * d + 1, ACC + 4 * q + 2 * d + 1, BF + 33))
    for r in range(8):
        k("v_cvt_pk_bf16_f32 v%d, v%d, v%d" % (RES + r, ACC + 2 * r, ACC + 2 * r + 1))
    for q in range(4):
        k("buffer_store_dwordx2 %s, v12, s[16:19], s59 offen offset:%d%s" % (vr(RES + 2 * q, 2), 16 * q, FSTO))
    k.ts(12)
    if os.environ.get("FDBG"):
        k("s_waitcnt lgkmcnt(0)")
        k("s_add_u32 s82, s70, s4")
        k("s_add_u32 s90, s70, s41")
    k.ts_flush(13)
    k.lab(end)
    return k


def build(kerns):
    head = open("cdna_kernels/%s.s.ref" % NAME).read().split("; @launch")[0]
    out = [head.rstrip("\n")]
    for kk in kerns:
        out.append("; @launch kernel=%s grid=(%d,1,1) block=(%d,1,1) lds=%d" % (kk.name, kk.grid, kk.block, kk.lds))
    out.append('.amdgcn_target "amdgcn-amd-amdhsa--gfx950"')
    out.append(".text")
    for kk in kerns:
        out.append(kk.text())
    out.append('.section .rodata,"a"')
    for kk in kerns:
        out.append(".p2align 6")
        out.append(kk.desc())
    return "\n".join(out) + "\n"


def main():
    which = sys.argv[1] if len(sys.argv) > 1 else "ABCDE"
    gens = {"A": gen_A}
    for nm in "BCDEF":
        if "gen_" + nm in globals():
            gens[nm] = globals()["gen_" + nm]
    kerns = [gens[c]() for c in which if c in gens]
    txt = build(kerns)
    open("cdna_kernels/%s.s" % NAME, "w").write(txt)
    print("wrote", len(txt), "bytes;", [kk.name for kk in kerns])


if __name__ == "__main__":
    main()
```
